```python
import torch

def _softmax(x, axis=-1):
    return torch.softmax(x, dim=axis)
def _gelu(x):
    return torch.nn.functional.gelu(x, approximate="tanh")
def _silu(x):
    return torch.nn.functional.silu(x)
def _sigmoid(x):
    return torch.sigmoid(x)
def _layernorm(x, axis=-1, eps=1e-5):
    m = x.mean(dim=axis, keepdim=True)
    v = x.var(dim=axis, keepdim=True, unbiased=False)
    return (x - m) / torch.sqrt(v + eps)
def _scatter_add(tgt, idx, src, axis=0):
    return tgt.clone().index_add_(axis, idx, src)
def _segment_sum(src, seg, n):
    out = torch.zeros((n,) + src.shape[1:], dtype=src.dtype)
    return out.index_add_(0, seg, src)
def _pad(x, pw):
    flat = tuple(v for pair in reversed(pw) for v in pair)
    return torch.nn.functional.pad(x, flat)

kernel_name = 'gated_mix__linear_attn_block__moe_arch_mod__prompt'

def setup_inputs():

    _w = (lambda a: (lambda t: t.to(torch.bfloat16) if t.is_floating_point() else t)(torch.as_tensor(a)))
    def _A_setup():
        B, S, D = 1, 2048, 1024
        return {
            "x": _w((lambda *s: torch.randn(*s, dtype=torch.bfloat16) * 0.05)(B, S, D)),
            "wqkv": _w((lambda *s: torch.randn(*s, dtype=torch.bfloat16) * 0.8)(D, 3 * D)),
            "wo": _w((lambda *s: torch.randn(*s, dtype=torch.bfloat16) * 0.1)(D, D)),
        }
    _A_in = _A_setup()

    def _B_setup():
        B, S, D, F, C = 1, 2048, 1024, 3584, 1
        return {
            "x": _w((lambda *s: torch.randn(*s, dtype=torch.bfloat16) * 0.05)(B, S, D)),
            "w_r": _w((lambda *s: torch.randn(*s, dtype=torch.bfloat16) * 1.6)(D)),
            "w_gate": _w((lambda *s: torch.randn(*s, dtype=torch.bfloat16) * 0.1)(D, F)),
            "w_up": _w((lambda *s: torch.randn(*s, dtype=torch.bfloat16) * 0.1)(D, F)),
            "w_down": _w((lambda *s: torch.randn(*s, dtype=torch.bfloat16) * 0.1)(F, D)),
        }
    _B_in = _B_setup()

    return {
        "A_x": _A_in["x"],
        "A_wqkv": _A_in["wqkv"],
        "A_wo": _A_in["wo"],
        "B_x": _B_in["x"],
        "B_w_r": _B_in["w_r"],
        "B_w_gate": _B_in["w_gate"],
        "B_w_up": _B_in["w_up"],
        "B_w_down": _B_in["w_down"],
        "gate_w": _w((lambda *s: torch.randn(*s, dtype=torch.bfloat16) * 0.05)(1024) * 16.0),
    }

def reference(A_x, A_wqkv, A_wo, B_x, B_w_r, B_w_gate, B_w_up, B_w_down, gate_w):
    def _A_ref(x, wqkv, wo):
        B, S, D = x.shape
        H = 32; Dh = D // H
        qkv = (lambda x, *d: x.permute(*d))((x @ wqkv).reshape(B, S, 3, H, Dh), 2, 0, 3, 1, 4)
        q, k, v = qkv[0], qkv[1], qkv[2]
        phi = lambda t: torch.where(t > 0, t + 1, torch.exp(t)) + 1e-6
        pq, pk = phi(q), phi(k)
        kv = torch.einsum("bhsd,bhse->bhde", pk, v)
        z = torch.einsum("bhsd->bhd", pk)
        num = torch.einsum("bhqd,bhde->bhqe", pq, kv)
        den = torch.einsum("bhqd,bhd->bhq", pq, z)[..., None] + 1e-6
        o = num / den
        return (lambda x, *d: x.permute(*d))(o, 0, 2, 1, 3).reshape(B, S, D) @ wo

    def _B_ref(x, w_r, w_gate, w_up, w_down):
        B, S, D = x.shape
        C = 1
        r = x @ w_r
        idx = torch.argsort(-r, axis=-1)[:, :C]
        idx_e = (lambda x, n, axis: torch.repeat_interleave(x, n, dim=axis))(idx.reshape(B, C, 1), D, axis=2)
        x_sel = (lambda x, i, axis: torch.take_along_dim(x, i, dim=axis))(x, idx_e, axis=1)
        g = _silu(x_sel @ w_gate)
        u = x_sel @ w_up
        y = (g * u) @ w_down
        r_sel = _sigmoid((lambda x, i, axis: torch.take_along_dim(x, i, dim=axis))(r, idx, axis=1))
        y = y * r_sel.reshape(B, C, 1)
        b_off = (torch.arange(B) * S).reshape(B, 1)
        flat_idx = (idx + b_off).reshape(B * C)
        zero = (x * 0.0).reshape(B * S, D)
        upd = _scatter_add(zero, flat_idx, y.reshape(B * C, D), axis=0)
        return x + upd.reshape(B, S, D)

    x = A_x
    g = _sigmoid((x * gate_w).sum(-1, keepdims=True))
    a = _A_ref(x, A_wqkv, A_wo)
    b = _B_ref(x, B_w_r, B_w_gate, B_w_up, B_w_down)
    return g * a + (1 - g) * b
```

```python
class Asm:
    def __init__(self):
        self.lines = []
        self.vm = []
        self._lbl = 0
        self.issued = 0

    def e(self, s, *a):
        if a:
            s = s % a
        for ln in s.split('\n'):
            ln = ln.strip()
            if not ln:
                continue
            if ln.endswith(':') or ln.startswith('.'):
                self.lines.append(ln)
            else:
                self.lines.append('    ' + ln)

    def c(self, s):
        self.lines.append('    ; ' + s)

    def label(self, base='L'):
        self._lbl += 1
        return '%s_%d' % (base, self._lbl)

    def vm_issue(self, tag, s, *a):
        self.e(s, *a)
        self.vm.append(tag)
        self.issued += 1

    def vm_uncounted(self, s, *a):
        self.e(s, *a)

    def vm_wait(self, tag, extra=''):
        if tag not in self.vm:
            if extra:
                self.e('s_waitcnt ' + extra)
            return
        idx = max(i for i, t in enumerate(self.vm) if t == tag)
        n = len(self.vm) - 1 - idx
        assert n <= 63, n
        self.e('s_waitcnt vmcnt(%d)%s' % (n, (' ' + extra) if extra else ''))
        self.vm = self.vm[idx + 1:]

    def vm_wait_all(self, extra=''):
        self.e('s_waitcnt vmcnt(0)%s' % ((' ' + extra) if extra else ''))
        self.vm = []

    def text(self):
        return '\n'.join(self.lines) + '\n'


def vr(b, n=1):
    return 'v%d' % b if n == 1 else 'v[%d:%d]' % (b, b + n - 1)


def sr(b, n=1):
    return 's%d' % b if n == 1 else 's[%d:%d]' % (b, b + n - 1)


def srd(a, d, base, nbytes):
    a.e('s_mov_b32 s%d, s%d', d, base)
    a.e('s_mov_b32 s%d, s%d', d + 1, base + 1)
    a.e('s_mov_b32 s%d, 0x%x', d + 2, nbytes)
    a.e('s_mov_b32 s%d, 0x00020000', d + 3)


def kd(name, vgpr, sgpr=102):
    acc = (vgpr + 3) // 4 * 4
    return f""".p2align 6
.amdhsa_kernel {name}
  .amdhsa_next_free_vgpr {vgpr}
  .amdhsa_next_free_sgpr {sgpr}
  .amdhsa_accum_offset {acc}
  .amdhsa_group_segment_fixed_size 0
  .amdhsa_kernarg_size 96
  .amdhsa_user_sgpr_count 2
  .amdhsa_user_sgpr_kernarg_segment_ptr 1
  .amdhsa_system_sgpr_workgroup_id_x 1
.end_amdhsa_kernel
"""
```

```python
import sys, os
sys.path.insert(0, os.path.dirname(os.path.abspath(__file__)))
from asmlib import *

NAME = 'gated_mix__linear_attn_block__moe_arch_mod__prompt'
E = lambda k, d: int(os.environ.get(k, str(d)))
EXP = os.environ.get('EXP', '').split(',')

WS_O = 0
WS_KVP = 4 << 20
KVB = 2304
WS_F2 = WS_KVP + 16 * 4 * 16 * KVB
WS_HP = WS_F2 + 1024 * 128
WS_YP = WS_HP + 64 * 2 * 32 * 256
WS_G = WS_YP + 64 * 4096
WS_KEY = WS_G + 8192
WS_END = WS_KEY + 4096
WS_BYTES = 268435456
WS_ST = 16 << 20

STAMPS = E('STAMPS', 0)
WT = ' sc0 sc1'
NTA = ' nt' if 'ntA' in EXP else ''
NTB = ' nt' if 'ntB' in EXP else ''
NTO = ' nt' if 'ntO' in EXP else ''
NTW = '' if 'nontW' in EXP else ' nt'
LOG2E = 0x3fb8aa3b
EPS6 = 0x358637bd

SLOT = 40960
MISC = 0
RB = 8192
SP = RB + 3 * SLOT
L_KF = MISC
L_ZF = MISC + 4096
L_KEY = MISC + 4224
L_FLG = MISC + 4288
L_H = MISC + 4352
L_ZX = MISC + 4608
L_YS = MISC + 5632
L_EX = RB + 24576
LDS_BYTES = 163840
EARLY = [SP, SP + 8192, RB + SLOT + 24576, RB + 2 * SLOT + 24576, SP + 16384, SP + 24576, RB + SLOT + 32768, RB + 2 * SLOT + 32768]
LATE = [RB + x for x in (32768, 0, 8192, 16384, SLOT, SLOT + 8192, SLOT + 16384, 2 * SLOT)]
POS = EARLY[0:4] + LATE[0:4] + EARLY[4:8] + LATE[4:8]
TP = 272
TK = 128 * TP

S_X, S_W, S_WS, S_DBG, S_WR, S_GW, S_WG, S_WU = 8, 12, 16, 20, 24, 28, 32, 36
S_WO, S_OUT, S_WD = 12, 20, 24
WSR = sr(S_WS, 4)
S_LOG2E, S_EPS = 72, 73


def stamp(a, idx, real=False):
    if STAMPS:
        a.e('%s s[%d:%d]', 's_memrealtime' if real else 's_memtime', 76 + 2 * idx, 77 + 2 * idx)


def stamp_flush(a):
    if not STAMPS:
        return
    a.e('s_waitcnt lgkmcnt(0)')
    a.e('s_lshl_b32 s64, s2, 3')
    a.e('s_add_u32 s64, s64, s3')
    a.e('s_lshl_b32 s64, s64, 7')
    a.e('s_add_u32 s64, s64, %d', WS_ST)
    a.e('v_mov_b32 v1, s64')
    a.e('s_mov_b64 exec, 1')
    for i in range(13):
        a.e('v_mov_b32 v2, s%d', 76 + 2 * i)
        a.e('v_mov_b32 v3, s%d', 77 + 2 * i)
        a.e('buffer_store_dwordx2 v[2:3], v1, %s, 0 offen offset:%d', WSR, 8 * i)
        a.e('s_nop 1')
    a.e('s_mov_b64 exec, -1')


def phi16(a, acc, out, t0, t1, e0, e1, mn):
    for j in range(8):
        a0, a1, p = acc + 2 * j, acc + 2 * j + 1, out + j
        a.e('v_cvt_pk_bf16_f32 v%d, v%d, v%d', p, a0, a1)
        a.e('v_lshlrev_b32 v%d, 16, v%d', t0, p)
        a.e('v_and_b32 v%d, 0xffff0000, v%d', t1, p)
        a.e('v_mul_f32 v%d, s%d, v%d', e0, S_LOG2E, t0)
        a.e('v_mul_f32 v%d, s%d, v%d', e1, S_LOG2E, t1)
        a.e('v_exp_f32 v%d, v%d clamp', e0, e0)
        a.e('v_exp_f32 v%d, v%d clamp', e1, e1)
        a.e('v_max_f32 v%d, 0, v%d', t0, t0)
        a.e('v_max_f32 v%d, 0, v%d', t1, t1)
        a.e('v_add_f32 v%d, v%d, v%d', t0, t0, e0)
        a.e('v_add_f32 v%d, v%d, v%d', t1, t1, e1)
        if j == 0:
            a.e('v_min_f32 v%d, v%d, v%d', mn, t0, t1)
        else:
            a.e('v_min3_f32 v%d, v%d, v%d, v%d', mn, t0, t1, mn)
        a.e('v_cvt_pk_bf16_f32 v%d, v%d, v%d', p, t0, t1)
    lab = a.label('phi_done')
    a.e('v_cmp_gt_f32 vcc, 0x3a800000, v%d', mn)
    a.e('s_cbranch_vccz %s', lab)
    for j in range(8):
        p = out + j
        a.e('v_lshlrev_b32 v%d, 16, v%d', t0, p)
        a.e('v_and_b32 v%d, 0xffff0000, v%d', t1, p)
        a.e('v_add_f32 v%d, s%d, v%d', t0, S_EPS, t0)
        a.e('v_add_f32 v%d, s%d, v%d', t1, S_EPS, t1)
        a.e('v_cvt_pk_bf16_f32 v%d, v%d, v%d', p, t0, t1)
    a.e('%s:', lab)


def wave_reduce(a, regs, op, stmp):
    pats = ['quad_perm:[1,0,3,2]', 'quad_perm:[2,3,0,1]', 'row_half_mirror', 'row_mirror']
    a.e('s_nop 1')
    for p in pats:
        if len(regs) < 3:
            a.e('s_nop 1')
        for r in regs:
            a.e('%s_dpp v%d, v%d, v%d %s row_mask:0xf bank_mask:0xf', op, r, r, r, p)
    a.e('s_nop 1')
    for r in regs:
        for q in range(4):
            a.e('v_readlane_b32 s%d, v%d, %d', stmp + q, r, 16 * q)
        a.e('s_nop 1')
        a.e('v_mov_b32 v%d, s%d', r, stmp)
        for q in range(1, 4):
            a.e('%s v%d, s%d, v%d', op, r, stmp + q, r)


def sigmoid_bf16(a, regs):
    for r in regs:
        a.e('v_mul_f32 v%d, s%d, v%d', r, S_LOG2E, r)
    for r in regs:
        a.e('v_exp_f32 v%d, -v%d', r, r)
    a.e('s_nop 0')
    for r in regs:
        a.e('v_add_f32 v%d, 1.0, v%d', r, r)
    for r in regs:
        a.e('v_rcp_f32 v%d, v%d', r, r)
    a.e('s_nop 0')
    for r in regs:
        a.e('v_cvt_pk_bf16_f32 v%d, v%d, v%d', r, r, r)
    for r in regs:
        a.e('v_lshlrev_b32 v%d, 16, v%d', r, r)


def p2_ids(a):
    a.e('s_and_b32 s64, s2, 7')
    a.e('s_lshr_b32 s65, s2, 3')
    a.e('s_and_b32 s4, s64, 3')
    a.e('s_lshl_b32 s4, s4, 2')
    a.e('s_and_b32 s66, s65, 3')
    a.e('s_add_u32 s4, s4, s66')
    a.e('s_lshr_b32 s5, s64, 2')
    a.e('s_lshl_b32 s5, s5, 3')
    a.e('s_lshr_b32 s74, s65, 2')
    a.e('s_add_u32 s5, s5, s74')


def wo_voff(a, vdst, t0, t1, s_piece):
    a.e('v_lshrrev_b32 v%d, 3, v2', t0)
    a.e('s_lshl_b32 s64, s%d, 3', s_piece)
    a.e('v_add_u32 v%d, s64, v%d', t0, t0)
    a.e('v_lshlrev_b32 v%d, 11, v%d', t0, t0)
    a.e('v_bfe_u32 v%d, v2, 4, 1', t1)
    a.e('v_lshlrev_b32 v%d, 2, v%d', t1, t1)
    a.e('v_and_b32 v%d, 7, v2', vdst)
    a.e('v_xor_b32 v%d, v%d, v%d', t1, t1, vdst)
    a.e('v_lshl_add_u32 v%d, v%d, 4, v%d', t0, t1, t0)
    a.e('s_lshl_b32 s64, s5, 7')
    a.e('v_add_u32 v%d, s64, v%d', vdst, t0)


def wo_dma(a, pos, voff, s_w1k, tag):
    a.e('s_add_u32 s65, s74, %d', pos & 7)
    a.e('s_and_b32 s65, s65, 7')
    if pos >= 8:
        a.e('s_add_u32 s65, s65, 8')
    a.e('s_lshl_b32 s65, s65, 17')
    for b in range(2):
        a.e('s_add_u32 m0, s%d, %d', s_w1k, POS[pos] + b * 4096)
        if b:
            a.e('s_add_u32 s65, s65, 65536')
        else:
            a.e('s_nop 0')
        a.vm_issue(tag, 'buffer_load_dwordx4 v%d, %s, s65 offen' + NTO + ' lds', voff, sr(S_WO, 4))


XO = 220
T2 = 232
VRO, VXO = 230, 231


def xo_loads(a):
    a.e('v_lshrrev_b32 v%d, 3, v0', VRO)
    a.e('s_lshl_b32 s64, s4, 7')
    a.e('v_add_u32 v%d, s64, v%d', VRO, VRO)
    a.e('v_lshlrev_b32 v%d, 11, v%d', VXO, VRO)
    a.e('v_and_b32 v3, 7, v0')
    a.e('v_lshl_add_u32 v%d, v3, 4, v%d', VXO, VXO)
    a.e('s_lshl_b32 s64, s5, 7')
    a.e('v_add_u32 v%d, s64, v%d', VXO, VXO)
    a.e('s_mov_b32 s64, 131072')
    a.e('v_lshlrev_b32 v3, 2, v%d', VRO)
    a.e('v_add_u32 v3, %d, v3', WS_G)
    a.vm_issue('xo', 'buffer_load_dwordx4 %s, v%d, %s, 0 offen', vr(XO, 4), VXO, sr(S_X, 4))
    a.vm_issue('xo', 'buffer_load_dwordx4 %s, v%d, %s, s64 offen', vr(XO + 4, 4), VXO, sr(S_X, 4))
    a.vm_issue('xo', 'buffer_load_dword v%d, v3, %s, 0 offen sc1', XO + 8, WSR)
    a.vm_issue('xo', 'buffer_load_dword v%d, v3, %s, 0 offen offset:256 sc1', XO + 9, WSR)


OM = [248, 249]


def t2_fill(a):
    for half in range(2):
        X, Gr, T, om = XO + 4 * half, XO + 8 + half, T2 + 8 * half, OM[half]
        a.e('v_sub_f32 v%d, 1.0, v%d', om, Gr)
        a.e('v_cvt_pk_bf16_f32 v%d, v%d, v%d', om, om, om)
        a.e('v_lshlrev_b32 v%d, 16, v%d', om, om)
        for q in range(4):
            x0, x1 = T + 2 * q, T + 2 * q + 1
            a.e('v_lshlrev_b32 v%d, 16, v%d', x0, X + q)
            a.e('v_and_b32 v%d, 0xffff0000, v%d', x1, X + q)
            a.e('v_mul_f32 v%d, v%d, v%d', x0, x0, om)
            a.e('v_mul_f32 v%d, v%d, v%d', x1, x1, om)
            a.e('v_cvt_pk_bf16_f32 v3, v%d, v%d', x0, x1)
            a.e('v_lshlrev_b32 v%d, 16, v3', x0)
            a.e('v_and_b32 v%d, 0xffff0000, v3', x1)


def gen(a):
    kn = NAME + '_kernel'
    a.e('.globl %s\n.p2align 8\n.type %s,@function\n%s:' % (kn, kn, kn))
    a.e('s_load_dwordx16 s[40:55], s[0:1], 0')
    a.e('s_load_dwordx8 s[56:63], s[0:1], 64')
    a.e('s_cmp_ge_u32 s2, 256')
    a.e('s_cbranch_scc1 K_end')
    stamp(a, 0, True); stamp(a, 1)
    a.e('v_lshrrev_b32 v1, 6, v0')
    a.e('v_and_b32 v2, 63, v0')
    a.e('s_and_b32 s6, s2, 7')
    a.e('v_readfirstlane_b32 s3, v1')
    a.e('s_lshr_b32 s7, s2, 3')
    a.e('s_and_b32 s4, s6, 1')
    a.e('s_lshl_b32 s4, s4, 3')
    a.e('s_and_b32 s64, s7, 7')
    a.e('s_add_u32 s4, s4, s64')
    a.e('s_lshr_b32 s5, s6, 1')
    a.e('s_lshl_b32 s5, s5, 2')
    a.e('s_lshr_b32 s64, s7, 3')
    a.e('s_add_u32 s5, s5, s64')
    ROT = os.environ.get('ROT', 'rt')
    if ROT == 'rt':
        a.e('s_lshl_b32 s74, s4, 1')
    elif ROT == 'xcd':
        a.e('s_lshl_b32 s74, s6, 1')
    elif ROT == 'xcd1':
        a.e('s_mov_b32 s74, s6')
    elif ROT == 'rt1':
        a.e('s_mov_b32 s74, s4')
    else:
        a.e('s_mov_b32 s74, 0')
    a.e('v_lshrrev_b32 v6, 3, v2')
    a.e('s_lshl_b32 s65, s3, 3')
    a.e('v_add_u32 v6, s65, v6')
    a.e('s_lshl_b32 s64, s4, 7')
    a.e('v_add_u32 v7, s64, v6')
    a.e('v_lshlrev_b32 v7, 11, v7')
    a.e('v_lshrrev_b32 v8, 4, v2')
    a.e('s_and_b32 s64, s3, 1')
    a.e('s_lshl_b32 s64, s64, 2')
    a.e('v_add_u32 v9, s64, v8')
    a.e('v_and_b32 v10, 7, v2')
    a.e('v_xor_b32 v9, v9, v10')
    a.e('v_lshl_add_u32 v7, v9, 4, v7')
    a.e('v_mul_u32_u24 v6, 6144, v6')
    a.e('v_and_b32 v9, 1, v8')
    a.e('v_lshlrev_b32 v9, 2, v9')
    a.e('v_xor_b32 v9, v9, v10')
    a.e('v_lshl_add_u32 v6, v9, 4, v6')
    a.e('s_lshl_b32 s64, s5, 7')
    a.e('v_add_u32 v6, s64, v6')
    a.e('s_lshl_b32 s66, s3, 10')
    a.e('s_mov_b32 s10, 4194304')
    a.e('s_mov_b32 s11, 0x00020000')
    a.e('s_mov_b32 s14, 6291456')
    a.e('s_mov_b32 s15, 0x00020000')

    def dma8(stage):
        a.e('s_add_u32 s65, s74, %d', stage)
        a.e('s_and_b32 s65, s65, 15')
        a.e('s_lshl_b32 s67, s65, 7')
        a.e('s_mul_i32 s65, s65, 393216')
        if stage == 0:
            a.e('s_waitcnt lgkmcnt(0)')
            a.e('s_mov_b32 s8, s40'); a.e('s_mov_b32 s9, s41')
            a.e('s_mov_b32 s12, s42'); a.e('s_mov_b32 s13, s43')
        for aa in range(2):
            a.e('s_add_u32 m0, s66, %d', RB + stage * SLOT + aa * 8192)
            a.e('s_add_u32 s64, s67, %d', aa * 131072)
            a.vm_issue('d%d' % stage, 'buffer_load_dwordx4 v7, %s, s64 offen' + NTA + ' lds', sr(S_X, 4))
        for ty in range(3):
            a.e('s_add_u32 m0, s66, %d', RB + stage * SLOT + 16384 + ty * 8192)
            a.e('s_add_u32 s64, s65, %d', ty * 2048)
            a.vm_issue('d%d' % stage, 'buffer_load_dwordx4 v6, %s, s64 offen' + NTB + ' lds', sr(S_W, 4))
    dma8(0)
    stamp(a, 2)
    a.e('s_barrier')
    a.e('s_mov_b32 s%d, 0x%x', S_LOG2E, LOG2E)
    a.e('s_mov_b32 s%d, 0x%x', S_EPS, EPS6)
    srd(a, S_WS, 62, WS_BYTES)
    a.e('s_cmp_lt_u32 s3, 4')
    a.e('s_cbranch_scc1 C_start')
    vm_entry = list(a.vm)
    gen_h1(a)
    a.vm = list(vm_entry)
    gen_c1(a)
    gen_p2(a)


def gen_h1(a):
    VOA, VOB = 4, 5
    a.e('s_sub_u32 s6, s3, 4')
    a.e('s_lshl_b32 s7, s6, 10')
    a.e('v_lshrrev_b32 v6, 3, v2')
    a.e('s_lshl_b32 s64, s4, 7')
    a.e('s_lshl_b32 s65, s6, 3')
    a.e('s_add_u32 s64, s64, s65')
    a.e('v_add_u32 v7, s64, v6')
    a.e('v_lshlrev_b32 v7, 11, v7')
    a.e('s_and_b32 s64, s6, 1')
    a.e('s_lshl_b32 s64, s64, 2')
    a.e('v_add_u32 v9, s64, v8')
    a.e('v_xor_b32 v9, v9, v10')
    a.e('v_lshl_add_u32 v%d, v9, 4, v7', VOA)
    a.e('v_add_u32 v7, s65, v6')
    a.e('v_mul_u32_u24 v7, 6144, v7')
    a.e('v_and_b32 v9, 1, v8')
    a.e('v_lshlrev_b32 v9, 2, v9')
    a.e('v_xor_b32 v9, v9, v10')
    a.e('v_lshl_add_u32 v7, v9, 4, v7')
    a.e('s_lshl_b32 s64, s5, 7')
    a.e('v_add_u32 v%d, s64, v7', VOB)

    def dma(stage):
        slot = stage % 3
        a.e('s_add_u32 s65, s74, %d', stage)
        a.e('s_and_b32 s65, s65, 15')
        a.e('s_lshl_b32 s67, s65, 7')
        a.e('s_mul_i32 s65, s65, 393216')
        for aa in range(4):
            a.e('s_add_u32 m0, s7, %d', RB + slot * SLOT + aa * 4096)
            a.e('s_add_u32 s64, s67, %d', aa * 65536)
            a.vm_issue('d%d' % stage, 'buffer_load_dwordx4 v%d, %s, s64 offen' + NTA + ' lds', VOA, sr(S_X, 4))
        for ty in range(3):
            for b in range(2):
                a.e('s_add_u32 m0, s7, %d', RB + slot * SLOT + 16384 + ty * 8192 + b * 4096)
                a.e('s_add_u32 s64, s65, %d', b * 196608 + ty * 2048)
                a.vm_issue('d%d' % stage, 'buffer_load_dwordx4 v%d, %s, s64 offen' + NTB + ' lds', VOB, sr(S_W, 4))
    V16 = 6
    a.e('v_lshlrev_b32 v%d, 4, v2', V16)
    a.e('s_and_b32 s64, s2, 1')
    a.e('s_lshl_b32 s68, s64, 10')
    a.e('s_bfe_u32 s64, s2, 0x20001')
    a.e('s_lshl_b32 s64, s64, 8')
    a.e('s_add_u32 s68, s68, s64')
    a.e('s_and_b32 s64, s2, 0xf8')
    a.e('s_add_u32 s68, s68, s64')
    a.e('s_lshl_b32 s64, s6, 1')
    a.e('s_add_u32 s68, s68, s64')
    a.e('s_lshl_b32 s64, s68, 11')
    a.e('v_add_u32 v13, s64, v%d', V16)
    XR, WR, GW, WF = 24, 40, 48, 56
    RL = E('RL', -1)

    def x_rows():
        for q in range(4):
            a.vm_issue('r', 'buffer_load_dwordx4 %s, v13, %s, 0 offen offset:%d', vr(XR + 4 * q, 4), sr(S_X, 4), q * 1024)
    if 'rows0' in EXP:
        x_rows()
    dma(1)
    a.e('s_or_b32 s64, s2, s6')
    a.e('s_cmp_lg_u32 s64, 0')
    a.e('s_cbranch_scc1 H_nn')
    a.e('s_mov_b32 s64, %d', WS_KEY)
    a.e('s_load_dwordx2 s[66:67], s[62:63], s64')
    srd(a, S_DBG, 60, 256)
    a.e('s_waitcnt lgkmcnt(0)')
    a.e('s_xor_b32 s64, s66, s67')
    a.e('s_add_u32 s64, s64, 1')
    a.e('s_max_u32 s64, s64, 1')
    a.e('v_mov_b32 v72, s64')
    a.e('v_mov_b32 v73, 0')
    a.e('s_mov_b64 exec, 1')
    a.vm_uncounted('buffer_store_dword v72, v73, %s, 0 offen' % sr(S_DBG, 4) + WT)
    a.e('s_mov_b64 exec, -1')
    a.e('H_nn:')
    stamp(a, 3)
    srd(a, S_DBG, 60, 256)
    srd(a, S_WR, 48, 2048)
    srd(a, S_GW, 56, 2048)
    srd(a, S_WG, 50, 7340032)
    srd(a, S_WU, 52, 7340032)
    VWG, VHP, VKB = 11, 12, 14
    a.e('s_lshr_b32 s69, s2, 3')
    a.e('s_and_b32 s64, s2, 7')
    a.e('v_and_b32 v9, 15, v2')
    a.e('v_min_u32 v9, 13, v9')
    a.e('s_lshl_b32 s65, s69, 5')
    a.e('v_lshl_add_u32 v7, v8, 3, s65')
    a.e('v_mul_u32_u24 v7, 7168, v7')
    a.e('s_mul_i32 s65, s64, 896')
    a.e('s_mul_i32 s66, s6, 224')
    a.e('s_add_u32 s65, s65, s66')
    a.e('v_lshl_add_u32 v7, v9, 4, v7')
    a.e('v_add_u32 v%d, s65, v7', VWG)
    a.e('v_cmp_le_u32 vcc, 7, v9')
    a.e('v_mov_b32 v15, %d', 16384 - 7 * 32)
    a.e('v_cndmask_b32 v7, 0, v15, vcc')
    a.e('v_lshl_add_u32 v7, v9, 5, v7')
    a.e('v_lshrrev_b32 v15, 1, v8')
    a.e('v_lshl_add_u32 v7, v15, 13, v7')
    a.e('v_and_b32 v15, 1, v8')
    a.e('v_lshl_add_u32 v7, v15, 4, v7')
    a.e('s_lshl_b32 s64, s64, 17')
    a.e('s_lshl_b32 s65, s6, 15')
    a.e('s_add_u32 s64, s64, s65')
    a.e('s_lshl_b32 s65, s69, 8')
    a.e('s_add_u32 s64, s64, s65')
    a.e('s_add_u32 s64, s64, %d', WS_HP)
    a.e('v_add_u32 v%d, s64, v7', VHP)
    a.e('s_lshl_b32 s70, s5, 2')
    a.e('s_add_u32 s70, s70, s6')
    a.e('s_mul_i32 s70, s70, %d', 16 * KVB)
    a.e('s_add_u32 s70, s70, %d', WS_KVP)
    a.e('s_mul_i32 s64, s4, %d', KVB)
    a.e('s_add_u32 s64, s64, s70')
    a.e('s_add_u32 s64, s64, 2176')
    a.e('s_lshl_b32 s65, s4, 4')
    a.e('s_add_u32 s65, s65, s5')
    a.e('s_lshl_b32 s65, s65, 2')
    a.e('s_add_u32 s65, s65, s6')
    a.e('s_lshl_b32 s65, s65, 7')
    a.e('s_add_u32 s65, s65, %d', WS_F2)
    a.e('v_mov_b32 v15, s64')
    a.e('v_writelane_b32 v15, s65, 1')
    for r in range(4):
        a.e('v_mov_b32 v%d, -1', 16 + r)
    a.e('v_mov_b32 v20, 0')
    a.vm_wait('d0')
    stamp(a, 4)
    a.e('s_barrier')
    dma(2)
    MASK14 = 's_mov_b32 exec_lo, 0x3fff3fff\ns_mov_b32 exec_hi, 0x3fff3fff'

    def init_stores():
        a.e('s_mov_b64 exec, 3')
        a.vm_issue('init', 'buffer_store_dword v20, v15, %s, 0 offen' + WT, WSR)
        a.e(MASK14)
        a.vm_issue('init', 'buffer_store_dwordx4 v[16:19], v%d, %s, 0 offen' + WT, VHP, WSR)
        a.e('s_mov_b64 exec, 0xffff')
        a.e('s_lshl_b32 s64, s2, 10')
        a.e('s_lshl_b32 s65, s6, 8')
        a.e('s_add_u32 s64, s64, s65')
        a.e('s_add_u32 s64, s64, %d', WS_YP)
        a.vm_issue('init', 'buffer_store_dwordx4 v[16:19], v%d, %s, s64 offen' + WT, V16, WSR)
        a.e('s_mov_b64 exec, -1')

    def row_loads():
        if 'rows0' not in EXP:
            x_rows()
        for q in range(2):
            a.vm_issue('r', 'buffer_load_dwordx4 %s, v%d, %s, 0 offen offset:%d', vr(WR + 4 * q, 4), V16, sr(S_WR, 4), q * 1024)
        for q in range(2):
            a.vm_issue('r', 'buffer_load_dwordx4 %s, v%d, %s, 0 offen offset:%d', vr(GW + 4 * q, 4), V16, sr(S_GW, 4), q * 1024)

    GS = [72, 73]; RS = [74, 75]

    def g_row(row):
        a.e('v_mov_b32 v%d, 0', GS[row])
        a.e('v_mov_b32 v%d, 0', RS[row])
        for q in range(8):
            x = XR + 8 * row + q
            a.e('v_lshlrev_b32 v76, 16, v%d', x)
            a.e('v_and_b32 v77, 0xffff0000, v%d', x)
            a.e('v_mul_f32 v76, v76, v%d', WF + 2 * q)
            a.e('v_mul_f32 v77, v77, v%d', WF + 2 * q + 1)
            a.e('v_cvt_pk_bf16_f32 v76, v76, v77')
            a.e('v_dot2_f32_bf16 v%d, v%d, v%d, v%d', RS[row], x, WR + q, RS[row])
            a.e('v_and_b32 v77, 0xffff0000, v76')
            a.e('v_lshlrev_b32 v76, 16, v76')
            a.e('v_add_f32 v%d, v%d, v76', GS[row], GS[row])
            a.e('v_add_f32 v%d, v%d, v77', GS[row], GS[row])

    WGT = 96
    XS = 88
    WD = 192
    wl = [(m, j) for j in range(8) for m in range(2)]
    W0 = E('W0', 12)
    wsched = {W0: wl[0:6], W0 + 1: wl[6:11], W0 + 2: wl[11:16]}
    if 'wsp' in EXP:
        wsched = {W0 + k: wl[2 * k:2 * k + 2] for k in range(8)}

    def wload(lst):
        a.e(MASK14)
        for (m, j) in lst:
            a.e('s_mov_b32 s64, %d', j * 7168)
            a.vm_issue('w', 'buffer_load_dwordx4 %s, v%d, %s, s64 offen' + NTW, vr(WGT + 32 * m + 4 * j, 4), VWG, sr(S_WG if m == 0 else S_WU, 4))
        a.e('s_mov_b64 exec, -1')

    def h0_only(name):
        a.e('s_cmp_lg_u32 s6, 0')
        a.e('s_cbranch_scc1 %s', name)

    IN = E('IN', 0)
    PB = E('PB', 10)
    VOW = 10
    if RL == -1:
        row_loads()
    if IN == -1:
        init_stores()
    marks = {}
    for i in range(16):
        if i + 1 < 16:
            a.vm_wait('d%d' % (i + 1))
        if i in (RL + 5, PB + 2):
            a.e('s_waitcnt lgkmcnt(0)')
        a.e('s_barrier')
        if i + 3 < 16:
            dma(i + 3)
        if i == RL:
            row_loads()
        if i == IN:
            init_stores()
        if i == RL + 3:
            a.vm_wait('r')
            for q in range(8):
                a.e('v_lshlrev_b32 v%d, 16, v%d', WF + 2 * q, GW + q)
                a.e('v_and_b32 v%d, 0xffff0000, v%d', WF + 2 * q + 1, GW + q)
            g_row(0)
        if i == RL + 4:
            g_row(1)
            a.e('s_nop 2')
            wave_reduce(a, GS + RS, 'v_add_f32', 64)
            a.e('v_cvt_pk_bf16_f32 v76, v72, v73')
            a.e('v_cvt_pk_bf16_f32 v77, v74, v75')
            a.e('v_lshlrev_b32 v72, 16, v76')
            a.e('v_and_b32 v73, 0xffff0000, v76')
            a.e('v_lshlrev_b32 v74, 16, v77')
            a.e('v_and_b32 v75, 0xffff0000, v77')
            sigmoid_bf16(a, GS)
            a.e('s_lshl_b32 s64, s68, 2')
            a.e('s_add_u32 s64, s64, %d', WS_G)
            a.e('v_mov_b32 v76, s64')
            a.e('s_mov_b64 exec, 1')
            a.vm_issue('g', 'buffer_store_dwordx2 v[72:73], v76, %s, 0 offen' + WT, WSR)
            a.e('s_mov_b64 exec, -1')
            a.e('s_sub_u32 s64, %d, s68', 2047 + 0x8000)
            for k, r in enumerate(RS):
                a.e('v_ashrrev_i32 v76, 31, v%d', r)
                a.e('v_or_b32 v76, 0x80000000, v76')
                a.e('v_xor_b32 v%d, v%d, v76', r, r)
                a.e('v_and_b32 v%d, 0xffff0000, v%d', r, r)
                a.e('v_or_b32 v%d, s64, v%d', r, r)
                a.e('s_sub_u32 s64, s64, 1')
            a.e('v_max_u32 v74, v74, v75')
            a.e('s_lshl_b32 s64, s6, 2')
            a.e('s_add_u32 s64, s64, %d', L_KEY)
            a.e('v_mov_b32 v76, s64')
            a.e('ds_write_b32 v76, v74')
        if i == RL + 2:
            a.e('v_mov_b32 v79, 0')
            h0_only('H_nc')
            a.vm_uncounted('buffer_load_dword v78, v79, %s, 0 offen sc1' % sr(S_DBG, 4))
            a.e('H_nc:')
        if i == RL + 7:
            assert IN <= RL + 4
            h0_only('H_nk')
            a.e('v_mov_b32 v76, %d', L_KEY)
            a.e('ds_read_b128 v[72:75], v76')
            a.e('s_mov_b32 s65, 0')
            a.e('H_nspin:')
            a.e('v_readfirstlane_b32 s71, v78')
            a.e('s_add_u32 s65, s65, 1')
            a.e('s_cmp_lg_u32 s71, 0')
            a.e('s_cbranch_scc1 H_nok')
            a.e('s_cmp_ge_u32 s65, 200000')
            a.e('s_cbranch_scc1 H_nok')
            a.e('s_sleep 4')
            a.e('buffer_load_dword v78, v79, %s, 0 offen sc1' % sr(S_DBG, 4))
            a.e('s_waitcnt vmcnt(0)')
            a.e('s_branch H_nspin')
            a.e('H_nok:')
            a.e('s_lshl_b32 s64, s2, 4')
            a.e('s_add_u32 s64, s64, %d', WS_KEY)
            a.e('v_mov_b32 v76, s64')
            a.e('s_not_b32 s64, s71')
            a.e('s_waitcnt lgkmcnt(0)')
            a.e('v_max_u32 v72, v72, v73')
            a.e('v_max3_u32 v72, v72, v74, v75')
            a.e('v_xor_b32 v73, s71, v72')
            a.e('v_xor_b32 v74, s64, v72')
            a.e('v_mov_b32 v75, v72')
            a.e('s_mov_b64 exec, 1')
            a.vm_uncounted('buffer_store_dwordx4 v[72:75], v76, %s, 0 offen' % WSR + WT)
            a.e('s_mov_b64 exec, -1')
            a.e('H_nk:')

        def key_loads():
            a.e('s_mov_b32 s64, %d', WS_KEY)
            for q in range(4):
                a.vm_uncounted('buffer_load_dwordx4 %s, v%d, %s, s64 offen offset:%d sc1' % (vr(24 + 4 * q, 4), V16, WSR, q * 1024))
        if i == PB:
            h0_only('H_np')
            key_loads()
            a.e('H_np:')
            marks['poll'] = a.issued
        if i == PB + 1:
            h0_only('H_nq')
            a.e('s_waitcnt vmcnt(%d)', a.issued - marks['poll'])
            a.e('s_mov_b32 s65, 0')
            a.e('H_spin:')
            for q in range(4):
                b = 24 + 4 * q
                a.e('v_xor_b32 v%d, v%d, v%d', b + 2, b + 1, b + 2)
                a.e('v_xor_b32 v%d, v%d, v%d', b + 1, b, b + 1)
                a.e('v_xor_b32 v%d, s71, v%d', b + 1, b + 1)
                a.e('v_not_b32 v%d, v%d', b + 2, b + 2)
                if q == 0:
                    a.e('v_or_b32 v80, v%d, v%d', b + 1, b + 2)
                else:
                    a.e('v_or3_b32 v80, v%d, v%d, v80', b + 1, b + 2)
            a.e('v_cmp_ne_u32 vcc, 0, v80')
            a.e('s_cbranch_vccz H_pollok')
            a.e('s_add_u32 s65, s65, 1')
            a.e('s_cmp_ge_u32 s65, 200000')
            a.e('s_cbranch_scc1 H_pollok')
            a.e('s_sleep 8')
            key_loads()
            a.e('s_waitcnt vmcnt(0)')
            a.e('s_branch H_spin')
            a.e('H_pollok:')
            a.e('v_max_u32 v80, v24, v28')
            a.e('v_max3_u32 v80, v80, v32, v36')
            wave_reduce(a, [80], 'v_max_u32', 64)
            a.e('v_mov_b32 v81, %d', L_KEY + 16)
            a.e('ds_write_b32 v81, v80')
            a.e('H_nq:')
        if i in wsched:
            wload(wsched[i])
        if i == PB + 2:
            a.e('v_mov_b32 v81, %d', L_KEY + 16)
            a.e('ds_read_b32 v80, v81')
            a.e('s_lshl_b32 s65, s69, 6')
            a.e('v_lshl_add_u32 v81, v8, 4, s65')
            a.e('s_waitcnt lgkmcnt(0)')
            a.e('v_readfirstlane_b32 s75, v80')
            a.e('s_nop 3')
            a.e('s_and_b32 s64, s75, 0x7ff')
            a.e('s_sub_u32 s64, 2047, s64')
            a.e('s_lshl_b32 s64, s64, 11')
            a.vm_issue('xs', 'buffer_load_dwordx4 %s, v81, %s, s64 offen', vr(XS, 4), sr(S_X, 4))
        if i == 13:
            p2_ids(a)
            srd(a, S_WO, 44, 2097152)
            srd(a, S_WD, 54, 7340032)
            wo_voff(a, VOW, 7, 9, 6)
            a.e('s_lshr_b32 s64, s2, 2')
            a.e('s_mul_i32 s64, s64, %d', 56 * 2048)
            a.e('s_and_b32 s65, s2, 3')
            a.e('s_lshl_b32 s65, s65, 9')
            a.e('s_add_u32 s64, s64, s65')
            a.e('s_lshl_b32 s65, s6, 7')
            a.e('s_add_u32 s64, s64, s65')
            a.e('v_lshrrev_b32 v7, 3, v2')
            a.e('v_lshlrev_b32 v7, 11, v7')
            a.e('v_and_b32 v9, 7, v2')
            a.e('v_lshl_add_u32 v7, v9, 4, v7')
            a.e('v_add_u32 v7, s64, v7')
            for p in (0, 8, 1, 9):
                wo_dma(a, p, VOW, 7, 'wo')
        if i == 14:
            for j in range(7):
                a.e('s_mov_b32 s64, %d', j * 16384)
                a.vm_issue('wd', 'buffer_load_dwordx4 %s, v7, %s, s64 offen' + NTW, vr(WD + 4 * j, 4), sr(S_WD, 4))
            for p in (2, 10):
                wo_dma(a, p, VOW, 7, 'wo')
        if i == 15:
            for p in (3, 11):
                wo_dma(a, p, VOW, 7, 'wo')
    stamp(a, 5)
    xo_loads(a)
    XF, GA = 24, 32
    a.vm_wait('xs')
    for q in range(4):
        a.e('v_lshlrev_b32 v%d, 16, v%d', XF + 2 * q, XS + q)
        a.e('v_and_b32 v%d, 0xffff0000, v%d', XF + 2 * q + 1, XS + q)
    a.vm_wait('w')
    stamp(a, 6)
    for j in range(8):
        for m in range(2):
            for q in range(4):
                w = WGT + 32 * m + 4 * j + q
                a.e('v_lshlrev_b32 v48, 16, v%d', w)
                a.e('v_and_b32 v49, 0xffff0000, v%d', w)
                if j == 0:
                    a.e('v_mul_f32 v%d, v48, v%d', GA + 8 * m + 2 * q, XF + j)
                    a.e('v_mul_f32 v%d, v49, v%d', GA + 8 * m + 2 * q + 1, XF + j)
                else:
                    a.e('v_fmac_f32 v%d, v48, v%d', GA + 8 * m + 2 * q, XF + j)
                    a.e('v_fmac_f32 v%d, v49, v%d', GA + 8 * m + 2 * q + 1, XF + j)
    a.e('s_nop 1')
    for m in range(2):
        for q in range(4):
            a.e('v_permlane16_swap_b32 v%d, v%d', GA + 8 * m + q, GA + 8 * m + q + 4)
    for m in range(2):
        for q in range(4):
            a.e('v_add_f32 v%d, v%d, v%d', GA + 8 * m + q, GA + 8 * m + q, GA + 8 * m + q + 4)
    a.e('s_nop 1')
    for q in range(4):
        a.e('v_permlane32_swap_b32 v%d, v%d', GA + q, GA + 8 + q)
    for q in range(4):
        a.e('v_add_f32 v%d, v%d, v%d', GA + q, GA + q, GA + 8 + q)
    a.e(MASK14)
    a.vm_issue('hp', 'buffer_store_dwordx4 %s, v%d, %s, 0 offen' + WT, vr(GA, 4), VHP, WSR)
    a.e('s_mov_b64 exec, -1')
    stamp(a, 7)
    KB, KA = 64, 48
    a.e('v_and_b32 v16, 15, v2')
    a.e('v_mul_u32_u24 v16, %d, v16', KVB)
    a.e('s_add_u32 s64, s70, 2176')
    a.e('v_add_u32 v16, s64, v16')
    a.e('v_add_u32 v17, s70, v%d', V16)
    a.e('v_lshrrev_b32 v18, 2, v2')
    a.e('v_mul_u32_u24 v18, %d, v18', KVB)
    a.e('v_and_b32 v19, 3, v2')
    a.e('v_lshl_add_u32 v18, v19, 4, v18')
    a.e('s_add_u32 s64, s70, 2048')
    a.e('v_add_u32 v18, s64, v18')
    for r in range(8):
        a.e('v_mov_b32 v%d, 0', KA + r)
    a.e('s_mov_b32 s66, 0xffff')
    a.e('s_mov_b32 s67, 0')
    a.e('s_mov_b32 s65, 0')
    a.e('G_loop:')
    a.e('buffer_load_dword v20, v16, %s, 0 offen sc1', WSR)
    a.e('s_waitcnt vmcnt(0)')
    a.e('v_cmp_eq_u32 vcc, 1, v20')
    a.e('s_and_b32 s68, vcc_lo, s66')
    a.e('s_andn2_b32 s66, s66, s68')
    a.e('s_cmp_eq_u32 s68, 0')
    a.e('s_cbranch_scc1 G_noload')
    for p in range(16):
        a.e('s_bitcmp1_b32 s68, %d', p)
        a.e('s_cbranch_scc0 G_nl%d', p)
        a.e('s_mov_b32 s64, %d', p * KVB)
        a.e('buffer_load_dwordx4 %s, v17, %s, s64 offen sc1', vr(KB + 8 * p, 4), WSR)
        a.e('buffer_load_dwordx4 %s, v17, %s, s64 offen offset:1024 sc1', vr(KB + 8 * p + 4, 4), WSR)
        a.e('G_nl%d:', p)
    a.e('G_noload:')
    a.e('s_cmp_lg_u32 s66, 0')
    a.e('s_cbranch_scc1 G_sum')
    a.e('buffer_load_dwordx4 v[56:59], v18, %s, 0 offen sc1', WSR)
    a.e('G_sum:')
    a.e('s_cmp_eq_u32 s67, 0')
    a.e('s_cbranch_scc1 G_nosum')
    for p in range(16):
        a.e('s_bitcmp1_b32 s67, %d', p)
        a.e('s_cbranch_scc0 G_ns%d', p)
        for r in range(8):
            a.e('v_add_f32 v%d, v%d, v%d', KA + r, KA + r, KB + 8 * p + r)
        a.e('G_ns%d:', p)
    a.e('G_nosum:')
    a.e('s_mov_b32 s67, s68')
    a.e('s_cmp_eq_u32 s66, 0')
    a.e('s_cbranch_scc1 G_last')
    a.e('s_add_u32 s65, s65, 1')
    a.e('s_cmp_ge_u32 s65, 400000')
    a.e('s_cselect_b32 s66, 0, s66')
    a.e('s_cmp_lg_u32 s68, 0')
    a.e('s_cbranch_scc1 G_loop')
    a.e('s_sleep %d', E('GSL', 2))
    a.e('s_branch G_loop')
    a.e('G_last:')
    a.e('s_cmp_eq_u32 s67, 0')
    a.e('s_cbranch_scc1 G_done')
    a.e('s_waitcnt vmcnt(0)')
    a.e('s_mov_b32 s68, 0')
    a.e('s_branch G_sum')
    a.e('G_done:')
    a.e('s_waitcnt vmcnt(0)')
    a.vm = []
    stamp(a, 8)
    for q in range(4):
        a.e('v_cvt_pk_bf16_f32 v%d, v%d, v%d', 60 + q, KA + 2 * q, KA + 2 * q + 1)
    a.e('v_add_u32 v16, s7, v%d', V16)
    a.e('ds_write_b128 v16, v[60:63] offset:%d', L_KF)
    for pat in ('row_ror:4', 'row_ror:8'):
        for q in range(4):
            a.e('v_add_f32_dpp v%d, v%d, v%d %s row_mask:0xf bank_mask:0xf', 56 + q, 56 + q, 56 + q, pat)
    for swp in ('v_permlane16_swap_b32', 'v_permlane32_swap_b32'):
        for q in range(4):
            a.e('v_mov_b32 v%d, v%d', 64 + q, 56 + q)
        a.e('s_nop 0')
        for q in range(4):
            a.e('%s v%d, v%d', swp, 56 + q, 64 + q)
        for q in range(4):
            a.e('v_add_f32 v%d, v%d, v%d', 56 + q, 56 + q, 64 + q)
    a.e('v_cvt_pk_bf16_f32 v56, v56, v57')
    a.e('v_cvt_pk_bf16_f32 v57, v58, v59')
    a.e('v_and_b32 v16, 1, v2')
    a.e('v_lshlrev_b32 v16, 4, v16')
    a.e('v_bfe_u32 v17, v2, 1, 1')
    a.e('v_lshl_add_u32 v16, v17, 3, v16')
    a.e('s_lshl_b32 s64, s6, 5')
    a.e('v_add_u32 v16, s64, v16')
    a.e('s_mov_b64 exec, 15')
    a.e('ds_write_b64 v16, v[56:57] offset:%d', L_ZF)
    a.e('s_mov_b64 exec, -1')
    a.e('s_waitcnt lgkmcnt(0)')
    a.e('s_barrier')
    h0_only('H_nh')
    HB = 64
    a.e('s_lshr_b32 s64, s2, 2')
    a.e('s_lshl_b32 s64, s64, 14')
    a.e('s_add_u32 s64, s64, %d', WS_HP)
    a.e('v_add_u32 v16, s64, v%d', V16)
    a.e('s_mov_b32 s65, 0')
    a.e('H_hl:')
    for q in range(16):
        a.e('s_mov_b32 s64, %d', (q >> 2) * 4096)
        a.e('buffer_load_dwordx4 %s, v16, %s, s64 offen offset:%d sc1', vr(HB + 4 * q, 4), WSR, (q & 3) * 1024)
    a.e('s_waitcnt vmcnt(0)')
    a.e('v_max3_u32 v17, v%d, v%d, v%d', HB, HB + 1, HB + 2)
    for r in range(3, 63, 2):
        a.e('v_max3_u32 v17, v%d, v%d, v17', HB + r, HB + r + 1)
    a.e('v_max_u32 v17, v%d, v17', HB + 63)
    a.e(MASK14)
    a.e('v_cmp_eq_u32 vcc, -1, v17')
    a.e('s_mov_b64 exec, -1')
    a.e('s_cbranch_vccz H_hok')
    a.e('s_add_u32 s65, s65, 1')
    a.e('s_cmp_ge_u32 s65, 100000')
    a.e('s_cbranch_scc1 H_hok')
    a.e('s_sleep 8')
    a.e('s_branch H_hl')
    a.e('H_hok:')
    for m in range(2):
        for i in range(1, 8):
            for q in range(4):
                a.e('v_add_f32 v%d, v%d, v%d', HB + 32 * m + q, HB + 32 * m + q, HB + 32 * m + 4 * i + q)
    a.e('s_nop 1')
    for q in range(4):
        a.e('v_permlane16_swap_b32 v%d, v%d', HB + q, HB + 32 + q)
    for q in range(4):
        a.e('v_add_f32 v%d, v%d, v%d', HB + q, HB + q, HB + 32 + q)
    a.e('s_nop 1')
    for q in range(2):
        a.e('v_permlane32_swap_b32 v%d, v%d', HB + q, HB + 2 + q)
    for q in range(2):
        a.e('v_add_f32 v%d, v%d, v%d', HB + q, HB + q, HB + 2 + q)
    a.e('s_nop 1')
    a.e('v_permlane16_swap_b32 v%d, v%d', HB, HB + 1)
    G_, U_, T_ = HB, HB + 1, HB + 2
    a.e('v_cvt_pk_bf16_f32 v%d, v%d, v%d', T_, G_, U_)
    a.e('v_lshlrev_b32 v%d, 16, v%d', G_, T_)
    a.e('v_and_b32 v%d, 0xffff0000, v%d', U_, T_)
    a.e('v_mul_f32 v%d, s%d, v%d', T_, S_LOG2E, G_)
    a.e('v_exp_f32 v%d, -v%d', T_, T_)
    a.e('v_and_b32 v16, 15, v2')
    a.e('v_add_f32 v%d, 1.0, v%d', T_, T_)
    a.e('v_rcp_f32 v%d, v%d', T_, T_)
    a.e('v_lshl_add_u32 v16, v16, 2, v8')
    a.e('v_mul_f32 v%d, v%d, v%d', T_, T_, G_)
    a.e('v_cvt_pk_bf16_f32 v%d, v%d, v%d', T_, T_, T_)
    a.e('v_lshlrev_b32 v%d, 16, v%d', T_, T_)
    a.e('v_mul_f32 v%d, v%d, v%d', T_, T_, U_)
    a.e('v_cvt_pk_bf16_f32 v%d, v%d, v%d', T_, T_, T_)
    a.e('v_lshlrev_b32 v%d, 16, v%d', T_, T_)
    a.e('v_lshlrev_b32 v16, 2, v16')
    a.e('ds_write_b32 v16, v%d offset:%d', T_, L_H)
    a.e('v_mov_b32 v16, %d', L_FLG + 16)
    a.e('v_mov_b32 v17, 1')
    a.e('s_waitcnt lgkmcnt(0)')
    a.e('ds_write_b32 v16, v17')
    a.e('H_nh:')
    t2_fill(a)
    a.e('v_mov_b32 v16, %d', L_FLG + 16)
    a.e('v_lshrrev_b32 v18, 3, v2')
    a.e('v_lshlrev_b32 v18, 2, v18')
    a.e('H_hw:')
    a.e('ds_read_b32 v17, v16')
    a.e('s_waitcnt lgkmcnt(0)')
    a.e('v_cmp_eq_u32 vcc, 0, v17')
    a.e('s_cbranch_vccz H_hr')
    a.e('s_sleep 1')
    a.e('s_branch H_hw')
    a.e('H_hr:')
    for j in range(7):
        a.e('ds_read_b32 v%d, v18 offset:%d', 24 + j, L_H + 32 * j)
    a.e('s_waitcnt lgkmcnt(0)')
    YA = 32
    for j in range(7):
        for q in range(4):
            w = WD + 4 * j + q
            a.e('v_lshlrev_b32 v48, 16, v%d', w)
            a.e('v_and_b32 v49, 0xffff0000, v%d', w)
            if j == 0:
                a.e('v_mul_f32 v%d, v48, v%d', YA + 2 * q, 24 + j)
                a.e('v_mul_f32 v%d, v49, v%d', YA + 2 * q + 1, 24 + j)
            else:
                a.e('v_fmac_f32 v%d, v48, v%d', YA + 2 * q, 24 + j)
                a.e('v_fmac_f32 v%d, v49, v%d', YA + 2 * q + 1, 24 + j)
    a.e('s_nop 1')
    for q in range(4):
        a.e('v_permlane32_swap_b32 v%d, v%d', YA + q, YA + 4 + q)
    for q in range(4):
        a.e('v_add_f32 v%d, v%d, v%d', YA + q, YA + q, YA + 4 + q)
    a.e('s_nop 1')
    for q in range(2):
        a.e('v_permlane16_swap_b32 v%d, v%d', YA + q, YA + 2 + q)
    for q in range(2):
        a.e('v_add_f32 v%d, v%d, v%d', YA + q, YA + q, YA + 2 + q)
    a.e('s_nop 1')
    for q in range(2):
        a.e('v_add_f32_dpp v%d, v%d, v%d row_ror:8 row_mask:0xf bank_mask:0xf', YA + q, YA + q, YA + q)
    a.e('v_and_b32 v16, 7, v2')
    a.e('v_lshlrev_b32 v16, 5, v16')
    a.e('v_lshl_add_u32 v16, v8, 3, v16')
    a.e('s_lshl_b32 s64, s2, 10')
    a.e('s_lshl_b32 s65, s6, 8')
    a.e('s_add_u32 s64, s64, s65')
    a.e('s_add_u32 s64, s64, %d', WS_YP)
    a.e('s_mov_b32 exec_lo, 0x00ff00ff\ns_mov_b32 exec_hi, 0x00ff00ff')
    a.e('buffer_store_dwordx2 %s, v16, %s, s64 offen' + WT, vr(YA, 2), WSR)
    a.e('s_mov_b64 exec, -1')
    stamp(a, 9)
    a.e('s_branch P2_start')


def gen_c1(a):
    a.e('C_start:')
    TOUCH = E('TOUCH', 0)
    if TOUCH:
        a.e('s_mul_i32 s64, s2, 24576')
        a.e('s_mul_i32 s65, s3, 6144')
        a.e('s_add_u32 s64, s64, s65')
        a.e('v_mul_u32_u24 v3, %d, v2', TOUCH)
        a.e('s_mov_b32 exec_hi, 0xffff')
        for q in range(128 // TOUCH):
            a.vm_issue('t', 'buffer_load_dword v60, v3, %s, s64 offen offset:%d', sr(S_W, 4), q * 3072)
        a.e('s_mov_b32 exec_hi, -1')
    if 'noscode' not in EXP:
        NS = 4
        a.e('s_getpc_b64 s[68:69]')
        a.e('C_pc:')
        a.e('s_sub_u32 s68, s68, C_pc-%s_kernel' % NAME)
        a.e('s_subb_u32 s69, s69, 0')
        a.e('s_lshr_b32 s64, s2, 3')
        a.e('s_lshl_b32 s64, s64, 2')
        a.e('s_add_u32 s64, s64, s3')
        a.e('s_mul_i32 s64, s64, %d', NS * 64)
        a.e('s_mov_b32 s65, CODE_END-%s_kernel-4' % NAME)
        for q in range(NS):
            a.e('s_min_u32 s66, s64, s65')
            a.e('s_load_dword s75, s[68:69], s66')
            a.e('s_add_u32 s64, s64, 64')
    VAB, VBB, VA, VB = 4, 8, 10, 14
    FR = [16, 36]
    Q = [64, 80]; K = [96, 112]; V = [128, 144]
    a.e('s_and_b32 s6, s3, 1')
    a.e('s_lshr_b32 s7, s3, 1')
    a.e('v_and_b32 v3, 31, v2')
    a.e('s_lshl_b32 s64, s6, 6')
    a.e('v_add_u32 v3, s64, v3')
    a.e('v_lshlrev_b32 v3, 7, v3')
    a.e('v_add_u32 v3, %d, v3', RB)
    a.e('v_bfe_u32 v9, v2, 1, 3')
    a.e('v_lshrrev_b32 v15, 5, v2')
    a.e('v_xor_b32 v9, v9, v15')
    for t in range(4):
        a.e('v_xor_b32 v56, %d, v9', 2 * t)
        a.e('v_lshl_add_u32 v%d, v56, 4, v3', VAB + t)
    a.e('v_bfe_u32 v56, v2, 2, 2')
    a.e('v_lshl_add_u32 v57, v15, 3, v56')
    a.e('v_lshlrev_b32 v57, 7, v57')
    a.e('v_lshrrev_b32 v56, 1, v56')
    a.e('v_xor_b32 v56, s7, v56')
    a.e('v_lshl_add_u32 v57, v56, 6, v57')
    a.e('v_bfe_u32 v56, v2, 4, 1')
    a.e('v_lshl_add_u32 v57, v56, 5, v57')
    a.e('v_and_b32 v56, 3, v2')
    a.e('v_lshl_add_u32 v57, v56, 3, v57')
    a.e('v_add_u32 v%d, %d, v57', VBB, RB + 16384)
    for t in range(4):
        a.e('v_mov_b32 v%d, v%d', VA + t, VAB + t)
    a.e('v_mov_b32 v%d, v%d', VB, VBB)
    for r in range(64, 160):
        a.e('v_mov_b32 v%d, 0', r)
    a.e('s_mov_b32 s65, 0')
    a.e('s_mov_b32 s66, 0')
    a.e('s_lshl_b32 s64, s3, 2')
    a.e('s_add_u32 s64, s64, %d', L_FLG)
    a.e('v_mov_b32 v56, s64')
    a.e('ds_write_b32 v56, v64')
    a.e('ds_write_b32 v56, v64 offset:16')

    def reads(t, buf):
        f = FR[buf]
        L = ['ds_read_b128 %s, v%d' % (vr(f, 4), VA + t)]
        for ty in range(3):
            for tt in range(2):
                L.append('ds_read_b64_tr_b16 %s, v%d offset:%d' % (vr(f + 8 + 4 * ty + 2 * tt, 2), VB, ty * 8192 + t * 2048 + tt * 512))
        L.append('ds_read_b128 %s, v%d offset:4096' % (vr(f + 4, 4), VA + t))
        return L

    def mfmas(buf):
        f = FR[buf]
        L = []
        for rb in range(2):
            A = vr(f + 4 * rb, 4)
            L.append('v_mfma_f32_32x32x16_bf16 %s, %s, %s, %s' % (vr(Q[rb], 16), vr(f + 8, 4), A, vr(Q[rb], 16)))
            L.append('v_mfma_f32_32x32x16_bf16 %s, %s, %s, %s' % (vr(K[rb], 16), A, vr(f + 12, 4), vr(K[rb], 16)))
            L.append('v_mfma_f32_32x32x16_bf16 %s, %s, %s, %s' % (vr(V[rb], 16), A, vr(f + 16, 4), vr(V[rb], 16)))
        return L

    stamp(a, 3)
    a.vm_wait('d0', 'lgkmcnt(0)')
    stamp(a, 4)
    a.e('s_barrier')
    for r in reads(0, 0):
        a.e(r)
    a.e('.p2align 3')
    a.e('C_loop:')
    for t in range(4):
        buf = t & 1
        if t == 3:
            a.e('s_waitcnt vmcnt(0) lgkmcnt(0)')
            a.e('s_barrier')
            a.e('s_add_u32 s65, s65, %d', SLOT)
            a.e('s_cmp_eq_u32 s65, %d', 3 * SLOT)
            a.e('s_cselect_b32 s65, 0, s65')
        else:
            a.e('s_waitcnt lgkmcnt(0)')
        M = mfmas(buf)
        R = reads((t + 1) & 3, buf ^ 1)
        for i in range(6):
            a.e(M[i])
            if t == 3 and i == 0:
                for tt in range(4):
                    a.e('v_add_u32 v%d, s65, v%d', VA + tt, VAB + tt)
                a.e('v_add_u32 v%d, s65, v%d', VB, VBB)
            if i < 4:
                a.e(R[2 * i]); a.e(R[2 * i + 1])
    a.e('s_add_u32 s66, s66, 1')
    a.e('s_cmp_lt_u32 s66, 16')
    a.e('s_cbranch_scc1 C_loop')
    a.vm = []
    stamp(a, 5)
    PK = [16, 24]; VBF = [32, 40]; T0, T1, E0, E1, MN = 48, 49, 50, 51, 56
    ONES = 52
    KVA = 160; ZA = 176
    a.e('s_waitcnt lgkmcnt(0)')
    for r in range(4):
        a.e('v_mov_b32 v%d, 0x3f803f80', ONES + r)
    a.e('s_nop 4')
    first = True
    for rb in range(2):
        phi16(a, K[rb], PK[rb], T0, T1, E0, E1, MN)
        for j in range(8):
            a.e('v_cvt_pk_bf16_f32 v%d, v%d, v%d', VBF[rb] + j, V[rb] + 2 * j, V[rb] + 2 * j + 1)
        a.e('s_nop 1')
        for m in range(2):
            ckv = '0' if first else vr(KVA, 16)
            cz = '0' if first else vr(ZA, 16)
            a.e('v_mfma_f32_32x32x16_bf16 %s, %s, %s, %s', vr(KVA, 16), vr(PK[rb] + 4 * m, 4), vr(VBF[rb] + 4 * m, 4), ckv)
            a.e('v_mfma_f32_32x32x16_bf16 %s, %s, %s, %s', vr(ZA, 16), vr(ONES, 4), vr(PK[rb] + 4 * m, 4), cz)
            first = False
    a.e('v_lshlrev_b32 v3, 4, v2')
    a.e('s_lshl_b32 s64, s3, 11')
    a.e('v_add_u32 v4, s64, v3')
    a.e('s_xor_b32 s67, s3, 1')
    a.e('s_lshl_b32 s64, s67, 11')
    a.e('v_add_u32 v5, s64, v3')
    a.e('v_lshlrev_b32 v6, 2, v2')
    a.e('s_lshl_b32 s64, s3, 8')
    a.e('v_add_u32 v7, s64, v6')
    a.e('s_lshl_b32 s64, s67, 8')
    a.e('v_add_u32 v8, s64, v6')
    a.e('s_lshl_b32 s64, s3, 2')
    a.e('v_mov_b32 v9, s64')
    a.e('s_lshl_b32 s64, s67, 2')
    a.e('v_mov_b32 v10, s64')
    a.e('v_mov_b32 v11, 1')
    a.e('s_lshl_b32 s68, s5, 2')
    a.e('s_add_u32 s68, s68, s3')
    a.e('s_lshl_b32 s68, s68, 4')
    a.e('s_add_u32 s68, s68, s4')
    a.e('s_mul_i32 s68, s68, %d', KVB)
    a.e('s_add_u32 s68, s68, %d', WS_KVP)
    a.e('v_and_b32 v12, 15, v2')
    a.e('v_lshlrev_b32 v12, 2, v12')
    a.e('ds_write_b32 v7, v%d offset:%d', ZA, L_ZX)
    a.e('s_cmp_eq_u32 s6, 0')
    a.e('s_cbranch_scc0 C_ex1')
    a.e('ds_write_b128 v4, %s offset:%d', vr(KVA + 8, 4), L_EX)
    a.e('ds_write_b128 v4, %s offset:%d', vr(KVA + 12, 4), L_EX + 1024)
    a.e('s_mov_b64 s[70:71], 0xffff')
    a.e('s_branch C_ex2')
    a.e('C_ex1:')
    a.e('ds_write_b128 v4, %s offset:%d', vr(KVA, 4), L_EX)
    a.e('ds_write_b128 v4, %s offset:%d', vr(KVA + 4, 4), L_EX + 1024)
    a.e('s_mov_b64 s[70:71], 0xffff0000')
    a.e('s_nop 0')
    for r in range(8):
        a.e('v_mov_b32 v%d, v%d', KVA + r, KVA + 8 + r)
    a.e('C_ex2:')
    a.e('s_waitcnt lgkmcnt(0)')
    a.e('ds_write_b32 v9, v11 offset:%d', L_FLG)
    a.e('C_ps:')
    a.e('ds_read_b32 v13, v10 offset:%d', L_FLG)
    a.e('s_waitcnt lgkmcnt(0)')
    a.e('v_cmp_eq_u32 vcc, 0, v13')
    a.e('s_cbranch_vccnz C_ps')
    a.e('ds_read_b128 v[16:19], v5 offset:%d', L_EX)
    a.e('ds_read_b128 v[20:23], v5 offset:%d', L_EX + 1024)
    a.e('ds_read_b32 v24, v8 offset:%d', L_ZX)
    a.e('s_waitcnt lgkmcnt(0)')
    for r in range(8):
        a.e('v_add_f32 v%d, v%d, v%d', 16 + r, 16 + r, KVA + r)
    a.e('v_add_f32 v24, v24, v%d', ZA)
    a.vm_issue('kvp', 'buffer_store_dwordx4 v[16:19], v3, %s, s68 offen' + WT, WSR)
    a.vm_issue('kvp', 'buffer_store_dwordx4 v[20:23], v3, %s, s68 offen offset:1024' + WT, WSR)
    a.e('s_mov_b64 exec, s[70:71]')
    a.vm_issue('kvp', 'buffer_store_dword v24, v12, %s, s68 offen offset:2048' + WT, WSR)
    a.e('s_mov_b64 exec, -1')
    stamp(a, 6)
    a.e('s_lshl_b32 s69, s4, 2')
    a.e('s_lshl_b32 s64, s6, 1')
    a.e('s_add_u32 s69, s69, s64')
    a.e('s_lshl_b32 s69, s69, 5')
    a.e('s_lshl_b32 s64, s5, 1')
    a.e('s_add_u32 s69, s69, s64')
    a.e('s_add_u32 s69, s69, s7')
    a.e('s_lshl_b32 s69, s69, 11')
    a.e('s_lshl_b32 s70, s4, 4')
    a.e('s_add_u32 s70, s70, s5')
    a.e('s_lshl_b32 s70, s70, 2')
    a.e('s_add_u32 s70, s70, s3')
    a.e('s_lshl_b32 s70, s70, 7')
    a.e('s_add_u32 s70, s70, %d', WS_F2)
    p2_ids(a)
    srd(a, S_WO, 44, 2097152)
    VOW = 10
    wo_voff(a, VOW, 13, 14, 3)
    PQ = [16, 24]
    phi16(a, Q[0], 32, T0, T1, E0, E1, MN)
    a.vm_wait('kvp')
    a.e('v_mov_b32 v12, 0')
    a.e('s_mov_b64 exec, 1')
    a.vm_issue('f1', 'buffer_store_dword v11, v12, %s, s68 offen offset:2176' + WT, WSR)
    a.e('s_mov_b64 exec, -1')
    stamp(a, 7)
    xo_loads(a)
    PQ = [32, 40]
    phi16(a, Q[1], PQ[1], T0, T1, E0, E1, MN)
    a.e('v_lshlrev_b32 v3, 4, v2')
    a.e('s_lshl_b32 s64, s7, 11')
    a.e('v_add_u32 v4, s64, v3')
    a.e('v_lshrrev_b32 v5, 5, v2')
    a.e('v_lshlrev_b32 v5, 4, v5')
    a.e('s_lshl_b32 s64, s7, 6')
    a.e('v_add_u32 v5, s64, v5')
    a.e('v_mov_b32 v6, %d', L_KEY + 16)
    a.e('ds_read_b32 v6, v6')
    a.e('s_lshl_b32 s71, s3, 10')
    a.e('s_waitcnt lgkmcnt(0)')
    a.e('v_readfirstlane_b32 s75, v6')
    a.vm_wait('xo')
    t2_fill(a)
    a.e('v_lshlrev_b32 v3, 4, v2')
    a.e('s_barrier')
    stamp(a, 8)
    KF, ZF = 16, 24
    NA = [64, 80]; DA = [96, 112]
    a.e('ds_read_b128 %s, v5 offset:%d', vr(ZF, 4), L_ZF)
    a.e('ds_read_b128 %s, v4 offset:%d', vr(KF, 4), L_KF)
    a.e('ds_read_b128 %s, v5 offset:%d', vr(ZF + 4, 4), L_ZF + 32)
    a.e('ds_read_b128 %s, v4 offset:%d', vr(KF + 4, 4), L_KF + 1024)
    for rb in range(2):
        for m in range(2):
            if rb == 0:
                a.e('s_waitcnt lgkmcnt(%d)', 3 - 2 * m)
            a.e('v_mfma_f32_32x32x16_bf16 %s, %s, %s, %s', vr(DA[rb], 16), vr(ZF + 4 * m, 4), vr(PQ[rb] + 4 * m, 4), '0' if m == 0 else vr(DA[rb], 16))
            if rb == 0:
                a.e('s_waitcnt lgkmcnt(%d)', 2 - 2 * m)
            a.e('v_mfma_f32_32x32x16_bf16 %s, %s, %s, %s', vr(NA[rb], 16), vr(KF + 4 * m, 4), vr(PQ[rb] + 4 * m, 4), '0' if m == 0 else vr(NA[rb], 16))
    a.e('s_nop 6')
    OF = [128, 136]
    for rb in range(2):
        d = 48 + rb
        if rb == 1:
            a.e('s_nop 3')
        a.e('v_cvt_pk_bf16_f32 v%d, v%d, v%d', d, DA[rb], DA[rb])
        a.e('v_lshlrev_b32 v%d, 16, v%d', d, d)
        a.e('v_add_f32 v%d, s%d, v%d', d, S_EPS, d)
        a.e('v_cvt_pk_bf16_f32 v%d, v%d, v%d', d, d, d)
        a.e('v_lshlrev_b32 v%d, 16, v%d', d, d)
        a.e('v_rcp_f32 v%d, v%d', d, d)
        a.e('s_nop 0')
        for m in range(2):
            for j in range(4 * m, 4 * m + 4):
                r = NA[rb] + 2 * j
                a.e('v_mul_f32 v%d, v%d, v%d', r, r, d)
                a.e('v_mul_f32 v%d, v%d, v%d', r + 1, r + 1, d)
                a.e('v_cvt_pk_bf16_f32 v%d, v%d, v%d', OF[rb] + j, r, r + 1)
            a.vm_issue('o', 'buffer_store_dwordx4 %s, v3, %s, s69 offen offset:%d' + WT, vr(OF[rb] + 4 * m, 4), WSR, m * 1024)
        if rb == 0:
            a.e('s_add_u32 s69, s69, 65536')
    for p in (4, 12, 5, 13, 6, 14, 7, 15):
        wo_dma(a, p, VOW, 71, 'wo')
    a.vm_wait('o')
    a.e('v_mov_b32 v12, s70')
    a.e('s_mov_b64 exec, 1')
    a.vm_issue('f2', 'buffer_store_dword v11, v12, %s, 0 offen' + WT, WSR)
    a.e('s_mov_b64 exec, -1')
    stamp(a, 9)
    a.e('s_cmp_lg_u32 s3, 0')
    a.e('s_cbranch_scc1 C_np')
    a.e('s_lshl_b32 s64, s4, 13')
    a.e('s_add_u32 s64, s64, %d', WS_F2)
    a.e('v_lshlrev_b32 v12, 7, v2')
    a.e('v_add_u32 v12, s64, v12')
    a.e('s_mov_b32 s65, 0')
    a.e('C_spin:')
    a.e('buffer_load_dword v13, v12, %s, 0 offen sc1', WSR)
    a.e('s_waitcnt vmcnt(0)')
    a.e('v_cmp_ne_u32 vcc, 1, v13')
    a.e('s_cbranch_vccz C_np')
    a.e('s_add_u32 s65, s65, 1')
    a.e('s_cmp_ge_u32 s65, 400000')
    a.e('s_cbranch_scc1 C_np')
    a.e('s_sleep %d', E('PSL', 2))
    a.e('s_branch C_spin')
    a.e('C_np:')


def gen_p2(a):
    a.e('P2_start:')
    a.vm = []
    a.e('s_and_b32 s6, s3, 3')
    a.e('s_lshr_b32 s7, s3, 2')
    srd(a, S_OUT, 58, 4194304)
    a.e('s_and_b32 s67, s75, 0x7ff')
    a.e('s_sub_u32 s67, 2047, s67')
    VO = 4
    a.e('s_lshl_b32 s64, s4, 2')
    a.e('s_add_u32 s64, s64, s6')
    a.e('s_lshl_b32 s64, s64, 16')
    a.e('s_lshl_b32 s65, s7, 15')
    a.e('s_add_u32 s64, s64, s65')
    a.e('v_lshlrev_b32 v%d, 4, v2', VO)
    a.e('v_add_u32 v%d, s64, v%d', VO, VO)
    VWL = [5, 6]; VW = [8, 9]
    a.e('v_lshrrev_b32 v10, 5, v2')
    a.e('v_bfe_u32 v11, v2, 2, 2')
    a.e('v_lshl_add_u32 v12, v10, 2, v11')
    a.e('v_lshlrev_b32 v12, 7, v12')
    a.e('v_bfe_u32 v13, v2, 4, 1')
    a.e('v_lshl_add_u32 v12, v13, 5, v12')
    a.e('v_and_b32 v13, 3, v2')
    a.e('v_lshl_add_u32 v12, v13, 3, v12')
    a.e('v_lshrrev_b32 v11, 1, v11')
    a.e('v_lshl_add_u32 v%d, v11, 6, v12', VWL[0])
    a.e('v_xor_b32 v11, 1, v11')
    a.e('v_lshl_add_u32 v%d, v11, 6, v12', VWL[1])
    SB = 32
    a.e('s_cmp_eq_u32 s7, 0')
    for j in range(8):
        a.e('s_mov_b32 s64, %d', POS[8 + j])
        a.e('s_cselect_b32 s%d, %d, s64', SB + j, POS[j])
    ACO = [16, 32]
    WOF = [48, 64]
    OB = 80
    for r in range(16, 48):
        a.e('v_mov_b32 v%d, 0', r)
    a.e('s_waitcnt vmcnt(0)')
    a.e('s_barrier')
    stamp(a, 10)

    def o_g(j):
        G = []
        for q in range(4):
            pre = []
            if q == 0:
                pre = ['s_add_u32 s66, s74, %d' % j, 's_and_b32 s66, s66, 7', 's_lshl_b32 s66, s66, 12']
            G.append(('o%d' % j, pre, 'buffer_load_dwordx4 %s, v%d, %s, s66 offen offset:%d sc1' % (vr(OB + 16 * j + 4 * q, 4), VO, WSR, q * 1024)))
        return G

    def emit_g(G):
        for (tag, pre, ins) in G:
            for p in pre:
                a.e(p)
            a.vm_issue(tag, ins)

    def wo_reads(hd):
        j, u = hd >> 1, hd & 1
        L = []
        if u == 0:
            L += ['v_add_u32 v%d, s%d, v%d' % (VW[cb], SB + j, VWL[cb]) for cb in range(2)]
        for m in range(2):
            for cb in range(2):
                for tt in range(2):
                    L.append('ds_read_b64_tr_b16 %s, v%d offset:%d' % (vr(WOF[hd & 1] + 8 * cb + 4 * m + 2 * tt, 2), VW[cb], u * 4096 + m * 2048 + tt * 1024))
        return L

    def Mm(hd):
        L = []
        for m in range(2):
            for cb in range(2):
                L.append('v_mfma_f32_32x32x16_bf16 %s, %s, %s, %s' % (vr(ACO[cb], 16), vr(WOF[hd & 1] + 8 * cb + 4 * m, 4), vr(OB + 8 * hd + 4 * m, 4), vr(ACO[cb], 16)))
        return L

    LA = E('LA', 2)
    for j in range(LA):
        emit_g(o_g(j))
    for r in wo_reads(0):
        a.e(r)
    YL = 208
    pend = []
    for hd in range(16):
        j = hd >> 1
        if hd % 2 == 0:
            a.vm_wait('o%d' % j, 'lgkmcnt(0)')
            if j + LA < 8:
                pend += o_g(j + LA)
        else:
            a.e('s_waitcnt lgkmcnt(0)')
        if hd == 12:
            a.e('s_lshr_b32 s64, s67, 7')
            a.e('s_cmp_lg_u32 s64, s4')
            a.e('s_cbranch_scc1 P2_nyl')
            a.e('s_lshl_b32 s64, s5, 8')
            a.e('s_lshl_b32 s65, s3, 15')
            a.e('s_add_u32 s64, s64, s65')
            a.e('s_add_u32 s64, s64, %d', WS_YP)
            a.e('v_lshlrev_b32 v7, 2, v2')
            a.e('v_add_u32 v7, s64, v7')
            for q in range(8):
                a.e('s_mov_b32 s65, %d', q * 4096)
                a.vm_uncounted('buffer_load_dword v%d, v7, %s, s65 offen sc1' % (YL + q, WSR))
            a.e('P2_nyl:')
        F = wo_reads(hd + 1) if hd + 1 < 16 else []
        M = Mm(hd)
        per = -(-len(F) // 3) if F else 0
        for k in range(4):
            a.e(M[k])
            if pend and k % 2 == 0:
                emit_g([pend.pop(0)])
            for f in F[k * per:(k + 1) * per]:
                a.e(f)
    assert not pend
    stamp(a, 11)
    a.e('v_and_b32 v8, 31, v2')
    a.e('s_lshl_b32 s64, s6, 5')
    a.e('v_add_u32 v8, s64, v8')
    a.e('v_mul_u32_u24 v8, %d, v8', TP)
    a.e('v_lshrrev_b32 v9, 5, v2')
    a.e('v_lshl_add_u32 v8, v9, 4, v8')
    a.e('s_mul_i32 s64, s7, %d', TK)
    a.e('s_add_u32 s64, s64, %d', RB)
    a.e('v_add_u32 v8, s64, v8')
    a.e('v_lshrrev_b32 v6, 3, v0')
    a.e('v_mul_u32_u24 v5, %d, v6', TP)
    a.e('v_and_b32 v6, 7, v0')
    a.e('v_lshl_add_u32 v5, v6, 5, v5')
    a.e('v_add_u32 v5, %d, v5', RB)
    a.e('v_lshlrev_b32 v9, 5, v6')
    a.e('s_barrier')
    for cb in range(2):
        for q in range(4):
            a.e('ds_write_b128 v8, %s offset:%d', vr(ACO[cb] + 4 * q, 4), cb * 128 + q * 32)
    a.e('s_lshr_b32 s64, s67, 7')
    a.e('s_cmp_lg_u32 s64, s4')
    a.e('s_cbranch_scc1 P2_ny')
    a.e('s_mov_b32 s66, 0')
    a.e('P2_ychk:')
    a.e('s_waitcnt vmcnt(0)')
    a.e('v_max3_u32 v10, v%d, v%d, v%d', YL, YL + 1, YL + 2)
    a.e('v_max3_u32 v10, v%d, v%d, v10', YL + 3, YL + 4)
    a.e('v_max3_u32 v10, v%d, v%d, v10', YL + 5, YL + 6)
    a.e('v_max_u32 v10, v%d, v10', YL + 7)
    a.e('v_cmp_eq_u32 vcc, -1, v10')
    a.e('s_cbranch_vccz P2_yok')
    a.e('s_add_u32 s66, s66, 1')
    a.e('s_cmp_ge_u32 s66, 100000')
    a.e('s_cbranch_scc1 P2_yok')
    a.e('s_sleep 4')
    for q in range(8):
        a.e('s_mov_b32 s65, %d', q * 4096)
        a.e('buffer_load_dword v%d, v7, %s, s65 offen sc1' % (YL + q, WSR))
    a.e('s_branch P2_ychk')
    a.e('P2_yok:')
    for q in range(1, 8):
        a.e('v_add_f32 v%d, v%d, v%d', YL, YL, YL + q)
    a.e('v_lshlrev_b32 v7, 2, v2')
    a.e('s_lshl_b32 s64, s3, 8')
    a.e('v_add_u32 v7, s64, v7')
    a.e('v_add_u32 v7, %d, v7', L_YS)
    a.e('ds_write_b32 v7, v%d', YL)
    a.e('P2_ny:')
    a.e('s_waitcnt lgkmcnt(0)')
    a.e('s_barrier')
    AB = 64
    for half in range(2):
        for k in range(2):
            for q in range(2):
                a.e('ds_read_b128 %s, v5 offset:%d', vr(AB + 16 * half + 8 * k + 4 * q, 4), half * 64 * TP + k * TK + q * 16)
    a.e('v_add_u32 v9, %d, v9', L_YS)
    a.e('s_mov_b32 s68, 131072')
    for half in range(2):
        A = AB + 16 * half
        X = XO + 4 * half
        Gr = XO + 8 + half
        T = T2 + 8 * half
        om = OM[half]
        a.e('v_add_u32 v6, %d, v%d', 64 * half, VRO)
        a.e('v_cmp_eq_u32 vcc, s67, v6')
        a.e('s_and_saveexec_b64 s[70:71], vcc')
        lab = a.label('P2_nr')
        a.e('s_cbranch_execz %s', lab)
        Y = 128
        for w in range(8):
            a.e('ds_read_b128 %s, v9 offset:%d', vr(Y + 8 * w, 4), w * 256)
            a.e('ds_read_b128 %s, v9 offset:%d', vr(Y + 8 * w + 4, 4), w * 256 + 16)
        a.e('s_and_b32 s64, s75, 0xffff0000')
        a.e('s_xor_b32 s65, s64, 0x80000000')
        a.e('s_not_b32 s66, s64')
        a.e('s_and_b32 s66, s66, 0xffff0000')
        a.e('s_cmp_ge_u32 s64, 0x80000000')
        a.e('s_cselect_b32 s64, s65, s66')
        a.e('v_mov_b32 v100, s64')
        sigmoid_bf16(a, [100])
        a.e('s_waitcnt lgkmcnt(0)')
        for w in range(1, 8):
            for q in range(8):
                a.e('v_add_f32 v%d, v%d, v%d', Y + q, Y + q, Y + 8 * w + q)
        for q in range(4):
            y0, y1 = Y + 2 * q, Y + 2 * q + 1
            x0, x1 = T + 2 * q, T + 2 * q + 1
            a.e('v_cvt_pk_bf16_f32 v116, v%d, v%d', y0, y1)
            a.e('v_lshlrev_b32 v%d, 16, v116', y0)
            a.e('v_and_b32 v%d, 0xffff0000, v116', y1)
            a.e('v_mul_f32 v%d, v%d, v100', y0, y0)
            a.e('v_mul_f32 v%d, v%d, v100', y1, y1)
            a.e('v_cvt_pk_bf16_f32 v116, v%d, v%d', y0, y1)
            a.e('v_lshlrev_b32 v%d, 16, v116', y0)
            a.e('v_and_b32 v%d, 0xffff0000, v116', y1)
            a.e('v_lshlrev_b32 v%d, 16, v%d', x0, X + q)
            a.e('v_and_b32 v%d, 0xffff0000, v%d', x1, X + q)
            a.e('v_add_f32 v%d, v%d, v%d', x0, x0, y0)
            a.e('v_add_f32 v%d, v%d, v%d', x1, x1, y1)
            a.e('v_cvt_pk_bf16_f32 v116, v%d, v%d', x0, x1)
            a.e('v_lshlrev_b32 v%d, 16, v116', x0)
            a.e('v_and_b32 v%d, 0xffff0000, v116', x1)
            a.e('v_mul_f32 v%d, v%d, v%d', x0, x0, om)
            a.e('v_mul_f32 v%d, v%d, v%d', x1, x1, om)
            a.e('v_cvt_pk_bf16_f32 v116, v%d, v%d', x0, x1)
            a.e('v_lshlrev_b32 v%d, 16, v116', x0)
            a.e('v_and_b32 v%d, 0xffff0000, v116', x1)
        a.e('%s:', lab)
        a.e('s_mov_b64 exec, s[70:71]')
        a.e('s_waitcnt lgkmcnt(%d)', 4 if half == 0 else 0)
        O = 120 + 4 * half
        for q in range(4):
            a0, a1 = A + 2 * q, A + 2 * q + 1
            a.e('v_add_f32 v%d, v%d, v%d', a0, a0, a0 + 8)
            a.e('v_add_f32 v%d, v%d, v%d', a1, a1, a1 + 8)
            a.e('v_cvt_pk_bf16_f32 v116, v%d, v%d', a0, a1)
            a.e('v_lshlrev_b32 v%d, 16, v116', a0)
            a.e('v_and_b32 v%d, 0xffff0000, v116', a1)
            a.e('v_mul_f32 v%d, v%d, v%d', a0, a0, Gr)
            a.e('v_mul_f32 v%d, v%d, v%d', a1, a1, Gr)
            a.e('v_cvt_pk_bf16_f32 v116, v%d, v%d', a0, a1)
            a.e('v_lshlrev_b32 v%d, 16, v116', a0)
            a.e('v_and_b32 v%d, 0xffff0000, v116', a1)
            a.e('v_add_f32 v%d, v%d, v%d', a0, a0, T + 2 * q)
            a.e('v_add_f32 v%d, v%d, v%d', a1, a1, T + 2 * q + 1)
            a.e('v_cvt_pk_bf16_f32 v%d, v%d, v%d', O + q, a0, a1)
        a.e('buffer_store_dwordx4 %s, v%d, %s, %s offen nt', vr(O, 4), VXO, sr(S_OUT, 4), '0' if half == 0 else 's68')
    if STAMPS:
        a.e('s_waitcnt vmcnt(0)')
    stamp(a, 12, True)
    stamp_flush(a)
    a.e('K_end:')
    a.e('s_endpgm')


def main():
    hdr = open(os.path.join(os.path.dirname(os.path.abspath(__file__)), '..', NAME + '.s.ref')).read().split('; Override launch')[0]
    a = Asm()
    a.e('.amdgcn_target "amdgcn-amd-amdhsa--gfx950"')
    a.e('.text')
    gen(a)
    a.e('CODE_END:')
    out = hdr + '; @launch grid=(256,1,1) block=(512,1,1) lds=%d\n' % LDS_BYTES + a.text() + '.section .rodata,"a"\n' + kd(NAME + '_kernel', 256)
    path = sys.argv[1] if len(sys.argv) > 1 else os.path.join(os.path.dirname(os.path.abspath(__file__)), '..', NAME + '.s')
    open(path, 'w').write(out)


if __name__ == '__main__':
    main()
```

```python
class Asm:
    def __init__(self):
        self.lines = []
        self.vm = []
        self._lbl = 0
        self.issued = 0

    def e(self, s, *a):
        if a:
            s = s % a
        for ln in s.split('\n'):
            ln = ln.strip()
            if not ln:
                continue
            if ln.endswith(':') or ln.startswith('.'):
                self.lines.append(ln)
            else:
                self.lines.append('    ' + ln)

    def c(self, s):
        self.lines.append('    ; ' + s)

    def label(self, base='L'):
        self._lbl += 1
        return '%s_%d' % (base, self._lbl)

    def vm_issue(self, tag, s, *a):
        self.e(s, *a)
        self.vm.append(tag)
        self.issued += 1

    def vm_uncounted(self, s, *a):
        self.e(s, *a)

    def vm_wait(self, tag, extra=''):
        if tag not in self.vm:
            if extra:
                self.e('s_waitcnt ' + extra)
            return
        idx = max(i for i, t in enumerate(self.vm) if t == tag)
        n = len(self.vm) - 1 - idx
        assert n <= 63, n
        self.e('s_waitcnt vmcnt(%d)%s' % (n, (' ' + extra) if extra else ''))
        self.vm = self.vm[idx + 1:]

    def vm_wait_all(self, extra=''):
        self.e('s_waitcnt vmcnt(0)%s' % ((' ' + extra) if extra else ''))
        self.vm = []

    def cold(self):
        asm = self

        class _C:
            def __enter__(c):
                c.saved = asm.lines
                asm.lines = []

            def __exit__(c, *exc):
                asm.cold_lines = getattr(asm, 'cold_lines', []) + asm.lines
                asm.lines = c.saved
        return _C()

    def flush_cold(self):
        self.lines += getattr(self, 'cold_lines', [])
        self.cold_lines = []

    def text(self):
        return '\n'.join(self.lines) + '\n'


def vr(b, n=1):
    return 'v%d' % b if n == 1 else 'v[%d:%d]' % (b, b + n - 1)


def sr(b, n=1):
    return 's%d' % b if n == 1 else 's[%d:%d]' % (b, b + n - 1)


def srd(a, d, base, nbytes):
    a.e('s_mov_b32 s%d, s%d', d, base)
    a.e('s_mov_b32 s%d, s%d', d + 1, base + 1)
    a.e('s_mov_b32 s%d, 0x%x', d + 2, nbytes)
    a.e('s_mov_b32 s%d, 0x00020000', d + 3)


def kd(name, vgpr, sgpr=102):
    acc = (vgpr + 3) // 4 * 4
    return f""".p2align 6
.amdhsa_kernel {name}
  .amdhsa_next_free_vgpr {vgpr}
  .amdhsa_next_free_sgpr {sgpr}
  .amdhsa_accum_offset {acc}
  .amdhsa_group_segment_fixed_size 0
  .amdhsa_kernarg_size 96
  .amdhsa_user_sgpr_count 2
  .amdhsa_user_sgpr_kernarg_segment_ptr 1
  .amdhsa_system_sgpr_workgroup_id_x 1
.end_amdhsa_kernel
"""
```

```python
import sys, os
sys.path.insert(0, os.path.dirname(os.path.abspath(__file__)))
from asmlib import *

NAME = 'gated_mix__linear_attn_block__moe_arch_mod__prompt'
E = lambda k, d: int(os.environ.get(k, str(d)))
EXP = os.environ.get('EXP', '').split(',')

WS_O = 0
WS_KVP = 4 << 20
KVB = 1152
KVZ = 1024
WS_F1 = WS_KVP + 16 * 4 * 16 * KVB
WS_F2 = WS_F1 + 64 * 128
WS_HP = WS_F2 + 16 * 128
WS_YP = WS_HP + 64 * 2 * 32 * 256
WS_G = WS_YP + 64 * 4096
WS_KEY = WS_G + 8192
WS_END = WS_KEY + 4096
WS_BYTES = 268435456
WS_ST = 16 << 20

STAMPS = E('STAMPS', 0)
WT = ' sc1' if 'wt1' in EXP else ' sc0 sc1'
NTA = ' nt' if 'ntA' in EXP else ''
NTB = ' nt' if 'ntB' in EXP else ''
NTO = ' nt' if 'ntO' in EXP else ''
NTW = '' if 'nontW' in EXP else ' nt'
LOG2E = 0x3fb8aa3b
EPS6 = 0x358637bd

SLOT = 40960
MISC = 0
RB = 8192
SP = RB + 3 * SLOT
L_KF = MISC
L_ZF = MISC + 4096
L_KEY = MISC + 4224
L_FLG = MISC + 4288
L_H = MISC + 4352
L_ZX = MISC + 4608
L_YS = MISC + 5632
L_EX = RB + 24576
LDS_BYTES = 163840
EARLY = [SP, SP + 8192, RB + SLOT + 24576, RB + 2 * SLOT + 24576, SP + 16384, SP + 24576, RB + SLOT + 32768, RB + 2 * SLOT + 32768]
LATE = [RB + x for x in (32768, 0, 8192, 16384, SLOT, SLOT + 8192, SLOT + 16384, 2 * SLOT)]
POS = EARLY[0:4] + LATE[0:4] + EARLY[4:8] + LATE[4:8]
TP = 272
TK = 128 * TP

S_X, S_W, S_WS, S_DBG, S_WR, S_GW, S_WG, S_WU = 8, 12, 16, 20, 24, 28, 32, 36
S_WO, S_OUT, S_WD = 12, 20, 24
WSR = sr(S_WS, 4)
S_LOG2E, S_EPS = 72, 73


def stamp(a, idx, real=True):
    if STAMPS:
        a.e('%s s[%d:%d]', 's_memrealtime' if real else 's_memtime', 76 + 2 * idx, 77 + 2 * idx)


def stamp_flush(a):
    if not STAMPS:
        return
    a.e('s_waitcnt lgkmcnt(0)')
    a.e('s_lshl_b32 s64, s2, 3')
    a.e('s_add_u32 s64, s64, s3')
    a.e('s_lshl_b32 s64, s64, 7')
    a.e('s_add_u32 s64, s64, %d', WS_ST)
    a.e('v_mov_b32 v1, s64')
    a.e('s_mov_b64 exec, 1')
    for i in range(13):
        a.e('v_mov_b32 v2, s%d', 76 + 2 * i)
        a.e('v_mov_b32 v3, s%d', 77 + 2 * i)
        a.e('buffer_store_dwordx2 v[2:3], v1, %s, 0 offen offset:%d', WSR, 8 * i)
        a.e('s_nop 1')
    a.e('s_mov_b64 exec, -1')
    if STAMPS == 2:
        a.e('s_lshl_b32 s64, s2, 3')
        a.e('s_add_u32 s64, s64, s3')
        a.e('s_lshl_b32 s64, s64, 8')
        a.e('s_add_u32 s64, s64, %d', WS_ST + (1 << 20))
        a.e('v_and_b32 v1, 63, v0')
        a.e('v_lshlrev_b32 v1, 2, v1')
        a.e('v_add_u32 v1, s64, v1')
        a.e('buffer_store_dword v250, v1, %s, 0 offen', WSR)


def phi16(a, acc, out, t0, t1, e0, e1, mn):
    for j in range(8):
        a0, a1, p = acc + 2 * j, acc + 2 * j + 1, out + j
        a.e('v_cvt_pk_bf16_f32 v%d, v%d, v%d', p, a0, a1)
        a.e('v_lshlrev_b32 v%d, 16, v%d', t0, p)
        a.e('v_and_b32 v%d, 0xffff0000, v%d', t1, p)
        a.e('v_mul_f32 v%d, s%d, v%d', e0, S_LOG2E, t0)
        a.e('v_mul_f32 v%d, s%d, v%d', e1, S_LOG2E, t1)
        a.e('v_exp_f32 v%d, v%d clamp', e0, e0)
        a.e('v_exp_f32 v%d, v%d clamp', e1, e1)
        a.e('v_max_f32 v%d, 0, v%d', t0, t0)
        a.e('v_max_f32 v%d, 0, v%d', t1, t1)
        a.e('v_add_f32 v%d, v%d, v%d', t0, t0, e0)
        a.e('v_add_f32 v%d, v%d, v%d', t1, t1, e1)
        if j == 0:
            a.e('v_min_f32 v%d, v%d, v%d', mn, t0, t1)
        else:
            a.e('v_min3_f32 v%d, v%d, v%d, v%d', mn, t0, t1, mn)
        a.e('v_cvt_pk_bf16_f32 v%d, v%d, v%d', p, t0, t1)
    lab = a.label('phi')
    a.e('v_cmp_gt_f32 vcc, 0x3a800000, v%d', mn)
    a.e('s_cbranch_vccnz %s_fix', lab)
    a.e('%s_done:', lab)
    with a.cold():
        a.e('%s_fix:', lab)
        for j in range(8):
            p = out + j
            a.e('v_lshlrev_b32 v%d, 16, v%d', t0, p)
            a.e('v_and_b32 v%d, 0xffff0000, v%d', t1, p)
            a.e('v_add_f32 v%d, s%d, v%d', t0, S_EPS, t0)
            a.e('v_add_f32 v%d, s%d, v%d', t1, S_EPS, t1)
            a.e('v_cvt_pk_bf16_f32 v%d, v%d, v%d', p, t0, t1)
        a.e('s_branch %s_done', lab)


def wave_reduce(a, regs, op, stmp):
    pats = ['quad_perm:[1,0,3,2]', 'quad_perm:[2,3,0,1]', 'row_half_mirror', 'row_mirror']
    a.e('s_nop 1')
    for p in pats:
        if len(regs) < 3:
            a.e('s_nop 1')
        for r in regs:
            a.e('%s_dpp v%d, v%d, v%d %s row_mask:0xf bank_mask:0xf', op, r, r, r, p)
    a.e('s_nop 1')
    for r in regs:
        for q in range(4):
            a.e('v_readlane_b32 s%d, v%d, %d', stmp + q, r, 16 * q)
        a.e('s_nop 1')
        a.e('v_mov_b32 v%d, s%d', r, stmp)
        for q in range(1, 4):
            a.e('%s v%d, s%d, v%d', op, r, stmp + q, r)


def sigmoid_bf16(a, regs):
    for r in regs:
        a.e('v_mul_f32 v%d, s%d, v%d', r, S_LOG2E, r)
    for r in regs:
        a.e('v_exp_f32 v%d, -v%d', r, r)
    a.e('s_nop 0')
    for r in regs:
        a.e('v_add_f32 v%d, 1.0, v%d', r, r)
    for r in regs:
        a.e('v_rcp_f32 v%d, v%d', r, r)
    a.e('s_nop 0')
    for r in regs:
        a.e('v_cvt_pk_bf16_f32 v%d, v%d, v%d', r, r, r)
    for r in regs:
        a.e('v_lshlrev_b32 v%d, 16, v%d', r, r)


def p2_ids(a):
    a.e('s_and_b32 s64, s2, 7')
    a.e('s_lshr_b32 s65, s2, 3')
    a.e('s_and_b32 s4, s64, 3')
    a.e('s_lshl_b32 s4, s4, 2')
    a.e('s_and_b32 s66, s65, 3')
    a.e('s_add_u32 s4, s4, s66')
    a.e('s_lshr_b32 s5, s64, 2')
    a.e('s_lshl_b32 s5, s5, 3')
    a.e('s_lshr_b32 s74, s65, 2')
    a.e('s_add_u32 s5, s5, s74')


def wo_voff(a, vdst, t0, t1, s_piece):
    a.e('v_lshrrev_b32 v%d, 3, v2', t0)
    a.e('s_lshl_b32 s64, s%d, 3', s_piece)
    a.e('v_add_u32 v%d, s64, v%d', t0, t0)
    a.e('v_lshlrev_b32 v%d, 11, v%d', t0, t0)
    a.e('v_bfe_u32 v%d, v2, 4, 1', t1)
    a.e('v_lshlrev_b32 v%d, 2, v%d', t1, t1)
    a.e('v_and_b32 v%d, 7, v2', vdst)
    a.e('v_xor_b32 v%d, v%d, v%d', t1, t1, vdst)
    a.e('v_lshl_add_u32 v%d, v%d, 4, v%d', t0, t1, t0)
    a.e('s_lshl_b32 s64, s5, 7')
    a.e('v_add_u32 v%d, s64, v%d', vdst, t0)


def wo_dma(a, pos, voff, s_w1k, tag):
    a.e('s_add_u32 s65, s74, %d', pos & 7)
    a.e('s_and_b32 s65, s65, 7')
    if pos >= 8:
        a.e('s_add_u32 s65, s65, 8')
    a.e('s_lshl_b32 s65, s65, 17')
    for b in range(2):
        a.e('s_add_u32 m0, s%d, %d', s_w1k, POS[pos] + b * 4096)
        if b:
            a.e('s_add_u32 s65, s65, 65536')
        else:
            a.e('s_nop 0')
        a.vm_issue(tag, 'buffer_load_dwordx4 v%d, %s, s65 offen' + NTO + ' lds', voff, sr(S_WO, 4))


XO = 220
T2 = 232
VRO, VXO = 230, 231


def xo_loads(a):
    if 'noxo' in EXP:
        a.e('v_mov_b32 v%d, 0', VRO)
        a.e('v_mov_b32 v%d, 0', VXO)
        return
    a.e('v_lshrrev_b32 v%d, 3, v0', VRO)
    a.e('s_lshl_b32 s64, s4, 7')
    a.e('v_add_u32 v%d, s64, v%d', VRO, VRO)
    a.e('v_lshlrev_b32 v%d, 11, v%d', VXO, VRO)
    a.e('v_and_b32 v3, 7, v0')
    a.e('v_lshl_add_u32 v%d, v3, 4, v%d', VXO, VXO)
    a.e('s_lshl_b32 s64, s5, 7')
    a.e('v_add_u32 v%d, s64, v%d', VXO, VXO)
    a.e('s_mov_b32 s64, 131072')
    a.e('v_lshlrev_b32 v3, 2, v%d', VRO)
    a.e('v_add_u32 v3, %d, v3', WS_G)
    a.vm_issue('xo', 'buffer_load_dwordx4 %s, v%d, %s, 0 offen', vr(XO, 4), VXO, sr(S_X, 4))
    a.vm_issue('xo', 'buffer_load_dwordx4 %s, v%d, %s, s64 offen', vr(XO + 4, 4), VXO, sr(S_X, 4))
    a.vm_issue('xo', 'buffer_load_dword v%d, v3, %s, 0 offen sc1', XO + 8, WSR)
    a.vm_issue('xo', 'buffer_load_dword v%d, v3, %s, 0 offen offset:256 sc1', XO + 9, WSR)


OM = [248, 249]


def t2_fill(a):
    for half in range(2):
        X, Gr, T, om = XO + 4 * half, XO + 8 + half, T2 + 8 * half, OM[half]
        a.e('v_sub_f32 v%d, 1.0, v%d', om, Gr)
        a.e('v_cvt_pk_bf16_f32 v%d, v%d, v%d', om, om, om)
        a.e('v_lshlrev_b32 v%d, 16, v%d', om, om)
        for q in range(4):
            x0, x1 = T + 2 * q, T + 2 * q + 1
            a.e('v_lshlrev_b32 v%d, 16, v%d', x0, X + q)
            a.e('v_and_b32 v%d, 0xffff0000, v%d', x1, X + q)
            a.e('v_mul_f32 v%d, v%d, v%d', x0, x0, om)
            a.e('v_mul_f32 v%d, v%d, v%d', x1, x1, om)
            a.e('v_cvt_pk_bf16_f32 v3, v%d, v%d', x0, x1)
            a.e('v_lshlrev_b32 v%d, 16, v3', x0)
            a.e('v_and_b32 v%d, 0xffff0000, v3', x1)


def gen(a):
    kn = NAME + '_kernel'
    a.e('.globl %s\n.p2align 8\n.type %s,@function\n%s:' % (kn, kn, kn))
    a.e('s_load_dwordx16 s[40:55], s[0:1], 0')
    a.e('s_load_dwordx8 s[56:63], s[0:1], 64')
    a.e('s_cmp_ge_u32 s2, 256')
    a.e('s_cbranch_scc1 K_end')
    stamp(a, 0, True); stamp(a, 1, False)
    a.e('v_lshrrev_b32 v1, 6, v0')
    a.e('v_and_b32 v2, 63, v0')
    a.e('s_and_b32 s6, s2, 7')
    a.e('v_readfirstlane_b32 s3, v1')
    a.e('s_lshr_b32 s7, s2, 3')
    a.e('s_and_b32 s4, s6, 1')
    a.e('s_lshl_b32 s4, s4, 3')
    a.e('s_and_b32 s64, s7, 7')
    a.e('s_add_u32 s4, s4, s64')
    a.e('s_lshr_b32 s5, s6, 1')
    a.e('s_lshl_b32 s5, s5, 2')
    a.e('s_lshr_b32 s64, s7, 3')
    a.e('s_add_u32 s5, s5, s64')
    ROT = os.environ.get('ROT', 'none')
    if ROT == 'rt':
        a.e('s_lshl_b32 s74, s4, 1')
    elif ROT == 'xcd':
        a.e('s_lshl_b32 s74, s6, 1')
    elif ROT == 'xcd1':
        a.e('s_mov_b32 s74, s6')
    elif ROT == 'rt1':
        a.e('s_mov_b32 s74, s4')
    else:
        a.e('s_mov_b32 s74, 0')
    a.e('v_lshrrev_b32 v6, 3, v2')
    a.e('s_lshl_b32 s65, s3, 3')
    a.e('v_add_u32 v6, s65, v6')
    a.e('s_lshl_b32 s64, s4, 7')
    a.e('v_add_u32 v7, s64, v6')
    a.e('v_lshlrev_b32 v7, 11, v7')
    a.e('v_lshrrev_b32 v8, 4, v2')
    a.e('s_and_b32 s64, s3, 1')
    a.e('s_lshl_b32 s64, s64, 2')
    a.e('v_add_u32 v9, s64, v8')
    a.e('v_and_b32 v10, 7, v2')
    a.e('v_xor_b32 v9, v9, v10')
    a.e('v_lshl_add_u32 v7, v9, 4, v7')
    a.e('v_mul_u32_u24 v6, 6144, v6')
    a.e('v_and_b32 v9, 1, v8')
    a.e('v_lshlrev_b32 v9, 2, v9')
    a.e('v_xor_b32 v9, v9, v10')
    a.e('v_lshl_add_u32 v6, v9, 4, v6')
    a.e('s_lshl_b32 s64, s5, 7')
    a.e('v_add_u32 v6, s64, v6')
    a.e('s_lshl_b32 s66, s3, 10')
    a.e('s_mov_b32 s10, 4194304')
    a.e('s_mov_b32 s11, 0x00020000')
    a.e('s_mov_b32 s14, 6291456')
    a.e('s_mov_b32 s15, 0x00020000')

    def dma8(stage):
        a.e('s_add_u32 s65, s74, %d', stage)
        a.e('s_and_b32 s65, s65, 15')
        a.e('s_lshl_b32 s67, s65, 7')
        a.e('s_mul_i32 s65, s65, 393216')
        if stage == 0:
            a.e('s_waitcnt lgkmcnt(0)')
            a.e('s_mov_b32 s8, s40'); a.e('s_mov_b32 s9, s41')
            a.e('s_mov_b32 s12, s42'); a.e('s_mov_b32 s13, s43')
        for aa in range(2):
            a.e('s_add_u32 m0, s66, %d', RB + stage * SLOT + aa * 8192)
            a.e('s_add_u32 s64, s67, %d', aa * 131072)
            a.vm_issue('d%d' % stage, 'buffer_load_dwordx4 v7, %s, s64 offen' + NTA + ' lds', sr(S_X, 4))
        for ty in range(3):
            a.e('s_add_u32 m0, s66, %d', RB + stage * SLOT + 16384 + ty * 8192)
            a.e('s_add_u32 s64, s65, %d', ty * 2048)
            a.vm_issue('d%d' % stage, 'buffer_load_dwordx4 v6, %s, s64 offen' + NTB + ' lds', sr(S_W, 4))
    dma8(0)
    a.e('s_barrier')
    a.e('s_mov_b32 s%d, 0x%x', S_LOG2E, LOG2E)
    a.e('s_mov_b32 s%d, 0x%x', S_EPS, EPS6)
    srd(a, S_WS, 62, WS_BYTES)
    a.e('s_cmp_lt_u32 s3, 4')
    a.e('s_cbranch_scc1 C_start')
    vm_entry = list(a.vm)
    gen_h1(a)
    a.vm = list(vm_entry)
    gen_c1(a)
    gen_p2(a)


def gen_h1(a):
    VOA, VOB = 4, 5
    a.e('s_sub_u32 s6, s3, 4')
    a.e('s_lshl_b32 s7, s6, 10')
    a.e('v_lshrrev_b32 v6, 3, v2')
    a.e('s_lshl_b32 s64, s4, 7')
    a.e('s_lshl_b32 s65, s6, 3')
    a.e('s_add_u32 s64, s64, s65')
    a.e('v_add_u32 v7, s64, v6')
    a.e('v_lshlrev_b32 v7, 11, v7')
    a.e('s_and_b32 s64, s6, 1')
    a.e('s_lshl_b32 s64, s64, 2')
    a.e('v_add_u32 v9, s64, v8')
    a.e('v_xor_b32 v9, v9, v10')
    a.e('v_lshl_add_u32 v%d, v9, 4, v7', VOA)
    a.e('v_add_u32 v7, s65, v6')
    a.e('v_mul_u32_u24 v7, 6144, v7')
    a.e('v_and_b32 v9, 1, v8')
    a.e('v_lshlrev_b32 v9, 2, v9')
    a.e('v_xor_b32 v9, v9, v10')
    a.e('v_lshl_add_u32 v7, v9, 4, v7')
    a.e('s_lshl_b32 s64, s5, 7')
    a.e('v_add_u32 v%d, s64, v7', VOB)

    def dma(stage):
        slot = stage % 3
        if 'nodma' in EXP and stage >= 3:
            a.vm_issue('d%d' % stage, 's_nop 0')
            return
        a.e('s_add_u32 s65, s74, %d', stage)
        a.e('s_and_b32 s65, s65, 15')
        a.e('s_lshl_b32 s67, s65, 7')
        a.e('s_mul_i32 s65, s65, 393216')
        for aa in range(4):
            a.e('s_add_u32 m0, s7, %d', RB + slot * SLOT + aa * 4096)
            a.e('s_add_u32 s64, s67, %d', aa * 65536)
            a.vm_issue('d%d' % stage, 'buffer_load_dwordx4 v%d, %s, s64 offen' + NTA + ' lds', VOA, sr(S_X, 4))
        for ty in range(3):
            for b in range(2):
                a.e('s_add_u32 m0, s7, %d', RB + slot * SLOT + 16384 + ty * 8192 + b * 4096)
                a.e('s_add_u32 s64, s65, %d', b * 196608 + ty * 2048)
                a.vm_issue('d%d' % stage, 'buffer_load_dwordx4 v%d, %s, s64 offen' + NTB + ' lds', VOB, sr(S_W, 4))
    V16 = 6
    a.e('v_lshlrev_b32 v%d, 4, v2', V16)
    a.e('s_and_b32 s64, s2, 1')
    a.e('s_lshl_b32 s68, s64, 10')
    a.e('s_bfe_u32 s64, s2, 0x20001')
    a.e('s_lshl_b32 s64, s64, 8')
    a.e('s_add_u32 s68, s68, s64')
    a.e('s_and_b32 s64, s2, 0xf8')
    a.e('s_add_u32 s68, s68, s64')
    a.e('s_lshl_b32 s64, s6, 1')
    a.e('s_add_u32 s68, s68, s64')
    a.e('s_lshl_b32 s64, s68, 11')
    a.e('v_add_u32 v13, s64, v%d', V16)
    XR, WR, GW, WF = 24, 40, 48, 56
    RL = E('RL', -1)

    def x_rows():
        for q in range(4):
            a.vm_issue('r', 'buffer_load_dwordx4 %s, v13, %s, 0 offen offset:%d', vr(XR + 4 * q, 4), sr(S_X, 4), q * 1024)
    if 'rows0' in EXP:
        x_rows()
    dma(1)
    a.e('s_or_b32 s64, s2, s6')
    a.e('s_cmp_lg_u32 s64, 0')
    a.e('s_cbranch_scc1 H_nn')
    a.e('s_mov_b32 s64, %d', WS_KEY)
    a.e('s_load_dwordx2 s[66:67], s[62:63], s64')
    srd(a, S_DBG, 60, 256)
    a.e('s_waitcnt lgkmcnt(0)')
    a.e('s_xor_b32 s64, s66, s67')
    a.e('s_add_u32 s64, s64, 1')
    a.e('s_max_u32 s64, s64, 1')
    a.e('v_mov_b32 v72, s64')
    a.e('v_mov_b32 v73, 0')
    a.e('s_mov_b64 exec, 1')
    a.vm_uncounted('buffer_store_dword v72, v73, %s, 0 offen' % sr(S_DBG, 4) + WT)
    a.e('s_mov_b64 exec, -1')
    a.e('H_nn:')
    stamp(a, 3)
    srd(a, S_DBG, 60, 256)
    srd(a, S_WR, 48, 2048)
    srd(a, S_GW, 56, 2048)
    srd(a, S_WG, 50, 7340032)
    srd(a, S_WU, 52, 7340032)
    VWG, VHP, VKB = 11, 12, 14
    a.e('s_lshr_b32 s69, s2, 3')
    a.e('s_and_b32 s64, s2, 7')
    a.e('v_and_b32 v9, 15, v2')
    a.e('v_min_u32 v9, 13, v9')
    a.e('s_lshl_b32 s65, s69, 5')
    a.e('v_lshl_add_u32 v7, v8, 3, s65')
    a.e('v_mul_u32_u24 v7, 7168, v7')
    a.e('s_mul_i32 s65, s64, 896')
    a.e('s_mul_i32 s66, s6, 224')
    a.e('s_add_u32 s65, s65, s66')
    a.e('v_lshl_add_u32 v7, v9, 4, v7')
    a.e('v_add_u32 v%d, s65, v7', VWG)
    a.e('v_cmp_le_u32 vcc, 7, v9')
    a.e('v_mov_b32 v15, %d', 16384 - 7 * 32)
    a.e('v_cndmask_b32 v7, 0, v15, vcc')
    a.e('v_lshl_add_u32 v7, v9, 5, v7')
    a.e('v_lshrrev_b32 v15, 1, v8')
    a.e('v_lshl_add_u32 v7, v15, 13, v7')
    a.e('v_and_b32 v15, 1, v8')
    a.e('v_lshl_add_u32 v7, v15, 4, v7')
    a.e('s_lshl_b32 s64, s64, 17')
    a.e('s_lshl_b32 s65, s6, 15')
    a.e('s_add_u32 s64, s64, s65')
    a.e('s_lshl_b32 s65, s69, 8')
    a.e('s_add_u32 s64, s64, s65')
    a.e('s_add_u32 s64, s64, %d', WS_HP)
    a.e('v_add_u32 v%d, s64, v7', VHP)
    a.e('s_lshl_b32 s70, s5, 2')
    a.e('s_add_u32 s70, s70, s6')
    a.e('s_mul_i32 s70, s70, %d', 16 * KVB)
    a.e('s_add_u32 s70, s70, %d', WS_KVP)
    a.e('s_mul_i32 s64, s4, %d', KVB)
    a.e('s_add_u32 s64, s64, s70')
    a.e('s_mov_b32 s67, s64')
    a.e('v_lshl_add_u32 v15, v2, 2, s64')
    a.e('v_add_u32 v15, %d, v15', KVZ - 64)
    a.e('s_lshl_b32 s64, s5, 2')
    a.e('s_add_u32 s64, s64, s6')
    a.e('s_lshl_b32 s64, s64, 7')
    a.e('s_add_u32 s64, s64, %d', WS_F1)
    a.e('v_mov_b32 v23, s64')
    a.e('s_lshl_b32 s65, s4, 7')
    a.e('s_add_u32 s65, s65, %d', WS_F2)
    a.e('v_writelane_b32 v15, s64, 0')
    a.e('v_writelane_b32 v15, s65, 1')
    a.e('s_add_u32 s65, s65, 4')
    a.e('v_writelane_b32 v15, s65, 2')
    a.e('s_cmp_eq_u32 s4, 0')
    a.e('s_cselect_b32 s75, 1, 0')
    a.e('s_or_b32 s64, s5, s6')
    a.e('s_cmp_eq_u32 s64, 0')
    a.e('s_cselect_b32 s64, 6, 0')
    a.e('s_or_b32 s75, s75, s64')
    a.e('s_or_b32 s75, s75, 0xffff0000')
    a.e('v_add_u32 v22, s67, v%d', V16)
    for r in range(5):
        a.e('v_mov_b32 v%d, -1', 16 + r)
    a.e('v_writelane_b32 v20, 0, 0')
    a.e('v_writelane_b32 v20, 0, 1')
    a.e('v_writelane_b32 v20, 0, 2')
    a.vm_wait('d0')
    stamp(a, 4)
    a.e('s_barrier')
    dma(2)
    MASK14 = 's_mov_b32 exec_lo, 0x3fff3fff\ns_mov_b32 exec_hi, 0x3fff3fff'

    def init_stores():
        a.vm_issue('init', 'buffer_store_dwordx4 v[16:19], v22, %s, 0 offen' + WT, WSR)
        a.e('s_mov_b32 exec_lo, s75\ns_mov_b32 exec_hi, 0')
        a.vm_issue('init', 'buffer_store_dword v20, v15, %s, 0 offen' + WT, WSR)
        a.e(MASK14)
        a.vm_issue('init', 'buffer_store_dwordx4 v[16:19], v%d, %s, 0 offen' + WT, VHP, WSR)
        a.e('s_mov_b64 exec, 0xffff')
        a.e('s_lshl_b32 s64, s2, 10')
        a.e('s_lshl_b32 s65, s6, 8')
        a.e('s_add_u32 s64, s64, s65')
        a.e('s_add_u32 s64, s64, %d', WS_YP)
        a.vm_issue('init', 'buffer_store_dwordx4 v[16:19], v%d, %s, s64 offen' + WT, V16, WSR)
        a.e('s_mov_b64 exec, -1')

    def row_loads():
        if 'rows0' not in EXP:
            x_rows()
        for q in range(2):
            a.vm_issue('r', 'buffer_load_dwordx4 %s, v%d, %s, 0 offen offset:%d', vr(WR + 4 * q, 4), V16, sr(S_WR, 4), q * 1024)
        for q in range(2):
            a.vm_issue('r', 'buffer_load_dwordx4 %s, v%d, %s, 0 offen offset:%d', vr(GW + 4 * q, 4), V16, sr(S_GW, 4), q * 1024)

    WGT = 96
    XS = 88
    WD = 192
    wl = [(m, j) for j in range(8) for m in range(2)]
    TR = [int(c) for c in os.environ.get('TR', '11212121212122110')]
    assert len(TR) == 17 and sum(TR) == 23, sum(TR)
    allw = [('w', x) for x in wl] + [('d', j) for j in range(7)]
    wsched, dsched = {}, {}
    for k, n in enumerate(TR):
        for kind, x in allw[sum(TR[:k]):sum(TR[:k + 1])]:
            (wsched if kind == 'w' else dsched).setdefault(k - 1, []).append(x)
    D0 = min(dsched)
    GV = E('GV', 13)
    VWD = 21

    def wload(lst):
        if 'now' in EXP:
            return
        a.e(MASK14)
        for (m, j) in lst:
            a.e('s_mov_b32 s64, %d', j * 7168)
            a.vm_issue('w', 'buffer_load_dwordx4 %s, v%d, %s, s64 offen' + NTW, vr(WGT + 32 * m + 4 * j, 4), VWG, sr(S_WG if m == 0 else S_WU, 4))
        a.e('s_mov_b64 exec, -1')

    GA = 32

    def gemv1_part(pairs):
        if pairs[0] == 0:
            a.vm_wait('xs')
            a.vm_wait('w')
            stamp(a, 6)
        a.e('s_mov_b32 s64, 0x05040100')
        a.e('s_mov_b32 s65, 0x07060302')
        for jp in pairs:
            for m in range(2):
                for q in range(4):
                    w0 = WGT + 32 * m + 8 * jp + q
                    t = 48 + 2 * (q & 1)
                    a.e('v_perm_b32 v%d, v%d, v%d, s64', t, w0 + 4, w0)
                    a.e('v_perm_b32 v%d, v%d, v%d, s65', t + 1, w0 + 4, w0)
                    for k in range(2):
                        acc = GA + 8 * m + 2 * q + k
                        a.e('v_dot2_f32_bf16 v%d, v%d, v%d, %s', acc, t + k, XS + jp, '0' if jp == 0 else 'v%d' % acc)

    def gemv1_fin():
        a.e('s_nop 2')
        a.e('s_nop 1')
        for m in range(2):
            for q in range(4):
                a.e('v_permlane16_swap_b32 v%d, v%d', GA + 8 * m + q, GA + 8 * m + q + 4)
        for m in range(2):
            for q in range(4):
                a.e('v_add_f32 v%d, v%d, v%d', GA + 8 * m + q, GA + 8 * m + q, GA + 8 * m + q + 4)
        a.e('s_nop 1')
        for q in range(4):
            a.e('v_permlane32_swap_b32 v%d, v%d', GA + q, GA + 8 + q)
        for q in range(4):
            a.e('v_add_f32 v%d, v%d, v%d', GA + q, GA + q, GA + 8 + q)
        a.e(MASK14)
        a.vm_issue('hp', 'buffer_store_dwordx4 %s, v%d, %s, 0 offen' + WT, vr(GA, 4), VHP, WSR)
        a.e('s_mov_b64 exec, -1')
        stamp(a, 7)

    def h0_only(name):
        a.e('s_cmp_lg_u32 s6, 0')
        a.e('s_cbranch_scc1 %s', name)

    IN = E('IN', 0)
    PB = E('PB', 10)
    VOW = 10
    if RL == -1:
        row_loads()
    if IN == -1:
        init_stores()
    if -1 in wsched:
        wload(wsched[-1])
    marks = {}
    for i in range(16):
        if i + 1 < 16:
            a.vm_wait('d%d' % (i + 1))
        if i in (RL + 5, PB + 2):
            a.e('s_waitcnt lgkmcnt(0)')
        a.e('s_barrier')
        if i + 3 < 16:
            dma(i + 3)
        if i == RL:
            row_loads()
        if i == IN:
            init_stores()
        if i == RL + 3:
            a.vm_wait('r')
            for q in range(8):
                for k, (x, w) in enumerate(((XR + q, GW + q), (XR + 8 + q, GW + q), (XR + q, WR + q), (XR + 8 + q, WR + q))):
                    a.e('v_dot2_f32_bf16 v%d, v%d, v%d, %s', 72 + k, x, w, '0' if q == 0 else 'v%d' % (72 + k))
        if i == RL + 4:
            a.e('v_permlane32_swap_b32 v72, v74')
            a.e('v_permlane32_swap_b32 v73, v75')
            a.e('v_add_f32 v72, v72, v74')
            a.e('v_add_f32 v73, v73, v75')
            a.e('s_lshl_b32 s64, s68, 2')
            a.e('s_add_u32 s64, s64, %d', WS_G)
            a.e('v_permlane16_swap_b32 v72, v73')
            a.e('v_add_f32 v72, v72, v73')
            a.e('v_and_b32 v75, 1, v8')
            a.e('v_lshl_add_u32 v76, v75, 2, s64')
            for pat in ('quad_perm:[1,0,3,2]', 'quad_perm:[2,3,0,1]', 'row_half_mirror', 'row_mirror'):
                a.e('v_add_f32_dpp v72, v72, v72 %s row_mask:0xf bank_mask:0xf', pat)
                a.e('s_nop 1')
            a.e('v_cvt_pk_bf16_f32 v72, v72, v72')
            a.e('s_sub_u32 s64, %d, s68', 2047 + 0x8000)
            a.e('v_lshlrev_b32 v72, 16, v72')
            a.e('v_ashrrev_i32 v73, 31, v72')
            a.e('v_sub_u32 v77, s64, v75')
            a.e('v_or_b32 v73, 0x80000000, v73')
            a.e('s_lshl_b32 s64, s6, 3')
            a.e('v_xor_b32 v73, v72, v73')
            a.e('v_lshl_add_u32 v75, v75, 2, s64')
            a.e('v_and_b32 v73, 0xffff0000, v73')
            a.e('v_or_b32 v73, v77, v73')
            sigmoid_bf16(a, [72])
            a.e('s_mov_b32 exec_lo, 0\ns_mov_b32 exec_hi, 0x10001')
            a.e('ds_write_b32 v75, v73 offset:%d', L_KEY)
            a.e('s_mov_b32 exec_lo, 0x10001\ns_mov_b32 exec_hi, 0')
            a.vm_issue('g', 'buffer_store_dword v72, v76, %s, 0 offen' + WT, WSR)
            a.e('s_mov_b64 exec, -1')
        if i == RL + 2:
            a.e('v_mov_b32 v79, 0')
            h0_only('H_nc')
            a.vm_uncounted('buffer_load_dword v78, v79, %s, 0 offen sc1' % sr(S_DBG, 4))
            a.e('H_nc:')
        if i == RL + 7:
            assert IN <= RL + 4
            h0_only('H_nk')
            a.e('v_mov_b32 v76, %d', L_KEY)
            a.e('ds_read_b128 v[72:75], v76')
            a.e('ds_read_b128 v[24:27], v76 offset:16')
            a.e('s_mov_b32 s65, 0')
            a.e('H_nspin:')
            a.e('v_readfirstlane_b32 s71, v78')
            a.e('s_add_u32 s65, s65, 1')
            a.e('s_cmp_lg_u32 s71, 0')
            a.e('s_cbranch_scc1 H_nok')
            a.e('s_cmp_ge_u32 s65, 200000')
            a.e('s_cbranch_scc1 H_nok')
            a.e('s_sleep 4')
            a.e('buffer_load_dword v78, v79, %s, 0 offen sc1' % sr(S_DBG, 4))
            a.e('s_waitcnt vmcnt(0)')
            a.e('s_branch H_nspin')
            a.e('H_nok:')
            a.e('s_lshl_b32 s64, s2, 3')
            a.e('s_add_u32 s64, s64, %d', WS_KEY)
            a.e('v_mov_b32 v76, s64')
            a.e('s_waitcnt lgkmcnt(0)')
            a.e('v_max3_u32 v72, v72, v73, v74')
            a.e('v_max3_u32 v24, v24, v25, v26')
            a.e('v_max3_u32 v72, v72, v75, v27')
            a.e('v_max_u32 v72, v72, v24')
            a.e('v_xor_b32 v73, s71, v72')
            a.e('s_mov_b64 exec, 1')
            a.vm_uncounted('buffer_store_dwordx2 v[72:73], v76, %s, 0 offen' % WSR + WT)
            a.e('s_mov_b64 exec, -1')
            a.e('H_nk:')

        def key_loads():
            a.e('s_mov_b32 s64, %d', WS_KEY)
            for q in range(2):
                a.vm_uncounted('buffer_load_dwordx4 %s, v%d, %s, s64 offen offset:%d sc1' % (vr(24 + 4 * q, 4), V16, WSR, q * 1024))
        if i == PB:
            h0_only('H_np')
            key_loads()
            a.e('H_np:')
            marks['poll'] = a.issued
        if i == PB + 1:
            h0_only('H_nq')
            a.e('s_waitcnt vmcnt(%d)', a.issued - marks['poll'])
            a.e('s_mov_b32 s65, 0')
            a.e('H_spin:')
            for q in range(4):
                a.e('v_xor_b32 v%d, v%d, v%d', 25 + 2 * q, 24 + 2 * q, 25 + 2 * q)
            a.e('v_xor_b32 v80, s71, v25')
            a.e('v_xor_b32 v81, s71, v27')
            a.e('v_xor_b32 v25, s71, v29')
            a.e('v_xor_b32 v27, s71, v31')
            a.e('v_or3_b32 v80, v80, v81, v25')
            a.e('v_or_b32 v80, v80, v27')
            a.e('v_cmp_ne_u32 vcc, 0, v80')
            a.e('s_cbranch_vccz H_pollok')
            a.e('s_add_u32 s65, s65, 1')
            a.e('s_cmp_ge_u32 s65, 200000')
            a.e('s_cbranch_scc1 H_pollok')
            a.e('s_sleep 8')
            key_loads()
            a.e('s_waitcnt vmcnt(0)')
            a.e('s_branch H_spin')
            a.e('H_pollok:')
            a.e('v_max_u32 v80, v24, v26')
            a.e('v_max3_u32 v80, v80, v28, v30')
            a.e('s_nop 1')
            for pat in ('quad_perm:[1,0,3,2]', 'quad_perm:[2,3,0,1]', 'row_half_mirror', 'row_mirror'):
                a.e('v_max_u32_dpp v80, v80, v80 %s row_mask:0xf bank_mask:0xf', pat)
                a.e('s_nop 1')
            for swp in ('v_permlane16_swap_b32', 'v_permlane32_swap_b32'):
                a.e('v_mov_b32 v81, v80')
                a.e('s_nop 1')
                a.e('%s v80, v81', swp)
                a.e('v_max_u32 v80, v80, v81')
            a.e('v_mov_b32 v81, %d', L_KEY + 32)
            a.e('ds_write_b32 v81, v80')
            a.e('H_nq:')
        if i in wsched:
            wload(wsched[i])
        if i == PB + 2:
            a.e('v_mov_b32 v81, %d', L_KEY + 32)
            a.e('ds_read_b32 v80, v81')
            a.e('s_lshl_b32 s65, s69, 6')
            a.e('v_lshl_add_u32 v81, v8, 4, s65')
            a.e('s_waitcnt lgkmcnt(0)')
            a.e('v_readfirstlane_b32 s75, v80')
            a.e('s_nop 3')
            a.e('s_and_b32 s64, s75, 0x7ff')
            a.e('s_sub_u32 s64, 2047, s64')
            a.e('s_lshl_b32 s64, s64, 11')
            a.vm_issue('xs', 'buffer_load_dwordx4 %s, v81, %s, s64 offen', vr(XS, 4), sr(S_X, 4))
        if i == D0:
            assert D0 > RL
            srd(a, S_WD, 54, 7340032)
            a.e('s_lshr_b32 s64, s2, 2')
            a.e('s_mul_i32 s64, s64, %d', 56 * 2048)
            a.e('s_and_b32 s65, s2, 3')
            a.e('s_lshl_b32 s65, s65, 9')
            a.e('s_add_u32 s64, s64, s65')
            a.e('s_lshl_b32 s65, s6, 7')
            a.e('s_add_u32 s64, s64, s65')
            a.e('v_lshrrev_b32 v7, 3, v2')
            a.e('v_lshlrev_b32 v7, 11, v7')
            a.e('v_and_b32 v9, 7, v2')
            a.e('v_lshl_add_u32 v7, v9, 4, v7')
            a.e('v_add_u32 v%d, s64, v7', VWD)
        if i in dsched and 'now' not in EXP:
            for j in dsched[i]:
                a.e('s_mov_b32 s64, %d', j * 16384)
                a.vm_issue('wd', 'buffer_load_dwordx4 %s, v%d, %s, s64 offen' + NTW, vr(WD + 4 * j, 4), VWD, sr(S_WD, 4))
        if i == 13:
            p2_ids(a)
            srd(a, S_WO, 44, 2097152)
            wo_voff(a, VOW, 7, 9, 6)
            for p in (0, 8, 1, 9):
                wo_dma(a, p, VOW, 7, 'wo')
        if i == 14:
            for p in (2, 10, 3, 11):
                wo_dma(a, p, VOW, 7, 'wo')
        if i == 15:
            xo_loads(a)
        if i == 15 and 'wolate' not in EXP and 'nowo' not in EXP:
            for p in (4, 12, 5, 13, 6, 14, 7, 15):
                wo_dma(a, p, VOW, 7, 'wo')
        if i == GV:
            gemv1_part([0, 1])
        if i == GV + 1:
            gemv1_part([2, 3])
            gemv1_fin()
    stamp(a, 5)
    if 'gprio' in EXP:
        a.e('s_setprio 3')
    KB, KA, PA = 64, 128, 48
    SL = 40

    def f1_poll():
        a.e('s_mov_b64 exec, 1')
        a.e('v_mov_b32 v20, 0')
        a.e('buffer_atomic_or v20, v23, %s, 0 offen sc0', WSR)
        a.e('s_mov_b64 exec, -1')
    f1_poll()
    a.e('v_add_u32 v17, s70, v%d', V16)
    a.e('v_lshrrev_b32 v18, 2, v2')
    a.e('v_mul_u32_u24 v18, %d, v18', KVB)
    a.e('v_and_b32 v19, 3, v2')
    a.e('v_lshl_add_u32 v18, v19, 4, v18')
    a.e('s_add_u32 s64, s70, %d', KVZ)
    a.e('v_add_u32 v18, s64, v18')
    a.e('v_bfe_u32 v26, v2, 3, 1')
    a.e('v_lshl_add_u32 v26, v26, 2, v19')
    a.e('v_bfe_u32 v27, v2, 2, 1')
    a.e('v_lshrrev_b32 v28, 5, v2')
    a.e('v_cmp_eq_u32 vcc, v27, v28')
    a.e('v_and_b32 v27, 16, v2')
    a.e('v_cmp_eq_u32 s[64:65], 0, v27')
    a.e('s_and_b64 vcc, vcc, s[64:65]')
    a.e('v_and_b32 v27, 1, v26')
    a.e('v_lshlrev_b32 v27, 4, v27')
    a.e('v_mov_b32 v28, 0x3f80')
    a.e('v_lshlrev_b32 v27, v27, v28')
    a.e('v_cndmask_b32 v27, 0, v27, vcc')
    a.e('v_lshrrev_b32 v26, 1, v26')
    for q in range(4):
        a.e('v_cmp_eq_u32 vcc, %d, v26', q)
        a.e('s_nop 1')
        a.e('v_cndmask_b32 v%d, 0, v27, vcc', PA + q)
    for r in range(16):
        a.e('v_mov_b32 v%d, 0', KA + r)
    a.e('s_mov_b32 s66, 0xffff')
    a.e('s_mov_b32 s65, 0')
    a.e('s_waitcnt vmcnt(0)')
    a.e('G_loop:')
    a.e('v_readfirstlane_b32 s68, v20')
    if E('SPEC', 0):
        a.e('s_bcnt1_i32_b32 s64, s66')
        a.e('s_cmp_le_u32 s64, %d', E('SPEC', 0))
        a.e('s_cselect_b32 s68, 0xffff, s68')
    a.e('s_and_b32 s68, s68, s66')
    a.e('s_andn2_b32 s66, s66, s68')
    if STAMPS == 2:
        a.e('s_memrealtime s[86:87]')
        a.e('s_min_u32 s64, s65, 30')
        a.e('s_lshl_b32 m0, s64, 1')
        a.e('s_waitcnt lgkmcnt(0)')
        a.e('v_writelane_b32 v250, s86, m0')
        a.e('s_add_u32 m0, m0, 1')
        a.e('s_nop 0')
        a.e('v_writelane_b32 v250, s66, m0')
        a.e('v_writelane_b32 v250, s65, 63')
    a.e('s_bcnt1_i32_b32 s67, s68')

    def jump_n(pref):
        def rec(lo, hi, last):
            if lo == hi:
                if not (last and lo == 16):
                    a.e('s_branch %s%d', pref, lo)
                return
            mid = lo if hi - lo < 3 else (lo + hi) // 2
            if mid == lo:
                a.e('s_cmp_eq_u32 s67, %d', lo)
                a.e('s_cbranch_scc1 %s%d', pref, lo)
                rec(lo + 1, hi, last)
            else:
                lab = a.label(pref + 't')
                a.e('s_cmp_gt_u32 s67, %d', mid)
                a.e('s_cbranch_scc1 %s', lab)
                rec(lo, mid, False)
                a.e('%s:', lab)
                rec(mid + 1, hi, last)
        a.e('s_cmp_eq_u32 s67, 0')
        a.e('s_cbranch_scc1 %s0', pref)
        rec(1, 16, True)
    jump_n('G_l')
    for c in range(15, -1, -1):
        a.e('G_l%d:', c + 1)
        a.e('s_ff1_i32_b32 s%d, s68', SL + c)
        a.e('s_bitset0_b32 s68, s%d', SL + c)
        a.e('s_mul_i32 s64, s%d, %d', SL + c, KVB)
        a.e('buffer_load_dwordx4 %s, v17, %s, s64 offen sc1', vr(KB + 4 * c, 4), WSR)
    a.e('G_l0:')
    a.e('s_mov_b32 s68, s66')
    a.e('s_cmp_eq_u32 s66, 0')
    a.e('s_cbranch_scc1 G_z')
    a.e('s_cmp_lg_u32 s67, 0')
    a.e('s_cbranch_scc1 G_p')
    a.e('s_sleep %d', E('GSL', 2))
    a.e('G_p:')
    f1_poll()
    a.e('s_branch G_proc')
    a.e('G_z:')
    a.e('buffer_load_dwordx4 v[56:59], v18, %s, 0 offen sc1', WSR)
    a.e('G_proc:')
    jump_n('G_q')
    for c in range(15, -1, -1):
        b = KB + 4 * c
        a.e('G_q%d:', c + 1)
        a.e('s_waitcnt vmcnt(%d)', c + 1)
        a.e('v_max3_u32 v21, v%d, v%d, v%d', b, b + 1, b + 2)
        a.e('v_max_u32 v21, v21, v%d', b + 3)
        a.e('v_cmp_eq_u32 vcc, -1, v21')
        a.e('s_cbranch_vccnz G_f%d', c)
        a.e('v_mfma_f32_32x32x16_bf16 %s, %s, %s, %s', vr(KA, 16), vr(PA, 4), vr(b, 4), vr(KA, 16))
        with a.cold():
            a.e('G_f%d:', c)
            a.e('s_bitset1_b32 s66, s%d', SL + c)
            a.e('s_branch G_q%d', c)
    a.e('G_q0:')
    a.e('s_waitcnt vmcnt(0)')
    a.e('s_add_u32 s65, s65, 1')
    a.e('s_cmp_ge_u32 s65, 40000')
    a.e('s_cbranch_scc1 G_done')
    a.e('s_cmp_lg_u32 s68, 0')
    a.e('s_cbranch_scc1 G_loop')
    a.e('v_mov_b32 v20, -1')
    a.e('s_cmp_lg_u32 s66, 0')
    a.e('s_cbranch_scc1 G_loop')
    a.e('v_max3_u32 v21, v56, v57, v58')
    a.e('v_max_u32 v21, v21, v59')
    a.e('v_cmp_eq_u32 vcc, -1, v21')
    a.e('s_cbranch_vccnz G_loop')
    a.e('G_done:')
    a.vm = []
    stamp(a, 8)
    a.e('v_add_u32 v16, s7, v%d', V16)
    for pat in ('row_ror:4', 'row_ror:8'):
        for q in range(4):
            a.e('v_add_f32_dpp v%d, v%d, v%d %s row_mask:0xf bank_mask:0xf', 56 + q, 56 + q, 56 + q, pat)
    for swp in ('v_permlane16_swap_b32', 'v_permlane32_swap_b32'):
        for q in range(4):
            a.e('v_mov_b32 v%d, v%d', 64 + q, 56 + q)
        a.e('s_nop 0')
        for q in range(4):
            a.e('%s v%d, v%d', swp, 56 + q, 64 + q)
        for q in range(4):
            a.e('v_add_f32 v%d, v%d, v%d', 56 + q, 56 + q, 64 + q)
    for q in range(4):
        a.e('v_cvt_pk_bf16_f32 v%d, v%d, v%d', 60 + q, KA + 2 * q, KA + 2 * q + 1)
    a.e('ds_write_b128 v16, v[60:63] offset:%d', L_KF)
    a.e('v_cvt_pk_bf16_f32 v56, v56, v57')
    a.e('v_cvt_pk_bf16_f32 v57, v58, v59')
    a.e('v_and_b32 v16, 1, v2')
    a.e('v_lshlrev_b32 v16, 4, v16')
    a.e('v_bfe_u32 v17, v2, 1, 1')
    a.e('v_lshl_add_u32 v16, v17, 3, v16')
    a.e('s_lshl_b32 s64, s6, 5')
    a.e('v_add_u32 v16, s64, v16')
    a.e('s_mov_b64 exec, 15')
    a.e('ds_write_b64 v16, v[56:57] offset:%d', L_ZF)
    a.e('s_mov_b64 exec, -1')
    a.e('s_waitcnt lgkmcnt(0)')
    a.e('s_barrier')
    if 'gprio' in EXP:
        a.e('s_setprio 0')
    h0_only('H_nh')
    HB = 64
    a.e('s_lshr_b32 s64, s2, 2')
    a.e('s_lshl_b32 s64, s64, 14')
    a.e('s_add_u32 s64, s64, %d', WS_HP)
    a.e('v_add_u32 v16, s64, v%d', V16)
    a.e('s_mov_b32 s65, 0')
    a.e('H_hl:')
    for q in range(16):
        a.e('s_mov_b32 s64, %d', (q >> 2) * 4096)
        a.e('buffer_load_dwordx4 %s, v16, %s, s64 offen offset:%d sc1', vr(HB + 4 * q, 4), WSR, (q & 3) * 1024)
    a.e('s_waitcnt vmcnt(0)')
    a.e('v_max3_u32 v17, v%d, v%d, v%d', HB, HB + 1, HB + 2)
    for r in range(3, 63, 2):
        a.e('v_max3_u32 v17, v%d, v%d, v17', HB + r, HB + r + 1)
    a.e('v_max_u32 v17, v%d, v17', HB + 63)
    a.e(MASK14)
    a.e('v_cmp_eq_u32 vcc, -1, v17')
    a.e('s_mov_b64 exec, -1')
    a.e('s_cbranch_vccz H_hok')
    a.e('s_add_u32 s65, s65, 1')
    a.e('s_cmp_ge_u32 s65, 100000')
    a.e('s_cbranch_scc1 H_hok')
    a.e('s_sleep 8')
    a.e('s_branch H_hl')
    a.e('H_hok:')
    for m in range(2):
        for i in range(1, 8):
            for q in range(4):
                a.e('v_add_f32 v%d, v%d, v%d', HB + 32 * m + q, HB + 32 * m + q, HB + 32 * m + 4 * i + q)
    a.e('s_nop 1')
    for q in range(4):
        a.e('v_permlane16_swap_b32 v%d, v%d', HB + q, HB + 32 + q)
    for q in range(4):
        a.e('v_add_f32 v%d, v%d, v%d', HB + q, HB + q, HB + 32 + q)
    a.e('s_nop 1')
    for q in range(2):
        a.e('v_permlane32_swap_b32 v%d, v%d', HB + q, HB + 2 + q)
    for q in range(2):
        a.e('v_add_f32 v%d, v%d, v%d', HB + q, HB + q, HB + 2 + q)
    a.e('s_nop 1')
    a.e('v_permlane16_swap_b32 v%d, v%d', HB, HB + 1)
    G_, U_, T_ = HB, HB + 1, HB + 2
    a.e('v_cvt_pk_bf16_f32 v%d, v%d, v%d', T_, G_, U_)
    a.e('v_lshlrev_b32 v%d, 16, v%d', G_, T_)
    a.e('v_and_b32 v%d, 0xffff0000, v%d', U_, T_)
    a.e('v_mul_f32 v%d, s%d, v%d', T_, S_LOG2E, G_)
    a.e('v_exp_f32 v%d, -v%d', T_, T_)
    a.e('v_and_b32 v16, 15, v2')
    a.e('v_add_f32 v%d, 1.0, v%d', T_, T_)
    a.e('v_rcp_f32 v%d, v%d', T_, T_)
    a.e('v_lshl_add_u32 v16, v16, 2, v8')
    a.e('v_mul_f32 v%d, v%d, v%d', T_, T_, G_)
    a.e('v_cvt_pk_bf16_f32 v%d, v%d, v%d', T_, T_, T_)
    a.e('v_lshlrev_b32 v%d, 16, v%d', T_, T_)
    a.e('v_mul_f32 v%d, v%d, v%d', T_, T_, U_)
    a.e('v_cvt_pk_bf16_f32 v%d, v%d, v%d', T_, T_, T_)
    a.e('v_lshlrev_b32 v%d, 16, v%d', T_, T_)
    a.e('v_lshlrev_b32 v16, 2, v16')
    a.e('ds_write_b32 v16, v%d offset:%d', T_, L_H)
    a.e('v_mov_b32 v16, %d', L_FLG + 16)
    a.e('v_mov_b32 v17, 1')
    a.e('s_waitcnt lgkmcnt(0)')
    a.e('ds_write_b32 v16, v17')
    a.e('H_nh:')
    t2_fill(a)
    a.e('v_mov_b32 v16, %d', L_FLG + 16)
    a.e('v_lshrrev_b32 v18, 3, v2')
    a.e('v_lshlrev_b32 v18, 2, v18')
    a.e('H_hw:')
    a.e('ds_read_b32 v17, v16')
    a.e('s_waitcnt lgkmcnt(0)')
    a.e('v_cmp_eq_u32 vcc, 0, v17')
    a.e('s_cbranch_vccz H_hr')
    a.e('s_sleep 1')
    a.e('s_branch H_hw')
    a.e('H_hr:')
    for j in range(7):
        a.e('ds_read_b32 v%d, v18 offset:%d', 24 + j, L_H + 32 * j)
    a.e('s_waitcnt lgkmcnt(0)')
    YA = 32
    for j in range(7):
        for q in range(4):
            w = WD + 4 * j + q
            a.e('v_lshlrev_b32 v48, 16, v%d', w)
            a.e('v_and_b32 v49, 0xffff0000, v%d', w)
            if j == 0:
                a.e('v_mul_f32 v%d, v48, v%d', YA + 2 * q, 24 + j)
                a.e('v_mul_f32 v%d, v49, v%d', YA + 2 * q + 1, 24 + j)
            else:
                a.e('v_fmac_f32 v%d, v48, v%d', YA + 2 * q, 24 + j)
                a.e('v_fmac_f32 v%d, v49, v%d', YA + 2 * q + 1, 24 + j)
    a.e('s_nop 1')
    for q in range(4):
        a.e('v_permlane32_swap_b32 v%d, v%d', YA + q, YA + 4 + q)
    for q in range(4):
        a.e('v_add_f32 v%d, v%d, v%d', YA + q, YA + q, YA + 4 + q)
    a.e('s_nop 1')
    for q in range(2):
        a.e('v_permlane16_swap_b32 v%d, v%d', YA + q, YA + 2 + q)
    for q in range(2):
        a.e('v_add_f32 v%d, v%d, v%d', YA + q, YA + q, YA + 2 + q)
    a.e('s_nop 1')
    for q in range(2):
        a.e('v_add_f32_dpp v%d, v%d, v%d row_ror:8 row_mask:0xf bank_mask:0xf', YA + q, YA + q, YA + q)
    a.e('v_and_b32 v16, 7, v2')
    a.e('v_lshlrev_b32 v16, 5, v16')
    a.e('v_lshl_add_u32 v16, v8, 3, v16')
    a.e('s_lshl_b32 s64, s2, 10')
    a.e('s_lshl_b32 s65, s6, 8')
    a.e('s_add_u32 s64, s64, s65')
    a.e('s_add_u32 s64, s64, %d', WS_YP)
    a.e('s_mov_b32 exec_lo, 0x00ff00ff\ns_mov_b32 exec_hi, 0x00ff00ff')
    a.e('buffer_store_dwordx2 %s, v16, %s, s64 offen' + WT, vr(YA, 2), WSR)
    a.e('s_mov_b64 exec, -1')
    stamp(a, 9)
    a.e('s_branch P2_start')


def gen_c1(a):
    a.e('C_start:')
    TOUCH = E('TOUCH', 0)
    if TOUCH:
        a.e('s_mul_i32 s64, s2, 24576')
        a.e('s_mul_i32 s65, s3, 6144')
        a.e('s_add_u32 s64, s64, s65')
        a.e('v_mul_u32_u24 v3, %d, v2', TOUCH)
        a.e('s_mov_b32 exec_hi, 0xffff')
        for q in range(128 // TOUCH):
            a.vm_issue('t', 'buffer_load_dword v60, v3, %s, s64 offen offset:%d', sr(S_W, 4), q * 3072)
        a.e('s_mov_b32 exec_hi, -1')
    if 'noscode' not in EXP:
        NS = 4
        a.e('s_getpc_b64 s[68:69]')
        a.e('C_pc:')
        a.e('s_sub_u32 s68, s68, C_pc-%s_kernel' % NAME)
        a.e('s_subb_u32 s69, s69, 0')
        a.e('s_lshr_b32 s64, s2, 3')
        a.e('s_lshl_b32 s64, s64, 2')
        a.e('s_add_u32 s64, s64, s3')
        a.e('s_mul_i32 s64, s64, %d', NS * 64)
        a.e('s_mov_b32 s65, CODE_END-%s_kernel-4' % NAME)
        for q in range(NS):
            a.e('s_min_u32 s66, s64, s65')
            a.e('s_load_dword s75, s[68:69], s66')
            a.e('s_add_u32 s64, s64, 64')
    VAB, VBB, VA, VB = 4, 8, 10, 14
    FR = [16, 36]
    Q = [64, 80]; K = [96, 112]; V = [128, 144]
    a.e('s_and_b32 s6, s3, 1')
    a.e('s_lshr_b32 s7, s3, 1')
    a.e('v_and_b32 v3, 31, v2')
    a.e('s_lshl_b32 s64, s6, 6')
    a.e('v_add_u32 v3, s64, v3')
    a.e('v_lshlrev_b32 v3, 7, v3')
    a.e('v_add_u32 v3, %d, v3', RB)
    a.e('v_bfe_u32 v9, v2, 1, 3')
    a.e('v_lshrrev_b32 v15, 5, v2')
    a.e('v_xor_b32 v9, v9, v15')
    for t in range(4):
        a.e('v_xor_b32 v56, %d, v9', 2 * t)
        a.e('v_lshl_add_u32 v%d, v56, 4, v3', VAB + t)
    a.e('v_bfe_u32 v56, v2, 2, 2')
    a.e('v_lshl_add_u32 v57, v15, 3, v56')
    a.e('v_lshlrev_b32 v57, 7, v57')
    a.e('v_lshrrev_b32 v56, 1, v56')
    a.e('v_xor_b32 v56, s7, v56')
    a.e('v_lshl_add_u32 v57, v56, 6, v57')
    a.e('v_bfe_u32 v56, v2, 4, 1')
    a.e('v_lshl_add_u32 v57, v56, 5, v57')
    a.e('v_and_b32 v56, 3, v2')
    a.e('v_lshl_add_u32 v57, v56, 3, v57')
    a.e('v_add_u32 v%d, %d, v57', VBB, RB + 16384)
    for t in range(4):
        a.e('v_mov_b32 v%d, v%d', VA + t, VAB + t)
    a.e('v_mov_b32 v%d, v%d', VB, VBB)
    for r in range(64, 160):
        a.e('v_mov_b32 v%d, 0', r)
    a.e('s_mov_b32 s65, 0')
    a.e('s_mov_b32 s66, 0')
    a.e('s_lshl_b32 s64, s3, 2')
    a.e('s_add_u32 s64, s64, %d', L_FLG)
    a.e('v_mov_b32 v56, s64')
    a.e('ds_write_b32 v56, v64')
    a.e('ds_write_b32 v56, v64 offset:16')

    def reads(t, buf):
        f = FR[buf]
        L = ['ds_read_b128 %s, v%d' % (vr(f, 4), VA + t)]
        for ty in range(3):
            for tt in range(2):
                L.append('ds_read_b64_tr_b16 %s, v%d offset:%d' % (vr(f + 8 + 4 * ty + 2 * tt, 2), VB, ty * 8192 + t * 2048 + tt * 512))
        L.append('ds_read_b128 %s, v%d offset:4096' % (vr(f + 4, 4), VA + t))
        return L

    def mfmas(buf, t=0):
        f = FR[buf]
        L = []
        if 'm16' in EXP:
            for rb in range(2):
                A = vr(f + 4 * rb, 4)
                for acc, x, y in ((Q[rb], vr(f + 8, 4), A), (K[rb], A, vr(f + 12, 4)), (V[rb], A, vr(f + 16, 4))):
                    q0 = acc + 8 * (t & 1)
                    L.append('v_mfma_f32_16x16x32_bf16 %s, %s, %s, %s\nv_mfma_f32_16x16x32_bf16 %s, %s, %s, %s' % (
                        vr(q0, 4), x, y, vr(q0, 4), vr(q0 + 4, 4), y, x, vr(q0 + 4, 4)))
            return L
        for rb in range(2):
            A = vr(f + 4 * rb, 4)
            L.append('v_mfma_f32_32x32x16_bf16 %s, %s, %s, %s' % (vr(Q[rb], 16), vr(f + 8, 4), A, vr(Q[rb], 16)))
            L.append('v_mfma_f32_32x32x16_bf16 %s, %s, %s, %s' % (vr(K[rb], 16), A, vr(f + 12, 4), vr(K[rb], 16)))
            L.append('v_mfma_f32_32x32x16_bf16 %s, %s, %s, %s' % (vr(V[rb], 16), A, vr(f + 16, 4), vr(V[rb], 16)))
        return L

    stamp(a, 3)
    a.vm_wait('d0', 'lgkmcnt(0)')
    stamp(a, 4)
    a.e('s_barrier')
    for r in reads(0, 0):
        a.e(r)
    a.e('.p2align 3')
    a.e('C_loop:')
    for t in range(4):
        buf = t & 1
        if t == 3:
            a.e('s_waitcnt vmcnt(0) lgkmcnt(0)')
            if STAMPS == 2:
                a.e('s_memtime s[68:69]')
            a.e('s_barrier')
            if STAMPS == 2:
                a.e('s_memtime s[70:71]')
                a.e('s_waitcnt lgkmcnt(0)')
                a.e('s_mov_b32 m0, s66')
                a.e('s_nop 0')
                a.e('v_writelane_b32 v250, s68, m0')
                a.e('s_add_u32 m0, s66, 16')
                a.e('s_nop 0')
                a.e('v_writelane_b32 v250, s70, m0')
                a.e('s_memrealtime s[70:71]')
                a.e('s_add_u32 m0, s66, 32')
                a.e('s_waitcnt lgkmcnt(0)')
                a.e('v_writelane_b32 v250, s70, m0')
            a.e('s_add_u32 s65, s65, %d', SLOT)
            a.e('s_cmp_eq_u32 s65, %d', 3 * SLOT)
            a.e('s_cselect_b32 s65, 0, s65')
        else:
            a.e('s_waitcnt lgkmcnt(0)')
        M = mfmas(buf, t)
        R = reads((t + 1) & 3, buf ^ 1)
        for i in range(6):
            a.e(M[i])
            if t == 3 and i == 0:
                for tt in range(4):
                    a.e('v_add_u32 v%d, s65, v%d', VA + tt, VAB + tt)
                a.e('v_add_u32 v%d, s65, v%d', VB, VBB)
            if i < 4 and 'noread' not in EXP:
                a.e(R[2 * i]); a.e(R[2 * i + 1])
            if 'noreadB' in EXP and i in (0, 3):
                a.e(R[0 if i == 0 else 7])
    a.e('s_add_u32 s66, s66, 1')
    a.e('s_cmp_lt_u32 s66, 16')
    a.e('s_cbranch_scc1 C_loop')
    a.vm = []
    stamp(a, 5)
    PK = [16, 24]; VBF = [32, 40]; T0, T1, E0, E1, MN = 48, 49, 50, 51, 56
    ONES = 52
    KVA = 160; ZA = 176
    a.e('s_waitcnt lgkmcnt(0)')
    for r in range(4):
        a.e('v_mov_b32 v%d, 0x3f803f80', ONES + r)
    a.e('s_nop 4')
    first = True
    for rb in range(2):
        phi16(a, K[rb], PK[rb], T0, T1, E0, E1, MN)
        for j in range(8):
            a.e('v_cvt_pk_bf16_f32 v%d, v%d, v%d', VBF[rb] + j, V[rb] + 2 * j, V[rb] + 2 * j + 1)
        a.e('s_nop 1')
        for m in range(2):
            ckv = '0' if first else vr(KVA, 16)
            cz = '0' if first else vr(ZA, 16)
            a.e('v_mfma_f32_32x32x16_bf16 %s, %s, %s, %s', vr(KVA, 16), vr(PK[rb] + 4 * m, 4), vr(VBF[rb] + 4 * m, 4), ckv)
            a.e('v_mfma_f32_32x32x16_bf16 %s, %s, %s, %s', vr(ZA, 16), vr(ONES, 4), vr(PK[rb] + 4 * m, 4), cz)
            first = False
    a.e('v_lshlrev_b32 v3, 4, v2')
    a.e('s_lshl_b32 s64, s3, 11')
    a.e('v_add_u32 v4, s64, v3')
    a.e('s_xor_b32 s67, s3, 1')
    a.e('s_lshl_b32 s64, s67, 11')
    a.e('v_add_u32 v5, s64, v3')
    a.e('v_lshlrev_b32 v6, 2, v2')
    a.e('s_lshl_b32 s64, s3, 8')
    a.e('v_add_u32 v7, s64, v6')
    a.e('s_lshl_b32 s64, s67, 8')
    a.e('v_add_u32 v8, s64, v6')
    a.e('s_lshl_b32 s64, s3, 2')
    a.e('v_mov_b32 v9, s64')
    a.e('s_lshl_b32 s64, s67, 2')
    a.e('v_mov_b32 v10, s64')
    a.e('v_mov_b32 v11, 1')
    a.e('s_lshl_b32 s68, s5, 2')
    a.e('s_add_u32 s68, s68, s3')
    a.e('s_lshl_b32 s68, s68, 4')
    a.e('s_add_u32 s68, s68, s4')
    a.e('s_mul_i32 s68, s68, %d', KVB)
    a.e('s_add_u32 s68, s68, %d', WS_KVP)
    a.e('v_and_b32 v12, 15, v2')
    a.e('v_lshlrev_b32 v12, 2, v12')
    a.e('s_lshl_b32 s64, 1, s4')
    a.e('v_mov_b32 v14, s64')
    a.e('s_lshl_b32 s64, s5, 2')
    a.e('s_add_u32 s64, s64, s3')
    a.e('s_lshl_b32 s64, s64, 7')
    a.e('s_add_u32 s64, s64, %d', WS_F1)
    a.e('v_mov_b32 v15, s64')
    a.e('ds_write_b32 v7, v%d offset:%d', ZA, L_ZX)
    a.e('s_cmp_eq_u32 s6, 0')
    a.e('s_cbranch_scc0 C_ex1')
    a.e('ds_write_b128 v4, %s offset:%d', vr(KVA + 8, 4), L_EX)
    a.e('ds_write_b128 v4, %s offset:%d', vr(KVA + 12, 4), L_EX + 1024)
    a.e('s_mov_b64 s[70:71], 0xffff')
    a.e('s_branch C_ex2')
    a.e('C_ex1:')
    a.e('ds_write_b128 v4, %s offset:%d', vr(KVA, 4), L_EX)
    a.e('ds_write_b128 v4, %s offset:%d', vr(KVA + 4, 4), L_EX + 1024)
    a.e('s_mov_b32 s70, 0xffff0000\ns_mov_b32 s71, 0')
    a.e('s_nop 0')
    for r in range(8):
        a.e('v_mov_b32 v%d, v%d', KVA + r, KVA + 8 + r)
    a.e('C_ex2:')
    a.e('s_waitcnt lgkmcnt(0)')
    a.e('ds_write_b32 v9, v11 offset:%d', L_FLG)
    a.e('C_ps:')
    a.e('ds_read_b32 v13, v10 offset:%d', L_FLG)
    a.e('s_waitcnt lgkmcnt(0)')
    a.e('v_cmp_eq_u32 vcc, 0, v13')
    a.e('s_cbranch_vccnz C_ps')
    a.e('ds_read_b128 v[16:19], v5 offset:%d', L_EX)
    a.e('ds_read_b128 v[20:23], v5 offset:%d', L_EX + 1024)
    a.e('ds_read_b32 v24, v8 offset:%d', L_ZX)
    a.e('s_waitcnt lgkmcnt(0)')
    for r in range(8):
        a.e('v_add_f32 v%d, v%d, v%d', 16 + r, 16 + r, KVA + r)
    a.e('v_add_f32 v24, v24, v%d', ZA)
    for r in range(4):
        a.e('v_cvt_pk_bf16_f32 v%d, v%d, v%d', 28 + r, 16 + 2 * r, 17 + 2 * r)
    a.vm_issue('kvp', 'buffer_store_dwordx4 v[28:31], v3, %s, s68 offen' + WT, WSR)
    a.e('s_mov_b64 exec, s[70:71]')
    a.vm_issue('kvp', 'buffer_store_dword v24, v12, %s, s68 offen offset:%d' + WT, WSR, KVZ)
    a.e('s_mov_b64 exec, 1')
    a.vm_issue('f1', 'buffer_atomic_or v14, v15, %s, 0 offen', WSR)
    a.e('s_mov_b64 exec, -1')
    stamp(a, 6); stamp(a, 7)
    a.e('s_lshl_b32 s69, s4, 2')
    a.e('s_lshl_b32 s64, s6, 1')
    a.e('s_add_u32 s69, s69, s64')
    a.e('s_lshl_b32 s69, s69, 5')
    a.e('s_lshl_b32 s64, s5, 1')
    a.e('s_add_u32 s69, s69, s64')
    a.e('s_add_u32 s69, s69, s7')
    a.e('s_lshl_b32 s69, s69, 11')
    a.e('s_lshl_b32 s64, s5, 2')
    a.e('s_add_u32 s64, s64, s3')
    a.e('s_lshl_b32 s70, 1, s64')
    a.e('v_mov_b32 v11, s70')
    a.e('s_lshr_b32 s64, s64, 5')
    a.e('s_lshl_b32 s64, s64, 2')
    a.e('s_lshl_b32 s70, s4, 7')
    a.e('s_add_u32 s70, s70, s64')
    a.e('s_add_u32 s70, s70, %d', WS_F2)
    p2_ids(a)
    srd(a, S_WO, 44, 2097152)
    VOW = 10
    wo_voff(a, VOW, 13, 14, 3)
    PQ = [16, 24]
    phi16(a, Q[0], 32, T0, T1, E0, E1, MN)
    xo_loads(a)
    PQ = [32, 40]
    phi16(a, Q[1], PQ[1], T0, T1, E0, E1, MN)
    a.e('v_lshlrev_b32 v3, 4, v2')
    a.e('s_lshl_b32 s64, s7, 11')
    a.e('v_add_u32 v4, s64, v3')
    a.e('v_lshrrev_b32 v5, 5, v2')
    a.e('v_lshlrev_b32 v5, 4, v5')
    a.e('s_lshl_b32 s64, s7, 6')
    a.e('v_add_u32 v5, s64, v5')
    a.e('v_mov_b32 v6, %d', L_KEY + 32)
    a.e('ds_read_b32 v6, v6')
    a.e('s_lshl_b32 s71, s3, 10')
    a.e('s_waitcnt lgkmcnt(0)')
    a.e('v_readfirstlane_b32 s75, v6')
    a.vm_wait('xo')
    t2_fill(a)
    a.e('v_lshlrev_b32 v3, 4, v2')
    a.e('s_barrier')
    stamp(a, 8)
    KF, ZF = 16, 24
    NA = [64, 80]; DA = [96, 112]
    a.e('ds_read_b128 %s, v5 offset:%d', vr(ZF, 4), L_ZF)
    a.e('ds_read_b128 %s, v4 offset:%d', vr(KF, 4), L_KF)
    a.e('ds_read_b128 %s, v5 offset:%d', vr(ZF + 4, 4), L_ZF + 32)
    a.e('ds_read_b128 %s, v4 offset:%d', vr(KF + 4, 4), L_KF + 1024)
    for rb in range(2):
        for m in range(2):
            if rb == 0:
                a.e('s_waitcnt lgkmcnt(%d)', 3 - 2 * m)
            a.e('v_mfma_f32_32x32x16_bf16 %s, %s, %s, %s', vr(DA[rb], 16), vr(ZF + 4 * m, 4), vr(PQ[rb] + 4 * m, 4), '0' if m == 0 else vr(DA[rb], 16))
            if rb == 0:
                a.e('s_waitcnt lgkmcnt(%d)', 2 - 2 * m)
            a.e('v_mfma_f32_32x32x16_bf16 %s, %s, %s, %s', vr(NA[rb], 16), vr(KF + 4 * m, 4), vr(PQ[rb] + 4 * m, 4), '0' if m == 0 else vr(NA[rb], 16))
    a.e('s_nop 6')
    OF = [128, 136]
    for rb in range(2):
        d = 48 + rb
        if rb == 1:
            a.e('s_nop 3')
        a.e('v_cvt_pk_bf16_f32 v%d, v%d, v%d', d, DA[rb], DA[rb])
        a.e('v_lshlrev_b32 v%d, 16, v%d', d, d)
        a.e('v_add_f32 v%d, s%d, v%d', d, S_EPS, d)
        a.e('v_cvt_pk_bf16_f32 v%d, v%d, v%d', d, d, d)
        a.e('v_lshlrev_b32 v%d, 16, v%d', d, d)
        a.e('v_rcp_f32 v%d, v%d', d, d)
        a.e('s_nop 0')
        for m in range(2):
            for j in range(4 * m, 4 * m + 4):
                r = NA[rb] + 2 * j
                a.e('v_mul_f32 v%d, v%d, v%d', r, r, d)
                a.e('v_mul_f32 v%d, v%d, v%d', r + 1, r + 1, d)
                a.e('v_cvt_pk_bf16_f32 v%d, v%d, v%d', OF[rb] + j, r, r + 1)
            a.vm_issue('o', 'buffer_store_dwordx4 %s, v3, %s, s69 offen offset:%d' + WT, vr(OF[rb] + 4 * m, 4), WSR, m * 1024)
        if rb == 0:
            a.e('s_add_u32 s69, s69, 65536')
    if 'wolate' in EXP:
        for p in (4, 12, 5, 13, 6, 14, 7, 15):
            wo_dma(a, p, VOW, 71, 'wo')
    a.vm_wait('o')
    a.e('v_mov_b32 v12, s70')
    a.e('s_mov_b64 exec, 1')
    a.vm_issue('f2', 'buffer_atomic_or v11, v12, %s, 0 offen', WSR)
    a.e('s_mov_b64 exec, -1')
    stamp(a, 9)
    a.e('s_cmp_lg_u32 s3, 0')
    a.e('s_cbranch_scc1 C_np')
    a.e('s_lshl_b32 s64, s4, 7')
    a.e('s_add_u32 s64, s64, %d', WS_F2)
    a.e('v_mov_b32 v12, s64')
    a.e('s_mov_b32 s65, 0')
    a.e('C_spin:')
    a.e('s_mov_b64 exec, 1')
    a.e('v_mov_b32 v14, 0')
    a.e('v_mov_b32 v15, 0')
    a.e('buffer_atomic_or_x2 v[14:15], v12, %s, 0 offen sc0', WSR)
    a.e('s_waitcnt vmcnt(0)')
    a.e('v_and_b32 v14, v14, v15')
    a.e('v_cmp_ne_u32 vcc, -1, v14')
    a.e('s_mov_b64 exec, -1')
    a.e('s_cbranch_vccz C_np')
    a.e('s_add_u32 s65, s65, 1')
    a.e('s_cmp_ge_u32 s65, 400000')
    a.e('s_cbranch_scc1 C_np')
    a.e('s_sleep %d', E('PSL', 2))
    a.e('s_branch C_spin')
    a.e('C_np:')


def gen_p2(a):
    a.e('P2_start:')
    a.vm = []
    a.e('s_and_b32 s6, s3, 3')
    a.e('s_lshr_b32 s7, s3, 2')
    srd(a, S_OUT, 58, 4194304)
    a.e('s_and_b32 s67, s75, 0x7ff')
    a.e('s_sub_u32 s67, 2047, s67')
    VO = 4
    a.e('s_lshl_b32 s64, s4, 2')
    a.e('s_add_u32 s64, s64, s6')
    a.e('s_lshl_b32 s64, s64, 16')
    a.e('s_lshl_b32 s65, s7, 15')
    a.e('s_add_u32 s64, s64, s65')
    a.e('v_lshlrev_b32 v%d, 4, v2', VO)
    a.e('v_add_u32 v%d, s64, v%d', VO, VO)
    VWL = [5, 6]; VW = [8, 9]
    a.e('v_lshrrev_b32 v10, 5, v2')
    a.e('v_bfe_u32 v11, v2, 2, 2')
    a.e('v_lshl_add_u32 v12, v10, 2, v11')
    a.e('v_lshlrev_b32 v12, 7, v12')
    a.e('v_bfe_u32 v13, v2, 4, 1')
    a.e('v_lshl_add_u32 v12, v13, 5, v12')
    a.e('v_and_b32 v13, 3, v2')
    a.e('v_lshl_add_u32 v12, v13, 3, v12')
    a.e('v_lshrrev_b32 v11, 1, v11')
    a.e('v_lshl_add_u32 v%d, v11, 6, v12', VWL[0])
    a.e('v_xor_b32 v11, 1, v11')
    a.e('v_lshl_add_u32 v%d, v11, 6, v12', VWL[1])
    SB = 32
    a.e('s_cmp_eq_u32 s7, 0')
    for j in range(8):
        a.e('s_mov_b32 s64, %d', POS[8 + j])
        a.e('s_cselect_b32 s%d, %d, s64', SB + j, POS[j])
    ACO = [16, 32]
    WOF = [48, 64]
    OB = 80
    for r in range(16, 48):
        a.e('v_mov_b32 v%d, 0', r)
    a.e('s_waitcnt vmcnt(0)')
    a.e('s_barrier')
    stamp(a, 10)

    def o_g(j):
        G = []
        for q in range(4):
            pre = []
            if q == 0:
                pre = ['s_add_u32 s66, s74, %d' % j, 's_and_b32 s66, s66, 7', 's_lshl_b32 s66, s66, 12']
            G.append(('o%d' % j, pre, 'buffer_load_dwordx4 %s, v%d, %s, s66 offen offset:%d sc1' % (vr(OB + 16 * j + 4 * q, 4), VO, WSR, q * 1024)))
        return G

    def emit_g(G):
        for (tag, pre, ins) in G:
            for p in pre:
                a.e(p)
            a.vm_issue(tag, ins)

    def wo_reads(hd):
        j, u = hd >> 1, hd & 1
        L = []
        if u == 0:
            L += ['v_add_u32 v%d, s%d, v%d' % (VW[cb], SB + j, VWL[cb]) for cb in range(2)]
        for m in range(2):
            for cb in range(2):
                for tt in range(2):
                    L.append('ds_read_b64_tr_b16 %s, v%d offset:%d' % (vr(WOF[hd & 1] + 8 * cb + 4 * m + 2 * tt, 2), VW[cb], u * 4096 + m * 2048 + tt * 1024))
        return L

    def Mm(hd):
        L = []
        for m in range(2):
            for cb in range(2):
                L.append('v_mfma_f32_32x32x16_bf16 %s, %s, %s, %s' % (vr(ACO[cb], 16), vr(WOF[hd & 1] + 8 * cb + 4 * m, 4), vr(OB + 8 * hd + 4 * m, 4), vr(ACO[cb], 16)))
        return L

    LA = E('LA', 2)
    for j in range(LA):
        emit_g(o_g(j))
    for r in wo_reads(0):
        a.e(r)
    YL = 208
    pend = []
    for hd in range(16):
        j = hd >> 1
        if hd % 2 == 0:
            a.vm_wait('o%d' % j, 'lgkmcnt(0)')
            if j + LA < 8:
                pend += o_g(j + LA)
        else:
            a.e('s_waitcnt lgkmcnt(0)')
        if hd == 12:
            a.e('s_lshr_b32 s64, s67, 7')
            a.e('s_cmp_lg_u32 s64, s4')
            a.e('s_cbranch_scc0 P2_yl')
            with a.cold():
                a.e('P2_yl:')
                a.e('s_lshl_b32 s64, s5, 8')
                a.e('s_lshl_b32 s65, s3, 15')
                a.e('s_add_u32 s64, s64, s65')
                a.e('s_add_u32 s64, s64, %d', WS_YP)
                a.e('v_lshlrev_b32 v7, 2, v2')
                a.e('v_add_u32 v7, s64, v7')
                for q in range(8):
                    a.e('s_mov_b32 s65, %d', q * 4096)
                    a.vm_uncounted('buffer_load_dword v%d, v7, %s, s65 offen sc1' % (YL + q, WSR))
                a.e('s_branch P2_nyl')
            a.e('P2_nyl:')
        F = wo_reads(hd + 1) if hd + 1 < 16 else []
        M = Mm(hd)
        per = -(-len(F) // 3) if F else 0
        for k in range(4):
            a.e(M[k])
            if pend and k % 2 == 0:
                emit_g([pend.pop(0)])
            for f in F[k * per:(k + 1) * per]:
                a.e(f)
    assert not pend
    stamp(a, 11)
    a.e('v_and_b32 v8, 31, v2')
    a.e('s_lshl_b32 s64, s6, 5')
    a.e('v_add_u32 v8, s64, v8')
    a.e('v_mul_u32_u24 v8, %d, v8', TP)
    a.e('v_lshrrev_b32 v9, 5, v2')
    a.e('v_lshl_add_u32 v8, v9, 4, v8')
    a.e('s_mul_i32 s64, s7, %d', TK)
    a.e('s_add_u32 s64, s64, %d', RB)
    a.e('v_add_u32 v8, s64, v8')
    a.e('v_lshrrev_b32 v6, 3, v0')
    a.e('v_mul_u32_u24 v5, %d, v6', TP)
    a.e('v_and_b32 v6, 7, v0')
    a.e('v_lshl_add_u32 v5, v6, 5, v5')
    a.e('v_add_u32 v5, %d, v5', RB)
    a.e('v_lshlrev_b32 v9, 5, v6')
    a.e('s_barrier')
    for cb in range(2):
        for q in range(4):
            a.e('ds_write_b128 v8, %s offset:%d', vr(ACO[cb] + 4 * q, 4), cb * 128 + q * 32)
    a.e('s_lshr_b32 s64, s67, 7')
    a.e('s_cmp_lg_u32 s64, s4')
    a.e('s_cbranch_scc0 P2_y')
    with a.cold():
        a.e('P2_y:')
        a.e('s_mov_b32 s66, 0')
        a.e('P2_ychk:')
        a.e('s_waitcnt vmcnt(0)')
        a.e('v_max3_u32 v10, v%d, v%d, v%d', YL, YL + 1, YL + 2)
        a.e('v_max3_u32 v10, v%d, v%d, v10', YL + 3, YL + 4)
        a.e('v_max3_u32 v10, v%d, v%d, v10', YL + 5, YL + 6)
        a.e('v_max_u32 v10, v%d, v10', YL + 7)
        a.e('v_cmp_eq_u32 vcc, -1, v10')
        a.e('s_cbranch_vccz P2_yok')
        a.e('s_add_u32 s66, s66, 1')
        a.e('s_cmp_ge_u32 s66, 100000')
        a.e('s_cbranch_scc1 P2_yok')
        a.e('s_sleep 4')
        for q in range(8):
            a.e('s_mov_b32 s65, %d', q * 4096)
            a.e('buffer_load_dword v%d, v7, %s, s65 offen sc1' % (YL + q, WSR))
        a.e('s_branch P2_ychk')
        a.e('P2_yok:')
        for q in range(1, 8):
            a.e('v_add_f32 v%d, v%d, v%d', YL, YL, YL + q)
        a.e('v_lshlrev_b32 v7, 2, v2')
        a.e('s_lshl_b32 s64, s3, 8')
        a.e('v_add_u32 v7, s64, v7')
        a.e('v_add_u32 v7, %d, v7', L_YS)
        a.e('ds_write_b32 v7, v%d', YL)
        a.e('s_branch P2_ny')
    a.e('P2_ny:')
    a.e('s_waitcnt lgkmcnt(0)')
    a.e('s_barrier')
    AB = 64
    for half in range(2):
        for k in range(2):
            for q in range(2):
                a.e('ds_read_b128 %s, v5 offset:%d', vr(AB + 16 * half + 8 * k + 4 * q, 4), half * 64 * TP + k * TK + q * 16)
    a.e('v_add_u32 v9, %d, v9', L_YS)
    a.e('s_mov_b32 s68, 131072')
    for half in range(2):
        A = AB + 16 * half
        X = XO + 4 * half
        Gr = XO + 8 + half
        T = T2 + 8 * half
        om = OM[half]
        a.e('v_add_u32 v6, %d, v%d', 64 * half, VRO)
        a.e('v_cmp_eq_u32 vcc, s67, v6')
        lab = a.label('P2_nr')
        a.e('s_cbranch_vccnz %s_fix', lab)
        a.e('%s:', lab)
        with a.cold():
            a.e('%s_fix:', lab)
            a.e('s_and_saveexec_b64 s[70:71], vcc')
            Y = 128
            for w in range(8):
                a.e('ds_read_b128 %s, v9 offset:%d', vr(Y + 8 * w, 4), w * 256)
                a.e('ds_read_b128 %s, v9 offset:%d', vr(Y + 8 * w + 4, 4), w * 256 + 16)
            a.e('s_and_b32 s64, s75, 0xffff0000')
            a.e('s_xor_b32 s65, s64, 0x80000000')
            a.e('s_not_b32 s66, s64')
            a.e('s_and_b32 s66, s66, 0xffff0000')
            a.e('s_cmp_ge_u32 s64, 0x80000000')
            a.e('s_cselect_b32 s64, s65, s66')
            a.e('v_mov_b32 v100, s64')
            sigmoid_bf16(a, [100])
            a.e('s_waitcnt lgkmcnt(0)')
            for w in range(1, 8):
                for q in range(8):
                    a.e('v_add_f32 v%d, v%d, v%d', Y + q, Y + q, Y + 8 * w + q)
            for q in range(4):
                y0, y1 = Y + 2 * q, Y + 2 * q + 1
                x0, x1 = T + 2 * q, T + 2 * q + 1
                a.e('v_cvt_pk_bf16_f32 v116, v%d, v%d', y0, y1)
                a.e('v_lshlrev_b32 v%d, 16, v116', y0)
                a.e('v_and_b32 v%d, 0xffff0000, v116', y1)
                a.e('v_mul_f32 v%d, v%d, v100', y0, y0)
                a.e('v_mul_f32 v%d, v%d, v100', y1, y1)
                a.e('v_cvt_pk_bf16_f32 v116, v%d, v%d', y0, y1)
                a.e('v_lshlrev_b32 v%d, 16, v116', y0)
                a.e('v_and_b32 v%d, 0xffff0000, v116', y1)
                a.e('v_lshlrev_b32 v%d, 16, v%d', x0, X + q)
                a.e('v_and_b32 v%d, 0xffff0000, v%d', x1, X + q)
                a.e('v_add_f32 v%d, v%d, v%d', x0, x0, y0)
                a.e('v_add_f32 v%d, v%d, v%d', x1, x1, y1)
                a.e('v_cvt_pk_bf16_f32 v116, v%d, v%d', x0, x1)
                a.e('v_lshlrev_b32 v%d, 16, v116', x0)
                a.e('v_and_b32 v%d, 0xffff0000, v116', x1)
                a.e('v_mul_f32 v%d, v%d, v%d', x0, x0, om)
                a.e('v_mul_f32 v%d, v%d, v%d', x1, x1, om)
                a.e('v_cvt_pk_bf16_f32 v116, v%d, v%d', x0, x1)
                a.e('v_lshlrev_b32 v%d, 16, v116', x0)
                a.e('v_and_b32 v%d, 0xffff0000, v116', x1)
            a.e('s_mov_b64 exec, s[70:71]')
            a.e('s_branch %s', lab)
        a.e('s_waitcnt lgkmcnt(%d)', 4 if half == 0 else 0)
        O = 120 + 4 * half
        for q in range(4):
            a0, a1 = A + 2 * q, A + 2 * q + 1
            a.e('v_add_f32 v%d, v%d, v%d', a0, a0, a0 + 8)
            a.e('v_add_f32 v%d, v%d, v%d', a1, a1, a1 + 8)
            a.e('v_cvt_pk_bf16_f32 v116, v%d, v%d', a0, a1)
            a.e('v_lshlrev_b32 v%d, 16, v116', a0)
            a.e('v_and_b32 v%d, 0xffff0000, v116', a1)
            a.e('v_mul_f32 v%d, v%d, v%d', a0, a0, Gr)
            a.e('v_mul_f32 v%d, v%d, v%d', a1, a1, Gr)
            a.e('v_cvt_pk_bf16_f32 v116, v%d, v%d', a0, a1)
            a.e('v_lshlrev_b32 v%d, 16, v116', a0)
            a.e('v_and_b32 v%d, 0xffff0000, v116', a1)
            a.e('v_add_f32 v%d, v%d, v%d', a0, a0, T + 2 * q)
            a.e('v_add_f32 v%d, v%d, v%d', a1, a1, T + 2 * q + 1)
            a.e('v_cvt_pk_bf16_f32 v%d, v%d, v%d', O + q, a0, a1)
        a.e('buffer_store_dwordx4 %s, v%d, %s, %s offen nt', vr(O, 4), VXO, sr(S_OUT, 4), '0' if half == 0 else 's68')
    if STAMPS:
        a.e('s_waitcnt vmcnt(0)')
    stamp(a, 12, True); stamp(a, 2, False)
    stamp_flush(a)
    a.e('K_end:')
    a.e('s_endpgm')
    a.flush_cold()


def main():
    hdr = open(os.path.join(os.path.dirname(os.path.abspath(__file__)), '..', NAME + '.s.ref')).read().split('; Override launch')[0]
    a = Asm()
    a.e('.amdgcn_target "amdgcn-amd-amdhsa--gfx950"')
    a.e('.text')
    gen(a)
    a.e('CODE_END:')
    out = hdr + '; @launch grid=(256,1,1) block=(512,1,1) lds=%d\n' % LDS_BYTES + a.text() + '.section .rodata,"a"\n' + kd(NAME + '_kernel', 256)
    path = sys.argv[1] if len(sys.argv) > 1 else os.path.join(os.path.dirname(os.path.abspath(__file__)), '..', NAME + '.s')
    open(path, 'w').write(out)


if __name__ == '__main__':
    main()
```

```python
import sys, os
sys.path.insert(0, os.path.dirname(os.path.abspath(__file__)))
from asmlib import *

NAME = 'gated_mix__linear_attn_block__moe_arch_mod__prompt'
E = lambda k, d: int(os.environ.get(k, str(d)))
EXP = os.environ.get('EXP', '').split(',')

WS_O = 0
WS_KVP = 4 << 20
KVB = 1152
KVZ = 1024
WS_F1 = WS_KVP + 16 * 4 * 16 * KVB
WS_F2 = WS_F1 + 64 * 128
WS_HP = WS_F2 + 128 * 128
WS_YP = WS_HP + 64 * 2 * 32 * 256
WS_G = WS_YP + 64 * 4096
WS_KEY = WS_G + 8192
WS_END = WS_KEY + 4096
WS_BYTES = 268435456
WS_ST = 16 << 20

STAMPS = E('STAMPS', 0)
WT = ' sc1' if 'wt1' in EXP else ' sc0 sc1'
NTA = ' nt' if 'ntA' in EXP else ''
NTB = ' nt' if 'ntB' in EXP else ''
NTO = ' nt' if 'ntO' in EXP else ''
NTW = '' if 'nontW' in EXP else ' nt'
LOG2E = 0x3fb8aa3b
EPS6 = 0x358637bd

SLOT = 40960
MISC = 0
RB = 8192
SP = RB + 3 * SLOT
L_KF = MISC
L_ZF = MISC + 4096
L_KEY = MISC + 4224
L_FLG = MISC + 4288
L_H = MISC + 4352
L_ZX = MISC + 4608
L_YS = MISC + 5632
L_EX = RB + 24576
LDS_BYTES = 163840
EARLY = [SP, SP + 8192, RB + SLOT + 24576, RB + 2 * SLOT + 24576, SP + 16384, SP + 24576, RB + SLOT + 32768, RB + 2 * SLOT + 32768]
LATE = [RB + x for x in (32768, 0, 8192, 16384, SLOT, SLOT + 8192, SLOT + 16384, 2 * SLOT)]
POS = EARLY[0:4] + LATE[0:4] + EARLY[4:8] + LATE[4:8]
TP = 272
TK = 128 * TP

S_X, S_W, S_WS, S_DBG, S_WR, S_GW, S_WG, S_WU = 8, 12, 16, 20, 24, 28, 32, 36
S_WO, S_OUT, S_WD = 12, 20, 24
WSR = sr(S_WS, 4)
S_LOG2E, S_EPS = 72, 73


def stamp(a, idx, real=True):
    if STAMPS:
        a.e('%s s[%d:%d]', 's_memrealtime' if real else 's_memtime', 76 + 2 * idx, 77 + 2 * idx)


def stamp_flush(a):
    if not STAMPS:
        return
    a.e('s_waitcnt lgkmcnt(0)')
    a.e('s_lshl_b32 s64, s2, 3')
    a.e('s_add_u32 s64, s64, s3')
    a.e('s_lshl_b32 s64, s64, 7')
    a.e('s_add_u32 s64, s64, %d', WS_ST)
    a.e('v_mov_b32 v1, s64')
    a.e('s_mov_b64 exec, 1')
    for i in range(13):
        a.e('v_mov_b32 v2, s%d', 76 + 2 * i)
        a.e('v_mov_b32 v3, s%d', 77 + 2 * i)
        a.e('buffer_store_dwordx2 v[2:3], v1, %s, 0 offen offset:%d', WSR, 8 * i)
        a.e('s_nop 1')
    a.e('s_mov_b64 exec, -1')
    if STAMPS == 2:
        a.e('s_lshl_b32 s64, s2, 3')
        a.e('s_add_u32 s64, s64, s3')
        a.e('s_lshl_b32 s64, s64, 8')
        a.e('s_add_u32 s64, s64, %d', WS_ST + (1 << 20))
        a.e('v_and_b32 v1, 63, v0')
        a.e('v_lshlrev_b32 v1, 2, v1')
        a.e('v_add_u32 v1, s64, v1')
        a.e('buffer_store_dword v250, v1, %s, 0 offen', WSR)


def phi16(a, acc, out, t0, t1, e0, e1, mn):
    for j in range(8):
        a0, a1, p = acc + 2 * j, acc + 2 * j + 1, out + j
        a.e('v_cvt_pk_bf16_f32 v%d, v%d, v%d', p, a0, a1)
        a.e('v_lshlrev_b32 v%d, 16, v%d', t0, p)
        a.e('v_and_b32 v%d, 0xffff0000, v%d', t1, p)
        a.e('v_mul_f32 v%d, s%d, v%d', e0, S_LOG2E, t0)
        a.e('v_mul_f32 v%d, s%d, v%d', e1, S_LOG2E, t1)
        a.e('v_exp_f32 v%d, v%d clamp', e0, e0)
        a.e('v_exp_f32 v%d, v%d clamp', e1, e1)
        a.e('v_max_f32 v%d, 0, v%d', t0, t0)
        a.e('v_max_f32 v%d, 0, v%d', t1, t1)
        a.e('v_add_f32 v%d, v%d, v%d', t0, t0, e0)
        a.e('v_add_f32 v%d, v%d, v%d', t1, t1, e1)
        if j == 0:
            a.e('v_min_f32 v%d, v%d, v%d', mn, t0, t1)
        else:
            a.e('v_min3_f32 v%d, v%d, v%d, v%d', mn, t0, t1, mn)
        a.e('v_cvt_pk_bf16_f32 v%d, v%d, v%d', p, t0, t1)
    lab = a.label('phi')
    a.e('v_cmp_gt_f32 vcc, 0x3a800000, v%d', mn)
    a.e('s_cbranch_vccnz %s_fix', lab)
    a.e('%s_done:', lab)
    with a.cold():
        a.e('%s_fix:', lab)
        for j in range(8):
            p = out + j
            a.e('v_lshlrev_b32 v%d, 16, v%d', t0, p)
            a.e('v_and_b32 v%d, 0xffff0000, v%d', t1, p)
            a.e('v_add_f32 v%d, s%d, v%d', t0, S_EPS, t0)
            a.e('v_add_f32 v%d, s%d, v%d', t1, S_EPS, t1)
            a.e('v_cvt_pk_bf16_f32 v%d, v%d, v%d', p, t0, t1)
        a.e('s_branch %s_done', lab)


def wave_reduce(a, regs, op, stmp):
    pats = ['quad_perm:[1,0,3,2]', 'quad_perm:[2,3,0,1]', 'row_half_mirror', 'row_mirror']
    a.e('s_nop 1')
    for p in pats:
        if len(regs) < 3:
            a.e('s_nop 1')
        for r in regs:
            a.e('%s_dpp v%d, v%d, v%d %s row_mask:0xf bank_mask:0xf', op, r, r, r, p)
    a.e('s_nop 1')
    for r in regs:
        for q in range(4):
            a.e('v_readlane_b32 s%d, v%d, %d', stmp + q, r, 16 * q)
        a.e('s_nop 1')
        a.e('v_mov_b32 v%d, s%d', r, stmp)
        for q in range(1, 4):
            a.e('%s v%d, s%d, v%d', op, r, stmp + q, r)


def sigmoid_bf16(a, regs):
    for r in regs:
        a.e('v_mul_f32 v%d, s%d, v%d', r, S_LOG2E, r)
    for r in regs:
        a.e('v_exp_f32 v%d, -v%d', r, r)
    a.e('s_nop 0')
    for r in regs:
        a.e('v_add_f32 v%d, 1.0, v%d', r, r)
    for r in regs:
        a.e('v_rcp_f32 v%d, v%d', r, r)
    a.e('s_nop 0')
    for r in regs:
        a.e('v_cvt_pk_bf16_f32 v%d, v%d, v%d', r, r, r)
    for r in regs:
        a.e('v_lshlrev_b32 v%d, 16, v%d', r, r)


def p2_ids(a):
    a.e('s_and_b32 s64, s2, 7')
    a.e('s_lshr_b32 s65, s2, 3')
    a.e('s_and_b32 s4, s64, 3')
    a.e('s_lshl_b32 s4, s4, 2')
    a.e('s_and_b32 s66, s65, 3')
    a.e('s_add_u32 s4, s4, s66')
    a.e('s_lshr_b32 s5, s64, 2')
    a.e('s_lshl_b32 s5, s5, 3')
    a.e('s_lshr_b32 s74, s65, 2')
    a.e('s_add_u32 s5, s5, s74')


def wo_voff(a, vdst, t0, t1, s_piece):
    a.e('v_lshrrev_b32 v%d, 3, v2', t0)
    a.e('s_lshl_b32 s64, s%d, 3', s_piece)
    a.e('v_add_u32 v%d, s64, v%d', t0, t0)
    a.e('v_lshlrev_b32 v%d, 11, v%d', t0, t0)
    a.e('v_bfe_u32 v%d, v2, 4, 1', t1)
    a.e('v_lshlrev_b32 v%d, 2, v%d', t1, t1)
    a.e('v_and_b32 v%d, 7, v2', vdst)
    a.e('v_xor_b32 v%d, v%d, v%d', t1, t1, vdst)
    a.e('v_lshl_add_u32 v%d, v%d, 4, v%d', t0, t1, t0)
    a.e('s_lshl_b32 s64, s5, 7')
    a.e('v_add_u32 v%d, s64, v%d', vdst, t0)


def wo_dma(a, pos, voff, s_w1k, tag):
    a.e('s_mov_b32 s65, %d', pos << 17)
    for b in range(2):
        a.e('s_add_u32 m0, s%d, %d', s_w1k, POS[pos] + b * 4096)
        if b:
            a.e('s_add_u32 s65, s65, 65536')
        else:
            a.e('s_nop 0')
        a.vm_issue(tag, 'buffer_load_dwordx4 v%d, %s, s65 offen' + NTO + ' lds', voff, sr(S_WO, 4))


XO = 220
T2 = 232
VRO, VXO = 230, 231


def xo_loads(a):
    if 'noxo' in EXP:
        a.e('v_mov_b32 v%d, 0', VRO)
        a.e('v_mov_b32 v%d, 0', VXO)
        return
    a.e('v_lshrrev_b32 v%d, 3, v0', VRO)
    a.e('s_lshl_b32 s64, s4, 7')
    a.e('v_add_u32 v%d, s64, v%d', VRO, VRO)
    a.e('v_lshlrev_b32 v%d, 11, v%d', VXO, VRO)
    a.e('v_and_b32 v3, 7, v0')
    a.e('v_lshl_add_u32 v%d, v3, 4, v%d', VXO, VXO)
    a.e('s_lshl_b32 s64, s5, 7')
    a.e('v_add_u32 v%d, s64, v%d', VXO, VXO)
    a.e('s_mov_b32 s64, 131072')
    a.e('v_lshlrev_b32 v3, 2, v%d', VRO)
    a.e('v_add_u32 v3, %d, v3', WS_G)
    a.vm_issue('xo', 'buffer_load_dwordx4 %s, v%d, %s, 0 offen', vr(XO, 4), VXO, sr(S_X, 4))
    a.vm_issue('xo', 'buffer_load_dwordx4 %s, v%d, %s, s64 offen', vr(XO + 4, 4), VXO, sr(S_X, 4))
    a.vm_issue('xo', 'buffer_load_dword v%d, v3, %s, 0 offen sc1', XO + 8, WSR)
    a.vm_issue('xo', 'buffer_load_dword v%d, v3, %s, 0 offen offset:256 sc1', XO + 9, WSR)


OM = [248, 249]


def t2_fill(a):
    for half in range(2):
        X, Gr, T, om = XO + 4 * half, XO + 8 + half, T2 + 8 * half, OM[half]
        a.e('v_sub_f32 v%d, 1.0, v%d', om, Gr)
        a.e('v_cvt_pk_bf16_f32 v%d, v%d, v%d', om, om, om)
        a.e('v_lshlrev_b32 v%d, 16, v%d', om, om)
        for q in range(4):
            x0, x1 = T + 2 * q, T + 2 * q + 1
            a.e('v_lshlrev_b32 v%d, 16, v%d', x0, X + q)
            a.e('v_and_b32 v%d, 0xffff0000, v%d', x1, X + q)
            a.e('v_mul_f32 v%d, v%d, v%d', x0, x0, om)
            a.e('v_mul_f32 v%d, v%d, v%d', x1, x1, om)
            a.e('v_cvt_pk_bf16_f32 v3, v%d, v%d', x0, x1)
            a.e('v_lshlrev_b32 v%d, 16, v3', x0)
            a.e('v_and_b32 v%d, 0xffff0000, v3', x1)


MASK14 = 's_mov_b32 exec_lo, 0x3fff3fff\ns_mov_b32 exec_hi, 0x3fff3fff'


def h_compute(a):
    HB = 64
    a.e('s_lshr_b32 s64, s2, 2')
    a.e('s_lshl_b32 s64, s64, 14')
    a.e('s_add_u32 s64, s64, %d', WS_HP)
    a.e('v_lshl_add_u32 v16, v2, 4, s64')
    a.e('v_lshrrev_b32 v8, 4, v2')
    a.e('s_mov_b32 s65, 0')
    a.e('H_hl:')
    for q in range(16):
        a.e('s_mov_b32 s64, %d', (q >> 2) * 4096)
        a.e('buffer_load_dwordx4 %s, v16, %s, s64 offen offset:%d sc1', vr(HB + 4 * q, 4), WSR, (q & 3) * 1024)
    a.e('s_waitcnt vmcnt(0)')
    a.e('v_max3_u32 v17, v%d, v%d, v%d', HB, HB + 1, HB + 2)
    for r in range(3, 63, 2):
        a.e('v_max3_u32 v17, v%d, v%d, v17', HB + r, HB + r + 1)
    a.e('v_max_u32 v17, v%d, v17', HB + 63)
    a.e(MASK14)
    a.e('v_cmp_eq_u32 vcc, -1, v17')
    a.e('s_mov_b64 exec, -1')
    a.e('s_cbranch_vccz H_hok')
    a.e('s_add_u32 s65, s65, 1')
    a.e('s_cmp_ge_u32 s65, 100000')
    a.e('s_cbranch_scc1 H_hok')
    a.e('s_sleep 8')
    a.e('s_branch H_hl')
    a.e('H_hok:')
    for m in range(2):
        for i in range(1, 8):
            for q in range(4):
                a.e('v_add_f32 v%d, v%d, v%d', HB + 32 * m + q, HB + 32 * m + q, HB + 32 * m + 4 * i + q)
    a.e('s_nop 1')
    for q in range(4):
        a.e('v_permlane16_swap_b32 v%d, v%d', HB + q, HB + 32 + q)
    for q in range(4):
        a.e('v_add_f32 v%d, v%d, v%d', HB + q, HB + q, HB + 32 + q)
    a.e('s_nop 1')
    for q in range(2):
        a.e('v_permlane32_swap_b32 v%d, v%d', HB + q, HB + 2 + q)
    for q in range(2):
        a.e('v_add_f32 v%d, v%d, v%d', HB + q, HB + q, HB + 2 + q)
    a.e('s_nop 1')
    a.e('v_permlane16_swap_b32 v%d, v%d', HB, HB + 1)
    G_, U_, T_ = HB, HB + 1, HB + 2
    a.e('v_cvt_pk_bf16_f32 v%d, v%d, v%d', T_, G_, U_)
    a.e('v_lshlrev_b32 v%d, 16, v%d', G_, T_)
    a.e('v_and_b32 v%d, 0xffff0000, v%d', U_, T_)
    a.e('v_mul_f32 v%d, s%d, v%d', T_, S_LOG2E, G_)
    a.e('v_exp_f32 v%d, -v%d', T_, T_)
    a.e('v_and_b32 v16, 15, v2')
    a.e('v_add_f32 v%d, 1.0, v%d', T_, T_)
    a.e('v_rcp_f32 v%d, v%d', T_, T_)
    a.e('v_lshl_add_u32 v16, v16, 2, v8')
    a.e('v_mul_f32 v%d, v%d, v%d', T_, T_, G_)
    a.e('v_cvt_pk_bf16_f32 v%d, v%d, v%d', T_, T_, T_)
    a.e('v_lshlrev_b32 v%d, 16, v%d', T_, T_)
    a.e('v_mul_f32 v%d, v%d, v%d', T_, T_, U_)
    a.e('v_cvt_pk_bf16_f32 v%d, v%d, v%d', T_, T_, T_)
    a.e('v_lshlrev_b32 v%d, 16, v%d', T_, T_)
    a.e('v_lshlrev_b32 v16, 2, v16')
    a.e('ds_write_b32 v16, v%d offset:%d', T_, L_H)


def gen(a):
    kn = NAME + '_kernel'
    a.e('.globl %s\n.p2align 8\n.type %s,@function\n%s:' % (kn, kn, kn))
    a.e('s_load_dwordx16 s[40:55], s[0:1], 0')
    a.e('s_load_dwordx8 s[56:63], s[0:1], 64')
    a.e('s_cmp_ge_u32 s2, 256')
    a.e('s_cbranch_scc1 K_end')
    stamp(a, 0, True); stamp(a, 1, False)
    a.e('v_lshrrev_b32 v1, 6, v0')
    a.e('v_and_b32 v2, 63, v0')
    a.e('s_and_b32 s6, s2, 7')
    a.e('v_readfirstlane_b32 s3, v1')
    a.e('s_lshr_b32 s7, s2, 3')
    a.e('s_and_b32 s4, s6, 1')
    a.e('s_lshl_b32 s4, s4, 3')
    a.e('s_and_b32 s64, s7, 7')
    a.e('s_add_u32 s4, s4, s64')
    a.e('s_lshr_b32 s5, s6, 1')
    a.e('s_lshl_b32 s5, s5, 2')
    a.e('s_lshr_b32 s64, s7, 3')
    a.e('s_add_u32 s5, s5, s64')
    ROT = os.environ.get('ROT', 'rt')
    if ROT == 'rt':
        a.e('s_lshl_b32 s74, s4, 1')
    elif ROT == 'xcd':
        a.e('s_lshl_b32 s74, s6, 1')
    elif ROT == 'xcd1':
        a.e('s_mov_b32 s74, s6')
    elif ROT == 'rt1':
        a.e('s_mov_b32 s74, s4')
    else:
        a.e('s_mov_b32 s74, 0')
    a.e('v_lshrrev_b32 v6, 3, v2')
    a.e('s_lshl_b32 s65, s3, 3')
    a.e('v_add_u32 v6, s65, v6')
    a.e('s_lshl_b32 s64, s4, 7')
    a.e('v_add_u32 v7, s64, v6')
    a.e('v_lshlrev_b32 v7, 11, v7')
    a.e('v_lshrrev_b32 v8, 4, v2')
    a.e('s_and_b32 s64, s3, 1')
    a.e('s_lshl_b32 s64, s64, 2')
    a.e('v_add_u32 v9, s64, v8')
    a.e('v_and_b32 v10, 7, v2')
    a.e('v_xor_b32 v9, v9, v10')
    a.e('v_lshl_add_u32 v7, v9, 4, v7')
    a.e('v_mul_u32_u24 v6, 6144, v6')
    a.e('v_and_b32 v9, 1, v8')
    a.e('v_lshlrev_b32 v9, 2, v9')
    a.e('v_xor_b32 v9, v9, v10')
    a.e('v_lshl_add_u32 v6, v9, 4, v6')
    a.e('s_lshl_b32 s64, s5, 7')
    a.e('v_add_u32 v6, s64, v6')
    a.e('s_lshl_b32 s66, s3, 10')
    a.e('s_mov_b32 s10, 4194304')
    a.e('s_mov_b32 s11, 0x00020000')
    a.e('s_mov_b32 s14, 6291456')
    a.e('s_mov_b32 s15, 0x00020000')

    def dma8(stage):
        a.e('s_add_u32 s65, s74, %d', stage)
        a.e('s_and_b32 s65, s65, 15')
        a.e('s_lshl_b32 s67, s65, 7')
        a.e('s_mul_i32 s65, s65, 393216')
        if stage == 0:
            a.e('s_waitcnt lgkmcnt(0)')
            a.e('s_mov_b32 s8, s40'); a.e('s_mov_b32 s9, s41')
            a.e('s_mov_b32 s12, s42'); a.e('s_mov_b32 s13, s43')
        for aa in range(2):
            a.e('s_add_u32 m0, s66, %d', RB + stage * SLOT + aa * 8192)
            a.e('s_add_u32 s64, s67, %d', aa * 131072)
            a.vm_issue('d%d' % stage, 'buffer_load_dwordx4 v7, %s, s64 offen' + NTA + ' lds', sr(S_X, 4))
        for ty in range(3):
            a.e('s_add_u32 m0, s66, %d', RB + stage * SLOT + 16384 + ty * 8192)
            a.e('s_add_u32 s64, s65, %d', ty * 2048)
            a.vm_issue('d%d' % stage, 'buffer_load_dwordx4 v6, %s, s64 offen' + NTB + ' lds', sr(S_W, 4))
    dma8(0)
    a.e('s_barrier')
    a.e('s_mov_b32 s%d, 0x%x', S_LOG2E, LOG2E)
    a.e('s_mov_b32 s%d, 0x%x', S_EPS, EPS6)
    srd(a, S_WS, 62, WS_BYTES)
    a.e('s_cmp_lt_u32 s3, 4')
    a.e('s_cbranch_scc1 C_start')
    vm_entry = list(a.vm)
    gen_h1(a)
    a.vm = list(vm_entry)
    gen_c1(a)
    gen_p2(a)


def gen_h1(a):
    VOA, VOB = 4, 5
    a.e('s_sub_u32 s6, s3, 4')
    a.e('s_lshl_b32 s7, s6, 10')
    a.e('v_lshrrev_b32 v6, 3, v2')
    a.e('s_lshl_b32 s64, s4, 7')
    a.e('s_lshl_b32 s65, s6, 3')
    a.e('s_add_u32 s64, s64, s65')
    a.e('v_add_u32 v7, s64, v6')
    a.e('v_lshlrev_b32 v7, 11, v7')
    a.e('s_and_b32 s64, s6, 1')
    a.e('s_lshl_b32 s64, s64, 2')
    a.e('v_add_u32 v9, s64, v8')
    a.e('v_xor_b32 v9, v9, v10')
    a.e('v_lshl_add_u32 v%d, v9, 4, v7', VOA)
    a.e('v_add_u32 v7, s65, v6')
    a.e('v_mul_u32_u24 v7, 6144, v7')
    a.e('v_and_b32 v9, 1, v8')
    a.e('v_lshlrev_b32 v9, 2, v9')
    a.e('v_xor_b32 v9, v9, v10')
    a.e('v_lshl_add_u32 v7, v9, 4, v7')
    a.e('s_lshl_b32 s64, s5, 7')
    a.e('v_add_u32 v%d, s64, v7', VOB)

    def dma(stage):
        slot = stage % 3
        if 'nodma' in EXP and stage >= 3:
            a.vm_issue('d%d' % stage, 's_nop 0')
            return
        a.e('s_add_u32 s65, s74, %d', stage)
        a.e('s_and_b32 s65, s65, 15')
        a.e('s_lshl_b32 s67, s65, 7')
        a.e('s_mul_i32 s65, s65, 393216')
        for aa in range(4):
            a.e('s_add_u32 m0, s7, %d', RB + slot * SLOT + aa * 4096)
            a.e('s_add_u32 s64, s67, %d', aa * 65536)
            a.vm_issue('d%d' % stage, 'buffer_load_dwordx4 v%d, %s, s64 offen' + NTA + ' lds', VOA, sr(S_X, 4))
        for ty in range(3):
            for b in range(2):
                a.e('s_add_u32 m0, s7, %d', RB + slot * SLOT + 16384 + ty * 8192 + b * 4096)
                a.e('s_add_u32 s64, s65, %d', b * 196608 + ty * 2048)
                a.vm_issue('d%d' % stage, 'buffer_load_dwordx4 v%d, %s, s64 offen' + NTB + ' lds', VOB, sr(S_W, 4))
    V16 = 6
    a.e('v_lshlrev_b32 v%d, 4, v2', V16)
    a.e('s_and_b32 s64, s2, 1')
    a.e('s_lshl_b32 s68, s64, 10')
    a.e('s_bfe_u32 s64, s2, 0x20001')
    a.e('s_lshl_b32 s64, s64, 8')
    a.e('s_add_u32 s68, s68, s64')
    a.e('s_and_b32 s64, s2, 0xf8')
    a.e('s_add_u32 s68, s68, s64')
    a.e('s_lshl_b32 s64, s6, 1')
    a.e('s_add_u32 s68, s68, s64')
    a.e('s_lshl_b32 s64, s68, 11')
    a.e('v_add_u32 v13, s64, v%d', V16)
    XR, WR, GW, WF = 24, 40, 48, 56
    RL = E('RL', -1)

    def x_rows():
        for q in range(4):
            a.vm_issue('r', 'buffer_load_dwordx4 %s, v13, %s, 0 offen offset:%d', vr(XR + 4 * q, 4), sr(S_X, 4), q * 1024)
    if 'rows0' in EXP:
        x_rows()
    dma(1)
    a.e('s_or_b32 s64, s2, s6')
    a.e('s_cmp_lg_u32 s64, 0')
    a.e('s_cbranch_scc1 H_nn')
    a.e('s_mov_b32 s64, %d', WS_KEY)
    a.e('s_load_dwordx2 s[66:67], s[62:63], s64')
    srd(a, S_DBG, 60, 256)
    a.e('s_waitcnt lgkmcnt(0)')
    a.e('s_xor_b32 s64, s66, s67')
    a.e('s_add_u32 s64, s64, 1')
    a.e('s_max_u32 s64, s64, 1')
    a.e('v_mov_b32 v72, s64')
    a.e('v_mov_b32 v73, 0')
    a.e('s_mov_b64 exec, 1')
    a.vm_uncounted('buffer_store_dword v72, v73, %s, 0 offen' % sr(S_DBG, 4) + WT)
    a.e('s_mov_b64 exec, -1')
    a.e('H_nn:')
    stamp(a, 3)
    srd(a, S_DBG, 60, 256)
    srd(a, S_WR, 48, 2048)
    srd(a, S_GW, 56, 2048)
    srd(a, S_WG, 50, 7340032)
    srd(a, S_WU, 52, 7340032)
    VWG, VHP, VKB = 11, 12, 14
    a.e('s_lshr_b32 s69, s2, 3')
    a.e('s_and_b32 s64, s2, 7')
    a.e('v_and_b32 v9, 15, v2')
    a.e('v_min_u32 v9, 13, v9')
    a.e('s_lshl_b32 s65, s69, 5')
    a.e('v_lshl_add_u32 v7, v8, 3, s65')
    a.e('v_mul_u32_u24 v7, 7168, v7')
    a.e('s_mul_i32 s65, s64, 896')
    a.e('s_mul_i32 s66, s6, 224')
    a.e('s_add_u32 s65, s65, s66')
    a.e('v_lshl_add_u32 v7, v9, 4, v7')
    a.e('v_add_u32 v%d, s65, v7', VWG)
    a.e('v_cmp_le_u32 vcc, 7, v9')
    a.e('v_mov_b32 v15, %d', 16384 - 7 * 32)
    a.e('v_cndmask_b32 v7, 0, v15, vcc')
    a.e('v_lshl_add_u32 v7, v9, 5, v7')
    a.e('v_lshrrev_b32 v15, 1, v8')
    a.e('v_lshl_add_u32 v7, v15, 13, v7')
    a.e('v_and_b32 v15, 1, v8')
    a.e('v_lshl_add_u32 v7, v15, 4, v7')
    a.e('s_lshl_b32 s64, s64, 17')
    a.e('s_lshl_b32 s65, s6, 15')
    a.e('s_add_u32 s64, s64, s65')
    a.e('s_lshl_b32 s65, s69, 8')
    a.e('s_add_u32 s64, s64, s65')
    a.e('s_add_u32 s64, s64, %d', WS_HP)
    a.e('v_add_u32 v%d, s64, v7', VHP)
    a.e('s_lshl_b32 s70, s5, 2')
    a.e('s_add_u32 s70, s70, s6')
    a.e('s_mul_i32 s70, s70, %d', 16 * KVB)
    a.e('s_add_u32 s70, s70, %d', WS_KVP)
    a.e('s_mul_i32 s64, s4, %d', KVB)
    a.e('s_add_u32 s64, s64, s70')
    a.e('s_mov_b32 s67, s64')
    a.e('v_lshl_add_u32 v15, v2, 2, s64')
    a.e('v_add_u32 v15, %d, v15', KVZ - 64)
    a.e('s_lshl_b32 s64, s5, 2')
    a.e('s_add_u32 s64, s64, s6')
    a.e('s_lshl_b32 s64, s64, 7')
    a.e('s_add_u32 s64, s64, %d', WS_F1)
    a.e('v_mov_b32 v23, s64')
    a.e('s_lshl_b32 s65, s4, 10')
    a.e('s_add_u32 s65, s65, %d', WS_F2 - 128)
    a.e('v_lshl_add_u32 v20, v2, 7, s65')
    a.e('v_cmp_gt_u32 vcc, 16, v2')
    a.e('s_nop 1')
    a.e('v_cndmask_b32 v15, v15, v20, vcc')
    a.e('v_writelane_b32 v15, s64, 0')
    a.e('s_cmp_eq_u32 s4, 0')
    a.e('s_cselect_b32 s75, 1, 0')
    a.e('s_or_b32 s64, s5, s6')
    a.e('s_cmp_eq_u32 s64, 0')
    a.e('s_cselect_b32 s64, 0x1fe, 0')
    a.e('s_or_b32 s75, s75, s64')
    a.e('s_or_b32 s75, s75, 0xffff0000')
    a.e('v_add_u32 v22, s67, v%d', V16)
    for r in range(4):
        a.e('v_mov_b32 v%d, -1', 16 + r)
    a.e('v_cndmask_b32 v20, -1, 0, vcc')
    a.vm_wait('d0')
    stamp(a, 4)
    a.e('s_barrier')
    dma(2)

    def init_stores():
        a.vm_issue('init', 'buffer_store_dwordx4 v[16:19], v22, %s, 0 offen' + WT, WSR)
        a.e('s_mov_b32 exec_lo, s75\ns_mov_b32 exec_hi, 0')
        a.vm_issue('init', 'buffer_store_dword v20, v15, %s, 0 offen' + WT, WSR)
        a.e(MASK14)
        a.vm_issue('init', 'buffer_store_dwordx4 v[16:19], v%d, %s, 0 offen' + WT, VHP, WSR)
        a.e('s_mov_b64 exec, 0xffff')
        a.e('s_lshl_b32 s64, s2, 10')
        a.e('s_lshl_b32 s65, s6, 8')
        a.e('s_add_u32 s64, s64, s65')
        a.e('s_add_u32 s64, s64, %d', WS_YP)
        a.vm_issue('init', 'buffer_store_dwordx4 v[16:19], v%d, %s, s64 offen' + WT, V16, WSR)
        a.e('s_mov_b64 exec, -1')

    def row_loads():
        if 'rows0' not in EXP:
            x_rows()
        for q in range(2):
            a.vm_issue('r', 'buffer_load_dwordx4 %s, v%d, %s, 0 offen offset:%d', vr(WR + 4 * q, 4), V16, sr(S_WR, 4), q * 1024)
        for q in range(2):
            a.vm_issue('r', 'buffer_load_dwordx4 %s, v%d, %s, 0 offen offset:%d', vr(GW + 4 * q, 4), V16, sr(S_GW, 4), q * 1024)

    WGT = 96
    XS = 88
    WD = 192
    wl = [(m, j) for j in range(8) for m in range(2)]
    TR = [int(c) for c in os.environ.get('TR', '00005005006007000')]
    assert len(TR) == 17 and sum(TR) == 23, sum(TR)
    allw = [('w', x) for x in wl] + [('d', j) for j in range(7)]
    wsched, dsched = {}, {}
    for k, n in enumerate(TR):
        for kind, x in allw[sum(TR[:k]):sum(TR[:k + 1])]:
            (wsched if kind == 'w' else dsched).setdefault(k - 1, []).append(x)
    D0 = min(dsched)
    GV = E('GV', 13)
    VWD = 21

    def wload(lst):
        if 'now' in EXP:
            return
        a.e(MASK14)
        for (m, j) in lst:
            a.e('s_mov_b32 s64, %d', j * 7168)
            a.vm_issue('w', 'buffer_load_dwordx4 %s, v%d, %s, s64 offen' + NTW, vr(WGT + 32 * m + 4 * j, 4), VWG, sr(S_WG if m == 0 else S_WU, 4))
        a.e('s_mov_b64 exec, -1')

    GA = 32

    def gemv1_part(pairs):
        if pairs[0] == 0:
            a.vm_wait('xs')
            a.vm_wait('w')
            stamp(a, 6)
        a.e('s_mov_b32 s64, 0x05040100')
        a.e('s_mov_b32 s65, 0x07060302')
        for jp in pairs:
            for m in range(2):
                for q in range(4):
                    w0 = WGT + 32 * m + 8 * jp + q
                    t = 48 + 2 * (q & 1)
                    a.e('v_perm_b32 v%d, v%d, v%d, s64', t, w0 + 4, w0)
                    a.e('v_perm_b32 v%d, v%d, v%d, s65', t + 1, w0 + 4, w0)
                    for k in range(2):
                        acc = GA + 8 * m + 2 * q + k
                        a.e('v_dot2_f32_bf16 v%d, v%d, v%d, %s', acc, t + k, XS + jp, '0' if jp == 0 else 'v%d' % acc)

    def gemv1_fin():
        a.e('s_nop 2')
        a.e('s_nop 1')
        for m in range(2):
            for q in range(4):
                a.e('v_permlane16_swap_b32 v%d, v%d', GA + 8 * m + q, GA + 8 * m + q + 4)
        for m in range(2):
            for q in range(4):
                a.e('v_add_f32 v%d, v%d, v%d', GA + 8 * m + q, GA + 8 * m + q, GA + 8 * m + q + 4)
        a.e('s_nop 1')
        for q in range(4):
            a.e('v_permlane32_swap_b32 v%d, v%d', GA + q, GA + 8 + q)
        for q in range(4):
            a.e('v_add_f32 v%d, v%d, v%d', GA + q, GA + q, GA + 8 + q)
        a.e(MASK14)
        a.vm_issue('hp', 'buffer_store_dwordx4 %s, v%d, %s, 0 offen' + WT, vr(GA, 4), VHP, WSR)
        a.e('s_mov_b64 exec, -1')
        stamp(a, 7)

    def h0_only(name):
        a.e('s_cmp_lg_u32 s6, 0')
        a.e('s_cbranch_scc1 %s', name)

    IN = E('IN', 0)
    PB = E('PB', 10)
    VOW = 10
    if RL == -1:
        row_loads()
    if IN == -1:
        init_stores()
    if -1 in wsched:
        wload(wsched[-1])
    marks = {}
    for i in range(16):
        if i + 1 < 16:
            a.vm_wait('d%d' % (i + 1))
        if i in (RL + 5, PB + 2):
            a.e('s_waitcnt lgkmcnt(0)')
        a.e('s_barrier')
        if i + 3 < 16:
            dma(i + 3)
        if i == RL:
            row_loads()
        if i == IN:
            init_stores()
        if i == RL + 3:
            a.vm_wait('r')
            for q in range(8):
                for k, (x, w) in enumerate(((XR + q, GW + q), (XR + 8 + q, GW + q), (XR + q, WR + q), (XR + 8 + q, WR + q))):
                    a.e('v_dot2_f32_bf16 v%d, v%d, v%d, %s', 72 + k, x, w, '0' if q == 0 else 'v%d' % (72 + k))
        if i == RL + 4:
            a.e('v_permlane32_swap_b32 v72, v74')
            a.e('v_permlane32_swap_b32 v73, v75')
            a.e('v_add_f32 v72, v72, v74')
            a.e('v_add_f32 v73, v73, v75')
            a.e('s_lshl_b32 s64, s68, 2')
            a.e('s_add_u32 s64, s64, %d', WS_G)
            a.e('v_permlane16_swap_b32 v72, v73')
            a.e('v_add_f32 v72, v72, v73')
            a.e('v_and_b32 v75, 1, v8')
            a.e('v_lshl_add_u32 v76, v75, 2, s64')
            for pat in ('quad_perm:[1,0,3,2]', 'quad_perm:[2,3,0,1]', 'row_half_mirror', 'row_mirror'):
                a.e('v_add_f32_dpp v72, v72, v72 %s row_mask:0xf bank_mask:0xf', pat)
                a.e('s_nop 1')
            a.e('v_cvt_pk_bf16_f32 v72, v72, v72')
            a.e('s_sub_u32 s64, %d, s68', 2047 + 0x8000)
            a.e('v_lshlrev_b32 v72, 16, v72')
            a.e('v_ashrrev_i32 v73, 31, v72')
            a.e('v_sub_u32 v77, s64, v75')
            a.e('v_or_b32 v73, 0x80000000, v73')
            a.e('s_lshl_b32 s64, s6, 3')
            a.e('v_xor_b32 v73, v72, v73')
            a.e('v_lshl_add_u32 v75, v75, 2, s64')
            a.e('v_and_b32 v73, 0xffff0000, v73')
            a.e('v_or_b32 v73, v77, v73')
            sigmoid_bf16(a, [72])
            a.e('s_mov_b32 exec_lo, 0\ns_mov_b32 exec_hi, 0x10001')
            a.e('ds_write_b32 v75, v73 offset:%d', L_KEY)
            a.e('s_mov_b32 exec_lo, 0x10001\ns_mov_b32 exec_hi, 0')
            a.vm_issue('g', 'buffer_store_dword v72, v76, %s, 0 offen' + WT, WSR)
            a.e('s_mov_b64 exec, -1')
        if i == RL + 2:
            a.e('v_mov_b32 v79, 0')
            h0_only('H_nc')
            a.vm_uncounted('buffer_load_dword v78, v79, %s, 0 offen sc1' % sr(S_DBG, 4))
            a.e('H_nc:')
        if i == RL + 7:
            assert IN <= RL + 4
            h0_only('H_nk')
            a.e('v_mov_b32 v76, %d', L_KEY)
            a.e('ds_read_b128 v[72:75], v76')
            a.e('ds_read_b128 v[24:27], v76 offset:16')
            a.e('s_mov_b32 s65, 0')
            a.e('H_nspin:')
            a.e('v_readfirstlane_b32 s71, v78')
            a.e('s_add_u32 s65, s65, 1')
            a.e('s_cmp_lg_u32 s71, 0')
            a.e('s_cbranch_scc1 H_nok')
            a.e('s_cmp_ge_u32 s65, 200000')
            a.e('s_cbranch_scc1 H_nok')
            a.e('s_sleep 4')
            a.e('buffer_load_dword v78, v79, %s, 0 offen sc1' % sr(S_DBG, 4))
            a.e('s_waitcnt vmcnt(0)')
            a.e('s_branch H_nspin')
            a.e('H_nok:')
            a.e('s_lshl_b32 s64, s2, 3')
            a.e('s_add_u32 s64, s64, %d', WS_KEY)
            a.e('v_mov_b32 v76, s64')
            a.e('s_waitcnt lgkmcnt(0)')
            a.e('v_max3_u32 v72, v72, v73, v74')
            a.e('v_max3_u32 v24, v24, v25, v26')
            a.e('v_max3_u32 v72, v72, v75, v27')
            a.e('v_max_u32 v72, v72, v24')
            a.e('v_xor_b32 v73, s71, v72')
            a.e('s_mov_b64 exec, 1')
            a.vm_uncounted('buffer_store_dwordx2 v[72:73], v76, %s, 0 offen' % WSR + WT)
            a.e('s_mov_b64 exec, -1')
            a.e('H_nk:')

        def key_loads():
            a.e('s_mov_b32 s64, %d', WS_KEY)
            for q in range(2):
                a.vm_uncounted('buffer_load_dwordx4 %s, v%d, %s, s64 offen offset:%d sc1' % (vr(24 + 4 * q, 4), V16, WSR, q * 1024))
        if i == PB:
            h0_only('H_np')
            key_loads()
            a.e('H_np:')
            marks['poll'] = a.issued
        if i == PB + 1:
            h0_only('H_nq')
            a.e('s_waitcnt vmcnt(%d)', a.issued - marks['poll'])
            a.e('s_mov_b32 s65, 0')
            a.e('H_spin:')
            for q in range(4):
                a.e('v_xor_b32 v%d, v%d, v%d', 25 + 2 * q, 24 + 2 * q, 25 + 2 * q)
            a.e('v_xor_b32 v80, s71, v25')
            a.e('v_xor_b32 v81, s71, v27')
            a.e('v_xor_b32 v25, s71, v29')
            a.e('v_xor_b32 v27, s71, v31')
            a.e('v_or3_b32 v80, v80, v81, v25')
            a.e('v_or_b32 v80, v80, v27')
            a.e('v_cmp_ne_u32 vcc, 0, v80')
            a.e('s_cbranch_vccz H_pollok')
            a.e('s_add_u32 s65, s65, 1')
            a.e('s_cmp_ge_u32 s65, 200000')
            a.e('s_cbranch_scc1 H_pollok')
            a.e('s_sleep 8')
            key_loads()
            a.e('s_waitcnt vmcnt(0)')
            a.e('s_branch H_spin')
            a.e('H_pollok:')
            a.e('v_max_u32 v80, v24, v26')
            a.e('v_max3_u32 v80, v80, v28, v30')
            a.e('s_nop 1')
            for pat in ('quad_perm:[1,0,3,2]', 'quad_perm:[2,3,0,1]', 'row_half_mirror', 'row_mirror'):
                a.e('v_max_u32_dpp v80, v80, v80 %s row_mask:0xf bank_mask:0xf', pat)
                a.e('s_nop 1')
            for swp in ('v_permlane16_swap_b32', 'v_permlane32_swap_b32'):
                a.e('v_mov_b32 v81, v80')
                a.e('s_nop 1')
                a.e('%s v80, v81', swp)
                a.e('v_max_u32 v80, v80, v81')
            a.e('v_mov_b32 v81, %d', L_KEY + 32)
            a.e('ds_write_b32 v81, v80')
            a.e('H_nq:')
        if i in wsched:
            wload(wsched[i])
        if i == PB + 2:
            a.e('v_mov_b32 v81, %d', L_KEY + 32)
            a.e('ds_read_b32 v80, v81')
            a.e('s_lshl_b32 s65, s69, 6')
            a.e('v_lshl_add_u32 v81, v8, 4, s65')
            a.e('s_waitcnt lgkmcnt(0)')
            a.e('v_readfirstlane_b32 s75, v80')
            a.e('s_nop 3')
            a.e('s_and_b32 s64, s75, 0x7ff')
            a.e('s_sub_u32 s64, 2047, s64')
            a.e('s_lshl_b32 s64, s64, 11')
            a.vm_issue('xs', 'buffer_load_dwordx4 %s, v81, %s, s64 offen', vr(XS, 4), sr(S_X, 4))
        if i == D0:
            assert D0 > RL
            srd(a, S_WD, 54, 7340032)
            a.e('s_lshr_b32 s64, s2, 2')
            a.e('s_mul_i32 s64, s64, %d', 56 * 2048)
            a.e('s_and_b32 s65, s2, 3')
            a.e('s_lshl_b32 s65, s65, 9')
            a.e('s_add_u32 s64, s64, s65')
            a.e('s_lshl_b32 s65, s6, 7')
            a.e('s_add_u32 s64, s64, s65')
            a.e('v_lshrrev_b32 v7, 3, v2')
            a.e('v_lshlrev_b32 v7, 11, v7')
            a.e('v_and_b32 v9, 7, v2')
            a.e('v_lshl_add_u32 v7, v9, 4, v7')
            a.e('v_add_u32 v%d, s64, v7', VWD)
        if i in dsched and 'now' not in EXP:
            for j in dsched[i]:
                a.e('s_mov_b32 s64, %d', j * 16384)
                a.vm_issue('wd', 'buffer_load_dwordx4 %s, v%d, %s, s64 offen' + NTW, vr(WD + 4 * j, 4), VWD, sr(S_WD, 4))
        if i == 13:
            p2_ids(a)
            srd(a, S_WO, 44, 2097152)
            wo_voff(a, VOW, 7, 9, 6)
            for p in (0, 8, 1, 9):
                wo_dma(a, p, VOW, 7, 'wo')
        if i == 14:
            for p in (2, 10, 3, 11):
                wo_dma(a, p, VOW, 7, 'wo')
        if i == 15:
            xo_loads(a)
        if i == 15 and 'wolate' not in EXP and 'nowo' not in EXP:
            for p in (4, 12, 5, 13, 6, 14, 7, 15):
                wo_dma(a, p, VOW, 7, 'wo')
        if i == GV:
            gemv1_part([0, 1])
        if i == GV + 1:
            gemv1_part([2, 3])
            gemv1_fin()
    stamp(a, 5)
    if 'gprio' in EXP:
        a.e('s_setprio 3')
    KB, KA, PA = 64, 128, 48
    SL = 40

    def f1_poll():
        a.e('s_mov_b64 exec, 1')
        a.e('v_mov_b32 v20, 0')
        a.e('buffer_atomic_or v20, v23, %s, 0 offen sc0', WSR)
        a.e('s_mov_b64 exec, -1')
    f1_poll()
    a.e('v_add_u32 v17, s70, v%d', V16)
    a.e('v_lshrrev_b32 v18, 2, v2')
    a.e('v_mul_u32_u24 v18, %d, v18', KVB)
    a.e('v_and_b32 v19, 3, v2')
    a.e('v_lshl_add_u32 v18, v19, 4, v18')
    a.e('s_add_u32 s64, s70, %d', KVZ)
    a.e('v_add_u32 v18, s64, v18')
    a.e('v_bfe_u32 v26, v2, 3, 1')
    a.e('v_lshl_add_u32 v26, v26, 2, v19')
    a.e('v_bfe_u32 v27, v2, 2, 1')
    a.e('v_lshrrev_b32 v28, 5, v2')
    a.e('v_cmp_eq_u32 vcc, v27, v28')
    a.e('v_and_b32 v27, 16, v2')
    a.e('v_cmp_eq_u32 s[64:65], 0, v27')
    a.e('s_and_b64 vcc, vcc, s[64:65]')
    a.e('v_and_b32 v27, 1, v26')
    a.e('v_lshlrev_b32 v27, 4, v27')
    a.e('v_mov_b32 v28, 0x3f80')
    a.e('v_lshlrev_b32 v27, v27, v28')
    a.e('v_cndmask_b32 v27, 0, v27, vcc')
    a.e('v_lshrrev_b32 v26, 1, v26')
    for q in range(4):
        a.e('v_cmp_eq_u32 vcc, %d, v26', q)
        a.e('s_nop 1')
        a.e('v_cndmask_b32 v%d, 0, v27, vcc', PA + q)
    for r in range(16):
        a.e('v_mov_b32 v%d, 0', KA + r)
    a.e('s_mov_b32 s66, 0xffff')
    a.e('s_mov_b32 s65, 0')
    a.e('s_waitcnt vmcnt(0)')
    a.e('G_loop:')
    a.e('v_readfirstlane_b32 s68, v20')
    if E('SPEC', 0):
        a.e('s_bcnt1_i32_b32 s64, s66')
        a.e('s_cmp_le_u32 s64, %d', E('SPEC', 0))
        a.e('s_cselect_b32 s68, 0xffff, s68')
    a.e('s_and_b32 s68, s68, s66')
    a.e('s_andn2_b32 s66, s66, s68')
    if STAMPS == 2:
        a.e('s_memrealtime s[86:87]')
        a.e('s_min_u32 s64, s65, 30')
        a.e('s_lshl_b32 m0, s64, 1')
        a.e('s_waitcnt lgkmcnt(0)')
        a.e('v_writelane_b32 v250, s86, m0')
        a.e('s_add_u32 m0, m0, 1')
        a.e('s_nop 0')
        a.e('v_writelane_b32 v250, s66, m0')
        a.e('v_writelane_b32 v250, s65, 63')
    a.e('s_bcnt1_i32_b32 s67, s68')

    def jump_n(pref):
        def rec(lo, hi, last):
            if lo == hi:
                if not (last and lo == 16):
                    a.e('s_branch %s%d', pref, lo)
                return
            mid = lo if hi - lo < 3 else (lo + hi) // 2
            if mid == lo:
                a.e('s_cmp_eq_u32 s67, %d', lo)
                a.e('s_cbranch_scc1 %s%d', pref, lo)
                rec(lo + 1, hi, last)
            else:
                lab = a.label(pref + 't')
                a.e('s_cmp_gt_u32 s67, %d', mid)
                a.e('s_cbranch_scc1 %s', lab)
                rec(lo, mid, False)
                a.e('%s:', lab)
                rec(mid + 1, hi, last)
        a.e('s_cmp_eq_u32 s67, 0')
        a.e('s_cbranch_scc1 %s0', pref)
        rec(1, 16, True)
    jump_n('G_l')
    for c in range(15, -1, -1):
        a.e('G_l%d:', c + 1)
        a.e('s_ff1_i32_b32 s%d, s68', SL + c)
        a.e('s_bitset0_b32 s68, s%d', SL + c)
        a.e('s_mul_i32 s64, s%d, %d', SL + c, KVB)
        a.e('buffer_load_dwordx4 %s, v17, %s, s64 offen sc1', vr(KB + 4 * c, 4), WSR)
    a.e('G_l0:')
    a.e('s_mov_b32 s68, s66')
    a.e('s_cmp_eq_u32 s66, 0')
    a.e('s_cbranch_scc1 G_z')
    a.e('s_cmp_lg_u32 s67, 0')
    a.e('s_cbranch_scc1 G_p')
    a.e('s_sleep %d', E('GSL', 2))
    a.e('G_p:')
    f1_poll()
    a.e('s_branch G_proc')
    a.e('G_z:')
    a.e('buffer_load_dwordx4 v[56:59], v18, %s, 0 offen sc1', WSR)
    a.e('G_proc:')
    jump_n('G_q')
    for c in range(15, -1, -1):
        b = KB + 4 * c
        a.e('G_q%d:', c + 1)
        a.e('s_waitcnt vmcnt(%d)', c + 1)
        a.e('v_max3_u32 v21, v%d, v%d, v%d', b, b + 1, b + 2)
        a.e('v_max_u32 v21, v21, v%d', b + 3)
        a.e('v_cmp_eq_u32 vcc, -1, v21')
        a.e('s_cbranch_vccnz G_f%d', c)
        a.e('v_mfma_f32_32x32x16_bf16 %s, %s, %s, %s', vr(KA, 16), vr(PA, 4), vr(b, 4), vr(KA, 16))
        with a.cold():
            a.e('G_f%d:', c)
            a.e('s_bitset1_b32 s66, s%d', SL + c)
            a.e('s_branch G_q%d', c)
    a.e('G_q0:')
    a.e('s_waitcnt vmcnt(0)')
    a.e('s_add_u32 s65, s65, 1')
    a.e('s_cmp_ge_u32 s65, 40000')
    a.e('s_cbranch_scc1 G_done')
    a.e('s_cmp_lg_u32 s68, 0')
    a.e('s_cbranch_scc1 G_loop')
    a.e('v_mov_b32 v20, -1')
    a.e('s_cmp_lg_u32 s66, 0')
    a.e('s_cbranch_scc1 G_loop')
    a.e('v_max3_u32 v21, v56, v57, v58')
    a.e('v_max_u32 v21, v21, v59')
    a.e('v_cmp_eq_u32 vcc, -1, v21')
    a.e('s_cbranch_vccnz G_loop')
    a.e('G_done:')
    a.vm = []
    stamp(a, 8)
    a.e('v_add_u32 v16, s7, v%d', V16)
    for pat in ('row_ror:4', 'row_ror:8'):
        for q in range(4):
            a.e('v_add_f32_dpp v%d, v%d, v%d %s row_mask:0xf bank_mask:0xf', 56 + q, 56 + q, 56 + q, pat)
    for swp in ('v_permlane16_swap_b32', 'v_permlane32_swap_b32'):
        for q in range(4):
            a.e('v_mov_b32 v%d, v%d', 64 + q, 56 + q)
        a.e('s_nop 0')
        for q in range(4):
            a.e('%s v%d, v%d', swp, 56 + q, 64 + q)
        for q in range(4):
            a.e('v_add_f32 v%d, v%d, v%d', 56 + q, 56 + q, 64 + q)
    for q in range(4):
        a.e('v_cvt_pk_bf16_f32 v%d, v%d, v%d', 60 + q, KA + 2 * q, KA + 2 * q + 1)
    a.e('ds_write_b128 v16, v[60:63] offset:%d', L_KF)
    a.e('v_cvt_pk_bf16_f32 v56, v56, v57')
    a.e('v_cvt_pk_bf16_f32 v57, v58, v59')
    a.e('v_and_b32 v16, 1, v2')
    a.e('v_lshlrev_b32 v16, 4, v16')
    a.e('v_bfe_u32 v17, v2, 1, 1')
    a.e('v_lshl_add_u32 v16, v17, 3, v16')
    a.e('s_lshl_b32 s64, s6, 5')
    a.e('v_add_u32 v16, s64, v16')
    a.e('s_mov_b64 exec, 15')
    a.e('ds_write_b64 v16, v[56:57] offset:%d', L_ZF)
    a.e('s_mov_b64 exec, -1')
    a.e('s_waitcnt lgkmcnt(0)')
    a.e('s_barrier')
    if 'gprio' in EXP:
        a.e('s_setprio 0')
    a.e('v_lshrrev_b32 v18, 3, v2')
    a.e('v_lshlrev_b32 v18, 2, v18')
    for j in range(7):
        a.e('ds_read_b32 v%d, v18 offset:%d', 24 + j, L_H + 32 * j)
    a.e('s_waitcnt lgkmcnt(0)')
    YA = 32
    for j in range(7):
        for q in range(4):
            w = WD + 4 * j + q
            a.e('v_lshlrev_b32 v48, 16, v%d', w)
            a.e('v_and_b32 v49, 0xffff0000, v%d', w)
            if j == 0:
                a.e('v_mul_f32 v%d, v48, v%d', YA + 2 * q, 24 + j)
                a.e('v_mul_f32 v%d, v49, v%d', YA + 2 * q + 1, 24 + j)
            else:
                a.e('v_fmac_f32 v%d, v48, v%d', YA + 2 * q, 24 + j)
                a.e('v_fmac_f32 v%d, v49, v%d', YA + 2 * q + 1, 24 + j)
    a.e('s_nop 1')
    for q in range(4):
        a.e('v_permlane32_swap_b32 v%d, v%d', YA + q, YA + 4 + q)
    for q in range(4):
        a.e('v_add_f32 v%d, v%d, v%d', YA + q, YA + q, YA + 4 + q)
    a.e('s_nop 1')
    for q in range(2):
        a.e('v_permlane16_swap_b32 v%d, v%d', YA + q, YA + 2 + q)
    for q in range(2):
        a.e('v_add_f32 v%d, v%d, v%d', YA + q, YA + q, YA + 2 + q)
    a.e('s_nop 1')
    for q in range(2):
        a.e('v_add_f32_dpp v%d, v%d, v%d row_ror:8 row_mask:0xf bank_mask:0xf', YA + q, YA + q, YA + q)
    a.e('v_and_b32 v16, 7, v2')
    a.e('v_lshlrev_b32 v16, 5, v16')
    a.e('v_lshl_add_u32 v16, v8, 3, v16')
    a.e('s_lshl_b32 s64, s2, 10')
    a.e('s_lshl_b32 s65, s6, 8')
    a.e('s_add_u32 s64, s64, s65')
    a.e('s_add_u32 s64, s64, %d', WS_YP)
    a.e('s_mov_b32 exec_lo, 0x00ff00ff\ns_mov_b32 exec_hi, 0x00ff00ff')
    a.e('buffer_store_dwordx2 %s, v16, %s, s64 offen' + WT, vr(YA, 2), WSR)
    a.e('s_mov_b64 exec, -1')
    stamp(a, 9)
    t2_fill(a)
    a.e('s_branch P2_start')


def gen_c1(a):
    a.e('C_start:')
    TOUCH = E('TOUCH', 0)
    if TOUCH:
        a.e('s_mul_i32 s64, s2, 24576')
        a.e('s_mul_i32 s65, s3, 6144')
        a.e('s_add_u32 s64, s64, s65')
        a.e('v_mul_u32_u24 v3, %d, v2', TOUCH)
        a.e('s_mov_b32 exec_hi, 0xffff')
        for q in range(128 // TOUCH):
            a.vm_issue('t', 'buffer_load_dword v60, v3, %s, s64 offen offset:%d', sr(S_W, 4), q * 3072)
        a.e('s_mov_b32 exec_hi, -1')
    if 'noscode' not in EXP:
        NS = 4
        a.e('s_getpc_b64 s[68:69]')
        a.e('C_pc:')
        a.e('s_sub_u32 s68, s68, C_pc-%s_kernel' % NAME)
        a.e('s_subb_u32 s69, s69, 0')
        a.e('s_lshr_b32 s64, s2, 3')
        a.e('s_lshl_b32 s64, s64, 2')
        a.e('s_add_u32 s64, s64, s3')
        a.e('s_mul_i32 s64, s64, %d', NS * 64)
        a.e('s_mov_b32 s65, CODE_END-%s_kernel-4' % NAME)
        for q in range(NS):
            a.e('s_min_u32 s66, s64, s65')
            a.e('s_load_dword s75, s[68:69], s66')
            a.e('s_add_u32 s64, s64, 64')
    VAB, VBB, VA, VB = 4, 8, 10, 14
    FR = [16, 36]
    Q = [64, 80]; K = [96, 112]; V = [128, 144]
    a.e('s_and_b32 s6, s3, 1')
    a.e('s_lshr_b32 s7, s3, 1')
    a.e('v_and_b32 v3, 31, v2')
    a.e('s_lshl_b32 s64, s6, 6')
    a.e('v_add_u32 v3, s64, v3')
    a.e('v_lshlrev_b32 v3, 7, v3')
    a.e('v_add_u32 v3, %d, v3', RB)
    a.e('v_bfe_u32 v9, v2, 1, 3')
    a.e('v_lshrrev_b32 v15, 5, v2')
    a.e('v_xor_b32 v9, v9, v15')
    for t in range(4):
        a.e('v_xor_b32 v56, %d, v9', 2 * t)
        a.e('v_lshl_add_u32 v%d, v56, 4, v3', VAB + t)
    a.e('v_bfe_u32 v56, v2, 2, 2')
    a.e('v_lshl_add_u32 v57, v15, 3, v56')
    a.e('v_lshlrev_b32 v57, 7, v57')
    a.e('v_lshrrev_b32 v56, 1, v56')
    a.e('v_xor_b32 v56, s7, v56')
    a.e('v_lshl_add_u32 v57, v56, 6, v57')
    a.e('v_bfe_u32 v56, v2, 4, 1')
    a.e('v_lshl_add_u32 v57, v56, 5, v57')
    a.e('v_and_b32 v56, 3, v2')
    a.e('v_lshl_add_u32 v57, v56, 3, v57')
    a.e('v_add_u32 v%d, %d, v57', VBB, RB + 16384)
    for t in range(4):
        a.e('v_mov_b32 v%d, v%d', VA + t, VAB + t)
    a.e('v_mov_b32 v%d, v%d', VB, VBB)
    for r in range(64, 160):
        a.e('v_mov_b32 v%d, 0', r)
    a.e('s_mov_b32 s65, 0')
    a.e('s_mov_b32 s66, 0')
    a.e('s_lshl_b32 s64, s3, 2')
    a.e('s_add_u32 s64, s64, %d', L_FLG)
    a.e('v_mov_b32 v56, s64')
    a.e('ds_write_b32 v56, v64')
    a.e('ds_write_b32 v56, v64 offset:16')

    def reads(t, buf):
        f = FR[buf]
        L = ['ds_read_b128 %s, v%d' % (vr(f, 4), VA + t)]
        for ty in range(3):
            for tt in range(2):
                L.append('ds_read_b64_tr_b16 %s, v%d offset:%d' % (vr(f + 8 + 4 * ty + 2 * tt, 2), VB, ty * 8192 + t * 2048 + tt * 512))
        L.append('ds_read_b128 %s, v%d offset:4096' % (vr(f + 4, 4), VA + t))
        return L

    def mfmas(buf, t=0):
        f = FR[buf]
        L = []
        if 'm16' in EXP:
            for rb in range(2):
                A = vr(f + 4 * rb, 4)
                for acc, x, y in ((Q[rb], vr(f + 8, 4), A), (K[rb], A, vr(f + 12, 4)), (V[rb], A, vr(f + 16, 4))):
                    q0 = acc + 8 * (t & 1)
                    L.append('v_mfma_f32_16x16x32_bf16 %s, %s, %s, %s\nv_mfma_f32_16x16x32_bf16 %s, %s, %s, %s' % (
                        vr(q0, 4), x, y, vr(q0, 4), vr(q0 + 4, 4), y, x, vr(q0 + 4, 4)))
            return L
        for rb in range(2):
            A = vr(f + 4 * rb, 4)
            L.append('v_mfma_f32_32x32x16_bf16 %s, %s, %s, %s' % (vr(Q[rb], 16), vr(f + 8, 4), A, vr(Q[rb], 16)))
            L.append('v_mfma_f32_32x32x16_bf16 %s, %s, %s, %s' % (vr(K[rb], 16), A, vr(f + 12, 4), vr(K[rb], 16)))
            L.append('v_mfma_f32_32x32x16_bf16 %s, %s, %s, %s' % (vr(V[rb], 16), A, vr(f + 16, 4), vr(V[rb], 16)))
        return L

    stamp(a, 3)
    a.vm_wait('d0', 'lgkmcnt(0)')
    stamp(a, 4)
    a.e('s_barrier')
    for r in reads(0, 0):
        a.e(r)
    a.e('.p2align 3')
    a.e('C_loop:')
    for t in range(4):
        buf = t & 1
        if t == 3:
            a.e('s_waitcnt vmcnt(0) lgkmcnt(0)')
            if STAMPS == 2:
                a.e('s_memtime s[68:69]')
            a.e('s_barrier')
            if STAMPS == 2:
                a.e('s_memtime s[70:71]')
                a.e('s_waitcnt lgkmcnt(0)')
                a.e('s_mov_b32 m0, s66')
                a.e('s_nop 0')
                a.e('v_writelane_b32 v250, s68, m0')
                a.e('s_add_u32 m0, s66, 16')
                a.e('s_nop 0')
                a.e('v_writelane_b32 v250, s70, m0')
                a.e('s_memrealtime s[70:71]')
                a.e('s_add_u32 m0, s66, 32')
                a.e('s_waitcnt lgkmcnt(0)')
                a.e('v_writelane_b32 v250, s70, m0')
            a.e('s_add_u32 s65, s65, %d', SLOT)
            a.e('s_cmp_eq_u32 s65, %d', 3 * SLOT)
            a.e('s_cselect_b32 s65, 0, s65')
        else:
            a.e('s_waitcnt lgkmcnt(0)')
        M = mfmas(buf, t)
        R = reads((t + 1) & 3, buf ^ 1)
        for i in range(6):
            a.e(M[i])
            if t == 3 and i == 0:
                for tt in range(4):
                    a.e('v_add_u32 v%d, s65, v%d', VA + tt, VAB + tt)
                a.e('v_add_u32 v%d, s65, v%d', VB, VBB)
            if i < 4 and 'noread' not in EXP:
                a.e(R[2 * i]); a.e(R[2 * i + 1])
            if 'noreadB' in EXP and i in (0, 3):
                a.e(R[0 if i == 0 else 7])
    a.e('s_add_u32 s66, s66, 1')
    a.e('s_cmp_lt_u32 s66, 16')
    a.e('s_cbranch_scc1 C_loop')
    a.vm = []
    stamp(a, 5)
    PK = [16, 24]; VBF = [32, 40]; T0, T1, E0, E1, MN = 48, 49, 50, 51, 56
    ONES = 52
    KVA = 160; ZA = 176
    a.e('s_waitcnt lgkmcnt(0)')
    for r in range(4):
        a.e('v_mov_b32 v%d, 0x3f803f80', ONES + r)
    a.e('s_nop 4')
    first = True
    for rb in range(2):
        phi16(a, K[rb], PK[rb], T0, T1, E0, E1, MN)
        for j in range(8):
            a.e('v_cvt_pk_bf16_f32 v%d, v%d, v%d', VBF[rb] + j, V[rb] + 2 * j, V[rb] + 2 * j + 1)
        a.e('s_nop 1')
        for m in range(2):
            ckv = '0' if first else vr(KVA, 16)
            cz = '0' if first else vr(ZA, 16)
            a.e('v_mfma_f32_32x32x16_bf16 %s, %s, %s, %s', vr(KVA, 16), vr(PK[rb] + 4 * m, 4), vr(VBF[rb] + 4 * m, 4), ckv)
            a.e('v_mfma_f32_32x32x16_bf16 %s, %s, %s, %s', vr(ZA, 16), vr(ONES, 4), vr(PK[rb] + 4 * m, 4), cz)
            first = False
    a.e('v_lshlrev_b32 v3, 4, v2')
    a.e('s_lshl_b32 s64, s3, 11')
    a.e('v_add_u32 v4, s64, v3')
    a.e('s_xor_b32 s67, s3, 1')
    a.e('s_lshl_b32 s64, s67, 11')
    a.e('v_add_u32 v5, s64, v3')
    a.e('v_lshlrev_b32 v6, 2, v2')
    a.e('s_lshl_b32 s64, s3, 8')
    a.e('v_add_u32 v7, s64, v6')
    a.e('s_lshl_b32 s64, s67, 8')
    a.e('v_add_u32 v8, s64, v6')
    a.e('s_lshl_b32 s64, s3, 2')
    a.e('v_mov_b32 v9, s64')
    a.e('s_lshl_b32 s64, s67, 2')
    a.e('v_mov_b32 v10, s64')
    a.e('v_mov_b32 v11, 1')
    a.e('s_lshl_b32 s68, s5, 2')
    a.e('s_add_u32 s68, s68, s3')
    a.e('s_lshl_b32 s68, s68, 4')
    a.e('s_add_u32 s68, s68, s4')
    a.e('s_mul_i32 s68, s68, %d', KVB)
    a.e('s_add_u32 s68, s68, %d', WS_KVP)
    a.e('v_and_b32 v12, 15, v2')
    a.e('v_lshlrev_b32 v12, 2, v12')
    a.e('s_lshl_b32 s64, 1, s4')
    a.e('v_mov_b32 v14, s64')
    a.e('s_lshl_b32 s64, s5, 2')
    a.e('s_add_u32 s64, s64, s3')
    a.e('s_lshl_b32 s64, s64, 7')
    a.e('s_add_u32 s64, s64, %d', WS_F1)
    a.e('v_mov_b32 v15, s64')
    a.e('ds_write_b32 v7, v%d offset:%d', ZA, L_ZX)
    a.e('s_cmp_eq_u32 s6, 0')
    a.e('s_cbranch_scc0 C_ex1')
    a.e('ds_write_b128 v4, %s offset:%d', vr(KVA + 8, 4), L_EX)
    a.e('ds_write_b128 v4, %s offset:%d', vr(KVA + 12, 4), L_EX + 1024)
    a.e('s_mov_b64 s[70:71], 0xffff')
    a.e('s_branch C_ex2')
    a.e('C_ex1:')
    a.e('ds_write_b128 v4, %s offset:%d', vr(KVA, 4), L_EX)
    a.e('ds_write_b128 v4, %s offset:%d', vr(KVA + 4, 4), L_EX + 1024)
    a.e('s_mov_b32 s70, 0xffff0000\ns_mov_b32 s71, 0')
    a.e('s_nop 0')
    for r in range(8):
        a.e('v_mov_b32 v%d, v%d', KVA + r, KVA + 8 + r)
    a.e('C_ex2:')
    a.e('s_waitcnt lgkmcnt(0)')
    a.e('ds_write_b32 v9, v11 offset:%d', L_FLG)
    a.e('C_ps:')
    a.e('ds_read_b32 v13, v10 offset:%d', L_FLG)
    a.e('s_waitcnt lgkmcnt(0)')
    a.e('v_cmp_eq_u32 vcc, 0, v13')
    a.e('s_cbranch_vccnz C_ps')
    a.e('ds_read_b128 v[16:19], v5 offset:%d', L_EX)
    a.e('ds_read_b128 v[20:23], v5 offset:%d', L_EX + 1024)
    a.e('ds_read_b32 v24, v8 offset:%d', L_ZX)
    a.e('s_waitcnt lgkmcnt(0)')
    for r in range(8):
        a.e('v_add_f32 v%d, v%d, v%d', 16 + r, 16 + r, KVA + r)
    a.e('v_add_f32 v24, v24, v%d', ZA)
    for r in range(4):
        a.e('v_cvt_pk_bf16_f32 v%d, v%d, v%d', 28 + r, 16 + 2 * r, 17 + 2 * r)
    a.vm_issue('kvp', 'buffer_store_dwordx4 v[28:31], v3, %s, s68 offen' + WT, WSR)
    a.e('s_mov_b64 exec, s[70:71]')
    a.vm_issue('kvp', 'buffer_store_dword v24, v12, %s, s68 offen offset:%d' + WT, WSR, KVZ)
    a.e('s_mov_b64 exec, 1')
    a.vm_issue('f1', 'buffer_atomic_or v14, v15, %s, 0 offen', WSR)
    a.e('s_mov_b64 exec, -1')
    stamp(a, 6); stamp(a, 7)
    a.e('s_lshl_b32 s69, s4, 2')
    a.e('s_lshl_b32 s64, s6, 1')
    a.e('s_add_u32 s69, s69, s64')
    a.e('s_lshl_b32 s69, s69, 5')
    a.e('s_lshl_b32 s64, s5, 1')
    a.e('s_add_u32 s69, s69, s64')
    a.e('s_add_u32 s69, s69, s7')
    a.e('s_lshl_b32 s69, s69, 11')
    a.e('s_and_b32 s64, s5, 7')
    a.e('s_lshl_b32 s64, s64, 1')
    a.e('s_add_u32 s64, s64, s7')
    a.e('s_lshl_b32 s70, 1, s64')
    a.e('v_mov_b32 v11, s70')
    a.e('s_lshr_b32 s64, s5, 3')
    a.e('s_lshl_b32 s64, s64, 1')
    a.e('s_add_u32 s64, s64, s6')
    a.e('s_lshl_b32 s64, s64, 8')
    a.e('s_lshl_b32 s70, s4, 10')
    a.e('s_add_u32 s70, s70, s64')
    a.e('s_add_u32 s70, s70, %d', WS_F2)
    p2_ids(a)
    srd(a, S_WO, 44, 2097152)
    VOW = 10
    wo_voff(a, VOW, 13, 14, 3)
    PQ = [16, 24]
    phi16(a, Q[0], 32, T0, T1, E0, E1, MN)
    xo_loads(a)
    PQ = [32, 40]
    phi16(a, Q[1], PQ[1], T0, T1, E0, E1, MN)
    a.e('v_lshlrev_b32 v3, 4, v2')
    a.e('s_lshl_b32 s64, s7, 11')
    a.e('v_add_u32 v4, s64, v3')
    a.e('v_lshrrev_b32 v5, 5, v2')
    a.e('v_lshlrev_b32 v5, 4, v5')
    a.e('s_lshl_b32 s64, s7, 6')
    a.e('v_add_u32 v5, s64, v5')
    a.e('v_mov_b32 v6, %d', L_KEY + 32)
    a.e('ds_read_b32 v6, v6')
    a.e('s_lshl_b32 s71, s3, 10')
    a.e('s_waitcnt lgkmcnt(0)')
    a.e('v_readfirstlane_b32 s75, v6')
    a.vm_wait('xo')
    t2_fill(a)
    a.e('s_cmp_lg_u32 s3, 0')
    a.e('s_cbranch_scc1 C_nh')
    h_compute(a)
    a.e('s_waitcnt lgkmcnt(0)')
    a.e('C_nh:')
    a.e('v_lshlrev_b32 v3, 4, v2')
    a.e('s_barrier')
    stamp(a, 8)
    KF, ZF = 16, 24
    NA = [64, 80]; DA = [96, 112]
    a.e('ds_read_b128 %s, v5 offset:%d', vr(ZF, 4), L_ZF)
    a.e('ds_read_b128 %s, v4 offset:%d', vr(KF, 4), L_KF)
    a.e('ds_read_b128 %s, v5 offset:%d', vr(ZF + 4, 4), L_ZF + 32)
    a.e('ds_read_b128 %s, v4 offset:%d', vr(KF + 4, 4), L_KF + 1024)
    for rb in range(2):
        for m in range(2):
            if rb == 0:
                a.e('s_waitcnt lgkmcnt(%d)', 3 - 2 * m)
            a.e('v_mfma_f32_32x32x16_bf16 %s, %s, %s, %s', vr(DA[rb], 16), vr(ZF + 4 * m, 4), vr(PQ[rb] + 4 * m, 4), '0' if m == 0 else vr(DA[rb], 16))
            if rb == 0:
                a.e('s_waitcnt lgkmcnt(%d)', 2 - 2 * m)
            a.e('v_mfma_f32_32x32x16_bf16 %s, %s, %s, %s', vr(NA[rb], 16), vr(KF + 4 * m, 4), vr(PQ[rb] + 4 * m, 4), '0' if m == 0 else vr(NA[rb], 16))
    a.e('s_nop 6')
    OF = [128, 136]
    for rb in range(2):
        d = 48 + rb
        if rb == 1:
            a.e('s_nop 3')
        a.e('v_cvt_pk_bf16_f32 v%d, v%d, v%d', d, DA[rb], DA[rb])
        a.e('v_lshlrev_b32 v%d, 16, v%d', d, d)
        a.e('v_add_f32 v%d, s%d, v%d', d, S_EPS, d)
        a.e('v_cvt_pk_bf16_f32 v%d, v%d, v%d', d, d, d)
        a.e('v_lshlrev_b32 v%d, 16, v%d', d, d)
        a.e('v_rcp_f32 v%d, v%d', d, d)
        a.e('s_nop 0')
        for m in range(2):
            for j in range(4 * m, 4 * m + 4):
                r = NA[rb] + 2 * j
                a.e('v_mul_f32 v%d, v%d, v%d', r, r, d)
                a.e('v_mul_f32 v%d, v%d, v%d', r + 1, r + 1, d)
                a.e('v_cvt_pk_bf16_f32 v%d, v%d, v%d', OF[rb] + j, r, r + 1)
            a.vm_issue('o', 'buffer_store_dwordx4 %s, v3, %s, s69 offen offset:%d' + WT, vr(OF[rb] + 4 * m, 4), WSR, m * 1024)
        if rb == 0:
            a.e('s_add_u32 s69, s69, 65536')
    if 'wolate' in EXP:
        for p in (4, 12, 5, 13, 6, 14, 7, 15):
            wo_dma(a, p, VOW, 71, 'wo')
    a.e('v_lshl_add_u32 v12, v2, 7, s70')
    a.vm_wait('o')
    a.e('s_mov_b64 exec, 3')
    a.vm_issue('f2', 'buffer_atomic_or v11, v12, %s, 0 offen', WSR)
    a.e('s_mov_b64 exec, -1')
    stamp(a, 9)


def gen_p2(a):
    a.e('P2_start:')
    a.vm = []
    a.e('s_and_b32 s6, s3, 3')
    a.e('s_lshr_b32 s7, s3, 2')
    srd(a, S_OUT, 58, 4194304)
    a.e('s_and_b32 s67, s75, 0x7ff')
    a.e('s_sub_u32 s67, 2047, s67')
    VO = 4
    a.e('s_lshl_b32 s64, s4, 2')
    a.e('s_add_u32 s64, s64, s6')
    a.e('s_lshl_b32 s64, s64, 16')
    a.e('s_lshl_b32 s65, s7, 15')
    a.e('s_add_u32 s64, s64, s65')
    a.e('v_lshlrev_b32 v%d, 4, v2', VO)
    a.e('v_add_u32 v%d, s64, v%d', VO, VO)
    VWL = [5, 6]; VW = [8, 9]
    a.e('v_lshrrev_b32 v10, 5, v2')
    a.e('v_bfe_u32 v11, v2, 2, 2')
    a.e('v_lshl_add_u32 v12, v10, 2, v11')
    a.e('v_lshlrev_b32 v12, 7, v12')
    a.e('v_bfe_u32 v13, v2, 4, 1')
    a.e('v_lshl_add_u32 v12, v13, 5, v12')
    a.e('v_and_b32 v13, 3, v2')
    a.e('v_lshl_add_u32 v12, v13, 3, v12')
    a.e('v_lshrrev_b32 v11, 1, v11')
    a.e('v_lshl_add_u32 v%d, v11, 6, v12', VWL[0])
    a.e('v_xor_b32 v11, 1, v11')
    a.e('v_lshl_add_u32 v%d, v11, 6, v12', VWL[1])
    SB = 32
    VT, VF, VP = 7, 14, 15
    a.e('s_lshl_b32 s64, s4, 3')
    a.e('s_add_u32 s64, s64, s3')
    a.e('s_lshl_b32 s64, s64, 7')
    a.e('s_add_u32 s64, s64, %d', WS_F2)
    a.e('v_mov_b32 v%d, s64', VF)

    def poll():
        return ['s_mov_b64 exec, 1', 'v_mov_b32 v%d, 0' % VP,
                'buffer_atomic_or v%d, v%d, %s, 0 offen sc0' % (VP, VF, WSR), 's_mov_b64 exec, -1']
    for p in poll():
        a.e(p)
    a.e('s_cmp_eq_u32 s7, 0')
    for j in range(8):
        a.e('s_mov_b32 s64, %d', POS[8 + j])
        a.e('s_cselect_b32 s64, %d, s64', POS[j])
        a.e('v_writelane_b32 v%d, s64, %d', VT, 2 * j)
    ACO = [16, 32]
    WOF = [48, 64]
    OB = 80
    YL = 208
    for r in range(16, 48):
        a.e('v_mov_b32 v%d, 0', r)
    a.e('s_mov_b32 s66, 0x5555')
    a.e('s_mov_b32 s65, 0')
    stamp(a, 10)

    def issue(c):
        L = ['s_ff1_i32_b32 s64, s68', 's_bitset0_b32 s68, s64', 'v_readlane_b32 s%d, v%d, s64' % (SB + c, VT), 's_lshl_b32 s69, s64, 11']
        for q in range(4):
            L.append('buffer_load_dwordx4 %s, v%d, %s, s69 offen offset:%d sc1' % (vr(OB + 16 * c + 4 * q, 4), VO, WSR, q * 1024))
        return L

    def wo_reads(c, u):
        L = []
        if u == 0:
            L += ['v_add_u32 v%d, s%d, v%d' % (VW[cb], SB + c, VWL[cb]) for cb in range(2)]
        for m in range(2):
            for cb in range(2):
                for tt in range(2):
                    L.append('ds_read_b64_tr_b16 %s, v%d offset:%d' % (vr(WOF[u] + 8 * cb + 4 * m + 2 * tt, 2), VW[cb], u * 4096 + m * 2048 + tt * 1024))
        return L

    def Mm(c, u):
        L = []
        for m in range(2):
            for cb in range(2):
                L.append('v_mfma_f32_32x32x16_bf16 %s, %s, %s, %s' % (vr(ACO[cb], 16), vr(WOF[u] + 8 * cb + 4 * m, 4), vr(OB + 16 * c + 8 * u + 4 * m, 4), vr(ACO[cb], 16)))
        return L

    a.e('D_wait:')
    a.e('s_waitcnt vmcnt(0)')
    a.e('v_readfirstlane_b32 s68, v%d', VP)
    a.e('s_lshr_b32 s64, s68, 1')
    a.e('s_and_b32 s68, s68, s64')
    a.e('s_and_b32 s68, s68, s66')
    a.e('s_cbranch_scc1 D_go')
    a.e('s_add_u32 s65, s65, 1')
    a.e('s_cmp_ge_u32 s65, 40000')
    a.e('s_cbranch_scc1 D_end')
    if E('PSL', 1):
        a.e('s_sleep %d', E('PSL', 1))
    for p in poll():
        a.e(p)
    a.e('s_branch D_wait')
    a.e('D_go:')
    a.e('s_andn2_b32 s66, s66, s68')
    a.e('s_lshr_b32 s64, s67, 7')
    a.e('s_xor_b32 s64, s64, s4')
    a.e('s_or_b32 s64, s64, s66')
    a.e('s_cbranch_scc0 P2_yl')
    with a.cold():
        a.e('P2_yl:')
        a.e('s_lshl_b32 s64, s5, 8')
        a.e('s_lshl_b32 s69, s3, 15')
        a.e('s_add_u32 s64, s64, s69')
        a.e('s_add_u32 s64, s64, %d', WS_YP)
        a.e('v_lshlrev_b32 v13, 2, v2')
        a.e('v_add_u32 v13, s64, v13')
        for q in range(8):
            a.e('s_mov_b32 s69, %d', q * 4096)
            a.e('buffer_load_dword v%d, v13, %s, s69 offen sc1' % (YL + q, WSR))
        a.e('s_branch P2_nyl')
    a.e('P2_nyl:')
    a.e('s_bcnt1_i32_b32 s70, s68')
    a.e('s_cmp_gt_u32 s70, 4')
    a.e('s_cbranch_scc1 D_t58')
    a.e('s_cmp_gt_u32 s70, 2')
    a.e('s_cbranch_scc1 D_t34')
    a.e('s_cmp_eq_u32 s70, 2')
    a.e('s_cbranch_scc1 D_e2')

    def entry(n, last=False):
        a.e('D_e%d:', n)
        L = issue(n - 1)
        if n >= 2:
            L += issue(n - 2)
        if n <= 2:
            L += poll()
        for x in L + wo_reads(n - 1, 0):
            a.e(x)
        if not last:
            a.e('s_branch D_p%d', n - 1)
    entry(1); entry(2)
    a.e('D_t34:')
    a.e('s_cmp_eq_u32 s70, 4')
    a.e('s_cbranch_scc1 D_e4')
    entry(3); entry(4)
    a.e('D_t58:')
    a.e('s_cmp_gt_u32 s70, 6')
    a.e('s_cbranch_scc1 D_t78')
    a.e('s_cmp_eq_u32 s70, 6')
    a.e('s_cbranch_scc1 D_e6')
    entry(5); entry(6)
    a.e('D_t78:')
    a.e('s_cmp_eq_u32 s70, 8')
    a.e('s_cbranch_scc1 D_e8')
    entry(7); entry(8, True)
    for c in range(7, -1, -1):
        a.e('D_p%d:', c)
        G = issue(c - 2) if c >= 2 else []
        Gs = [G[:5], G[5:6], G[6:7], G[7:8] + (poll() if c == 2 else [])] if G else [[], [], [], []]
        for u in range(2):
            if u == 0:
                a.e('s_waitcnt vmcnt(%d) lgkmcnt(0)', 4 if c >= 2 else (5 if c == 1 else 1))
            else:
                a.e('s_waitcnt lgkmcnt(0)')
            F = wo_reads(c, 1) if u == 0 else (wo_reads(c - 1, 0) if c >= 1 else [])
            M = Mm(c, u)
            per = -(-len(F) // 3) if F else 0
            for k in range(4):
                a.e(M[k])
                if k % 2 == 0:
                    for x in Gs[2 * u + k // 2]:
                        a.e(x)
                for f in F[k * per:(k + 1) * per]:
                    a.e(f)
    a.e('s_cmp_lg_u32 s66, 0')
    a.e('s_cbranch_scc1 D_wait')
    a.e('D_end:')
    stamp(a, 11)
    a.e('v_and_b32 v8, 31, v2')
    a.e('s_lshl_b32 s64, s6, 5')
    a.e('v_add_u32 v8, s64, v8')
    a.e('v_mul_u32_u24 v8, %d, v8', TP)
    a.e('v_lshrrev_b32 v9, 5, v2')
    a.e('v_lshl_add_u32 v8, v9, 4, v8')
    a.e('s_mul_i32 s64, s7, %d', TK)
    a.e('s_add_u32 s64, s64, %d', RB)
    a.e('v_add_u32 v8, s64, v8')
    a.e('v_lshrrev_b32 v6, 3, v0')
    a.e('v_mul_u32_u24 v5, %d, v6', TP)
    a.e('v_and_b32 v6, 7, v0')
    a.e('v_lshl_add_u32 v5, v6, 5, v5')
    a.e('v_add_u32 v5, %d, v5', RB)
    a.e('v_lshlrev_b32 v9, 5, v6')
    a.e('s_barrier')
    for cb in range(2):
        for q in range(4):
            a.e('ds_write_b128 v8, %s offset:%d', vr(ACO[cb] + 4 * q, 4), cb * 128 + q * 32)
    a.e('s_lshr_b32 s64, s67, 7')
    a.e('s_cmp_lg_u32 s64, s4')
    a.e('s_cbranch_scc0 P2_y')
    with a.cold():
        a.e('P2_y:')
        a.e('s_mov_b32 s66, 0')
        a.e('P2_ychk:')
        a.e('s_waitcnt vmcnt(0)')
        a.e('v_max3_u32 v10, v%d, v%d, v%d', YL, YL + 1, YL + 2)
        a.e('v_max3_u32 v10, v%d, v%d, v10', YL + 3, YL + 4)
        a.e('v_max3_u32 v10, v%d, v%d, v10', YL + 5, YL + 6)
        a.e('v_max_u32 v10, v%d, v10', YL + 7)
        a.e('v_cmp_eq_u32 vcc, -1, v10')
        a.e('s_cbranch_vccz P2_yok')
        a.e('s_add_u32 s66, s66, 1')
        a.e('s_cmp_ge_u32 s66, 100000')
        a.e('s_cbranch_scc1 P2_yok')
        a.e('s_sleep 4')
        for q in range(8):
            a.e('s_mov_b32 s65, %d', q * 4096)
            a.e('buffer_load_dword v%d, v13, %s, s65 offen sc1' % (YL + q, WSR))
        a.e('s_branch P2_ychk')
        a.e('P2_yok:')
        for q in range(1, 8):
            a.e('v_add_f32 v%d, v%d, v%d', YL, YL, YL + q)
        a.e('v_lshlrev_b32 v7, 2, v2')
        a.e('s_lshl_b32 s64, s3, 8')
        a.e('v_add_u32 v7, s64, v7')
        a.e('v_add_u32 v7, %d, v7', L_YS)
        a.e('ds_write_b32 v7, v%d', YL)
        a.e('s_branch P2_ny')
    a.e('P2_ny:')
    a.e('s_waitcnt lgkmcnt(0)')
    a.e('s_barrier')
    AB = 64
    for half in range(2):
        for k in range(2):
            for q in range(2):
                a.e('ds_read_b128 %s, v5 offset:%d', vr(AB + 16 * half + 8 * k + 4 * q, 4), half * 64 * TP + k * TK + q * 16)
    a.e('v_add_u32 v9, %d, v9', L_YS)
    a.e('s_mov_b32 s68, 131072')
    for half in range(2):
        A = AB + 16 * half
        X = XO + 4 * half
        Gr = XO + 8 + half
        T = T2 + 8 * half
        om = OM[half]
        a.e('v_add_u32 v6, %d, v%d', 64 * half, VRO)
        a.e('v_cmp_eq_u32 vcc, s67, v6')
        lab = a.label('P2_nr')
        a.e('s_cbranch_vccnz %s_fix', lab)
        a.e('%s:', lab)
        with a.cold():
            a.e('%s_fix:', lab)
            a.e('s_and_saveexec_b64 s[70:71], vcc')
            Y = 128
            for w in range(8):
                a.e('ds_read_b128 %s, v9 offset:%d', vr(Y + 8 * w, 4), w * 256)
                a.e('ds_read_b128 %s, v9 offset:%d', vr(Y + 8 * w + 4, 4), w * 256 + 16)
            a.e('s_and_b32 s64, s75, 0xffff0000')
            a.e('s_xor_b32 s65, s64, 0x80000000')
            a.e('s_not_b32 s66, s64')
            a.e('s_and_b32 s66, s66, 0xffff0000')
            a.e('s_cmp_ge_u32 s64, 0x80000000')
            a.e('s_cselect_b32 s64, s65, s66')
            a.e('v_mov_b32 v100, s64')
            sigmoid_bf16(a, [100])
            a.e('s_waitcnt lgkmcnt(0)')
            for w in range(1, 8):
                for q in range(8):
                    a.e('v_add_f32 v%d, v%d, v%d', Y + q, Y + q, Y + 8 * w + q)
            for q in range(4):
                y0, y1 = Y + 2 * q, Y + 2 * q + 1
                x0, x1 = T + 2 * q, T + 2 * q + 1
                a.e('v_cvt_pk_bf16_f32 v116, v%d, v%d', y0, y1)
                a.e('v_lshlrev_b32 v%d, 16, v116', y0)
                a.e('v_and_b32 v%d, 0xffff0000, v116', y1)
                a.e('v_mul_f32 v%d, v%d, v100', y0, y0)
                a.e('v_mul_f32 v%d, v%d, v100', y1, y1)
                a.e('v_cvt_pk_bf16_f32 v116, v%d, v%d', y0, y1)
                a.e('v_lshlrev_b32 v%d, 16, v116', y0)
                a.e('v_and_b32 v%d, 0xffff0000, v116', y1)
                a.e('v_lshlrev_b32 v%d, 16, v%d', x0, X + q)
                a.e('v_and_b32 v%d, 0xffff0000, v%d', x1, X + q)
                a.e('v_add_f32 v%d, v%d, v%d', x0, x0, y0)
                a.e('v_add_f32 v%d, v%d, v%d', x1, x1, y1)
                a.e('v_cvt_pk_bf16_f32 v116, v%d, v%d', x0, x1)
                a.e('v_lshlrev_b32 v%d, 16, v116', x0)
                a.e('v_and_b32 v%d, 0xffff0000, v116', x1)
                a.e('v_mul_f32 v%d, v%d, v%d', x0, x0, om)
                a.e('v_mul_f32 v%d, v%d, v%d', x1, x1, om)
                a.e('v_cvt_pk_bf16_f32 v116, v%d, v%d', x0, x1)
                a.e('v_lshlrev_b32 v%d, 16, v116', x0)
                a.e('v_and_b32 v%d, 0xffff0000, v116', x1)
            a.e('s_mov_b64 exec, s[70:71]')
            a.e('s_branch %s', lab)
        a.e('s_waitcnt lgkmcnt(%d)', 4 if half == 0 else 0)
        O = 120 + 4 * half
        for q in range(4):
            a0, a1 = A + 2 * q, A + 2 * q + 1
            a.e('v_add_f32 v%d, v%d, v%d', a0, a0, a0 + 8)
            a.e('v_add_f32 v%d, v%d, v%d', a1, a1, a1 + 8)
            a.e('v_cvt_pk_bf16_f32 v116, v%d, v%d', a0, a1)
            a.e('v_lshlrev_b32 v%d, 16, v116', a0)
            a.e('v_and_b32 v%d, 0xffff0000, v116', a1)
            a.e('v_mul_f32 v%d, v%d, v%d', a0, a0, Gr)
            a.e('v_mul_f32 v%d, v%d, v%d', a1, a1, Gr)
            a.e('v_cvt_pk_bf16_f32 v116, v%d, v%d', a0, a1)
            a.e('v_lshlrev_b32 v%d, 16, v116', a0)
            a.e('v_and_b32 v%d, 0xffff0000, v116', a1)
            a.e('v_add_f32 v%d, v%d, v%d', a0, a0, T + 2 * q)
            a.e('v_add_f32 v%d, v%d, v%d', a1, a1, T + 2 * q + 1)
            a.e('v_cvt_pk_bf16_f32 v%d, v%d, v%d', O + q, a0, a1)
        a.e('buffer_store_dwordx4 %s, v%d, %s, %s offen nt', vr(O, 4), VXO, sr(S_OUT, 4), '0' if half == 0 else 's68')
    if STAMPS:
        a.e('s_waitcnt vmcnt(0)')
    stamp(a, 12, True); stamp(a, 2, False)
    stamp_flush(a)
    a.e('K_end:')
    a.e('s_endpgm')
    a.flush_cold()


def main():
    hdr = open(os.path.join(os.path.dirname(os.path.abspath(__file__)), '..', NAME + '.s.ref')).read().split('; Override launch')[0]
    a = Asm()
    a.e('.amdgcn_target "amdgcn-amd-amdhsa--gfx950"')
    a.e('.text')
    gen(a)
    a.e('CODE_END:')
    out = hdr + '; @launch grid=(256,1,1) block=(512,1,1) lds=%d\n' % LDS_BYTES + a.text() + '.section .rodata,"a"\n' + kd(NAME + '_kernel', 256)
    path = sys.argv[1] if len(sys.argv) > 1 else os.path.join(os.path.dirname(os.path.abspath(__file__)), '..', NAME + '.s')
    open(path, 'w').write(out)


if __name__ == '__main__':
    main()
```

```python
import sys, os
sys.path.insert(0, os.path.dirname(os.path.abspath(__file__)))
from asmlib import *

NAME = 'gated_mix__linear_attn_block__moe_arch_mod__prompt'
E = lambda k, d: int(os.environ.get(k, str(d)))
EXP = os.environ.get('EXP', '').split(',')

WS_O = 0
WS_KVP = 4 << 20
KVB = 1152
KVZ = 1024
WS_F1 = WS_KVP + 16 * 4 * 16 * KVB
WS_F2 = WS_F1 + 64 * 128
WS_HP = WS_F2 + 128 * 128
WS_YP = WS_HP + 64 * 2 * 32 * 256
WS_G = WS_YP + 64 * 4096
WS_KEY = WS_G + 8192
WS_END = WS_KEY + 4096
WS_BYTES = 268435456
WS_ST = 16 << 20

STAMPS = E('STAMPS', 0)
WT = ' sc1' if 'wt1' in EXP else ' sc0 sc1'
NTA = ' nt' if 'ntA' in EXP else ''
NTB = ' nt' if 'ntB' in EXP else ''
NTO = ' nt' if 'ntO' in EXP else ''
NTW = '' if 'nontW' in EXP else ' nt'
LOG2E = 0x3fb8aa3b
EPS6 = 0x358637bd

SLOT = 40960
MISC = 0
RB = 8192
SP = RB + 3 * SLOT
L_KF = MISC
L_ZF = MISC + 4096
L_KEY = MISC + 4224
L_FLG = MISC + 4288
L_H = MISC + 4352
L_ZX = MISC + 4608
L_YS = MISC + 5632
L_EX = RB + 24576
LDS_BYTES = 163840
EARLY = [SP, SP + 8192, RB + SLOT + 24576, RB + 2 * SLOT + 24576, SP + 16384, SP + 24576, RB + SLOT + 32768, RB + 2 * SLOT + 32768]
LATE = [RB + x for x in (32768, 0, 8192, 2 * SLOT + 8192, SLOT, SLOT + 8192, SLOT + 16384, 2 * SLOT)]
POS = EARLY[0:4] + LATE[0:4] + EARLY[4:8] + LATE[4:8]
TP = 272
TK = 128 * TP

S_X, S_W, S_WS, S_DBG, S_WR, S_GW, S_WG, S_WU = 8, 12, 16, 20, 24, 28, 32, 36
S_WO, S_OUT, S_WD = 12, 20, 24
WSR = sr(S_WS, 4)
S_LOG2E, S_EPS = 72, 73


def stamp(a, idx, real=True, lvl=0):
    if STAMPS in (3, 4) and idx in (3, 4, 6, 7, 9, 10) and lvl != STAMPS:
        return
    if lvl and STAMPS != lvl:
        return
    if STAMPS:
        a.e('%s s[%d:%d]', 's_memrealtime' if real else 's_memtime', 76 + 2 * idx, 77 + 2 * idx)


def stamp_flush(a):
    if not STAMPS:
        return
    a.e('s_waitcnt lgkmcnt(0)')
    a.e('s_lshl_b32 s64, s2, 3')
    a.e('s_add_u32 s64, s64, s3')
    a.e('s_lshl_b32 s64, s64, 7')
    a.e('s_add_u32 s64, s64, %d', WS_ST)
    a.e('v_mov_b32 v1, s64')
    a.e('s_mov_b64 exec, 1')
    for i in range(13):
        a.e('v_mov_b32 v2, s%d', 76 + 2 * i)
        a.e('v_mov_b32 v3, s%d', 77 + 2 * i)
        a.e('buffer_store_dwordx2 v[2:3], v1, %s, 0 offen offset:%d', WSR, 8 * i)
        a.e('s_nop 1')
    a.e('s_mov_b64 exec, -1')
    if STAMPS == 2:
        a.e('s_lshl_b32 s64, s2, 3')
        a.e('s_add_u32 s64, s64, s3')
        a.e('s_lshl_b32 s64, s64, 8')
        a.e('s_add_u32 s64, s64, %d', WS_ST + (1 << 20))
        a.e('v_and_b32 v1, 63, v0')
        a.e('v_lshlrev_b32 v1, 2, v1')
        a.e('v_add_u32 v1, s64, v1')
        a.e('buffer_store_dword v250, v1, %s, 0 offen', WSR)


def phi16_fast(a, acc, out, e0, mn, sp):
    for j in range(8):
        a0, a1, p = acc + 2 * j, acc + 2 * j + 1, out + j
        e = e0 + 2 * (j & 1)
        a.e('v_pk_mul_f32 v[%d:%d], v[%d:%d], s[%d:%d]', e, e + 1, a0, a1, sp, sp + 1)
        a.e('v_pk_add_f32 v[%d:%d], v[%d:%d], s[%d:%d]', a0, a1, a0, a1, sp + 2, sp + 3)
        a.e('v_exp_f32 v%d, v%d clamp', e, e)
        a.e('v_exp_f32 v%d, v%d clamp', e + 1, e + 1)
        if j:
            phi_tail(a, acc, out, e0, mn, j - 1)
    phi_tail(a, acc, out, e0, mn, 7)
    phi_fix(a, out, e0, e0 + 1, mn)


def phi_tail(a, acc, out, e0, mn, j):
    a0, a1, p = acc + 2 * j, acc + 2 * j + 1, out + j
    e = e0 + 2 * (j & 1)
    a.e('v_max_f32 v%d, v%d, v%d', a0, a0, e)
    a.e('v_max_f32 v%d, v%d, v%d', a1, a1, e + 1)
    if j == 0:
        a.e('v_min_f32 v%d, v%d, v%d', mn, a0, a1)
    else:
        a.e('v_min3_f32 v%d, v%d, v%d, v%d', mn, a0, a1, mn)
    a.e('v_cvt_pk_bf16_f32 v%d, v%d, v%d', p, a0, a1)


def phi16(a, acc, out, t0, t1, e0, e1, mn):
    for j in range(8):
        a0, a1, p = acc + 2 * j, acc + 2 * j + 1, out + j
        a.e('v_cvt_pk_bf16_f32 v%d, v%d, v%d', p, a0, a1)
        a.e('v_lshlrev_b32 v%d, 16, v%d', t0, p)
        a.e('v_and_b32 v%d, 0xffff0000, v%d', t1, p)
        a.e('v_mul_f32 v%d, s%d, v%d', e0, S_LOG2E, t0)
        a.e('v_mul_f32 v%d, s%d, v%d', e1, S_LOG2E, t1)
        a.e('v_exp_f32 v%d, v%d clamp', e0, e0)
        a.e('v_exp_f32 v%d, v%d clamp', e1, e1)
        a.e('v_max_f32 v%d, 0, v%d', t0, t0)
        a.e('v_max_f32 v%d, 0, v%d', t1, t1)
        a.e('v_add_f32 v%d, v%d, v%d', t0, t0, e0)
        a.e('v_add_f32 v%d, v%d, v%d', t1, t1, e1)
        if j == 0:
            a.e('v_min_f32 v%d, v%d, v%d', mn, t0, t1)
        else:
            a.e('v_min3_f32 v%d, v%d, v%d, v%d', mn, t0, t1, mn)
        a.e('v_cvt_pk_bf16_f32 v%d, v%d, v%d', p, t0, t1)
    phi_fix(a, out, t0, t1, mn)


def phi_fix(a, out, t0, t1, mn):
    lab = a.label('phi')
    a.e('v_cmp_gt_f32 vcc, 0x3a800000, v%d', mn)
    a.e('s_cbranch_vccnz %s_fix', lab)
    a.e('%s_done:', lab)
    with a.cold():
        a.e('%s_fix:', lab)
        for j in range(8):
            p = out + j
            a.e('v_lshlrev_b32 v%d, 16, v%d', t0, p)
            a.e('v_and_b32 v%d, 0xffff0000, v%d', t1, p)
            a.e('v_add_f32 v%d, s%d, v%d', t0, S_EPS, t0)
            a.e('v_add_f32 v%d, s%d, v%d', t1, S_EPS, t1)
            a.e('v_cvt_pk_bf16_f32 v%d, v%d, v%d', p, t0, t1)
        a.e('s_branch %s_done', lab)


def wave_reduce(a, regs, op, stmp):
    pats = ['quad_perm:[1,0,3,2]', 'quad_perm:[2,3,0,1]', 'row_half_mirror', 'row_mirror']
    a.e('s_nop 1')
    for p in pats:
        if len(regs) < 3:
            a.e('s_nop 1')
        for r in regs:
            a.e('%s_dpp v%d, v%d, v%d %s row_mask:0xf bank_mask:0xf', op, r, r, r, p)
    a.e('s_nop 1')
    for r in regs:
        for q in range(4):
            a.e('v_readlane_b32 s%d, v%d, %d', stmp + q, r, 16 * q)
        a.e('s_nop 1')
        a.e('v_mov_b32 v%d, s%d', r, stmp)
        for q in range(1, 4):
            a.e('%s v%d, s%d, v%d', op, r, stmp + q, r)


def sigmoid_bf16(a, regs):
    for r in regs:
        a.e('v_mul_f32 v%d, s%d, v%d', r, S_LOG2E, r)
    for r in regs:
        a.e('v_exp_f32 v%d, -v%d', r, r)
    a.e('s_nop 0')
    for r in regs:
        a.e('v_add_f32 v%d, 1.0, v%d', r, r)
    for r in regs:
        a.e('v_rcp_f32 v%d, v%d', r, r)
    a.e('s_nop 0')
    for r in regs:
        a.e('v_cvt_pk_bf16_f32 v%d, v%d, v%d', r, r, r)
    for r in regs:
        a.e('v_lshlrev_b32 v%d, 16, v%d', r, r)


def p2_ids(a):
    a.e('s_and_b32 s64, s2, 7')
    a.e('s_lshr_b32 s65, s2, 3')
    a.e('s_and_b32 s4, s64, 3')
    a.e('s_lshl_b32 s4, s4, 2')
    a.e('s_and_b32 s66, s65, 3')
    a.e('s_add_u32 s4, s4, s66')
    a.e('s_lshr_b32 s5, s64, 2')
    a.e('s_lshl_b32 s5, s5, 3')
    a.e('s_lshr_b32 s74, s65, 2')
    a.e('s_add_u32 s5, s5, s74')


def wo_voff(a, vdst, t0, t1, s_piece):
    a.e('v_lshrrev_b32 v%d, 3, v2', t0)
    a.e('s_lshl_b32 s64, s%d, 3', s_piece)
    a.e('v_add_u32 v%d, s64, v%d', t0, t0)
    a.e('v_lshlrev_b32 v%d, 11, v%d', t0, t0)
    a.e('v_lshrrev_b32 v%d, 4, v2', t1)
    a.e('v_lshlrev_b32 v%d, 1, v%d', t1, t1)
    a.e('v_and_b32 v%d, 7, v2', vdst)
    a.e('v_xor_b32 v%d, v%d, v%d', t1, t1, vdst)
    a.e('v_lshl_add_u32 v%d, v%d, 4, v%d', t0, t1, t0)
    a.e('s_lshl_b32 s64, s5, 7')
    a.e('v_add_u32 v%d, s64, v%d', vdst, t0)


def wo_dma(a, pos, voff, s_w1k, tag):
    a.e('s_mov_b32 s65, %d', pos << 17)
    for b in range(2):
        a.e('s_add_u32 m0, s%d, %d', s_w1k, POS[pos] + b * 4096)
        if b:
            a.e('s_add_u32 s65, s65, 65536')
        else:
            a.e('s_nop 0')
        a.vm_issue(tag, 'buffer_load_dwordx4 v%d, %s, s65 offen' + NTO + ' lds', voff, sr(S_WO, 4))


XO = 220
T2 = 232
VRO, VXO = 230, 231


def xo_loads(a):
    if 'noxo' in EXP:
        a.e('v_mov_b32 v%d, 0', VRO)
        a.e('v_mov_b32 v%d, 0', VXO)
        return
    a.e('v_lshrrev_b32 v%d, 3, v0', VRO)
    a.e('s_lshl_b32 s64, s4, 7')
    a.e('v_add_u32 v%d, s64, v%d', VRO, VRO)
    a.e('v_lshlrev_b32 v%d, 11, v%d', VXO, VRO)
    a.e('v_and_b32 v3, 7, v0')
    a.e('v_lshl_add_u32 v%d, v3, 4, v%d', VXO, VXO)
    a.e('s_lshl_b32 s64, s5, 7')
    a.e('v_add_u32 v%d, s64, v%d', VXO, VXO)
    a.e('s_mov_b32 s64, 131072')
    a.e('v_lshlrev_b32 v3, 2, v%d', VRO)
    a.e('v_add_u32 v3, %d, v3', WS_G)
    a.vm_issue('xo', 'buffer_load_dwordx4 %s, v%d, %s, 0 offen', vr(XO, 4), VXO, sr(S_X, 4))
    a.vm_issue('xo', 'buffer_load_dwordx4 %s, v%d, %s, s64 offen', vr(XO + 4, 4), VXO, sr(S_X, 4))
    a.vm_issue('xo', 'buffer_load_dword v%d, v3, %s, 0 offen sc1', XO + 8, WSR)
    a.vm_issue('xo', 'buffer_load_dword v%d, v3, %s, 0 offen offset:256 sc1', XO + 9, WSR)


OM = [248, 249]


def t2_fill(a):
    for half in range(2):
        X, Gr, T, om = XO + 4 * half, XO + 8 + half, T2 + 8 * half, OM[half]
        a.e('v_sub_f32 v%d, 1.0, v%d', om, Gr)
        a.e('v_cvt_pk_bf16_f32 v%d, v%d, v%d', om, om, om)
        a.e('v_lshlrev_b32 v%d, 16, v%d', om, om)
        for q in range(4):
            x0, x1 = T + 2 * q, T + 2 * q + 1
            a.e('v_lshlrev_b32 v%d, 16, v%d', x0, X + q)
            a.e('v_and_b32 v%d, 0xffff0000, v%d', x1, X + q)
            a.e('v_mul_f32 v%d, v%d, v%d', x0, x0, om)
            a.e('v_mul_f32 v%d, v%d, v%d', x1, x1, om)
            a.e('v_cvt_pk_bf16_f32 v3, v%d, v%d', x0, x1)
            a.e('v_lshlrev_b32 v%d, 16, v3', x0)
            a.e('v_and_b32 v%d, 0xffff0000, v3', x1)


MASK14 = 's_mov_b32 exec_lo, 0x3fff3fff\ns_mov_b32 exec_hi, 0x3fff3fff'


def h_compute(a):
    HB = 64
    a.e('s_lshr_b32 s64, s2, 2')
    a.e('s_lshl_b32 s64, s64, 14')
    a.e('s_add_u32 s64, s64, %d', WS_HP)
    a.e('v_lshl_add_u32 v16, v2, 4, s64')
    a.e('v_lshrrev_b32 v8, 4, v2')
    a.e('s_mov_b32 s65, 0')
    a.e('H_hl:')
    for q in range(16):
        a.e('s_mov_b32 s64, %d', (q >> 2) * 4096)
        a.e('buffer_load_dwordx4 %s, v16, %s, s64 offen offset:%d sc1', vr(HB + 4 * q, 4), WSR, (q & 3) * 1024)
    a.e('s_waitcnt vmcnt(0)')
    a.e('v_max3_u32 v17, v%d, v%d, v%d', HB, HB + 1, HB + 2)
    for r in range(3, 63, 2):
        a.e('v_max3_u32 v17, v%d, v%d, v17', HB + r, HB + r + 1)
    a.e('v_max_u32 v17, v%d, v17', HB + 63)
    a.e(MASK14)
    a.e('v_cmp_eq_u32 vcc, -1, v17')
    a.e('s_mov_b64 exec, -1')
    a.e('s_cbranch_vccz H_hok')
    a.e('s_add_u32 s65, s65, 1')
    a.e('s_cmp_ge_u32 s65, 100000')
    a.e('s_cbranch_scc1 H_hok')
    a.e('s_sleep 8')
    a.e('s_branch H_hl')
    a.e('H_hok:')
    for m in range(2):
        for i in range(1, 8):
            for q in range(4):
                a.e('v_add_f32 v%d, v%d, v%d', HB + 32 * m + q, HB + 32 * m + q, HB + 32 * m + 4 * i + q)
    a.e('s_nop 1')
    for q in range(4):
        a.e('v_permlane16_swap_b32 v%d, v%d', HB + q, HB + 32 + q)
    for q in range(4):
        a.e('v_add_f32 v%d, v%d, v%d', HB + q, HB + q, HB + 32 + q)
    a.e('s_nop 1')
    for q in range(2):
        a.e('v_permlane32_swap_b32 v%d, v%d', HB + q, HB + 2 + q)
    for q in range(2):
        a.e('v_add_f32 v%d, v%d, v%d', HB + q, HB + q, HB + 2 + q)
    a.e('s_nop 1')
    a.e('v_permlane16_swap_b32 v%d, v%d', HB, HB + 1)
    G_, U_, T_ = HB, HB + 1, HB + 2
    a.e('v_cvt_pk_bf16_f32 v%d, v%d, v%d', T_, G_, U_)
    a.e('v_lshlrev_b32 v%d, 16, v%d', G_, T_)
    a.e('v_and_b32 v%d, 0xffff0000, v%d', U_, T_)
    a.e('v_mul_f32 v%d, s%d, v%d', T_, S_LOG2E, G_)
    a.e('v_exp_f32 v%d, -v%d', T_, T_)
    a.e('v_and_b32 v16, 15, v2')
    a.e('v_add_f32 v%d, 1.0, v%d', T_, T_)
    a.e('v_rcp_f32 v%d, v%d', T_, T_)
    a.e('v_lshl_add_u32 v16, v16, 2, v8')
    a.e('v_mul_f32 v%d, v%d, v%d', T_, T_, G_)
    a.e('v_cvt_pk_bf16_f32 v%d, v%d, v%d', T_, T_, T_)
    a.e('v_lshlrev_b32 v%d, 16, v%d', T_, T_)
    a.e('v_mul_f32 v%d, v%d, v%d', T_, T_, U_)
    a.e('v_cvt_pk_bf16_f32 v%d, v%d, v%d', T_, T_, T_)
    a.e('v_lshlrev_b32 v%d, 16, v%d', T_, T_)
    a.e('v_lshlrev_b32 v16, 2, v16')
    a.e('ds_write_b32 v16, v%d offset:%d', T_, L_H)


def f2_poll_first(a):
    a.e('s_lshl_b32 s64, s4, 3')
    a.e('s_add_u32 s64, s64, s3')
    a.e('s_lshl_b32 s64, s64, 7')
    a.e('s_add_u32 s64, s64, %d', WS_F2)
    a.e('v_mov_b32 v14, s64')
    a.e('s_mov_b64 exec, 1')
    a.e('v_mov_b32 v15, 0')
    a.vm_issue('p', 'buffer_atomic_or v15, v14, %s, 0 offen sc0', WSR)
    a.e('s_mov_b64 exec, -1')


def gen(a):
    kn = NAME + '_kernel'
    a.e('.globl %s\n.p2align 8\n.type %s,@function\n%s:' % (kn, kn, kn))
    a.e('s_load_dwordx16 s[40:55], s[0:1], 0')
    a.e('s_load_dwordx8 s[56:63], s[0:1], 64')
    a.e('s_cmp_ge_u32 s2, 256')
    a.e('s_cbranch_scc1 K_end')
    stamp(a, 0, True); stamp(a, 1, False)
    a.e('v_lshrrev_b32 v1, 6, v0')
    a.e('v_and_b32 v2, 63, v0')
    a.e('s_and_b32 s6, s2, 7')
    a.e('v_readfirstlane_b32 s3, v1')
    a.e('s_lshr_b32 s7, s2, 3')
    a.e('s_and_b32 s4, s6, 1')
    a.e('s_lshl_b32 s4, s4, 3')
    a.e('s_and_b32 s64, s7, 7')
    a.e('s_add_u32 s4, s4, s64')
    a.e('s_lshr_b32 s5, s6, 1')
    a.e('s_lshl_b32 s5, s5, 2')
    a.e('s_lshr_b32 s64, s7, 3')
    a.e('s_add_u32 s5, s5, s64')
    ROT = os.environ.get('ROT', 'rt')
    if ROT == 'rt':
        a.e('s_lshl_b32 s74, s4, 1')
    elif ROT == 'xcd':
        a.e('s_lshl_b32 s74, s6, 1')
    elif ROT == 'xcd1':
        a.e('s_mov_b32 s74, s6')
    elif ROT == 'r4':
        a.e('s_and_b32 s74, s4, 3')
        a.e('s_lshl_b32 s74, s74, 2')
    elif ROT == 'r2':
        a.e('s_and_b32 s74, s4, 1')
        a.e('s_lshl_b32 s74, s74, 3')
    elif ROT == 'r4b':
        a.e('s_bfe_u32 s74, s4, 0x20001')
        a.e('s_lshl_b32 s74, s74, 2')
    elif ROT == 'r5':
        a.e('s_mul_i32 s74, s4, 3')
    elif ROT == 'rt1':
        a.e('s_mov_b32 s74, s4')
    else:
        a.e('s_mov_b32 s74, 0')
    a.e('v_lshrrev_b32 v6, 3, v2')
    a.e('s_lshl_b32 s65, s3, 3')
    a.e('v_add_u32 v6, s65, v6')
    a.e('s_lshl_b32 s64, s4, 7')
    a.e('v_add_u32 v7, s64, v6')
    a.e('v_lshlrev_b32 v7, 11, v7')
    a.e('v_lshrrev_b32 v8, 4, v2')
    a.e('s_and_b32 s64, s3, 1')
    a.e('s_lshl_b32 s64, s64, 2')
    a.e('v_add_u32 v9, s64, v8')
    a.e('v_and_b32 v10, 7, v2')
    a.e('v_xor_b32 v9, v9, v10')
    a.e('v_lshl_add_u32 v7, v9, 4, v7')
    a.e('v_mul_u32_u24 v6, 6144, v6')
    a.e('v_and_b32 v9, 1, v8')
    a.e('s_lshr_b32 s64, s64, 1')
    a.e('v_lshl_add_u32 v9, v9, 2, s64')
    a.e('v_xor_b32 v9, v9, v10')
    a.e('v_lshl_add_u32 v6, v9, 4, v6')
    a.e('s_lshl_b32 s64, s5, 7')
    a.e('v_add_u32 v6, s64, v6')
    a.e('s_lshl_b32 s66, s3, 10')
    a.e('s_mov_b32 s10, 4194304')
    a.e('s_mov_b32 s11, 0x00020000')
    a.e('s_mov_b32 s14, 6291456')
    a.e('s_mov_b32 s15, 0x00020000')

    def dma8(stage):
        a.e('s_add_u32 s65, s74, %d', stage)
        a.e('s_and_b32 s65, s65, 15')
        a.e('s_lshl_b32 s67, s65, 7')
        a.e('s_mul_i32 s65, s65, 393216')
        if stage == 0:
            a.e('s_waitcnt lgkmcnt(0)')
            a.e('s_mov_b32 s8, s40'); a.e('s_mov_b32 s9, s41')
            a.e('s_mov_b32 s12, s42'); a.e('s_mov_b32 s13, s43')
        for aa in range(2):
            a.e('s_add_u32 m0, s66, %d', RB + stage * SLOT + aa * 8192)
            a.e('s_add_u32 s64, s67, %d', aa * 131072)
            a.vm_issue('d%d' % stage, 'buffer_load_dwordx4 v7, %s, s64 offen' + NTA + ' lds', sr(S_X, 4))
        for ty in range(3):
            a.e('s_add_u32 m0, s66, %d', RB + stage * SLOT + 16384 + ty * 8192)
            a.e('s_add_u32 s64, s65, %d', ty * 2048)
            a.vm_issue('d%d' % stage, 'buffer_load_dwordx4 v6, %s, s64 offen' + NTB + ' lds', sr(S_W, 4))
    dma8(0)
    a.e('s_barrier')
    a.e('s_mov_b32 s%d, 0x%x', S_LOG2E, LOG2E)
    a.e('s_mov_b32 s%d, 0x%x', S_EPS, EPS6)
    srd(a, S_WS, 62, WS_BYTES)
    a.e('s_cmp_lt_u32 s3, 4')
    a.e('s_cbranch_scc1 C_start')
    vm_entry = list(a.vm)
    gen_h1(a)
    a.vm = list(vm_entry)
    gen_c1(a)
    gen_p2(a)


def gen_h1(a):
    VOA, VOB = 4, 5
    a.e('s_sub_u32 s6, s3, 4')
    a.e('s_lshl_b32 s7, s6, 10')
    a.e('v_lshrrev_b32 v6, 3, v2')
    a.e('s_lshl_b32 s64, s4, 7')
    a.e('s_lshl_b32 s65, s6, 3')
    a.e('s_add_u32 s64, s64, s65')
    a.e('v_add_u32 v7, s64, v6')
    a.e('v_lshlrev_b32 v7, 11, v7')
    a.e('s_and_b32 s64, s6, 1')
    a.e('s_lshl_b32 s64, s64, 2')
    a.e('v_add_u32 v9, s64, v8')
    a.e('v_xor_b32 v9, v9, v10')
    a.e('v_lshl_add_u32 v%d, v9, 4, v7', VOA)
    a.e('v_add_u32 v7, s65, v6')
    a.e('v_mul_u32_u24 v7, 6144, v7')
    a.e('v_and_b32 v9, 1, v8')
    a.e('s_lshr_b32 s64, s64, 1')
    a.e('v_lshl_add_u32 v9, v9, 2, s64')
    a.e('v_xor_b32 v9, v9, v10')
    a.e('v_lshl_add_u32 v7, v9, 4, v7')
    a.e('s_lshl_b32 s64, s5, 7')
    a.e('v_add_u32 v%d, s64, v7', VOB)

    def spread(fill, n):
        fill = list(fill or [])
        per = -(-len(fill) // n)

        def put():
            for _ in range(per):
                if fill:
                    for ln in fill.pop(0):
                        a.e(ln)
        return put

    def dma(stage, fill=None):
        slot = stage % 3
        put = spread(fill, 10)
        a.e('s_add_u32 s41, s74, %d', stage)
        a.e('s_and_b32 s41, s41, 15')
        a.e('s_lshl_b32 s42, s41, 7')
        a.e('s_mul_i32 s41, s41, 393216')
        for aa in range(4):
            a.e('s_add_u32 m0, s7, %d', RB + slot * SLOT + aa * 4096)
            a.e('s_add_u32 s40, s42, %d', aa * 65536)
            a.vm_issue('d%d' % stage, 'buffer_load_dwordx4 v%d, %s, s40 offen' + NTA + ' lds', VOA, sr(S_X, 4))
            put()
        for ty in range(3):
            for b in range(2):
                a.e('s_add_u32 m0, s7, %d', RB + slot * SLOT + 16384 + ty * 8192 + b * 4096)
                a.e('s_add_u32 s40, s41, %d', b * 196608 + ty * 2048)
                a.vm_issue('d%d' % stage, 'buffer_load_dwordx4 v%d, %s, s40 offen' + NTB + ' lds', VOB, sr(S_W, 4))
                put()

    def wo_units(ps, fill=None):
        put = spread(fill, 2 * len(ps))
        for p in ps:
            for b in range(2):
                a.e('s_add_u32 m0, s7, %d', POS[p] + b * 4096)
                a.e('s_mov_b32 s40, %d', (p << 17) + b * 65536)
                a.vm_issue('wo', 'buffer_load_dwordx4 v%d, %s, s40 offen' + NTO + ' lds', VOW, sr(S_WO, 4))
                put()

    def cap(fn, n=4):
        saved = a.lines
        a.lines = []
        fn()
        L = [ln.strip() for ln in a.lines]
        a.lines = saved
        return [L[k:k + n] for k in range(0, len(L), n)]
    VOW = 10
    V16 = 6
    a.e('v_lshlrev_b32 v%d, 4, v2', V16)
    a.e('s_and_b32 s64, s2, 1')
    a.e('s_lshl_b32 s68, s64, 10')
    a.e('s_bfe_u32 s64, s2, 0x20001')
    a.e('s_lshl_b32 s64, s64, 8')
    a.e('s_add_u32 s68, s68, s64')
    a.e('s_and_b32 s64, s2, 0xf8')
    a.e('s_add_u32 s68, s68, s64')
    a.e('s_lshl_b32 s64, s6, 1')
    a.e('s_add_u32 s68, s68, s64')
    a.e('s_lshl_b32 s64, s68, 11')
    a.e('v_add_u32 v13, s64, v%d', V16)
    XR, WR, GW, WF = 24, 40, 48, 56
    RL = E('RL', -1)

    def x_rows():
        for q in range(4):
            a.vm_issue('r', 'buffer_load_dwordx4 %s, v13, %s, 0 offen offset:%d', vr(XR + 4 * q, 4), sr(S_X, 4), q * 1024)
    if 'rows0' in EXP:
        x_rows()
    dma(1)
    a.e('s_or_b32 s64, s2, s6')
    a.e('s_cmp_lg_u32 s64, 0')
    a.e('s_cbranch_scc1 H_nn')
    a.e('s_mov_b32 s64, %d', WS_KEY)
    a.e('s_load_dwordx2 s[66:67], s[62:63], s64')
    srd(a, S_DBG, 60, 256)
    a.e('s_waitcnt lgkmcnt(0)')
    a.e('s_xor_b32 s64, s66, s67')
    a.e('s_add_u32 s64, s64, 1')
    a.e('s_max_u32 s64, s64, 1')
    a.e('v_mov_b32 v72, s64')
    a.e('v_mov_b32 v73, 0')
    a.e('s_mov_b64 exec, 1')
    a.vm_uncounted('buffer_store_dword v72, v73, %s, 0 offen' % sr(S_DBG, 4) + WT)
    a.e('s_mov_b64 exec, -1')
    a.e('H_nn:')
    stamp(a, 3)
    srd(a, S_DBG, 60, 256)
    srd(a, S_WR, 48, 2048)
    srd(a, S_GW, 56, 2048)
    srd(a, S_WG, 50, 7340032)
    srd(a, S_WU, 52, 7340032)
    VWG, VHP, VKB = 11, 12, 14
    a.e('s_lshr_b32 s69, s2, 3')
    a.e('s_and_b32 s64, s2, 7')
    a.e('v_and_b32 v9, 15, v2')
    a.e('v_min_u32 v9, 13, v9')
    a.e('s_lshl_b32 s65, s69, 5')
    a.e('v_lshl_add_u32 v7, v8, 3, s65')
    a.e('v_mul_u32_u24 v7, 7168, v7')
    a.e('s_mul_i32 s65, s64, 896')
    a.e('s_mul_i32 s66, s6, 224')
    a.e('s_add_u32 s65, s65, s66')
    a.e('v_lshl_add_u32 v7, v9, 4, v7')
    a.e('v_add_u32 v%d, s65, v7', VWG)
    a.e('v_cmp_le_u32 vcc, 7, v9')
    a.e('v_mov_b32 v15, %d', 16384 - 7 * 32)
    a.e('s_nop 0')
    a.e('v_cndmask_b32 v7, 0, v15, vcc')
    a.e('v_lshl_add_u32 v7, v9, 5, v7')
    a.e('v_lshrrev_b32 v15, 1, v8')
    a.e('v_lshl_add_u32 v7, v15, 13, v7')
    a.e('v_and_b32 v15, 1, v8')
    a.e('v_lshl_add_u32 v7, v15, 4, v7')
    a.e('s_lshl_b32 s64, s64, 17')
    a.e('s_lshl_b32 s65, s6, 15')
    a.e('s_add_u32 s64, s64, s65')
    a.e('s_lshl_b32 s65, s69, 8')
    a.e('s_add_u32 s64, s64, s65')
    a.e('s_add_u32 s64, s64, %d', WS_HP)
    a.e('v_add_u32 v%d, s64, v7', VHP)
    a.e('s_lshl_b32 s70, s5, 2')
    a.e('s_add_u32 s70, s70, s6')
    a.e('s_mul_i32 s70, s70, %d', 16 * KVB)
    a.e('s_add_u32 s70, s70, %d', WS_KVP)
    a.e('s_mul_i32 s64, s4, %d', KVB)
    a.e('s_add_u32 s64, s64, s70')
    a.e('s_mov_b32 s67, s64')
    a.e('v_lshl_add_u32 v15, v2, 2, s64')
    a.e('v_add_u32 v15, %d, v15', KVZ - 64)
    a.e('s_lshl_b32 s64, s5, 2')
    a.e('s_add_u32 s64, s64, s6')
    a.e('s_lshl_b32 s64, s64, 7')
    a.e('s_add_u32 s64, s64, %d', WS_F1)
    a.e('v_mov_b32 v23, s64')
    a.e('s_lshl_b32 s65, s4, 10')
    a.e('s_add_u32 s65, s65, %d', WS_F2 - 128)
    a.e('v_lshl_add_u32 v20, v2, 7, s65')
    a.e('v_cmp_gt_u32 vcc, 16, v2')
    a.e('s_nop 1')
    a.e('v_cndmask_b32 v15, v15, v20, vcc')
    a.e('v_writelane_b32 v15, s64, 0')
    a.e('s_cmp_eq_u32 s4, 0')
    a.e('s_cselect_b32 s75, 1, 0')
    a.e('s_or_b32 s64, s5, s6')
    a.e('s_cmp_eq_u32 s64, 0')
    a.e('s_cselect_b32 s64, 0x1fe, 0')
    a.e('s_or_b32 s75, s75, s64')
    a.e('s_or_b32 s75, s75, 0xffff0000')
    a.e('v_add_u32 v22, s67, v%d', V16)
    for r in range(4):
        a.e('v_mov_b32 v%d, -1', 16 + r)
    a.e('v_cndmask_b32 v20, -1, 0, vcc')
    a.vm_wait('d0')
    stamp(a, 4)
    a.e('s_barrier')
    dma(2)

    def init_stores():
        a.vm_issue('init', 'buffer_store_dwordx4 v[16:19], v22, %s, 0 offen' + WT, WSR)
        a.e('s_mov_b32 exec_lo, s75\ns_mov_b32 exec_hi, 0')
        a.vm_issue('init', 'buffer_store_dword v20, v15, %s, 0 offen' + WT, WSR)
        a.e(MASK14)
        a.vm_issue('init', 'buffer_store_dwordx4 v[16:19], v%d, %s, 0 offen' + WT, VHP, WSR)
        a.e('s_mov_b64 exec, 0xffff')
        a.e('s_lshl_b32 s64, s2, 10')
        a.e('s_lshl_b32 s65, s6, 8')
        a.e('s_add_u32 s64, s64, s65')
        a.e('s_add_u32 s64, s64, %d', WS_YP)
        a.vm_issue('init', 'buffer_store_dwordx4 v[16:19], v%d, %s, s64 offen' + WT, V16, WSR)
        a.e('s_mov_b64 exec, -1')

    def row_loads():
        if 'rows0' not in EXP:
            x_rows()
        for q in range(2):
            a.vm_issue('r', 'buffer_load_dwordx4 %s, v%d, %s, 0 offen offset:%d', vr(WR + 4 * q, 4), V16, sr(S_WR, 4), q * 1024)
        for q in range(2):
            a.vm_issue('r', 'buffer_load_dwordx4 %s, v%d, %s, 0 offen offset:%d', vr(GW + 4 * q, 4), V16, sr(S_GW, 4), q * 1024)

    WGT = 96
    XS = 88
    WD = 192
    wl = [(m, j) for j in range(8) for m in range(2)]
    TR = [int(c) for c in os.environ.get('TR', '00005005006007000')]
    assert len(TR) == 17 and sum(TR) == 23, sum(TR)
    allw = [('w', x) for x in wl] + [('d', j) for j in range(7)]
    wsched, dsched = {}, {}
    for k, n in enumerate(TR):
        for kind, x in allw[sum(TR[:k]):sum(TR[:k + 1])]:
            (wsched if kind == 'w' else dsched).setdefault(k - 1, []).append(x)
    D0 = min(dsched)
    GV = E('GV', 13)
    VWD = 21

    def wload(lst):
        if 'now' in EXP:
            return
        a.e(MASK14)
        for (m, j) in lst:
            a.e('s_mov_b32 s64, %d', j * 7168)
            a.vm_issue('w', 'buffer_load_dwordx4 %s, v%d, %s, s64 offen' + NTW, vr(WGT + 32 * m + 4 * j, 4), VWG, sr(S_WG if m == 0 else S_WU, 4))
        a.e('s_mov_b64 exec, -1')

    GA = 32

    def gemv1_part(pairs):
        a.e('s_mov_b32 s64, 0x05040100')
        a.e('s_mov_b32 s65, 0x07060302')
        for jp in pairs:
            for m in range(2):
                for q in range(4):
                    w0 = WGT + 32 * m + 8 * jp + q
                    t = 48 + 2 * (q & 1)
                    a.e('v_perm_b32 v%d, v%d, v%d, s64', t, w0 + 4, w0)
                    a.e('v_perm_b32 v%d, v%d, v%d, s65', t + 1, w0 + 4, w0)
                    for k in range(2):
                        acc = GA + 8 * m + 2 * q + k
                        a.e('v_dot2_f32_bf16 v%d, v%d, v%d, %s', acc, t + k, XS + jp, '0' if jp == 0 else 'v%d' % acc)

    def gemv1_fin():
        a.e('s_nop 2')
        a.e('s_nop 1')
        for m in range(2):
            for q in range(4):
                a.e('v_permlane16_swap_b32 v%d, v%d', GA + 8 * m + q, GA + 8 * m + q + 4)
        for m in range(2):
            for q in range(4):
                a.e('v_add_f32 v%d, v%d, v%d', GA + 8 * m + q, GA + 8 * m + q, GA + 8 * m + q + 4)
        a.e('s_nop 1')
        for q in range(4):
            a.e('v_permlane32_swap_b32 v%d, v%d', GA + q, GA + 8 + q)
        for q in range(4):
            a.e('v_add_f32 v%d, v%d, v%d', GA + q, GA + q, GA + 8 + q)
        a.e(MASK14)
        a.vm_issue('hp', 'buffer_store_dwordx4 %s, v%d, %s, 0 offen' + WT, vr(GA, 4), VHP, WSR)
        a.e('s_mov_b64 exec, -1')
        stamp(a, 7)

    def h0_only(name):
        a.e('s_cmp_lg_u32 s6, 0')
        a.e('s_cbranch_scc1 %s', name)

    IN = E('IN', 0)
    PB = E('PB', 10)
    KP = E('KP', RL + 7)
    gv = {GV: [0, 1], GV + 1: [2, 3]}
    if RL == -1:
        row_loads()
    if IN == -1:
        init_stores()
    if -1 in wsched:
        wload(wsched[-1])
    def wd_addr():
        srd(a, S_WD, 54, 7340032)
        a.e('s_lshr_b32 s64, s2, 2')
        a.e('s_mul_i32 s64, s64, %d', 56 * 2048)
        a.e('s_and_b32 s65, s2, 3')
        a.e('s_lshl_b32 s65, s65, 9')
        a.e('s_add_u32 s64, s64, s65')
        a.e('s_lshl_b32 s65, s6, 7')
        a.e('s_add_u32 s64, s64, s65')
        a.e('v_lshrrev_b32 v7, 3, v2')
        a.e('v_lshlrev_b32 v7, 11, v7')
        a.e('v_and_b32 v9, 7, v2')
        a.e('v_lshl_add_u32 v7, v9, 4, v7')
        a.e('v_add_u32 v%d, s64, v7', VWD)

    def key_loads():
        a.e('s_mov_b32 s64, %d', WS_KEY)
        for q in range(2):
            a.vm_uncounted('buffer_load_dwordx4 %s, v%d, %s, s64 offen offset:%d sc1' % (vr(24 + 4 * q, 4), V16, WSR, q * 1024))

    def dots():
        for q in range(8):
            for k, (x, w) in enumerate(((XR + q, GW + q), (XR + 8 + q, GW + q), (XR + q, WR + q), (XR + 8 + q, WR + q))):
                a.e('v_dot2_f32_bf16 v%d, v%d, v%d, %s', 72 + k, x, w, '0' if q == 0 else 'v%d' % (72 + k))

    def router_fin():
        a.e('v_permlane32_swap_b32 v72, v74')
        a.e('v_permlane32_swap_b32 v73, v75')
        a.e('v_add_f32 v72, v72, v74')
        a.e('v_add_f32 v73, v73, v75')
        a.e('s_lshl_b32 s64, s68, 2')
        a.e('s_add_u32 s64, s64, %d', WS_G)
        a.e('v_permlane16_swap_b32 v72, v73')
        a.e('v_add_f32 v72, v72, v73')
        a.e('v_and_b32 v75, 1, v8')
        a.e('v_lshl_add_u32 v76, v75, 2, s64')
        for pat in ('quad_perm:[1,0,3,2]', 'quad_perm:[2,3,0,1]', 'row_half_mirror', 'row_mirror'):
            a.e('v_add_f32_dpp v72, v72, v72 %s row_mask:0xf bank_mask:0xf', pat)
            a.e('s_nop 1')
        a.e('v_cvt_pk_bf16_f32 v72, v72, v72')
        a.e('s_sub_u32 s64, %d, s68', 2047 + 0x8000)
        a.e('v_lshlrev_b32 v72, 16, v72')
        a.e('v_ashrrev_i32 v73, 31, v72')
        a.e('v_sub_u32 v77, s64, v75')
        a.e('v_or_b32 v73, 0x80000000, v73')
        a.e('s_lshl_b32 s64, s6, 3')
        a.e('v_xor_b32 v73, v72, v73')
        a.e('v_lshl_add_u32 v75, v75, 2, s64')
        a.e('v_and_b32 v73, 0xffff0000, v73')
        a.e('v_or_b32 v73, v77, v73')
        sigmoid_bf16(a, [72])

    def key_max():
        a.e('v_max_u32 v3, v24, v26')
        a.e('v_max3_u32 v3, v3, v28, v30')
        a.e('s_nop 1')
        for pat in ('quad_perm:[1,0,3,2]', 'quad_perm:[2,3,0,1]', 'row_half_mirror', 'row_mirror'):
            a.e('v_max_u32_dpp v3, v3, v3 %s row_mask:0xf bank_mask:0xf', pat)
            a.e('s_nop 1')
        for swp in ('v_permlane16_swap_b32', 'v_permlane32_swap_b32'):
            a.e('v_mov_b32 v7, v3')
            a.e('s_nop 1')
            a.e('%s v3, v7', swp)
            a.e('v_max_u32 v3, v3, v7')
        a.e('v_mov_b32 v7, %d', L_KEY + 32)

    marks = {}
    for i in range(16):
        if i + 1 < 16:
            a.vm_wait('d%d' % (i + 1))
        if i == KP:
            a.vm_wait('g')
        if i in (RL + 5, PB + 2):
            a.e('s_waitcnt lgkmcnt(0)')
        a.e('s_barrier')
        fill = []
        if i == RL + 2:
            a.e('v_mov_b32 v79, 0')
            h0_only('H_nc')
            a.vm_uncounted('buffer_load_dword v78, v79, %s, 0 offen sc1' % sr(S_DBG, 4))
            a.e('H_nc:')
        if i == PB:
            h0_only('H_np')
            key_loads()
            a.e('H_np:')
            marks['poll'] = a.issued
        if i == PB + 1:
            h0_only('H_nq')
            a.e('s_waitcnt vmcnt(%d)', a.issued - marks['poll'])
            a.e('s_mov_b32 s65, 0')
            a.e('H_spin:')
            for q in range(4):
                a.e('v_xor_b32 v%d, v%d, v%d', 25 + 2 * q, 24 + 2 * q, 25 + 2 * q)
            a.e('v_xor_b32 v3, s71, v25')
            a.e('v_xor_b32 v7, s71, v27')
            a.e('v_xor_b32 v25, s71, v29')
            a.e('v_xor_b32 v27, s71, v31')
            a.e('v_or3_b32 v3, v3, v7, v25')
            a.e('v_or_b32 v3, v3, v27')
            a.e('v_cmp_ne_u32 vcc, 0, v3')
            a.e('s_cbranch_vccnz H_retry')
            with a.cold():
                a.e('H_retry:')
                a.e('s_add_u32 s65, s65, 1')
                a.e('s_cmp_ge_u32 s65, 200000')
                a.e('s_cbranch_scc1 H_nq')
                a.e('s_sleep 8')
                key_loads()
                a.e('s_waitcnt vmcnt(0)')
                a.e('s_branch H_spin')
            a.e('H_nq:')
            fill += cap(key_max)
        if i == PB + 2:
            a.e('v_mov_b32 v7, %d', L_KEY + 32)
            a.e('ds_read_b32 v3, v7')
            a.e('s_lshl_b32 s65, s69, 6')
            a.e('v_lshl_add_u32 v7, v8, 4, s65')
            a.e('s_waitcnt lgkmcnt(0)')
            a.e('v_readfirstlane_b32 s75, v3')
            a.e('s_nop 3')
            a.e('s_and_b32 s64, s75, 0x7ff')
            a.e('s_sub_u32 s64, 2047, s64')
            a.e('s_lshl_b32 s64, s64, 11')
            a.vm_issue('xs', 'buffer_load_dwordx4 %s, v7, %s, s64 offen', vr(XS, 4), sr(S_X, 4))
        if i == RL + 3:
            a.vm_wait('r')
            fill += cap(dots)
        if i == RL + 4:
            fill += cap(router_fin)
        if i in gv:
            if gv[i][0] == 0:
                a.vm_wait('xs')
                a.vm_wait('w')
                stamp(a, 6)
            fill += cap(lambda: gemv1_part(gv[i]))
        if i + 3 < 16:
            dma(i + 3, fill)
        else:
            if i == 13:
                p2_ids(a)
                srd(a, S_WO, 44, 2097152)
                wo_voff(a, VOW, 7, 9, 6)
            if i == 15:
                xo_loads(a)
            wo_units({13: (0, 8, 1, 9, 2, 10), 14: (3, 11), 15: (4, 12, 5, 13, 6, 14, 7, 15)}[i], fill)
        if i == RL:
            row_loads()
        if i == IN:
            init_stores()
        if i == RL + 4:
            a.e('s_mov_b32 exec_lo, 0\ns_mov_b32 exec_hi, 0x10001')
            a.e('ds_write_b32 v75, v73 offset:%d', L_KEY)
            a.e('s_mov_b32 exec_lo, 0x10001\ns_mov_b32 exec_hi, 0')
            a.vm_issue('g', 'buffer_store_dword v72, v76, %s, 0 offen' + WT, WSR)
            a.e('s_mov_b64 exec, -1')
        if i == KP:
            assert IN <= RL + 4 < KP
            h0_only('H_nk')
            a.e('v_mov_b32 v3, %d', L_KEY)
            a.e('ds_read_b128 v[72:75], v3')
            a.e('ds_read_b128 v[24:27], v3 offset:16')
            a.e('s_mov_b32 s65, 0')
            a.e('H_nspin:')
            a.e('v_readfirstlane_b32 s71, v78')
            a.e('s_cmp_eq_u32 s71, 0')
            a.e('s_cbranch_scc1 H_nre')
            with a.cold():
                a.e('H_nre:')
                a.e('s_add_u32 s65, s65, 1')
                a.e('s_cmp_ge_u32 s65, 200000')
                a.e('s_cbranch_scc1 H_nok')
                a.e('s_sleep 4')
                a.e('buffer_load_dword v78, v79, %s, 0 offen sc1' % sr(S_DBG, 4))
                a.e('s_waitcnt vmcnt(0)')
                a.e('s_branch H_nspin')
            a.e('H_nok:')
            a.e('s_lshl_b32 s64, s2, 3')
            a.e('s_add_u32 s64, s64, %d', WS_KEY)
            a.e('v_mov_b32 v3, s64')
            a.e('s_waitcnt lgkmcnt(0)')
            a.e('v_max3_u32 v72, v72, v73, v74')
            a.e('v_max3_u32 v24, v24, v25, v26')
            a.e('v_max3_u32 v72, v72, v75, v27')
            a.e('v_max_u32 v72, v72, v24')
            a.e('v_xor_b32 v73, s71, v72')
            a.e('s_mov_b64 exec, 1')
            a.vm_uncounted('buffer_store_dwordx2 v[72:73], v3, %s, 0 offen' % WSR + WT)
            a.e('s_mov_b64 exec, -1')
            a.e('H_nk:')
        if i == PB + 1:
            h0_only('H_nw')
            a.e('ds_write_b32 v7, v3')
            a.e('H_nw:')
        if i in wsched:
            wload(wsched[i])
        if i == D0:
            wd_addr()
        if i in dsched and 'now' not in EXP:
            for j in dsched[i]:
                a.e('s_mov_b32 s64, %d', j * 16384)
                a.vm_issue('wd', 'buffer_load_dwordx4 %s, v%d, %s, s64 offen' + NTW, vr(WD + 4 * j, 4), VWD, sr(S_WD, 4))
        if i == max(gv):
            gemv1_fin()
    stamp(a, 5)
    if 'gprio' in EXP:
        a.e('s_setprio 3')
    KB, KA, PA = 64, 128, 48
    SL = 40

    def f1_poll():
        a.e('s_mov_b64 exec, 1')
        a.e('v_mov_b32 v20, 0')
        a.e('buffer_atomic_or v20, v23, %s, 0 offen sc0', WSR)
        a.e('s_mov_b64 exec, -1')
    f1_poll()
    a.e('v_add_u32 v17, s70, v%d', V16)
    a.e('v_lshrrev_b32 v18, 2, v2')
    a.e('v_mul_u32_u24 v18, %d, v18', KVB)
    a.e('v_and_b32 v19, 3, v2')
    a.e('v_lshl_add_u32 v18, v19, 4, v18')
    a.e('s_add_u32 s64, s70, %d', KVZ)
    a.e('v_add_u32 v18, s64, v18')
    a.e('v_bfe_u32 v26, v2, 3, 1')
    a.e('v_lshl_add_u32 v26, v26, 2, v19')
    a.e('v_bfe_u32 v27, v2, 2, 1')
    a.e('v_lshrrev_b32 v28, 5, v2')
    a.e('v_cmp_eq_u32 vcc, v27, v28')
    a.e('v_and_b32 v27, 16, v2')
    a.e('v_cmp_eq_u32 s[64:65], 0, v27')
    a.e('s_and_b64 vcc, vcc, s[64:65]')
    a.e('v_and_b32 v27, 1, v26')
    a.e('v_lshlrev_b32 v27, 4, v27')
    a.e('v_mov_b32 v28, 0x3f80')
    a.e('v_lshlrev_b32 v27, v27, v28')
    a.e('v_cndmask_b32 v27, 0, v27, vcc')
    a.e('v_lshrrev_b32 v26, 1, v26')
    for q in range(4):
        a.e('v_cmp_eq_u32 vcc, %d, v26', q)
        a.e('s_nop 1')
        a.e('v_cndmask_b32 v%d, 0, v27, vcc', PA + q)
    for r in range(16):
        a.e('v_mov_b32 v%d, 0', KA + r)
    a.e('s_mov_b32 s66, 0xffff')
    a.e('s_mov_b32 s65, 0')
    a.e('s_waitcnt vmcnt(0)')
    a.e('G_loop:')
    a.e('v_readfirstlane_b32 s68, v20')
    if E('SPEC', 0):
        a.e('s_bcnt1_i32_b32 s64, s66')
        a.e('s_cmp_le_u32 s64, %d', E('SPEC', 0))
        a.e('s_cselect_b32 s68, 0xffff, s68')
    a.e('s_and_b32 s68, s68, s66')
    a.e('s_andn2_b32 s66, s66, s68')
    if STAMPS == 2:
        a.e('s_memrealtime s[86:87]')
        a.e('s_min_u32 s64, s65, 30')
        a.e('s_lshl_b32 m0, s64, 1')
        a.e('s_waitcnt lgkmcnt(0)')
        a.e('v_writelane_b32 v250, s86, m0')
        a.e('s_add_u32 m0, m0, 1')
        a.e('s_nop 0')
        a.e('v_writelane_b32 v250, s66, m0')
        a.e('v_writelane_b32 v250, s65, 63')
    a.e('s_bcnt1_i32_b32 s67, s68')

    def jump_n(pref):
        def rec(lo, hi, last):
            if lo == hi:
                if not (last and lo == 16):
                    a.e('s_branch %s%d', pref, lo)
                return
            mid = lo if hi - lo < 3 else (lo + hi) // 2
            if mid == lo:
                a.e('s_cmp_eq_u32 s67, %d', lo)
                a.e('s_cbranch_scc1 %s%d', pref, lo)
                rec(lo + 1, hi, last)
            else:
                lab = a.label(pref + 't')
                a.e('s_cmp_gt_u32 s67, %d', mid)
                a.e('s_cbranch_scc1 %s', lab)
                rec(lo, mid, False)
                a.e('%s:', lab)
                rec(mid + 1, hi, last)
        a.e('s_cmp_eq_u32 s67, 0')
        a.e('s_cbranch_scc1 %s0', pref)
        rec(1, 16, True)
    jump_n('G_l')
    for c in range(15, -1, -1):
        a.e('G_l%d:', c + 1)
        a.e('s_ff1_i32_b32 s%d, s68', SL + c)
        a.e('s_bitset0_b32 s68, s%d', SL + c)
        a.e('s_mul_i32 s64, s%d, %d', SL + c, KVB)
        a.e('buffer_load_dwordx4 %s, v17, %s, s64 offen sc1', vr(KB + 4 * c, 4), WSR)
    a.e('G_l0:')
    a.e('s_mov_b32 s68, s66')
    a.e('s_cmp_eq_u32 s66, 0')
    a.e('s_cbranch_scc1 G_z')
    a.e('s_cmp_lg_u32 s67, 0')
    a.e('s_cbranch_scc1 G_p')
    a.e('s_sleep %d', E('GSL', 2))
    a.e('G_p:')
    f1_poll()
    a.e('s_branch G_proc')
    a.e('G_z:')
    a.e('buffer_load_dwordx4 v[56:59], v18, %s, 0 offen sc1', WSR)
    a.e('G_proc:')
    jump_n('G_q')
    for c in range(15, -1, -1):
        b = KB + 4 * c
        a.e('G_q%d:', c + 1)
        a.e('s_waitcnt vmcnt(%d)', c + 1)
        a.e('v_max3_u32 v21, v%d, v%d, v%d', b, b + 1, b + 2)
        a.e('v_max_u32 v21, v21, v%d', b + 3)
        a.e('v_cmp_eq_u32 vcc, -1, v21')
        a.e('s_cbranch_vccnz G_f%d', c)
        a.e('v_mfma_f32_32x32x16_bf16 %s, %s, %s, %s', vr(KA, 16), vr(PA, 4), vr(b, 4), vr(KA, 16))
        with a.cold():
            a.e('G_f%d:', c)
            a.e('s_bitset1_b32 s66, s%d', SL + c)
            a.e('s_branch G_q%d', c)
    a.e('G_q0:')
    a.e('s_waitcnt vmcnt(0)')
    a.e('s_add_u32 s65, s65, 1')
    a.e('s_cmp_ge_u32 s65, 40000')
    a.e('s_cbranch_scc1 G_done')
    a.e('s_cmp_lg_u32 s68, 0')
    a.e('s_cbranch_scc1 G_loop')
    a.e('v_mov_b32 v20, -1')
    a.e('s_cmp_lg_u32 s66, 0')
    a.e('s_cbranch_scc1 G_loop')
    a.e('v_max3_u32 v21, v56, v57, v58')
    a.e('v_max_u32 v21, v21, v59')
    a.e('v_cmp_eq_u32 vcc, -1, v21')
    a.e('s_cbranch_vccnz G_loop')
    a.e('G_done:')
    a.vm = []
    stamp(a, 8)
    a.e('v_add_u32 v16, s7, v%d', V16)
    for pat in ('row_ror:4', 'row_ror:8'):
        for q in range(4):
            a.e('v_add_f32_dpp v%d, v%d, v%d %s row_mask:0xf bank_mask:0xf', 56 + q, 56 + q, 56 + q, pat)
    for swp in ('v_permlane16_swap_b32', 'v_permlane32_swap_b32'):
        for q in range(4):
            a.e('v_mov_b32 v%d, v%d', 64 + q, 56 + q)
        a.e('s_nop 0')
        for q in range(4):
            a.e('%s v%d, v%d', swp, 56 + q, 64 + q)
        for q in range(4):
            a.e('v_add_f32 v%d, v%d, v%d', 56 + q, 56 + q, 64 + q)
    for q in range(4):
        a.e('v_cvt_pk_bf16_f32 v%d, v%d, v%d', 60 + q, KA + 2 * q, KA + 2 * q + 1)
    a.e('ds_write_b128 v16, v[60:63] offset:%d', L_KF)
    a.e('v_cvt_pk_bf16_f32 v56, v56, v57')
    a.e('v_cvt_pk_bf16_f32 v57, v58, v59')
    a.e('s_lshr_b32 s64, s6, 1')
    a.e('s_lshl_b32 s64, s64, 6')
    a.e('s_and_b32 s65, s6, 1')
    a.e('s_lshl_b32 s65, s65, 3')
    a.e('s_add_u32 s64, s64, s65')
    a.e('v_lshl_add_u32 v16, v2, 4, s64')
    a.e('s_mov_b64 exec, 15')
    a.e('ds_write_b64 v16, v[56:57] offset:%d', L_ZF)
    a.e('s_mov_b64 exec, -1')
    a.e('s_waitcnt lgkmcnt(0)')
    a.e('s_barrier')
    if 'gprio' in EXP:
        a.e('s_setprio 0')
    a.e('v_lshrrev_b32 v18, 3, v2')
    a.e('v_lshlrev_b32 v18, 2, v18')
    for j in range(7):
        a.e('ds_read_b32 v%d, v18 offset:%d', 24 + j, L_H + 32 * j)
    a.e('s_waitcnt lgkmcnt(0)')
    YA = 32
    for j in range(7):
        for q in range(4):
            w = WD + 4 * j + q
            a.e('v_lshlrev_b32 v48, 16, v%d', w)
            a.e('v_and_b32 v49, 0xffff0000, v%d', w)
            if j == 0:
                a.e('v_mul_f32 v%d, v48, v%d', YA + 2 * q, 24 + j)
                a.e('v_mul_f32 v%d, v49, v%d', YA + 2 * q + 1, 24 + j)
            else:
                a.e('v_fmac_f32 v%d, v48, v%d', YA + 2 * q, 24 + j)
                a.e('v_fmac_f32 v%d, v49, v%d', YA + 2 * q + 1, 24 + j)
    a.e('s_nop 1')
    for q in range(4):
        a.e('v_permlane32_swap_b32 v%d, v%d', YA + q, YA + 4 + q)
    for q in range(4):
        a.e('v_add_f32 v%d, v%d, v%d', YA + q, YA + q, YA + 4 + q)
    a.e('s_nop 1')
    for q in range(2):
        a.e('v_permlane16_swap_b32 v%d, v%d', YA + q, YA + 2 + q)
    for q in range(2):
        a.e('v_add_f32 v%d, v%d, v%d', YA + q, YA + q, YA + 2 + q)
    a.e('s_nop 1')
    for q in range(2):
        a.e('v_add_f32_dpp v%d, v%d, v%d row_ror:8 row_mask:0xf bank_mask:0xf', YA + q, YA + q, YA + q)
    a.e('v_and_b32 v16, 7, v2')
    a.e('v_lshlrev_b32 v16, 5, v16')
    a.e('v_lshl_add_u32 v16, v8, 3, v16')
    a.e('s_lshl_b32 s64, s2, 10')
    a.e('s_lshl_b32 s65, s6, 8')
    a.e('s_add_u32 s64, s64, s65')
    a.e('s_add_u32 s64, s64, %d', WS_YP)
    a.e('s_mov_b32 exec_lo, 0x00ff00ff\ns_mov_b32 exec_hi, 0x00ff00ff')
    a.e('buffer_store_dwordx2 %s, v16, %s, s64 offen' + WT, vr(YA, 2), WSR)
    a.e('s_mov_b64 exec, -1')
    stamp(a, 9)
    if 'latep' not in EXP:
        f2_poll_first(a)
    t2_fill(a)
    a.e('s_branch P2_start')


def gen_c1(a):
    a.e('C_start:')
    TOUCH = E('TOUCH', 0)
    if TOUCH:
        a.e('s_mul_i32 s64, s2, 24576')
        a.e('s_mul_i32 s65, s3, 6144')
        a.e('s_add_u32 s64, s64, s65')
        a.e('v_mul_u32_u24 v3, %d, v2', TOUCH)
        a.e('s_mov_b32 exec_hi, 0xffff')
        for q in range(128 // TOUCH):
            a.vm_issue('t', 'buffer_load_dword v60, v3, %s, s64 offen offset:%d', sr(S_W, 4), q * 3072)
        a.e('s_mov_b32 exec_hi, -1')
    if 'noscode' not in EXP:
        NS = 4
        a.e('s_getpc_b64 s[68:69]')
        a.e('C_pc:')
        a.e('s_sub_u32 s68, s68, C_pc-%s_kernel' % NAME)
        a.e('s_subb_u32 s69, s69, 0')
        a.e('s_lshr_b32 s64, s2, 3')
        a.e('s_lshl_b32 s64, s64, 2')
        a.e('s_add_u32 s64, s64, s3')
        a.e('s_mul_i32 s64, s64, %d', NS * 64)
        a.e('s_mov_b32 s65, CODE_END-%s_kernel-4' % NAME)
        for q in range(NS):
            a.e('s_min_u32 s66, s64, s65')
            a.e('s_load_dword s75, s[68:69], s66')
            a.e('s_add_u32 s64, s64, 64')
    M16 = 'v_mfma_f32_16x16x32_bf16'
    VAB, VBB, VA, VB = 4, 6, 8, 10
    BF = [16, 40]
    AB = [192, 208]
    QA, KA_, VA_ = 64, 96, 128
    qt = lambda sb, db: QA + (sb * 2 + db) * 4
    kt = lambda base, sb, db: base + (((sb >> 1) * 2 + db) * 2 + (sb & 1)) * 4
    X = 224
    ONES = 236
    a.e('s_and_b32 s6, s3, 1')
    a.e('s_lshr_b32 s7, s3, 1')
    a.e('v_and_b32 v3, 15, v2')
    a.e('s_lshl_b32 s64, s6, 6')
    a.e('v_add_u32 v3, s64, v3')
    a.e('v_lshlrev_b32 v3, 7, v3')
    a.e('v_add_u32 v3, %d, v3', RB)
    a.e('v_bfe_u32 v56, v2, 1, 3')
    a.e('v_lshrrev_b32 v57, 4, v2')
    a.e('v_xor_b32 v56, v56, v57')
    a.e('v_lshl_add_u32 v%d, v56, 4, v3', VAB)
    a.e('v_xor_b32 v%d, 64, v%d', VAB + 1, VAB)
    a.e('v_bfe_u32 v56, v2, 2, 2')
    a.e('v_lshl_add_u32 v58, v57, 3, v56')
    a.e('v_lshlrev_b32 v58, 7, v58')
    a.e('v_lshrrev_b32 v56, 1, v56')
    a.e('v_xor_b32 v56, s7, v56')
    a.e('v_lshl_add_u32 v58, v56, 6, v58')
    a.e('v_and_b32 v57, 1, v57')
    a.e('v_lshl_add_u32 v58, v57, 5, v58')
    a.e('v_and_b32 v56, 3, v2')
    a.e('v_lshl_add_u32 v58, v56, 3, v58')
    a.e('v_add_u32 v%d, %d, v58', VBB, RB + 16384)
    a.e('v_xor_b32 v%d, 32, v%d', VBB + 1, VBB)
    for t in range(2):
        a.e('v_mov_b32 v%d, v%d', VA + t, VAB + t)
        a.e('v_mov_b32 v%d, v%d', VB + t, VBB + t)
    for r in range(64, 160):
        a.e('v_mov_b32 v%d, 0', r)
    a.e('s_lshl_b32 s64, s3, 2')
    a.e('v_mov_b32 v%d, s64', X + 5)
    a.e('ds_write_b32 v%d, v64 offset:%d', X + 5, L_FLG)
    a.e('v_lshlrev_b32 v3, 4, v2')
    a.e('s_lshl_b32 s64, s3, 11')
    a.e('v_add_u32 v%d, s64, v3', X)
    a.e('v_xor_b32 v%d, 2048, v%d', X + 1, X)
    a.e('s_lshl_b32 s64, s3, 8')
    a.e('v_lshl_add_u32 v%d, v2, 2, s64', X + 3)
    a.e('v_xor_b32 v%d, 256, v%d', X + 4, X + 3)
    a.e('v_xor_b32 v%d, 4, v%d', X + 6, X + 5)
    a.e('v_mov_b32 v%d, 1', X + 7)
    a.e('v_lshlrev_b32 v%d, 2, v2', X + 8)
    a.e('s_lshl_b32 s64, 1, s4')
    a.e('v_mov_b32 v%d, s64', X + 9)
    a.e('s_lshl_b32 s43, s5, 2')
    a.e('s_add_u32 s43, s43, s3')
    a.e('s_lshl_b32 s64, s43, 7')
    a.e('s_add_u32 s64, s64, %d', WS_F1)
    a.e('v_mov_b32 v%d, s64', X + 10)
    a.e('s_lshl_b32 s43, s43, 4')
    a.e('s_add_u32 s43, s43, s4')
    a.e('s_mul_i32 s43, s43, %d', KVB)
    a.e('s_add_u32 s43, s43, %d', WS_KVP)
    a.e('s_lshl_b32 s42, s4, 2')
    a.e('s_lshl_b32 s64, s6, 1')
    a.e('s_add_u32 s42, s42, s64')
    a.e('s_lshl_b32 s42, s42, 5')
    a.e('s_lshl_b32 s64, s5, 1')
    a.e('s_add_u32 s42, s42, s64')
    a.e('s_add_u32 s42, s42, s7')
    a.e('s_lshl_b32 s42, s42, 11')
    a.e('s_and_b32 s64, s5, 7')
    a.e('s_lshl_b32 s64, s64, 1')
    a.e('s_add_u32 s64, s64, s7')
    a.e('s_lshl_b32 s64, 1, s64')
    a.e('v_mov_b32 v13, s64')
    a.e('s_lshr_b32 s64, s5, 3')
    a.e('s_lshl_b32 s64, s64, 1')
    a.e('s_add_u32 s64, s64, s6')
    a.e('s_lshl_b32 s64, s64, 8')
    a.e('s_lshl_b32 s65, s4, 10')
    a.e('s_add_u32 s64, s64, s65')
    a.e('s_add_u32 s64, s64, %d', WS_F2)
    a.e('v_lshl_add_u32 v12, v2, 7, s64')
    p2_ids(a)
    a.e('s_mov_b32 s65, 0')
    a.e('s_mov_b32 s66, 0')
    for r in range(4):
        a.e('v_mov_b32 v%d, 0x3f803f80', ONES + r)

    def reads(st, buf, areg, q=True):
        B = lambda ty, cb: ['ds_read_b64_tr_b16 %s, v%d offset:%d' % (vr(BF[buf] + 8 * ty + 4 * cb + 2 * tt, 2), VB + cb, ty * 8192 + st * 4096 + tt * 512)
                            for tt in range(2)]
        A = ['ds_read_b128 %s, v%d offset:%d' % (vr(areg + 4 * b, 4), VA + st, b * 2048) for b in range(4)]
        L = []
        for ty in ((0, 1, 2) if q else (1, 2)):
            for cb in range(2):
                L += B(ty, cb)
        return L[:2] + A + L[2:]

    def mfmas(buf, areg, q=True):
        L = []
        for ty in ((0, 1, 2) if q else (1, 2)):
            for cb in range(2):
                w = vr(BF[buf] + 8 * ty + 4 * cb, 4)
                for b in range(4):
                    x = vr(areg + 4 * b, 4)
                    if ty == 0:
                        d = vr(qt(b, cb), 4)
                        L.append('%s %s, %s, %s, %s' % (M16, d, w, x, d))
                    else:
                        d = vr(kt(KA_ if ty == 1 else VA_, b, cb), 4)
                        L.append('%s %s, %s, %s, %s' % (M16, d, x, w, d))
        return L

    def bar_stamped():
        if STAMPS == 2:
            a.e('s_memtime s[68:69]')
        a.e('s_barrier')
        if STAMPS == 2:
            a.e('s_memtime s[70:71]')
            a.e('s_waitcnt lgkmcnt(0)')
            a.e('s_mov_b32 m0, s66')
            a.e('s_nop 0')
            a.e('v_writelane_b32 v250, s68, m0')
            a.e('s_add_u32 m0, s66, 16')
            a.e('s_nop 0')
            a.e('v_writelane_b32 v250, s70, m0')
            a.e('s_memrealtime s[70:71]')
            a.e('s_add_u32 m0, s66, 32')
            a.e('s_waitcnt lgkmcnt(0)')
            a.e('v_writelane_b32 v250, s70, m0')

    def step(M, F):
        for i, m_ in enumerate(M):
            a.e(m_)
            if i < len(F):
                a.e(F[i])
        for f in F[len(M):]:
            a.e(f)

    stamp(a, 3)
    a.vm_wait('d0', 'lgkmcnt(0)')
    stamp(a, 4)
    a.e('s_barrier')
    for r in reads(0, 0, AB[0]):
        a.e(r)
    ND = E('ND', 2)
    a.e('.p2align 3')
    a.e('C_loop:')
    a.e('s_waitcnt lgkmcnt(0)')
    step(mfmas(0, AB[0]), reads(1, 1, AB[1]))
    a.e('s_waitcnt lgkmcnt(0)')
    bar_stamped()
    a.e('s_add_u32 s65, s65, %d', SLOT)
    a.e('s_cmp_eq_u32 s65, %d', 3 * SLOT)
    a.e('s_cselect_b32 s65, 0, s65')
    AD = ['v_add_u32 v%d, s65, v%d' % (r + 4, r) for r in (VBB, VAB, VBB + 1, VAB + 1)]
    R = reads(0, 0, AB[0])
    step(mfmas(1, AB[1]), [AD[0] + '\n' + AD[1]] + R[:6] + [AD[2]] + R[6:] + [AD[3]])
    a.e('s_add_u32 s66, s66, 1')
    a.e('s_cmp_lt_u32 s66, %d', 16 - ND)
    a.e('s_cbranch_scc1 C_loop')
    AR = {(14, 0): 192, (14, 1): 160, (15, 0): 176, (15, 1): 208}
    if ND:
        a.e('s_waitcnt lgkmcnt(0)')
        step(mfmas(0, AR[14, 0], False), reads(1, 1, AR[14, 1], False))
        a.e('s_waitcnt lgkmcnt(0)')
        bar_stamped()
        a.e('s_add_u32 s66, s66, 1')
        AD = ['v_mov_b32 v%d, v%d' % (r + 4, r) for r in (VBB, VAB, VBB + 1, VAB + 1)]
        R = reads(0, 0, AR[15, 0], False)
        step(mfmas(1, AR[14, 1], False), [AD[0] + '\n' + AD[1]] + R[:2] + [AD[2] + '\n' + AD[3]] + R[2:])
        a.e('s_waitcnt lgkmcnt(0)')
        step(mfmas(0, AR[15, 0], False), reads(1, 1, AR[15, 1], False))
        a.e('s_waitcnt lgkmcnt(0)')
        bar_stamped()
        step(mfmas(1, AR[15, 1], False), [])
    a.vm = []
    stamp(a, 5)
    PK = [16, 24]; VBF = [32, 40]; T0, T1, E0, E1, MN = 48, 49, 50, 51, 56
    KVA = 240; ZA = [52, 60]
    if not ND:
        a.e('s_waitcnt lgkmcnt(0)')
    for cb in range(2):
        a.e('v_add_u32 v%d, %d, v%d', VB + cb, 2 * SLOT, VBB + cb)
    for p in range(2):
        phi16(a, KA_ + 16 * p, PK[p], T0, T1, E0, E1, MN)
        for j in range(8):
            a.e('v_cvt_pk_bf16_f32 v%d, v%d, v%d', VBF[p] + j, VA_ + 16 * p + 2 * j, VA_ + 16 * p + 2 * j + 1)
            if j in (1, 2):
                db = j - 1
                a.e('%s %s, %s, %s, %s', M16, vr(ZA[db], 4), vr(ONES, 4), vr(PK[p] + 4 * db, 4), '0' if p == 0 else vr(ZA[db], 4))
            if j in (5, 6):
                db = j - 5
                d = vr(KVA + db * 4, 4)
                a.e('%s %s, %s, %s, %s', M16, d, vr(PK[p] + 4 * db, 4), vr(VBF[p], 4), '0' if p == 0 else d)
        a.e('s_nop 1')
        for db in range(2):
            d = vr(KVA + 8 + db * 4, 4)
            a.e('%s %s, %s, %s, %s', M16, d, vr(PK[p] + 4 * db, 4), vr(VBF[p] + 4, 4), '0' if p == 0 else d)
    a.e('s_cmp_eq_u32 s6, 0')
    a.e('s_cbranch_scc0 C_ex1')
    a.e('ds_write_b32 v%d, v%d offset:%d', X + 3, ZA[1], L_ZX)
    a.e('s_nop 5')
    a.e('ds_write_b128 v%d, %s offset:%d', X, vr(KVA + 8, 4), L_EX)
    a.e('ds_write_b128 v%d, %s offset:%d', X, vr(KVA + 12, 4), L_EX + 1024)
    a.e('C_ex2:')
    with a.cold():
        a.e('C_ex1:')
        a.e('ds_write_b32 v%d, v%d offset:%d', X + 3, ZA[0], L_ZX)
        a.e('ds_write_b128 v%d, %s offset:%d', X, vr(KVA, 4), L_EX)
        a.e('ds_write_b128 v%d, %s offset:%d', X, vr(KVA + 4, 4), L_EX + 1024)
        a.e('s_nop 4')
        a.e('v_mov_b32 v%d, v%d', ZA[0], ZA[1])
        for r in range(8):
            a.e('v_mov_b32 v%d, v%d', KVA + r, KVA + 8 + r)
        a.e('s_branch C_ex2')
    a.e('ds_write_b32 v%d, v%d offset:%d', X + 5, X + 7, L_FLG)
    a.e('C_ps:')
    a.e('ds_read_b32 v25, v%d offset:%d', X + 6, L_FLG)
    a.e('ds_read_b128 v[16:19], v%d offset:%d', X + 1, L_EX)
    a.e('ds_read_b128 v[20:23], v%d offset:%d', X + 1, L_EX + 1024)
    a.e('ds_read_b32 v24, v%d offset:%d', X + 4, L_ZX)
    a.e('s_waitcnt lgkmcnt(0)')
    a.e('v_cmp_eq_u32 vcc, 0, v25')
    a.e('s_cbranch_vccnz C_ps')
    for r in range(8):
        a.e('v_add_f32 v%d, v%d, v%d', 16 + r, 16 + r, KVA + r)
    a.e('v_add_f32 v24, v24, v%d', ZA[0])
    for r in range(4):
        a.e('v_cvt_pk_bf16_f32 v%d, v%d, v%d', 28 + r, 16 + 2 * r, 17 + 2 * r)
    a.vm_issue('kvp', 'buffer_store_dwordx4 v[28:31], v3, %s, s43 offen' + WT, WSR)
    a.e('s_mov_b64 exec, 0xffff')
    a.vm_issue('kvp', 'buffer_store_dword v24, v%d, %s, s43 offen offset:%d' + WT, X + 8, WSR, KVZ)
    a.e('s_mov_b64 exec, 1')
    a.vm_issue('f1', 'buffer_atomic_or v%d, v%d, %s, 0 offen', X + 9, X + 10, WSR)
    a.e('s_mov_b64 exec, -1')
    stamp(a, 6)
    if ND:
        steps = [(14, 0), (14, 1), (15, 0), (15, 1)]
        for n, (sg, st) in enumerate(steps):
            for cb in range(2):
                for tt in range(2):
                    a.e('ds_read_b64_tr_b16 %s, v%d offset:%d', vr(96 + 8 * n + 4 * cb + 2 * tt, 2), (VB if sg == 14 else VBB) + cb, st * 4096 + tt * 512)
        for n, (sg, st) in enumerate(steps):
            a.e('s_waitcnt lgkmcnt(%d)', 12 - 4 * n)
            for cb in range(2):
                for b in range(4):
                    d = vr(qt(b, cb), 4)
                    a.e('%s %s, %s, %s, %s', M16, d, vr(96 + 8 * n + 4 * cb, 4), vr(AR[sg, st] + 4 * b, 4), d)
    stamp(a, 7)
    xo_loads(a)
    a.e('v_lshlrev_b32 v3, 4, v2')
    a.e('s_lshl_b32 s64, s7, 11')
    a.e('v_add_u32 v4, s64, v3')
    a.e('v_lshrrev_b32 v5, 4, v2')
    a.e('v_lshlrev_b32 v5, 4, v5')
    a.e('s_lshl_b32 s64, s7, 6')
    a.e('v_add_u32 v5, s64, v5')
    a.e('v_mov_b32 v6, %d', L_KEY + 32)
    a.e('ds_read_b32 v6, v6')
    PQ = 32
    for p in range(2):
        phi16(a, QA + 16 * p, PQ + 8 * p, T0, T1, E0, E1, MN)
    a.e('s_waitcnt lgkmcnt(0)')
    a.e('v_readfirstlane_b32 s75, v6')
    a.vm_wait('xo')
    t2_fill(a)
    a.e('s_cmp_lg_u32 s3, 0')
    a.e('s_cbranch_scc1 C_nh')
    h_compute(a)
    a.e('s_waitcnt lgkmcnt(0)')
    a.e('C_nh:')
    a.e('v_lshlrev_b32 v3, 4, v2')
    a.e('s_barrier')
    stamp(a, 8)
    KF, ZF = 16, 24
    NA, DA, OF = 64, 96, 128
    a.e('ds_read_b128 %s, v5 offset:%d', vr(ZF, 4), L_ZF)
    a.e('ds_read_b128 %s, v4 offset:%d', vr(KF, 4), L_KF)
    a.e('ds_read_b128 %s, v4 offset:%d', vr(KF + 4, 4), L_KF + 1024)
    a.e('s_waitcnt lgkmcnt(2)')
    for sb in range(4):
        a.e('%s %s, %s, %s, 0', M16, vr(DA + 4 * sb, 4), vr(ZF, 4), vr(PQ + 4 * sb, 4))
    a.e('s_waitcnt lgkmcnt(0)')
    for sb in range(4):
        for eb in range(2):
            a.e('%s %s, %s, %s, 0', M16, vr(NA + 8 * sb + 4 * eb, 4), vr(KF + 4 * eb, 4), vr(PQ + 4 * sb, 4))
    D = [48 + sb for sb in range(4)]
    for sb in range(4):
        a.e('v_cvt_pk_bf16_f32 v%d, v%d, v%d', D[sb], DA + 4 * sb, DA + 4 * sb)
    for d in D:
        a.e('v_lshlrev_b32 v%d, 16, v%d', d, d)
    for d in D:
        a.e('v_add_f32 v%d, s%d, v%d', d, S_EPS, d)
    for d in D:
        a.e('v_cvt_pk_bf16_f32 v%d, v%d, v%d', d, d, d)
    for d in D:
        a.e('v_lshlrev_b32 v%d, 16, v%d', d, d)
    for d in D:
        a.e('v_rcp_f32 v%d, v%d', d, d)
    a.e('s_nop 0')
    for sb in range(4):
        for j in range(4):
            r = NA + 8 * sb + 2 * j
            a.e('v_mul_f32 v%d, v%d, v%d', r, r, D[sb])
            a.e('v_mul_f32 v%d, v%d, v%d', r + 1, r + 1, D[sb])
            a.e('v_cvt_pk_bf16_f32 v%d, v%d, v%d', OF + 4 * sb + j, r, r + 1)
        a.vm_issue('o', 'buffer_store_dwordx4 %s, v3, %s, s42 offen offset:%d' + WT, vr(OF + 4 * sb, 4), WSR, (sb & 1) * 1024)
        if sb == 1:
            a.e('s_add_u32 s42, s42, 65536')
    if 'latep' not in EXP:
        f2_poll_first(a)
    a.vm_wait('o')
    a.e('s_mov_b64 exec, 3')
    a.vm_issue('f2', 'buffer_atomic_or v13, v12, %s, 0 offen', WSR)
    a.e('s_mov_b64 exec, -1')
    stamp(a, 9)


def gen_p2(a):
    a.e('P2_start:')
    a.vm = []
    a.e('s_and_b32 s6, s3, 3')
    a.e('s_lshr_b32 s7, s3, 2')
    srd(a, S_OUT, 58, 4194304)
    a.e('s_and_b32 s67, s75, 0x7ff')
    a.e('s_sub_u32 s67, 2047, s67')
    VO = 4
    a.e('s_lshl_b32 s64, s4, 2')
    a.e('s_add_u32 s64, s64, s6')
    a.e('s_lshl_b32 s64, s64, 16')
    a.e('s_lshl_b32 s65, s7, 15')
    a.e('s_add_u32 s64, s64, s65')
    a.e('v_lshlrev_b32 v%d, 4, v2', VO)
    a.e('v_add_u32 v%d, s64, v%d', VO, VO)
    M16 = 'v_mfma_f32_16x16x32_bf16'
    VWL = [5, 6, 1, 3]; VW = [8, 9, 10, 11]
    a.e('v_lshrrev_b32 v10, 4, v2')
    a.e('v_bfe_u32 v11, v2, 2, 2')
    a.e('v_lshl_add_u32 v12, v10, 2, v11')
    a.e('v_bfe_u32 v13, v12, 1, 2')
    a.e('v_lshlrev_b32 v12, 7, v12')
    a.e('v_lshl_add_u32 v12, v13, 5, v12')
    a.e('v_and_b32 v13, 3, v2')
    a.e('v_lshl_add_u32 v%d, v13, 3, v12', VWL[0])
    for nb in range(1, 4):
        a.e('v_xor_b32 v%d, %d, v%d', VWL[nb], 32 * nb, VWL[0])
    SB = 32
    VT, VF, VP = 7, 14, 15
    if 'latep' in EXP:
        f2_poll_first(a)

    def poll():
        return ['s_mov_b64 exec, 1', 'v_mov_b32 v%d, 0' % VP,
                'buffer_atomic_or v%d, v%d, %s, 0 offen sc0' % (VP, VF, WSR), 's_mov_b64 exec, -1']
    a.e('s_lshl_b32 s74, s74, 1') if 'norot2' not in EXP else a.e('s_mov_b32 s74, 0')
    a.e('s_cmp_eq_u32 s7, 0')
    for j in range(8):
        a.e('s_mov_b32 s64, %d', POS[8 + j])
        a.e('s_cselect_b32 s64, %d, s64', POS[j])
        a.e('s_sub_u32 m0, %d, s74', 2 * j + 16)
        a.e('s_and_b32 m0, m0, 15')
        a.e('v_writelane_b32 v%d, s64, m0', VT)
        a.e('s_cmp_eq_u32 s7, 0')
    ACO = [16, 32]
    WOF = [48, 64]
    OB = 80
    YL = 208
    for r in range(16, 48):
        a.e('v_mov_b32 v%d, 0', r)
    if 'p2prio' in EXP:
        a.e('s_cmp_lt_u32 s3, 4')
        a.e('s_cbranch_scc1 P2_np')
        a.e('s_setprio 1')
        a.e('P2_np:')
    if STAMPS == 2:
        a.e('s_mov_b32 s71, 0')
        for l in range(48, 64):
            a.e('v_writelane_b32 v250, 0, %d', l)
    a.e('s_mov_b32 s66, 0x5555')
    a.e('s_mov_b32 s65, 0')
    stamp(a, 10)

    def issue(c):
        L = ['s_ff1_i32_b32 s64, s68', 's_bitset0_b32 s68, s64', 'v_readlane_b32 s%d, v%d, s64' % (SB + c, VT),
             's_add_u32 s69, s64, s74', 's_and_b32 s69, s69, 15', 's_lshl_b32 s69, s69, 11']
        for q in range(4):
            L.append('buffer_load_dwordx4 %s, v%d, %s, s69 offen offset:%d sc1' % (vr(OB + 16 * c + 4 * q, 4), VO, WSR, q * 1024))
        return L

    def wo_reads(c, u):
        L = []
        for nb in range(4):
            if u == 0:
                L.append('v_add_u32 v%d, s%d, v%d' % (VW[nb], SB + c, VWL[nb]))
            for tt in range(2):
                L.append('ds_read_b64_tr_b16 %s, v%d offset:%d' % (vr(WOF[u] + 4 * nb + 2 * tt, 2), VW[nb], u * 4096 + tt * 2048))
        return L

    def Mm(c, u):
        L = []
        for nb in range(4):
            for sub in range(2):
                d = vr(16 + (sub * 4 + nb) * 4, 4)
                L.append('%s %s, %s, %s, %s' % (M16, d, vr(WOF[u] + 4 * nb, 4), vr(OB + 16 * c + 8 * u + 4 * sub, 4), d))
        return L

    if 'latep' not in EXP:
        a.e('s_cmp_lt_u32 s3, 4')
        a.e('s_cbranch_scc0 D_wait')
        a.e('s_waitcnt vmcnt(1)')
        a.e('s_branch D_got')
    a.e('D_wait:')
    a.e('s_waitcnt vmcnt(0)')
    a.e('D_got:')
    a.e('v_readfirstlane_b32 s68, v%d', VP)
    a.e('s_mul_i32 s68, s68, 0x10001')
    a.e('s_lshr_b32 s68, s68, s74')
    a.e('s_lshr_b32 s64, s68, 1')
    a.e('s_and_b32 s68, s68, s64')
    a.e('s_and_b32 s68, s68, s66')
    a.e('s_cbranch_scc1 D_go')
    a.e('s_add_u32 s65, s65, 1')
    a.e('s_cmp_ge_u32 s65, 40000')
    a.e('s_cbranch_scc1 D_end')
    if E('PSL', 1):
        a.e('s_sleep %d', E('PSL', 1))
    for p in poll():
        a.e(p)
    a.e('s_branch D_wait')
    a.e('D_go:')
    a.e('s_andn2_b32 s66, s66, s68')
    if STAMPS == 2:
        a.e('s_memrealtime s[86:87]')
        a.e('s_min_u32 s64, s71, 7')
        a.e('s_lshl_b32 s64, s64, 1')
        a.e('s_add_u32 m0, s64, 48')
        a.e('s_waitcnt lgkmcnt(0)')
        a.e('v_writelane_b32 v250, s86, m0')
        a.e('s_add_u32 m0, m0, 1')
        a.e('s_nop 0')
        a.e('v_writelane_b32 v250, s66, m0')
        a.e('s_add_u32 s71, s71, 1')
    a.e('s_lshr_b32 s64, s67, 7')
    a.e('s_xor_b32 s64, s64, s4')
    a.e('s_or_b32 s64, s64, s66')
    a.e('s_cbranch_scc0 P2_yl')
    with a.cold():
        a.e('P2_yl:')
        a.e('s_lshl_b32 s64, s5, 8')
        a.e('s_lshl_b32 s69, s3, 15')
        a.e('s_add_u32 s64, s64, s69')
        a.e('s_add_u32 s64, s64, %d', WS_YP)
        a.e('v_lshlrev_b32 v13, 2, v2')
        a.e('v_add_u32 v13, s64, v13')
        for q in range(8):
            a.e('s_mov_b32 s69, %d', q * 4096)
            a.e('buffer_load_dword v%d, v13, %s, s69 offen sc1' % (YL + q, WSR))
        a.e('s_branch P2_nyl')
    a.e('P2_nyl:')
    a.e('s_bcnt1_i32_b32 s70, s68')
    a.e('s_cmp_gt_u32 s70, 4')
    a.e('s_cbranch_scc1 D_t58')
    a.e('s_cmp_gt_u32 s70, 2')
    a.e('s_cbranch_scc1 D_t34')
    a.e('s_cmp_eq_u32 s70, 2')
    a.e('s_cbranch_scc1 D_e2')

    def entry(n, last=False):
        a.e('D_e%d:', n)
        L = issue(n - 1)
        if n >= 2:
            L += issue(n - 2)
        if n <= 2:
            L += poll()
        for x in L + wo_reads(n - 1, 0):
            a.e(x)
        if not last:
            a.e('s_branch D_p%d', n - 1)
    entry(1); entry(2)
    a.e('D_t34:')
    a.e('s_cmp_eq_u32 s70, 4')
    a.e('s_cbranch_scc1 D_e4')
    entry(3); entry(4)
    a.e('D_t58:')
    a.e('s_cmp_gt_u32 s70, 6')
    a.e('s_cbranch_scc1 D_t78')
    a.e('s_cmp_eq_u32 s70, 6')
    a.e('s_cbranch_scc1 D_e6')
    entry(5); entry(6)
    a.e('D_t78:')
    a.e('s_cmp_eq_u32 s70, 8')
    a.e('s_cbranch_scc1 D_e8')
    entry(7); entry(8, True)
    for c in range(7, -1, -1):
        a.e('D_p%d:', c)
        G = issue(c - 2) if c >= 2 else []
        Gs = [G[:7], G[7:8], G[8:9], G[9:10] + (poll() if c == 2 else [])] if G else [[], [], [], []]
        for u in range(2):
            if u == 0:
                a.e('s_waitcnt vmcnt(%d) lgkmcnt(0)', 4 if c >= 2 else (5 if c == 1 else 1))
            else:
                a.e('s_waitcnt lgkmcnt(0)')
            F = wo_reads(c, 1) if u == 0 else (wo_reads(c - 1, 0) if c >= 1 else [])
            M = Mm(c, u)
            per = -(-len(F) // 6) if F else 0
            for k in range(8):
                a.e(M[k])
                for f in F[k * per:(k + 1) * per]:
                    a.e(f)
                if k in (3, 6):
                    for x in Gs[2 * u + k // 6]:
                        a.e(x)
    a.e('s_cmp_lg_u32 s66, 0')
    a.e('s_cbranch_scc1 D_wait')
    a.e('D_end:')
    stamp(a, 11)
    a.e('v_and_b32 v8, 15, v2')
    a.e('s_lshl_b32 s64, s6, 5')
    a.e('v_add_u32 v8, s64, v8')
    a.e('v_mul_u32_u24 v8, %d, v8', TP)
    a.e('v_lshrrev_b32 v9, 4, v2')
    a.e('v_lshl_add_u32 v8, v9, 4, v8')
    a.e('s_mul_i32 s64, s7, %d', TK)
    a.e('s_add_u32 s64, s64, %d', RB)
    a.e('v_add_u32 v8, s64, v8')
    a.e('v_lshrrev_b32 v6, 3, v0')
    a.e('v_mul_u32_u24 v5, %d, v6', TP)
    a.e('v_and_b32 v6, 7, v0')
    a.e('v_lshl_add_u32 v5, v6, 5, v5')
    a.e('v_add_u32 v5, %d, v5', RB)
    a.e('v_lshlrev_b32 v9, 5, v6')
    a.e('s_barrier')
    stamp(a, 3, lvl=3)
    for sub in range(2):
        for nb in range(4):
            a.e('ds_write_b128 v8, %s offset:%d', vr(16 + (sub * 4 + nb) * 4, 4), sub * 16 * TP + nb * 64)
    a.e('s_lshr_b32 s64, s67, 7')
    a.e('s_cmp_lg_u32 s64, s4')
    a.e('s_cbranch_scc0 P2_y')
    with a.cold():
        a.e('P2_y:')
        a.e('s_mov_b32 s66, 0')
        a.e('P2_ychk:')
        a.e('s_waitcnt vmcnt(0)')
        a.e('v_max3_u32 v10, v%d, v%d, v%d', YL, YL + 1, YL + 2)
        a.e('v_max3_u32 v10, v%d, v%d, v10', YL + 3, YL + 4)
        a.e('v_max3_u32 v10, v%d, v%d, v10', YL + 5, YL + 6)
        a.e('v_max_u32 v10, v%d, v10', YL + 7)
        a.e('v_cmp_eq_u32 vcc, -1, v10')
        a.e('s_cbranch_vccz P2_yok')
        a.e('s_add_u32 s66, s66, 1')
        a.e('s_cmp_ge_u32 s66, 100000')
        a.e('s_cbranch_scc1 P2_yok')
        a.e('s_sleep 4')
        for q in range(8):
            a.e('s_mov_b32 s65, %d', q * 4096)
            a.e('buffer_load_dword v%d, v13, %s, s65 offen sc1' % (YL + q, WSR))
        a.e('s_branch P2_ychk')
        a.e('P2_yok:')
        for q in range(1, 8):
            a.e('v_add_f32 v%d, v%d, v%d', YL, YL, YL + q)
        a.e('v_lshlrev_b32 v7, 2, v2')
        a.e('s_lshl_b32 s64, s3, 8')
        a.e('v_add_u32 v7, s64, v7')
        a.e('v_add_u32 v7, %d, v7', L_YS)
        a.e('ds_write_b32 v7, v%d', YL)
        a.e('s_branch P2_ny')
    a.e('P2_ny:')
    a.e('s_waitcnt lgkmcnt(0)')
    stamp(a, 4, lvl=3)
    a.e('s_barrier')
    stamp(a, 6, lvl=3)
    AB = 64
    for half in range(2):
        for k in range(2):
            for q in range(2):
                a.e('ds_read_b128 %s, v5 offset:%d', vr(AB + 16 * half + 8 * k + 4 * q, 4), half * 64 * TP + k * TK + q * 16)
    a.e('v_add_u32 v9, %d, v9', L_YS)
    a.e('s_mov_b32 s68, 131072')
    for half in range(2):
        A = AB + 16 * half
        X = XO + 4 * half
        Gr = XO + 8 + half
        T = T2 + 8 * half
        om = OM[half]
        a.e('v_add_u32 v6, %d, v%d', 64 * half, VRO)
        a.e('v_cmp_eq_u32 vcc, s67, v6')
        lab = a.label('P2_nr')
        a.e('s_cbranch_vccnz %s_fix', lab)
        a.e('%s:', lab)
        with a.cold():
            a.e('%s_fix:', lab)
            a.e('s_and_saveexec_b64 s[70:71], vcc')
            Y = 128
            for w in range(8):
                a.e('ds_read_b128 %s, v9 offset:%d', vr(Y + 8 * w, 4), w * 256)
                a.e('ds_read_b128 %s, v9 offset:%d', vr(Y + 8 * w + 4, 4), w * 256 + 16)
            a.e('s_and_b32 s64, s75, 0xffff0000')
            a.e('s_xor_b32 s65, s64, 0x80000000')
            a.e('s_not_b32 s66, s64')
            a.e('s_and_b32 s66, s66, 0xffff0000')
            a.e('s_cmp_ge_u32 s64, 0x80000000')
            a.e('s_cselect_b32 s64, s65, s66')
            a.e('v_mov_b32 v100, s64')
            sigmoid_bf16(a, [100])
            a.e('s_waitcnt lgkmcnt(0)')
            for w in range(1, 8):
                for q in range(8):
                    a.e('v_add_f32 v%d, v%d, v%d', Y + q, Y + q, Y + 8 * w + q)
            for q in range(4):
                y0, y1 = Y + 2 * q, Y + 2 * q + 1
                x0, x1 = T + 2 * q, T + 2 * q + 1
                a.e('v_cvt_pk_bf16_f32 v116, v%d, v%d', y0, y1)
                a.e('v_lshlrev_b32 v%d, 16, v116', y0)
                a.e('v_and_b32 v%d, 0xffff0000, v116', y1)
                a.e('v_mul_f32 v%d, v%d, v100', y0, y0)
                a.e('v_mul_f32 v%d, v%d, v100', y1, y1)
                a.e('v_cvt_pk_bf16_f32 v116, v%d, v%d', y0, y1)
                a.e('v_lshlrev_b32 v%d, 16, v116', y0)
                a.e('v_and_b32 v%d, 0xffff0000, v116', y1)
                a.e('v_lshlrev_b32 v%d, 16, v%d', x0, X + q)
                a.e('v_and_b32 v%d, 0xffff0000, v%d', x1, X + q)
                a.e('v_add_f32 v%d, v%d, v%d', x0, x0, y0)
                a.e('v_add_f32 v%d, v%d, v%d', x1, x1, y1)
                a.e('v_cvt_pk_bf16_f32 v116, v%d, v%d', x0, x1)
                a.e('v_lshlrev_b32 v%d, 16, v116', x0)
                a.e('v_and_b32 v%d, 0xffff0000, v116', x1)
                a.e('v_mul_f32 v%d, v%d, v%d', x0, x0, om)
                a.e('v_mul_f32 v%d, v%d, v%d', x1, x1, om)
                a.e('v_cvt_pk_bf16_f32 v116, v%d, v%d', x0, x1)
                a.e('v_lshlrev_b32 v%d, 16, v116', x0)
                a.e('v_and_b32 v%d, 0xffff0000, v116', x1)
            a.e('s_mov_b64 exec, s[70:71]')
            a.e('s_branch %s', lab)
        a.e('s_waitcnt lgkmcnt(%d)', 4 if half == 0 else 0)
        O = 120 + 4 * half
        for q in range(4):
            a0, a1 = A + 2 * q, A + 2 * q + 1
            a.e('v_add_f32 v%d, v%d, v%d', a0, a0, a0 + 8)
            a.e('v_add_f32 v%d, v%d, v%d', a1, a1, a1 + 8)
            a.e('v_cvt_pk_bf16_f32 v116, v%d, v%d', a0, a1)
            a.e('v_lshlrev_b32 v%d, 16, v116', a0)
            a.e('v_and_b32 v%d, 0xffff0000, v116', a1)
            a.e('v_mul_f32 v%d, v%d, v%d', a0, a0, Gr)
            a.e('v_mul_f32 v%d, v%d, v%d', a1, a1, Gr)
            a.e('v_cvt_pk_bf16_f32 v116, v%d, v%d', a0, a1)
            a.e('v_lshlrev_b32 v%d, 16, v116', a0)
            a.e('v_and_b32 v%d, 0xffff0000, v116', a1)
            a.e('v_add_f32 v%d, v%d, v%d', a0, a0, T + 2 * q)
            a.e('v_add_f32 v%d, v%d, v%d', a1, a1, T + 2 * q + 1)
            a.e('v_cvt_pk_bf16_f32 v%d, v%d, v%d', O + q, a0, a1)
        a.e('buffer_store_dwordx4 %s, v%d, %s, %s offen ' + os.environ.get('OUTF', 'nt'), vr(O, 4), VXO, sr(S_OUT, 4), '0' if half == 0 else 's68')
    stamp(a, 7, lvl=3)
    if STAMPS:
        a.e('s_waitcnt vmcnt(0)')
    stamp(a, 12, True); stamp(a, 2, False)
    stamp_flush(a)
    a.e('K_end:')
    a.e('s_endpgm')
    a.flush_cold()


def main():
    hdr = open(os.path.join(os.path.dirname(os.path.abspath(__file__)), '..', NAME + '.s.ref')).read().split('; Override launch')[0]
    a = Asm()
    a.e('.amdgcn_target "amdgcn-amd-amdhsa--gfx950"')
    a.e('.text')
    gen(a)
    a.e('CODE_END:')
    out = hdr + '; @launch grid=(256,1,1) block=(512,1,1) lds=%d\n' % LDS_BYTES + a.text() + '.section .rodata,"a"\n' + kd(NAME + '_kernel', 256)
    path = sys.argv[1] if len(sys.argv) > 1 else os.path.join(os.path.dirname(os.path.abspath(__file__)), '..', NAME + '.s')
    open(path, 'w').write(out)


if __name__ == '__main__':
    main()
```

```python
import sys, os
sys.path.insert(0, os.path.dirname(os.path.abspath(__file__)))
from asmlib import *

NAME = 'gated_mix__linear_attn_block__moe_arch_mod__prompt'
E = lambda k, d: int(os.environ.get(k, str(d)))
EXP = os.environ.get('EXP', '').split(',')

WS_O = 0
WS_KVP = 4 << 20
KVB = 1152
KVZ = 1024
WS_F1 = WS_KVP + 16 * 4 * 16 * KVB
WS_F2 = WS_F1 + 64 * 128
WS_HP = WS_F2 + 128 * 128
WS_YP = WS_HP + 64 * 2 * 32 * 256
WS_G = WS_YP + 64 * 4096
WS_KEY = WS_G + 8192
WS_END = WS_KEY + 4096
WS_BYTES = 268435456
WS_ST = 16 << 20

STAMPS = E('STAMPS', 0)
WT = ' sc1' if 'wt1' in EXP else ' sc0 sc1'
NTA = ' nt' if 'ntA' in EXP else ''
NTB = ' nt' if 'ntB' in EXP else ''
NTO = ' nt' if 'ntO' in EXP else ''
NTW = '' if 'nontW' in EXP else ' nt'
LOG2E = 0x3fb8aa3b
EPS6 = 0x358637bd

SLOT = 40960
MISC = 0
RB = 8192
SP = RB + 3 * SLOT
L_KF = MISC
L_ZF = MISC + 4096
L_KEY = MISC + 4224
L_FLG = MISC + 4288
L_H = MISC + 4352
L_ZX = MISC + 4608
L_YS = MISC + 5632
L_EX = RB + 24576
LDS_BYTES = 163840
EARLY = [SP, SP + 8192, RB + SLOT + 24576, RB + 2 * SLOT + 24576, SP + 16384, SP + 24576, RB + SLOT + 32768, RB + 2 * SLOT + 32768]
LATE = [RB + x for x in (32768, 0, 8192, 2 * SLOT + 8192, SLOT, SLOT + 8192, SLOT + 16384, 2 * SLOT)]
POS = EARLY[0:4] + LATE[0:4] + EARLY[4:8] + LATE[4:8]
TP = 272
TK = 128 * TP

S_X, S_W, S_WS, S_DBG, S_WR, S_GW, S_WG, S_WU = 8, 12, 16, 20, 24, 28, 32, 36
S_WO, S_OUT, S_WD = 12, 20, 24
WSR = sr(S_WS, 4)
S_LOG2E, S_EPS = 72, 73


def stamp(a, idx, real=True, lvl=0):
    if STAMPS in (3, 4) and idx in (3, 4, 6, 7, 9, 10) and lvl != STAMPS:
        return
    if lvl and STAMPS != lvl:
        return
    if STAMPS:
        a.e('%s s[%d:%d]', 's_memrealtime' if real else 's_memtime', 76 + 2 * idx, 77 + 2 * idx)


def stamp_flush(a):
    if not STAMPS:
        return
    a.e('s_waitcnt lgkmcnt(0)')
    a.e('s_lshl_b32 s64, s2, 3')
    a.e('s_add_u32 s64, s64, s3')
    a.e('s_lshl_b32 s64, s64, 7')
    a.e('s_add_u32 s64, s64, %d', WS_ST)
    a.e('v_mov_b32 v1, s64')
    a.e('s_mov_b64 exec, 1')
    for i in range(13):
        a.e('v_mov_b32 v2, s%d', 76 + 2 * i)
        a.e('v_mov_b32 v3, s%d', 77 + 2 * i)
        a.e('buffer_store_dwordx2 v[2:3], v1, %s, 0 offen offset:%d', WSR, 8 * i)
        a.e('s_nop 1')
    a.e('s_mov_b64 exec, -1')
    if STAMPS == 2:
        a.e('s_lshl_b32 s64, s2, 3')
        a.e('s_add_u32 s64, s64, s3')
        a.e('s_lshl_b32 s64, s64, 8')
        a.e('s_add_u32 s64, s64, %d', WS_ST + (1 << 20))
        a.e('v_and_b32 v1, 63, v0')
        a.e('v_lshlrev_b32 v1, 2, v1')
        a.e('v_add_u32 v1, s64, v1')
        a.e('buffer_store_dword v250, v1, %s, 0 offen', WSR)


def phi16_fast(a, acc, out, e0, mn, sp):
    for j in range(8):
        a0, a1, p = acc + 2 * j, acc + 2 * j + 1, out + j
        e = e0 + 2 * (j & 1)
        a.e('v_pk_mul_f32 v[%d:%d], v[%d:%d], s[%d:%d]', e, e + 1, a0, a1, sp, sp + 1)
        a.e('v_pk_add_f32 v[%d:%d], v[%d:%d], s[%d:%d]', a0, a1, a0, a1, sp + 2, sp + 3)
        a.e('v_exp_f32 v%d, v%d clamp', e, e)
        a.e('v_exp_f32 v%d, v%d clamp', e + 1, e + 1)
        if j:
            phi_tail(a, acc, out, e0, mn, j - 1)
    phi_tail(a, acc, out, e0, mn, 7)
    phi_fix(a, out, e0, e0 + 1, mn)


def phi_tail(a, acc, out, e0, mn, j):
    a0, a1, p = acc + 2 * j, acc + 2 * j + 1, out + j
    e = e0 + 2 * (j & 1)
    a.e('v_max_f32 v%d, v%d, v%d', a0, a0, e)
    a.e('v_max_f32 v%d, v%d, v%d', a1, a1, e + 1)
    if j == 0:
        a.e('v_min_f32 v%d, v%d, v%d', mn, a0, a1)
    else:
        a.e('v_min3_f32 v%d, v%d, v%d, v%d', mn, a0, a1, mn)
    a.e('v_cvt_pk_bf16_f32 v%d, v%d, v%d', p, a0, a1)


def phi16(a, acc, out, t0, t1, e0, e1, mn):
    for j in range(8):
        a0, a1, p = acc + 2 * j, acc + 2 * j + 1, out + j
        a.e('v_cvt_pk_bf16_f32 v%d, v%d, v%d', p, a0, a1)
        a.e('v_lshlrev_b32 v%d, 16, v%d', t0, p)
        a.e('v_and_b32 v%d, 0xffff0000, v%d', t1, p)
        a.e('v_mul_f32 v%d, s%d, v%d', e0, S_LOG2E, t0)
        a.e('v_mul_f32 v%d, s%d, v%d', e1, S_LOG2E, t1)
        a.e('v_exp_f32 v%d, v%d clamp', e0, e0)
        a.e('v_exp_f32 v%d, v%d clamp', e1, e1)
        a.e('v_max_f32 v%d, 0, v%d', t0, t0)
        a.e('v_max_f32 v%d, 0, v%d', t1, t1)
        a.e('v_add_f32 v%d, v%d, v%d', t0, t0, e0)
        a.e('v_add_f32 v%d, v%d, v%d', t1, t1, e1)
        if j == 0:
            a.e('v_min_f32 v%d, v%d, v%d', mn, t0, t1)
        else:
            a.e('v_min3_f32 v%d, v%d, v%d, v%d', mn, t0, t1, mn)
        a.e('v_cvt_pk_bf16_f32 v%d, v%d, v%d', p, t0, t1)
    phi_fix(a, out, t0, t1, mn)


def phi_fix(a, out, t0, t1, mn):
    lab = a.label('phi')
    a.e('v_cmp_gt_f32 vcc, 0x3a800000, v%d', mn)
    a.e('s_cbranch_vccnz %s_fix', lab)
    a.e('%s_done:', lab)
    with a.cold():
        a.e('%s_fix:', lab)
        for j in range(8):
            p = out + j
            a.e('v_lshlrev_b32 v%d, 16, v%d', t0, p)
            a.e('v_and_b32 v%d, 0xffff0000, v%d', t1, p)
            a.e('v_add_f32 v%d, s%d, v%d', t0, S_EPS, t0)
            a.e('v_add_f32 v%d, s%d, v%d', t1, S_EPS, t1)
            a.e('v_cvt_pk_bf16_f32 v%d, v%d, v%d', p, t0, t1)
        a.e('s_branch %s_done', lab)


def wave_reduce(a, regs, op, stmp):
    pats = ['quad_perm:[1,0,3,2]', 'quad_perm:[2,3,0,1]', 'row_half_mirror', 'row_mirror']
    a.e('s_nop 1')
    for p in pats:
        if len(regs) < 3:
            a.e('s_nop 1')
        for r in regs:
            a.e('%s_dpp v%d, v%d, v%d %s row_mask:0xf bank_mask:0xf', op, r, r, r, p)
    a.e('s_nop 1')
    for r in regs:
        for q in range(4):
            a.e('v_readlane_b32 s%d, v%d, %d', stmp + q, r, 16 * q)
        a.e('s_nop 1')
        a.e('v_mov_b32 v%d, s%d', r, stmp)
        for q in range(1, 4):
            a.e('%s v%d, s%d, v%d', op, r, stmp + q, r)


def sigmoid_bf16(a, regs):
    for r in regs:
        a.e('v_mul_f32 v%d, s%d, v%d', r, S_LOG2E, r)
    for r in regs:
        a.e('v_exp_f32 v%d, -v%d', r, r)
    a.e('s_nop 0')
    for r in regs:
        a.e('v_add_f32 v%d, 1.0, v%d', r, r)
    for r in regs:
        a.e('v_rcp_f32 v%d, v%d', r, r)
    a.e('s_nop 0')
    for r in regs:
        a.e('v_cvt_pk_bf16_f32 v%d, v%d, v%d', r, r, r)
    for r in regs:
        a.e('v_lshlrev_b32 v%d, 16, v%d', r, r)


def p2_ids(a):
    a.e('s_and_b32 s64, s2, 7')
    a.e('s_lshr_b32 s65, s2, 3')
    a.e('s_and_b32 s4, s64, 3')
    a.e('s_lshl_b32 s4, s4, 2')
    a.e('s_and_b32 s66, s65, 3')
    a.e('s_add_u32 s4, s4, s66')
    a.e('s_lshr_b32 s5, s64, 2')
    a.e('s_lshl_b32 s5, s5, 3')
    a.e('s_lshr_b32 s74, s65, 2')
    a.e('s_add_u32 s5, s5, s74')


def wo_voff(a, vdst, t0, t1, s_piece):
    a.e('v_lshrrev_b32 v%d, 3, v2', t0)
    a.e('s_lshl_b32 s64, s%d, 3', s_piece)
    a.e('v_add_u32 v%d, s64, v%d', t0, t0)
    a.e('v_lshlrev_b32 v%d, 11, v%d', t0, t0)
    a.e('v_lshrrev_b32 v%d, 4, v2', t1)
    a.e('v_lshlrev_b32 v%d, 1, v%d', t1, t1)
    a.e('v_and_b32 v%d, 7, v2', vdst)
    a.e('v_xor_b32 v%d, v%d, v%d', t1, t1, vdst)
    a.e('v_lshl_add_u32 v%d, v%d, 4, v%d', t0, t1, t0)
    a.e('s_lshl_b32 s64, s5, 7')
    a.e('v_add_u32 v%d, s64, v%d', vdst, t0)


def wo_dma(a, pos, voff, s_w1k, tag):
    a.e('s_mov_b32 s65, %d', pos << 17)
    for b in range(2):
        a.e('s_add_u32 m0, s%d, %d', s_w1k, POS[pos] + b * 4096)
        if b:
            a.e('s_add_u32 s65, s65, 65536')
        else:
            a.e('s_nop 0')
        a.vm_issue(tag, 'buffer_load_dwordx4 v%d, %s, s65 offen' + NTO + ' lds', voff, sr(S_WO, 4))


XO = 220
T2 = 232
VRO, VXO = 230, 231


def xo_loads(a):
    if 'noxo' in EXP:
        a.e('v_mov_b32 v%d, 0', VRO)
        a.e('v_mov_b32 v%d, 0', VXO)
        return
    a.e('v_lshrrev_b32 v%d, 3, v0', VRO)
    a.e('s_lshl_b32 s64, s4, 7')
    a.e('v_add_u32 v%d, s64, v%d', VRO, VRO)
    a.e('v_lshlrev_b32 v%d, 11, v%d', VXO, VRO)
    a.e('v_and_b32 v3, 7, v0')
    a.e('v_lshl_add_u32 v%d, v3, 4, v%d', VXO, VXO)
    a.e('s_lshl_b32 s64, s5, 7')
    a.e('v_add_u32 v%d, s64, v%d', VXO, VXO)
    a.e('s_mov_b32 s64, 131072')
    a.e('v_lshlrev_b32 v3, 2, v%d', VRO)
    a.e('v_add_u32 v3, %d, v3', WS_G)
    a.vm_issue('xo', 'buffer_load_dwordx4 %s, v%d, %s, 0 offen', vr(XO, 4), VXO, sr(S_X, 4))
    a.vm_issue('xo', 'buffer_load_dwordx4 %s, v%d, %s, s64 offen', vr(XO + 4, 4), VXO, sr(S_X, 4))
    a.vm_issue('xo', 'buffer_load_dword v%d, v3, %s, 0 offen sc1', XO + 8, WSR)
    a.vm_issue('xo', 'buffer_load_dword v%d, v3, %s, 0 offen offset:256 sc1', XO + 9, WSR)


OM = [248, 249]


def t2_fill(a):
    for half in range(2):
        X, Gr, T, om = XO + 4 * half, XO + 8 + half, T2 + 8 * half, OM[half]
        a.e('v_sub_f32 v%d, 1.0, v%d', om, Gr)
        a.e('v_cvt_pk_bf16_f32 v%d, v%d, v%d', om, om, om)
        a.e('v_lshlrev_b32 v%d, 16, v%d', om, om)
        for q in range(4):
            x0, x1 = T + 2 * q, T + 2 * q + 1
            a.e('v_lshlrev_b32 v%d, 16, v%d', x0, X + q)
            a.e('v_and_b32 v%d, 0xffff0000, v%d', x1, X + q)
            a.e('v_mul_f32 v%d, v%d, v%d', x0, x0, om)
            a.e('v_mul_f32 v%d, v%d, v%d', x1, x1, om)
            a.e('v_cvt_pk_bf16_f32 v3, v%d, v%d', x0, x1)
            a.e('v_lshlrev_b32 v%d, 16, v3', x0)
            a.e('v_and_b32 v%d, 0xffff0000, v3', x1)


MASK14 = 's_mov_b32 exec_lo, 0x3fff3fff\ns_mov_b32 exec_hi, 0x3fff3fff'


def h_compute(a):
    HB = 64
    a.e('s_lshr_b32 s64, s2, 2')
    a.e('s_lshl_b32 s64, s64, 14')
    a.e('s_add_u32 s64, s64, %d', WS_HP)
    a.e('v_lshl_add_u32 v16, v2, 4, s64')
    a.e('v_lshrrev_b32 v8, 4, v2')
    a.e('s_mov_b32 s65, 0')
    a.e('H_hl:')
    for q in range(16):
        a.e('s_mov_b32 s64, %d', (q >> 2) * 4096)
        a.e('buffer_load_dwordx4 %s, v16, %s, s64 offen offset:%d sc1', vr(HB + 4 * q, 4), WSR, (q & 3) * 1024)
    a.e('s_waitcnt vmcnt(0)')
    a.e('v_max3_u32 v17, v%d, v%d, v%d', HB, HB + 1, HB + 2)
    for r in range(3, 63, 2):
        a.e('v_max3_u32 v17, v%d, v%d, v17', HB + r, HB + r + 1)
    a.e('v_max_u32 v17, v%d, v17', HB + 63)
    a.e(MASK14)
    a.e('v_cmp_eq_u32 vcc, -1, v17')
    a.e('s_mov_b64 exec, -1')
    a.e('s_cbranch_vccz H_hok')
    a.e('s_add_u32 s65, s65, 1')
    a.e('s_cmp_ge_u32 s65, 100000')
    a.e('s_cbranch_scc1 H_hok')
    a.e('s_sleep 8')
    a.e('s_branch H_hl')
    a.e('H_hok:')
    for m in range(2):
        for i in range(1, 8):
            for q in range(4):
                a.e('v_add_f32 v%d, v%d, v%d', HB + 32 * m + q, HB + 32 * m + q, HB + 32 * m + 4 * i + q)
    a.e('s_nop 1')
    for q in range(4):
        a.e('v_permlane16_swap_b32 v%d, v%d', HB + q, HB + 32 + q)
    for q in range(4):
        a.e('v_add_f32 v%d, v%d, v%d', HB + q, HB + q, HB + 32 + q)
    a.e('s_nop 1')
    for q in range(2):
        a.e('v_permlane32_swap_b32 v%d, v%d', HB + q, HB + 2 + q)
    for q in range(2):
        a.e('v_add_f32 v%d, v%d, v%d', HB + q, HB + q, HB + 2 + q)
    a.e('s_nop 1')
    a.e('v_permlane16_swap_b32 v%d, v%d', HB, HB + 1)
    G_, U_, T_ = HB, HB + 1, HB + 2
    a.e('v_cvt_pk_bf16_f32 v%d, v%d, v%d', T_, G_, U_)
    a.e('v_lshlrev_b32 v%d, 16, v%d', G_, T_)
    a.e('v_and_b32 v%d, 0xffff0000, v%d', U_, T_)
    a.e('v_mul_f32 v%d, s%d, v%d', T_, S_LOG2E, G_)
    a.e('v_exp_f32 v%d, -v%d', T_, T_)
    a.e('v_and_b32 v16, 15, v2')
    a.e('v_add_f32 v%d, 1.0, v%d', T_, T_)
    a.e('v_rcp_f32 v%d, v%d', T_, T_)
    a.e('v_lshl_add_u32 v16, v16, 2, v8')
    a.e('v_mul_f32 v%d, v%d, v%d', T_, T_, G_)
    a.e('v_cvt_pk_bf16_f32 v%d, v%d, v%d', T_, T_, T_)
    a.e('v_lshlrev_b32 v%d, 16, v%d', T_, T_)
    a.e('v_mul_f32 v%d, v%d, v%d', T_, T_, U_)
    a.e('v_cvt_pk_bf16_f32 v%d, v%d, v%d', T_, T_, T_)
    a.e('v_lshlrev_b32 v%d, 16, v%d', T_, T_)
    a.e('v_lshlrev_b32 v16, 2, v16')
    a.e('ds_write_b32 v16, v%d offset:%d', T_, L_H)


def f2_poll_first(a):
    a.e('s_lshl_b32 s64, s4, 3')
    a.e('s_add_u32 s64, s64, s3')
    a.e('s_lshl_b32 s64, s64, 7')
    a.e('s_add_u32 s64, s64, %d', WS_F2)
    a.e('v_mov_b32 v14, s64')
    a.e('s_mov_b64 exec, 1')
    a.e('v_mov_b32 v15, 0')
    a.vm_issue('p', 'buffer_atomic_or v15, v14, %s, 0 offen sc0', WSR)
    a.e('s_mov_b64 exec, -1')


def gen(a):
    kn = NAME + '_kernel'
    a.e('.globl %s\n.p2align 8\n.type %s,@function\n%s:' % (kn, kn, kn))
    a.e('s_load_dwordx16 s[40:55], s[0:1], 0')
    a.e('s_load_dwordx8 s[56:63], s[0:1], 64')
    a.e('s_cmp_ge_u32 s2, 256')
    a.e('s_cbranch_scc1 K_end')
    stamp(a, 0, True); stamp(a, 1, False)
    a.e('v_lshrrev_b32 v1, 6, v0')
    a.e('v_and_b32 v2, 63, v0')
    a.e('s_and_b32 s6, s2, 7')
    a.e('v_readfirstlane_b32 s3, v1')
    a.e('s_lshr_b32 s7, s2, 3')
    a.e('s_and_b32 s4, s6, 1')
    a.e('s_lshl_b32 s4, s4, 3')
    a.e('s_and_b32 s64, s7, 7')
    a.e('s_add_u32 s4, s4, s64')
    a.e('s_lshr_b32 s5, s6, 1')
    a.e('s_lshl_b32 s5, s5, 2')
    a.e('s_lshr_b32 s64, s7, 3')
    a.e('s_add_u32 s5, s5, s64')
    ROT = os.environ.get('ROT', 'rt')
    if ROT == 'rt':
        a.e('s_lshl_b32 s74, s4, 1')
    elif ROT == 'xcd':
        a.e('s_lshl_b32 s74, s6, 1')
    elif ROT == 'xcd1':
        a.e('s_mov_b32 s74, s6')
    elif ROT == 'r4':
        a.e('s_and_b32 s74, s4, 3')
        a.e('s_lshl_b32 s74, s74, 2')
    elif ROT == 'r2':
        a.e('s_and_b32 s74, s4, 1')
        a.e('s_lshl_b32 s74, s74, 3')
    elif ROT == 'r4b':
        a.e('s_bfe_u32 s74, s4, 0x20001')
        a.e('s_lshl_b32 s74, s74, 2')
    elif ROT == 'r5':
        a.e('s_mul_i32 s74, s4, 3')
    elif ROT == 'rt1':
        a.e('s_mov_b32 s74, s4')
    else:
        a.e('s_mov_b32 s74, 0')
    a.e('v_lshrrev_b32 v6, 3, v2')
    a.e('s_lshl_b32 s65, s3, 3')
    a.e('v_add_u32 v6, s65, v6')
    a.e('s_lshl_b32 s64, s4, 7')
    a.e('v_add_u32 v7, s64, v6')
    a.e('v_lshlrev_b32 v7, 11, v7')
    a.e('v_lshrrev_b32 v8, 4, v2')
    a.e('s_and_b32 s64, s3, 1')
    a.e('s_lshl_b32 s64, s64, 2')
    a.e('v_add_u32 v9, s64, v8')
    a.e('v_and_b32 v10, 7, v2')
    a.e('v_xor_b32 v9, v9, v10')
    a.e('v_lshl_add_u32 v7, v9, 4, v7')
    a.e('v_mul_u32_u24 v6, 6144, v6')
    a.e('v_and_b32 v9, 1, v8')
    a.e('s_lshr_b32 s64, s64, 1')
    a.e('v_lshl_add_u32 v9, v9, 2, s64')
    a.e('v_xor_b32 v9, v9, v10')
    a.e('v_lshl_add_u32 v6, v9, 4, v6')
    a.e('s_lshl_b32 s64, s5, 7')
    a.e('v_add_u32 v6, s64, v6')
    a.e('s_lshl_b32 s66, s3, 10')
    a.e('s_mov_b32 s10, 4194304')
    a.e('s_mov_b32 s11, 0x00020000')
    a.e('s_mov_b32 s14, 6291456')
    a.e('s_mov_b32 s15, 0x00020000')

    def dma8(stage):
        a.e('s_add_u32 s65, s74, %d', stage)
        a.e('s_and_b32 s65, s65, 15')
        a.e('s_lshl_b32 s67, s65, 7')
        a.e('s_mul_i32 s65, s65, 393216')
        if stage == 0:
            a.e('s_waitcnt lgkmcnt(0)')
            a.e('s_mov_b32 s8, s40'); a.e('s_mov_b32 s9, s41')
            a.e('s_mov_b32 s12, s42'); a.e('s_mov_b32 s13, s43')
        for aa in range(2):
            a.e('s_add_u32 m0, s66, %d', RB + stage * SLOT + aa * 8192)
            a.e('s_add_u32 s64, s67, %d', aa * 131072)
            a.vm_issue('d%d' % stage, 'buffer_load_dwordx4 v7, %s, s64 offen' + NTA + ' lds', sr(S_X, 4))
        for ty in range(3):
            a.e('s_add_u32 m0, s66, %d', RB + stage * SLOT + 16384 + ty * 8192)
            a.e('s_add_u32 s64, s65, %d', ty * 2048)
            a.vm_issue('d%d' % stage, 'buffer_load_dwordx4 v6, %s, s64 offen' + NTB + ' lds', sr(S_W, 4))
    dma8(0)
    a.e('s_barrier')
    a.e('s_mov_b32 s%d, 0x%x', S_LOG2E, LOG2E)
    a.e('s_mov_b32 s%d, 0x%x', S_EPS, EPS6)
    srd(a, S_WS, 62, WS_BYTES)
    a.e('s_cmp_lt_u32 s3, 4')
    a.e('s_cbranch_scc1 C_start')
    vm_entry = list(a.vm)
    gen_h1(a)
    a.vm = list(vm_entry)
    gen_c1(a)
    gen_p2(a)


def gen_h1(a):
    VOA, VOB = 4, 5
    a.e('s_sub_u32 s6, s3, 4')
    a.e('s_lshl_b32 s7, s6, 10')
    a.e('v_lshrrev_b32 v6, 3, v2')
    a.e('s_lshl_b32 s64, s4, 7')
    a.e('s_lshl_b32 s65, s6, 3')
    a.e('s_add_u32 s64, s64, s65')
    a.e('v_add_u32 v7, s64, v6')
    a.e('v_lshlrev_b32 v7, 11, v7')
    a.e('s_and_b32 s64, s6, 1')
    a.e('s_lshl_b32 s64, s64, 2')
    a.e('v_add_u32 v9, s64, v8')
    a.e('v_xor_b32 v9, v9, v10')
    a.e('v_lshl_add_u32 v%d, v9, 4, v7', VOA)
    a.e('v_add_u32 v7, s65, v6')
    a.e('v_mul_u32_u24 v7, 6144, v7')
    a.e('v_and_b32 v9, 1, v8')
    a.e('s_lshr_b32 s64, s64, 1')
    a.e('v_lshl_add_u32 v9, v9, 2, s64')
    a.e('v_xor_b32 v9, v9, v10')
    a.e('v_lshl_add_u32 v7, v9, 4, v7')
    a.e('s_lshl_b32 s64, s5, 7')
    a.e('v_add_u32 v%d, s64, v7', VOB)

    def spread(fill, n):
        fill = list(fill or [])
        per = -(-len(fill) // n)

        def put():
            for _ in range(per):
                if fill:
                    for ln in fill.pop(0):
                        a.e(ln)
        return put

    def dma(stage, fill=None):
        slot = stage % 3
        put = spread(fill, 10)
        a.e('s_add_u32 s41, s74, %d', stage)
        a.e('s_and_b32 s41, s41, 15')
        a.e('s_lshl_b32 s42, s41, 7')
        a.e('s_mul_i32 s41, s41, 393216')
        for aa in range(4):
            a.e('s_add_u32 m0, s7, %d', RB + slot * SLOT + aa * 4096)
            a.e('s_add_u32 s40, s42, %d', aa * 65536)
            a.vm_issue('d%d' % stage, 'buffer_load_dwordx4 v%d, %s, s40 offen' + NTA + ' lds', VOA, sr(S_X, 4))
            put()
        for ty in range(3):
            for b in range(2):
                a.e('s_add_u32 m0, s7, %d', RB + slot * SLOT + 16384 + ty * 8192 + b * 4096)
                a.e('s_add_u32 s40, s41, %d', b * 196608 + ty * 2048)
                a.vm_issue('d%d' % stage, 'buffer_load_dwordx4 v%d, %s, s40 offen' + NTB + ' lds', VOB, sr(S_W, 4))
                put()

    def wo_units(ps, fill=None):
        put = spread(fill, 2 * len(ps))
        for p in ps:
            for b in range(2):
                a.e('s_add_u32 m0, s7, %d', POS[p] + b * 4096)
                a.e('s_mov_b32 s40, %d', (p << 17) + b * 65536)
                a.vm_issue('wo', 'buffer_load_dwordx4 v%d, %s, s40 offen' + NTO + ' lds', VOW, sr(S_WO, 4))
                put()

    def cap(fn, n=4):
        saved = a.lines
        a.lines = []
        fn()
        L = [ln.strip() for ln in a.lines]
        a.lines = saved
        return [L[k:k + n] for k in range(0, len(L), n)]
    VOW = 10
    V16 = 6
    a.e('v_lshlrev_b32 v%d, 4, v2', V16)
    a.e('s_and_b32 s64, s2, 1')
    a.e('s_lshl_b32 s68, s64, 10')
    a.e('s_bfe_u32 s64, s2, 0x20001')
    a.e('s_lshl_b32 s64, s64, 8')
    a.e('s_add_u32 s68, s68, s64')
    a.e('s_and_b32 s64, s2, 0xf8')
    a.e('s_add_u32 s68, s68, s64')
    a.e('s_lshl_b32 s64, s6, 1')
    a.e('s_add_u32 s68, s68, s64')
    a.e('s_lshl_b32 s64, s68, 11')
    a.e('v_add_u32 v13, s64, v%d', V16)
    XR, WR, GW, WF = 24, 40, 48, 56
    RL = E('RL', -1)

    def x_rows():
        for q in range(4):
            a.vm_issue('r', 'buffer_load_dwordx4 %s, v13, %s, 0 offen offset:%d', vr(XR + 4 * q, 4), sr(S_X, 4), q * 1024)
    if 'rows0' in EXP:
        x_rows()
    dma(1)
    a.e('s_or_b32 s64, s2, s6')
    a.e('s_cmp_lg_u32 s64, 0')
    a.e('s_cbranch_scc1 H_nn')
    a.e('s_mov_b32 s64, %d', WS_KEY)
    a.e('s_load_dwordx2 s[66:67], s[62:63], s64')
    srd(a, S_DBG, 60, 256)
    a.e('s_waitcnt lgkmcnt(0)')
    a.e('s_xor_b32 s64, s66, s67')
    a.e('s_add_u32 s64, s64, 1')
    a.e('s_max_u32 s64, s64, 1')
    a.e('v_mov_b32 v72, s64')
    a.e('v_mov_b32 v73, 0')
    a.e('s_mov_b64 exec, 1')
    a.vm_uncounted('buffer_store_dword v72, v73, %s, 0 offen' % sr(S_DBG, 4) + WT)
    a.e('s_mov_b64 exec, -1')
    a.e('H_nn:')
    stamp(a, 3)
    srd(a, S_DBG, 60, 256)
    srd(a, S_WR, 48, 2048)
    srd(a, S_GW, 56, 2048)
    srd(a, S_WG, 50, 7340032)
    srd(a, S_WU, 52, 7340032)
    VWG, VHP, VKB = 11, 12, 14
    a.e('s_lshr_b32 s69, s2, 3')
    a.e('s_and_b32 s64, s2, 7')
    a.e('v_and_b32 v9, 15, v2')
    a.e('v_min_u32 v9, 13, v9')
    a.e('s_lshl_b32 s65, s69, 5')
    a.e('v_lshl_add_u32 v7, v8, 3, s65')
    a.e('v_mul_u32_u24 v7, 7168, v7')
    a.e('s_mul_i32 s65, s64, 896')
    a.e('s_mul_i32 s66, s6, 224')
    a.e('s_add_u32 s65, s65, s66')
    a.e('v_lshl_add_u32 v7, v9, 4, v7')
    a.e('v_add_u32 v%d, s65, v7', VWG)
    a.e('v_cmp_le_u32 vcc, 7, v9')
    a.e('v_mov_b32 v15, %d', 16384 - 7 * 32)
    a.e('s_nop 0')
    a.e('v_cndmask_b32 v7, 0, v15, vcc')
    a.e('v_lshl_add_u32 v7, v9, 5, v7')
    a.e('v_lshrrev_b32 v15, 1, v8')
    a.e('v_lshl_add_u32 v7, v15, 13, v7')
    a.e('v_and_b32 v15, 1, v8')
    a.e('v_lshl_add_u32 v7, v15, 4, v7')
    a.e('s_lshl_b32 s64, s64, 17')
    a.e('s_lshl_b32 s65, s6, 15')
    a.e('s_add_u32 s64, s64, s65')
    a.e('s_lshl_b32 s65, s69, 8')
    a.e('s_add_u32 s64, s64, s65')
    a.e('s_add_u32 s64, s64, %d', WS_HP)
    a.e('v_add_u32 v%d, s64, v7', VHP)
    a.e('s_lshl_b32 s70, s5, 2')
    a.e('s_add_u32 s70, s70, s6')
    a.e('s_mul_i32 s70, s70, %d', 16 * KVB)
    a.e('s_add_u32 s70, s70, %d', WS_KVP)
    a.e('s_mul_i32 s64, s4, %d', KVB)
    a.e('s_add_u32 s64, s64, s70')
    a.e('s_mov_b32 s67, s64')
    a.e('v_lshl_add_u32 v15, v2, 2, s64')
    a.e('v_add_u32 v15, %d, v15', KVZ - 64)
    a.e('s_lshl_b32 s64, s5, 2')
    a.e('s_add_u32 s64, s64, s6')
    a.e('s_lshl_b32 s64, s64, 7')
    a.e('s_add_u32 s64, s64, %d', WS_F1)
    a.e('v_mov_b32 v23, s64')
    a.e('s_lshl_b32 s65, s4, 10')
    a.e('s_add_u32 s65, s65, %d', WS_F2 - 128)
    a.e('v_lshl_add_u32 v20, v2, 7, s65')
    a.e('v_cmp_gt_u32 vcc, 16, v2')
    a.e('s_nop 1')
    a.e('v_cndmask_b32 v15, v15, v20, vcc')
    a.e('v_writelane_b32 v15, s64, 0')
    a.e('s_cmp_eq_u32 s4, 0')
    a.e('s_cselect_b32 s75, 1, 0')
    a.e('s_or_b32 s64, s5, s6')
    a.e('s_cmp_eq_u32 s64, 0')
    a.e('s_cselect_b32 s64, 0x1fe, 0')
    a.e('s_or_b32 s75, s75, s64')
    a.e('s_or_b32 s75, s75, 0xffff0000')
    a.e('v_add_u32 v22, s67, v%d', V16)
    for r in range(4):
        a.e('v_mov_b32 v%d, -1', 16 + r)
    a.e('v_cndmask_b32 v20, -1, 0, vcc')
    a.vm_wait('d0')
    stamp(a, 4)
    a.e('s_barrier')
    dma(2)

    def init_stores():
        a.vm_issue('init', 'buffer_store_dwordx4 v[16:19], v22, %s, 0 offen' + WT, WSR)
        a.e('s_mov_b32 exec_lo, s75\ns_mov_b32 exec_hi, 0')
        a.vm_issue('init', 'buffer_store_dword v20, v15, %s, 0 offen' + WT, WSR)
        a.e(MASK14)
        a.vm_issue('init', 'buffer_store_dwordx4 v[16:19], v%d, %s, 0 offen' + WT, VHP, WSR)
        a.e('s_mov_b64 exec, 0xffff')
        a.e('s_lshl_b32 s64, s2, 10')
        a.e('s_lshl_b32 s65, s6, 8')
        a.e('s_add_u32 s64, s64, s65')
        a.e('s_add_u32 s64, s64, %d', WS_YP)
        a.vm_issue('init', 'buffer_store_dwordx4 v[16:19], v%d, %s, s64 offen' + WT, V16, WSR)
        a.e('s_mov_b64 exec, -1')

    def row_loads():
        if 'rows0' not in EXP:
            x_rows()
        for q in range(2):
            a.vm_issue('r', 'buffer_load_dwordx4 %s, v%d, %s, 0 offen offset:%d', vr(WR + 4 * q, 4), V16, sr(S_WR, 4), q * 1024)
        for q in range(2):
            a.vm_issue('r', 'buffer_load_dwordx4 %s, v%d, %s, 0 offen offset:%d', vr(GW + 4 * q, 4), V16, sr(S_GW, 4), q * 1024)

    WGT = 96
    XS = 88
    WD = 192
    wl = [(m, j) for j in range(8) for m in range(2)]
    TR = [int(c) for c in os.environ.get('TR', '00005005006007000')]
    assert len(TR) == 17 and sum(TR) == 23, sum(TR)
    allw = [('w', x) for x in wl] + [('d', j) for j in range(7)]
    wsched, dsched = {}, {}
    for k, n in enumerate(TR):
        for kind, x in allw[sum(TR[:k]):sum(TR[:k + 1])]:
            (wsched if kind == 'w' else dsched).setdefault(k - 1, []).append(x)
    D0 = min(dsched)
    GV = E('GV', 13)
    VWD = 21

    def wload(lst):
        if 'now' in EXP:
            return
        a.e(MASK14)
        for (m, j) in lst:
            a.e('s_mov_b32 s64, %d', j * 7168)
            a.vm_issue('w', 'buffer_load_dwordx4 %s, v%d, %s, s64 offen' + NTW, vr(WGT + 32 * m + 4 * j, 4), VWG, sr(S_WG if m == 0 else S_WU, 4))
        a.e('s_mov_b64 exec, -1')

    GA = 32

    def gemv1_part(pairs):
        a.e('s_mov_b32 s64, 0x05040100')
        a.e('s_mov_b32 s65, 0x07060302')
        for jp in pairs:
            for m in range(2):
                for q in range(4):
                    w0 = WGT + 32 * m + 8 * jp + q
                    t = 48 + 2 * (q & 1)
                    a.e('v_perm_b32 v%d, v%d, v%d, s64', t, w0 + 4, w0)
                    a.e('v_perm_b32 v%d, v%d, v%d, s65', t + 1, w0 + 4, w0)
                    for k in range(2):
                        acc = GA + 8 * m + 2 * q + k
                        a.e('v_dot2_f32_bf16 v%d, v%d, v%d, %s', acc, t + k, XS + jp, '0' if jp == 0 else 'v%d' % acc)

    def gemv1_fin():
        a.e('s_nop 2')
        a.e('s_nop 1')
        for m in range(2):
            for q in range(4):
                a.e('v_permlane16_swap_b32 v%d, v%d', GA + 8 * m + q, GA + 8 * m + q + 4)
        for m in range(2):
            for q in range(4):
                a.e('v_add_f32 v%d, v%d, v%d', GA + 8 * m + q, GA + 8 * m + q, GA + 8 * m + q + 4)
        a.e('s_nop 1')
        for q in range(4):
            a.e('v_permlane32_swap_b32 v%d, v%d', GA + q, GA + 8 + q)
        for q in range(4):
            a.e('v_add_f32 v%d, v%d, v%d', GA + q, GA + q, GA + 8 + q)
        a.e(MASK14)
        a.vm_issue('hp', 'buffer_store_dwordx4 %s, v%d, %s, 0 offen' + WT, vr(GA, 4), VHP, WSR)
        a.e('s_mov_b64 exec, -1')
        stamp(a, 7)

    def h0_only(name):
        a.e('s_cmp_lg_u32 s6, 0')
        a.e('s_cbranch_scc1 %s', name)

    IN = E('IN', 0)
    PB = E('PB', 10)
    KP = E('KP', RL + 7)
    gv = {'a': {GV: [0, 1], GV + 1: [2, 3]}, 'b': {GV: [0], GV + 1: [1, 2], GV + 2: [3]}, 'c': {GV: [0], GV + 1: [1], GV + 2: [2, 3]},
          'd': {GV: [0, 1, 2, 3]}}[os.environ.get('GVS', 'a')]
    WOS = {'a': {13: (0, 8, 1, 9, 2, 10), 14: (3, 11), 15: (4, 12, 5, 13, 6, 14, 7, 15)},
           'b': {13: (0, 8, 1, 9), 14: (2, 10), 15: (3, 11, 4, 12, 5, 13, 6, 14, 7, 15)},
           'c': {13: (0, 8), 14: (1, 9), 15: (2, 10, 3, 11, 4, 12, 5, 13, 6, 14, 7, 15)}}[os.environ.get('WOSCH', 'a')]
    if RL == -1:
        row_loads()
    if IN == -1:
        init_stores()
    if -1 in wsched:
        wload(wsched[-1])
    def wd_addr():
        srd(a, S_WD, 54, 7340032)
        a.e('s_lshr_b32 s64, s2, 2')
        a.e('s_mul_i32 s64, s64, %d', 56 * 2048)
        a.e('s_and_b32 s65, s2, 3')
        a.e('s_lshl_b32 s65, s65, 9')
        a.e('s_add_u32 s64, s64, s65')
        a.e('s_lshl_b32 s65, s6, 7')
        a.e('s_add_u32 s64, s64, s65')
        a.e('v_lshrrev_b32 v7, 3, v2')
        a.e('v_lshlrev_b32 v7, 11, v7')
        a.e('v_and_b32 v9, 7, v2')
        a.e('v_lshl_add_u32 v7, v9, 4, v7')
        a.e('v_add_u32 v%d, s64, v7', VWD)

    def key_loads():
        a.e('s_mov_b32 s64, %d', WS_KEY)
        for q in range(2):
            a.vm_uncounted('buffer_load_dwordx4 %s, v%d, %s, s64 offen offset:%d sc1' % (vr(24 + 4 * q, 4), V16, WSR, q * 1024))

    def dots():
        for q in range(8):
            for k, (x, w) in enumerate(((XR + q, GW + q), (XR + 8 + q, GW + q), (XR + q, WR + q), (XR + 8 + q, WR + q))):
                a.e('v_dot2_f32_bf16 v%d, v%d, v%d, %s', 72 + k, x, w, '0' if q == 0 else 'v%d' % (72 + k))

    def router_fin():
        a.e('v_permlane32_swap_b32 v72, v74')
        a.e('v_permlane32_swap_b32 v73, v75')
        a.e('v_add_f32 v72, v72, v74')
        a.e('v_add_f32 v73, v73, v75')
        a.e('s_lshl_b32 s64, s68, 2')
        a.e('s_add_u32 s64, s64, %d', WS_G)
        a.e('v_permlane16_swap_b32 v72, v73')
        a.e('v_add_f32 v72, v72, v73')
        a.e('v_and_b32 v75, 1, v8')
        a.e('v_lshl_add_u32 v76, v75, 2, s64')
        for pat in ('quad_perm:[1,0,3,2]', 'quad_perm:[2,3,0,1]', 'row_half_mirror', 'row_mirror'):
            a.e('v_add_f32_dpp v72, v72, v72 %s row_mask:0xf bank_mask:0xf', pat)
            a.e('s_nop 1')
        a.e('v_cvt_pk_bf16_f32 v72, v72, v72')
        a.e('s_sub_u32 s64, %d, s68', 2047 + 0x8000)
        a.e('v_lshlrev_b32 v72, 16, v72')
        a.e('v_ashrrev_i32 v73, 31, v72')
        a.e('v_sub_u32 v77, s64, v75')
        a.e('v_or_b32 v73, 0x80000000, v73')
        a.e('s_lshl_b32 s64, s6, 3')
        a.e('v_xor_b32 v73, v72, v73')
        a.e('v_lshl_add_u32 v75, v75, 2, s64')
        a.e('v_and_b32 v73, 0xffff0000, v73')
        a.e('v_or_b32 v73, v77, v73')
        sigmoid_bf16(a, [72])

    def key_max():
        a.e('v_max_u32 v3, v24, v26')
        a.e('v_max3_u32 v3, v3, v28, v30')
        a.e('s_nop 1')
        for pat in ('quad_perm:[1,0,3,2]', 'quad_perm:[2,3,0,1]', 'row_half_mirror', 'row_mirror'):
            a.e('v_max_u32_dpp v3, v3, v3 %s row_mask:0xf bank_mask:0xf', pat)
            a.e('s_nop 1')
        for swp in ('v_permlane16_swap_b32', 'v_permlane32_swap_b32'):
            a.e('v_mov_b32 v7, v3')
            a.e('s_nop 1')
            a.e('%s v3, v7', swp)
            a.e('v_max_u32 v3, v3, v7')
        a.e('v_mov_b32 v7, %d', L_KEY + 32)

    marks = {}
    for i in range(16):
        if i + 1 < 16:
            a.vm_wait('d%d' % (i + 1))
        if i == KP:
            a.vm_wait('g')
        if i in (RL + 5, PB + 2):
            a.e('s_waitcnt lgkmcnt(0)')
        a.e('s_barrier')
        fill = []
        if i == RL + 2:
            a.e('v_mov_b32 v79, 0')
            h0_only('H_nc')
            a.vm_uncounted('buffer_load_dword v78, v79, %s, 0 offen sc1' % sr(S_DBG, 4))
            a.e('H_nc:')
        if i == PB:
            h0_only('H_np')
            key_loads()
            a.e('H_np:')
            marks['poll'] = a.issued
        if i == PB + 1:
            h0_only('H_nq')
            a.e('s_waitcnt vmcnt(%d)', a.issued - marks['poll'])
            a.e('s_mov_b32 s65, 0')
            a.e('H_spin:')
            for q in range(4):
                a.e('v_xor_b32 v%d, v%d, v%d', 25 + 2 * q, 24 + 2 * q, 25 + 2 * q)
            a.e('v_xor_b32 v3, s71, v25')
            a.e('v_xor_b32 v7, s71, v27')
            a.e('v_xor_b32 v25, s71, v29')
            a.e('v_xor_b32 v27, s71, v31')
            a.e('v_or3_b32 v3, v3, v7, v25')
            a.e('v_or_b32 v3, v3, v27')
            a.e('v_cmp_ne_u32 vcc, 0, v3')
            a.e('s_cbranch_vccnz H_retry')
            with a.cold():
                a.e('H_retry:')
                a.e('s_add_u32 s65, s65, 1')
                a.e('s_cmp_ge_u32 s65, 200000')
                a.e('s_cbranch_scc1 H_nq')
                a.e('s_sleep 8')
                key_loads()
                a.e('s_waitcnt vmcnt(0)')
                a.e('s_branch H_spin')
            a.e('H_nq:')
            fill += cap(key_max)
        if i == PB + 2:
            a.e('v_mov_b32 v7, %d', L_KEY + 32)
            a.e('ds_read_b32 v3, v7')
            a.e('s_lshl_b32 s65, s69, 6')
            a.e('v_lshl_add_u32 v7, v8, 4, s65')
            a.e('s_waitcnt lgkmcnt(0)')
            a.e('v_readfirstlane_b32 s75, v3')
            a.e('s_nop 3')
            a.e('s_and_b32 s64, s75, 0x7ff')
            a.e('s_sub_u32 s64, 2047, s64')
            a.e('s_lshl_b32 s64, s64, 11')
            a.vm_issue('xs', 'buffer_load_dwordx4 %s, v7, %s, s64 offen', vr(XS, 4), sr(S_X, 4))
        if i == RL + 3:
            a.vm_wait('r')
            fill += cap(dots)
        if i == RL + 4:
            fill += cap(router_fin)
        if i in gv:
            if gv[i][0] == 0:
                a.vm_wait('xs')
                a.vm_wait('w')
                stamp(a, 6)
            fill += cap(lambda: gemv1_part(gv[i]))
        if i + 3 < 16:
            dma(i + 3, fill)
        else:
            if i == 13:
                p2_ids(a)
                srd(a, S_WO, 44, 2097152)
                wo_voff(a, VOW, 7, 9, 6)
            if i == 15:
                xo_loads(a)
            wo_units(WOS[i], fill)
        if i == RL:
            row_loads()
        if i == IN:
            init_stores()
        if i == RL + 4:
            a.e('s_mov_b32 exec_lo, 0\ns_mov_b32 exec_hi, 0x10001')
            a.e('ds_write_b32 v75, v73 offset:%d', L_KEY)
            a.e('s_mov_b32 exec_lo, 0x10001\ns_mov_b32 exec_hi, 0')
            a.vm_issue('g', 'buffer_store_dword v72, v76, %s, 0 offen' + WT, WSR)
            a.e('s_mov_b64 exec, -1')
        if i == KP:
            assert IN <= RL + 4 < KP
            h0_only('H_nk')
            a.e('v_mov_b32 v3, %d', L_KEY)
            a.e('ds_read_b128 v[72:75], v3')
            a.e('ds_read_b128 v[24:27], v3 offset:16')
            a.e('s_mov_b32 s65, 0')
            a.e('H_nspin:')
            a.e('v_readfirstlane_b32 s71, v78')
            a.e('s_cmp_eq_u32 s71, 0')
            a.e('s_cbranch_scc1 H_nre')
            with a.cold():
                a.e('H_nre:')
                a.e('s_add_u32 s65, s65, 1')
                a.e('s_cmp_ge_u32 s65, 200000')
                a.e('s_cbranch_scc1 H_nok')
                a.e('s_sleep 4')
                a.e('buffer_load_dword v78, v79, %s, 0 offen sc1' % sr(S_DBG, 4))
                a.e('s_waitcnt vmcnt(0)')
                a.e('s_branch H_nspin')
            a.e('H_nok:')
            a.e('s_lshl_b32 s64, s2, 3')
            a.e('s_add_u32 s64, s64, %d', WS_KEY)
            a.e('v_mov_b32 v3, s64')
            a.e('s_waitcnt lgkmcnt(0)')
            a.e('v_max3_u32 v72, v72, v73, v74')
            a.e('v_max3_u32 v24, v24, v25, v26')
            a.e('v_max3_u32 v72, v72, v75, v27')
            a.e('v_max_u32 v72, v72, v24')
            a.e('v_xor_b32 v73, s71, v72')
            a.e('s_mov_b64 exec, 1')
            a.vm_uncounted('buffer_store_dwordx2 v[72:73], v3, %s, 0 offen' % WSR + WT)
            a.e('s_mov_b64 exec, -1')
            a.e('H_nk:')
        if i == PB + 1:
            h0_only('H_nw')
            a.e('ds_write_b32 v7, v3')
            a.e('H_nw:')
        if i in wsched:
            wload(wsched[i])
        if i == D0:
            wd_addr()
        if i in dsched and 'now' not in EXP:
            for j in dsched[i]:
                a.e('s_mov_b32 s64, %d', j * 16384)
                a.vm_issue('wd', 'buffer_load_dwordx4 %s, v%d, %s, s64 offen' + NTW, vr(WD + 4 * j, 4), VWD, sr(S_WD, 4))
        if i == max(gv):
            gemv1_fin()
    stamp(a, 5)
    if 'gprio' in EXP:
        a.e('s_setprio 3')
    KB, KA, PA = 64, 128, 48
    SL = 40

    def f1_poll():
        a.e('s_mov_b64 exec, 1')
        a.e('v_mov_b32 v20, 0')
        a.e('buffer_atomic_or v20, v23, %s, 0 offen sc0', WSR)
        a.e('s_mov_b64 exec, -1')
    f1_poll()
    a.e('v_add_u32 v17, s70, v%d', V16)
    a.e('v_lshrrev_b32 v18, 2, v2')
    a.e('v_mul_u32_u24 v18, %d, v18', KVB)
    a.e('v_and_b32 v19, 3, v2')
    a.e('v_lshl_add_u32 v18, v19, 4, v18')
    a.e('s_add_u32 s64, s70, %d', KVZ)
    a.e('v_add_u32 v18, s64, v18')
    a.e('v_bfe_u32 v26, v2, 3, 1')
    a.e('v_lshl_add_u32 v26, v26, 2, v19')
    a.e('v_bfe_u32 v27, v2, 2, 1')
    a.e('v_lshrrev_b32 v28, 5, v2')
    a.e('v_cmp_eq_u32 vcc, v27, v28')
    a.e('v_and_b32 v27, 16, v2')
    a.e('v_cmp_eq_u32 s[64:65], 0, v27')
    a.e('s_and_b64 vcc, vcc, s[64:65]')
    a.e('v_and_b32 v27, 1, v26')
    a.e('v_lshlrev_b32 v27, 4, v27')
    a.e('v_mov_b32 v28, 0x3f80')
    a.e('v_lshlrev_b32 v27, v27, v28')
    a.e('v_cndmask_b32 v27, 0, v27, vcc')
    a.e('v_lshrrev_b32 v26, 1, v26')
    for q in range(4):
        a.e('v_cmp_eq_u32 vcc, %d, v26', q)
        a.e('s_nop 1')
        a.e('v_cndmask_b32 v%d, 0, v27, vcc', PA + q)
    for r in range(16):
        a.e('v_mov_b32 v%d, 0', KA + r)
    a.e('s_mov_b32 s66, 0xffff')
    a.e('s_mov_b32 s65, 0')
    a.e('s_waitcnt vmcnt(0)')
    a.e('G_loop:')
    a.e('v_readfirstlane_b32 s68, v20')
    if E('SPEC', 0):
        a.e('s_bcnt1_i32_b32 s64, s66')
        a.e('s_cmp_le_u32 s64, %d', E('SPEC', 0))
        a.e('s_cselect_b32 s68, 0xffff, s68')
    a.e('s_and_b32 s68, s68, s66')
    a.e('s_andn2_b32 s66, s66, s68')
    if STAMPS == 2:
        a.e('s_memrealtime s[86:87]')
        a.e('s_min_u32 s64, s65, 30')
        a.e('s_lshl_b32 m0, s64, 1')
        a.e('s_waitcnt lgkmcnt(0)')
        a.e('v_writelane_b32 v250, s86, m0')
        a.e('s_add_u32 m0, m0, 1')
        a.e('s_nop 0')
        a.e('v_writelane_b32 v250, s66, m0')
        a.e('v_writelane_b32 v250, s65, 63')
    a.e('s_bcnt1_i32_b32 s67, s68')

    def jump_n(pref):
        def rec(lo, hi, last):
            if lo == hi:
                if not (last and lo == 16):
                    a.e('s_branch %s%d', pref, lo)
                return
            mid = lo if hi - lo < 3 else (lo + hi) // 2
            if mid == lo:
                a.e('s_cmp_eq_u32 s67, %d', lo)
                a.e('s_cbranch_scc1 %s%d', pref, lo)
                rec(lo + 1, hi, last)
            else:
                lab = a.label(pref + 't')
                a.e('s_cmp_gt_u32 s67, %d', mid)
                a.e('s_cbranch_scc1 %s', lab)
                rec(lo, mid, False)
                a.e('%s:', lab)
                rec(mid + 1, hi, last)
        a.e('s_cmp_eq_u32 s67, 0')
        a.e('s_cbranch_scc1 %s0', pref)
        rec(1, 16, True)
    jump_n('G_l')
    for c in range(15, -1, -1):
        a.e('G_l%d:', c + 1)
        a.e('s_ff1_i32_b32 s%d, s68', SL + c)
        a.e('s_bitset0_b32 s68, s%d', SL + c)
        a.e('s_mul_i32 s64, s%d, %d', SL + c, KVB)
        a.e('buffer_load_dwordx4 %s, v17, %s, s64 offen sc1', vr(KB + 4 * c, 4), WSR)
    a.e('G_l0:')
    a.e('s_mov_b32 s68, s66')
    a.e('s_cmp_eq_u32 s66, 0')
    a.e('s_cbranch_scc1 G_z')
    a.e('s_cmp_lg_u32 s67, 0')
    a.e('s_cbranch_scc1 G_p')
    a.e('s_sleep %d', E('GSL', 2))
    a.e('G_p:')
    f1_poll()
    a.e('s_branch G_proc')
    a.e('G_z:')
    a.e('buffer_load_dwordx4 v[56:59], v18, %s, 0 offen sc1', WSR)
    a.e('G_proc:')
    jump_n('G_q')
    for c in range(15, -1, -1):
        b = KB + 4 * c
        a.e('G_q%d:', c + 1)
        a.e('s_waitcnt vmcnt(%d)', c + 1)
        a.e('v_max3_u32 v21, v%d, v%d, v%d', b, b + 1, b + 2)
        a.e('v_max_u32 v21, v21, v%d', b + 3)
        a.e('v_cmp_eq_u32 vcc, -1, v21')
        a.e('s_cbranch_vccnz G_f%d', c)
        a.e('v_mfma_f32_32x32x16_bf16 %s, %s, %s, %s', vr(KA, 16), vr(PA, 4), vr(b, 4), vr(KA, 16))
        with a.cold():
            a.e('G_f%d:', c)
            a.e('s_bitset1_b32 s66, s%d', SL + c)
            a.e('s_branch G_q%d', c)
    a.e('G_q0:')
    a.e('s_waitcnt vmcnt(0)')
    a.e('s_add_u32 s65, s65, 1')
    a.e('s_cmp_ge_u32 s65, 40000')
    a.e('s_cbranch_scc1 G_done')
    a.e('s_cmp_lg_u32 s68, 0')
    a.e('s_cbranch_scc1 G_loop')
    a.e('v_mov_b32 v20, -1')
    a.e('s_cmp_lg_u32 s66, 0')
    a.e('s_cbranch_scc1 G_loop')
    a.e('v_max3_u32 v21, v56, v57, v58')
    a.e('v_max_u32 v21, v21, v59')
    a.e('v_cmp_eq_u32 vcc, -1, v21')
    a.e('s_cbranch_vccnz G_loop')
    a.e('G_done:')
    a.vm = []
    stamp(a, 8)
    a.e('v_add_u32 v16, s7, v%d', V16)
    for pat in ('row_ror:4', 'row_ror:8'):
        for q in range(4):
            a.e('v_add_f32_dpp v%d, v%d, v%d %s row_mask:0xf bank_mask:0xf', 56 + q, 56 + q, 56 + q, pat)
    for swp in ('v_permlane16_swap_b32', 'v_permlane32_swap_b32'):
        for q in range(4):
            a.e('v_mov_b32 v%d, v%d', 64 + q, 56 + q)
        a.e('s_nop 0')
        for q in range(4):
            a.e('%s v%d, v%d', swp, 56 + q, 64 + q)
        for q in range(4):
            a.e('v_add_f32 v%d, v%d, v%d', 56 + q, 56 + q, 64 + q)
    for q in range(4):
        a.e('v_cvt_pk_bf16_f32 v%d, v%d, v%d', 60 + q, KA + 2 * q, KA + 2 * q + 1)
    a.e('ds_write_b128 v16, v[60:63] offset:%d', L_KF)
    a.e('v_cvt_pk_bf16_f32 v56, v56, v57')
    a.e('v_cvt_pk_bf16_f32 v57, v58, v59')
    a.e('s_lshr_b32 s64, s6, 1')
    a.e('s_lshl_b32 s64, s64, 6')
    a.e('s_and_b32 s65, s6, 1')
    a.e('s_lshl_b32 s65, s65, 3')
    a.e('s_add_u32 s64, s64, s65')
    a.e('v_lshl_add_u32 v16, v2, 4, s64')
    a.e('s_mov_b64 exec, 15')
    a.e('ds_write_b64 v16, v[56:57] offset:%d', L_ZF)
    a.e('s_mov_b64 exec, -1')
    a.e('s_waitcnt lgkmcnt(0)')
    a.e('s_barrier')
    if 'gprio' in EXP:
        a.e('s_setprio 0')
    a.e('v_lshrrev_b32 v18, 3, v2')
    a.e('v_lshlrev_b32 v18, 2, v18')
    for j in range(7):
        a.e('ds_read_b32 v%d, v18 offset:%d', 24 + j, L_H + 32 * j)
    a.e('s_waitcnt lgkmcnt(0)')
    YA = 32
    for j in range(7):
        for q in range(4):
            w = WD + 4 * j + q
            a.e('v_lshlrev_b32 v48, 16, v%d', w)
            a.e('v_and_b32 v49, 0xffff0000, v%d', w)
            if j == 0:
                a.e('v_mul_f32 v%d, v48, v%d', YA + 2 * q, 24 + j)
                a.e('v_mul_f32 v%d, v49, v%d', YA + 2 * q + 1, 24 + j)
            else:
                a.e('v_fmac_f32 v%d, v48, v%d', YA + 2 * q, 24 + j)
                a.e('v_fmac_f32 v%d, v49, v%d', YA + 2 * q + 1, 24 + j)
    a.e('s_nop 1')
    for q in range(4):
        a.e('v_permlane32_swap_b32 v%d, v%d', YA + q, YA + 4 + q)
    for q in range(4):
        a.e('v_add_f32 v%d, v%d, v%d', YA + q, YA + q, YA + 4 + q)
    a.e('s_nop 1')
    for q in range(2):
        a.e('v_permlane16_swap_b32 v%d, v%d', YA + q, YA + 2 + q)
    for q in range(2):
        a.e('v_add_f32 v%d, v%d, v%d', YA + q, YA + q, YA + 2 + q)
    a.e('s_nop 1')
    for q in range(2):
        a.e('v_add_f32_dpp v%d, v%d, v%d row_ror:8 row_mask:0xf bank_mask:0xf', YA + q, YA + q, YA + q)
    a.e('v_and_b32 v16, 7, v2')
    a.e('v_lshlrev_b32 v16, 5, v16')
    a.e('v_lshl_add_u32 v16, v8, 3, v16')
    a.e('s_lshl_b32 s64, s2, 10')
    a.e('s_lshl_b32 s65, s6, 8')
    a.e('s_add_u32 s64, s64, s65')
    a.e('s_add_u32 s64, s64, %d', WS_YP)
    a.e('s_mov_b32 exec_lo, 0x00ff00ff\ns_mov_b32 exec_hi, 0x00ff00ff')
    a.e('buffer_store_dwordx2 %s, v16, %s, s64 offen' + WT, vr(YA, 2), WSR)
    a.e('s_mov_b64 exec, -1')
    stamp(a, 9)
    if 'latep' not in EXP:
        f2_poll_first(a)
    t2_fill(a)
    a.e('s_branch P2_start')


def gen_c1(a):
    a.e('C_start:')
    TOUCH = E('TOUCH', 0)
    if TOUCH:
        a.e('s_mul_i32 s64, s2, 24576')
        a.e('s_mul_i32 s65, s3, 6144')
        a.e('s_add_u32 s64, s64, s65')
        a.e('v_mul_u32_u24 v3, %d, v2', TOUCH)
        a.e('s_mov_b32 exec_hi, 0xffff')
        for q in range(128 // TOUCH):
            a.vm_issue('t', 'buffer_load_dword v60, v3, %s, s64 offen offset:%d', sr(S_W, 4), q * 3072)
        a.e('s_mov_b32 exec_hi, -1')
    if 'noscode' not in EXP:
        NS = 4
        a.e('s_getpc_b64 s[68:69]')
        a.e('C_pc:')
        a.e('s_sub_u32 s68, s68, C_pc-%s_kernel' % NAME)
        a.e('s_subb_u32 s69, s69, 0')
        a.e('s_lshr_b32 s64, s2, 3')
        a.e('s_lshl_b32 s64, s64, 2')
        a.e('s_add_u32 s64, s64, s3')
        a.e('s_mul_i32 s64, s64, %d', NS * 64)
        a.e('s_mov_b32 s65, CODE_END-%s_kernel-4' % NAME)
        for q in range(NS):
            a.e('s_min_u32 s66, s64, s65')
            a.e('s_load_dword s75, s[68:69], s66')
            a.e('s_add_u32 s64, s64, 64')
    M16 = 'v_mfma_f32_16x16x32_bf16'
    VAB, VBB, VA, VB = 4, 6, 8, 10
    BF = [16, 40]
    AB = [192, 208]
    QA, KA_, VA_ = 64, 96, 128
    qt = lambda sb, db: QA + (sb * 2 + db) * 4
    kt = lambda base, sb, db: base + (((sb >> 1) * 2 + db) * 2 + (sb & 1)) * 4
    X = 224
    ONES = 236
    a.e('s_and_b32 s6, s3, 1')
    a.e('s_lshr_b32 s7, s3, 1')
    a.e('v_and_b32 v3, 15, v2')
    a.e('s_lshl_b32 s64, s6, 6')
    a.e('v_add_u32 v3, s64, v3')
    a.e('v_lshlrev_b32 v3, 7, v3')
    a.e('v_add_u32 v3, %d, v3', RB)
    a.e('v_bfe_u32 v56, v2, 1, 3')
    a.e('v_lshrrev_b32 v57, 4, v2')
    a.e('v_xor_b32 v56, v56, v57')
    a.e('v_lshl_add_u32 v%d, v56, 4, v3', VAB)
    a.e('v_xor_b32 v%d, 64, v%d', VAB + 1, VAB)
    a.e('v_bfe_u32 v56, v2, 2, 2')
    a.e('v_lshl_add_u32 v58, v57, 3, v56')
    a.e('v_lshlrev_b32 v58, 7, v58')
    a.e('v_lshrrev_b32 v56, 1, v56')
    a.e('v_xor_b32 v56, s7, v56')
    a.e('v_lshl_add_u32 v58, v56, 6, v58')
    a.e('v_and_b32 v57, 1, v57')
    a.e('v_lshl_add_u32 v58, v57, 5, v58')
    a.e('v_and_b32 v56, 3, v2')
    a.e('v_lshl_add_u32 v58, v56, 3, v58')
    a.e('v_add_u32 v%d, %d, v58', VBB, RB + 16384)
    a.e('v_xor_b32 v%d, 32, v%d', VBB + 1, VBB)
    for t in range(2):
        a.e('v_mov_b32 v%d, v%d', VA + t, VAB + t)
        a.e('v_mov_b32 v%d, v%d', VB + t, VBB + t)
    for r in range(64, 160):
        a.e('v_mov_b32 v%d, 0', r)
    a.e('s_lshl_b32 s64, s3, 2')
    a.e('v_mov_b32 v%d, s64', X + 5)
    a.e('ds_write_b32 v%d, v64 offset:%d', X + 5, L_FLG)
    a.e('v_lshlrev_b32 v3, 4, v2')
    a.e('s_lshl_b32 s64, s3, 11')
    a.e('v_add_u32 v%d, s64, v3', X)
    a.e('v_xor_b32 v%d, 2048, v%d', X + 1, X)
    a.e('s_lshl_b32 s64, s3, 8')
    a.e('v_lshl_add_u32 v%d, v2, 2, s64', X + 3)
    a.e('v_xor_b32 v%d, 256, v%d', X + 4, X + 3)
    a.e('v_xor_b32 v%d, 4, v%d', X + 6, X + 5)
    a.e('v_mov_b32 v%d, 1', X + 7)
    a.e('v_lshlrev_b32 v%d, 2, v2', X + 8)
    a.e('s_lshl_b32 s64, 1, s4')
    a.e('v_mov_b32 v%d, s64', X + 9)
    a.e('s_lshl_b32 s43, s5, 2')
    a.e('s_add_u32 s43, s43, s3')
    a.e('s_lshl_b32 s64, s43, 7')
    a.e('s_add_u32 s64, s64, %d', WS_F1)
    a.e('v_mov_b32 v%d, s64', X + 10)
    a.e('s_lshl_b32 s43, s43, 4')
    a.e('s_add_u32 s43, s43, s4')
    a.e('s_mul_i32 s43, s43, %d', KVB)
    a.e('s_add_u32 s43, s43, %d', WS_KVP)
    a.e('s_lshl_b32 s42, s4, 2')
    a.e('s_lshl_b32 s64, s6, 1')
    a.e('s_add_u32 s42, s42, s64')
    a.e('s_lshl_b32 s42, s42, 5')
    a.e('s_lshl_b32 s64, s5, 1')
    a.e('s_add_u32 s42, s42, s64')
    a.e('s_add_u32 s42, s42, s7')
    a.e('s_lshl_b32 s42, s42, 11')
    a.e('s_and_b32 s64, s5, 7')
    a.e('s_lshl_b32 s64, s64, 1')
    a.e('s_add_u32 s64, s64, s7')
    a.e('s_lshl_b32 s64, 1, s64')
    a.e('v_mov_b32 v13, s64')
    a.e('s_lshr_b32 s64, s5, 3')
    a.e('s_lshl_b32 s64, s64, 1')
    a.e('s_add_u32 s64, s64, s6')
    a.e('s_lshl_b32 s64, s64, 8')
    a.e('s_lshl_b32 s65, s4, 10')
    a.e('s_add_u32 s64, s64, s65')
    a.e('s_add_u32 s64, s64, %d', WS_F2)
    a.e('v_lshl_add_u32 v12, v2, 7, s64')
    p2_ids(a)
    a.e('s_mov_b32 s65, 0')
    a.e('s_mov_b32 s66, 0')
    for r in range(4):
        a.e('v_mov_b32 v%d, 0x3f803f80', ONES + r)

    def reads(st, buf, areg, q=True):
        B = lambda ty, cb: ['ds_read_b64_tr_b16 %s, v%d offset:%d' % (vr(BF[buf] + 8 * ty + 4 * cb + 2 * tt, 2), VB + cb, ty * 8192 + st * 4096 + tt * 512)
                            for tt in range(2)]
        A = ['ds_read_b128 %s, v%d offset:%d' % (vr(areg + 4 * b, 4), VA + st, b * 2048) for b in range(4)]
        L = []
        for ty in ((0, 1, 2) if q else (1, 2)):
            for cb in range(2):
                L += B(ty, cb)
        return L[:2] + A + L[2:]

    def mfmas(buf, areg, q=True):
        L = []
        for ty in ((0, 1, 2) if q else (1, 2)):
            for cb in range(2):
                w = vr(BF[buf] + 8 * ty + 4 * cb, 4)
                for b in range(4):
                    x = vr(areg + 4 * b, 4)
                    if ty == 0:
                        d = vr(qt(b, cb), 4)
                        L.append('%s %s, %s, %s, %s' % (M16, d, w, x, d))
                    else:
                        d = vr(kt(KA_ if ty == 1 else VA_, b, cb), 4)
                        L.append('%s %s, %s, %s, %s' % (M16, d, x, w, d))
        return L

    def bar_stamped():
        if STAMPS == 2:
            a.e('s_memtime s[68:69]')
        a.e('s_barrier')
        if STAMPS == 2:
            a.e('s_memtime s[70:71]')
            a.e('s_waitcnt lgkmcnt(0)')
            a.e('s_mov_b32 m0, s66')
            a.e('s_nop 0')
            a.e('v_writelane_b32 v14, s68, m0')
            a.e('s_add_u32 m0, s66, 16')
            a.e('s_nop 0')
            a.e('v_writelane_b32 v14, s70, m0')
            a.e('s_memrealtime s[70:71]')
            a.e('s_add_u32 m0, s66, 32')
            a.e('s_waitcnt lgkmcnt(0)')
            a.e('v_writelane_b32 v14, s70, m0')

    def step(M, F):
        for i, m_ in enumerate(M):
            a.e(m_)
            if i < len(F):
                a.e(F[i])
        for f in F[len(M):]:
            a.e(f)

    stamp(a, 3)
    a.vm_wait('d0', 'lgkmcnt(0)')
    stamp(a, 4)
    a.e('s_barrier')
    for r in reads(0, 0, AB[0]):
        a.e(r)
    ND = E('ND', 2)
    a.e('.p2align 3')
    a.e('C_loop:')
    a.e('s_waitcnt lgkmcnt(0)')
    step(mfmas(0, AB[0]), reads(1, 1, AB[1]))
    a.e('s_waitcnt lgkmcnt(0)')
    bar_stamped()
    a.e('s_add_u32 s65, s65, %d', SLOT)
    a.e('s_cmp_eq_u32 s65, %d', 3 * SLOT)
    a.e('s_cselect_b32 s65, 0, s65')
    AD = ['v_add_u32 v%d, s65, v%d' % (r + 4, r) for r in (VBB, VAB, VBB + 1, VAB + 1)]
    R = reads(0, 0, AB[0])
    step(mfmas(1, AB[1]), [AD[0] + '\n' + AD[1]] + R[:6] + [AD[2]] + R[6:] + [AD[3]])
    a.e('s_add_u32 s66, s66, 1')
    a.e('s_cmp_lt_u32 s66, %d', 16 - ND)
    a.e('s_cbranch_scc1 C_loop')
    AR = {(14, 0): 192, (14, 1): 160, (15, 0): 176, (15, 1): 208}
    if ND:
        a.e('s_waitcnt lgkmcnt(0)')
        step(mfmas(0, AR[14, 0], False), reads(1, 1, AR[14, 1], False))
        a.e('s_waitcnt lgkmcnt(0)')
        bar_stamped()
        a.e('s_add_u32 s66, s66, 1')
        AD = ['v_mov_b32 v%d, v%d' % (r + 4, r) for r in (VBB, VAB, VBB + 1, VAB + 1)]
        R = reads(0, 0, AR[15, 0], False)
        step(mfmas(1, AR[14, 1], False), [AD[0] + '\n' + AD[1]] + R[:2] + [AD[2] + '\n' + AD[3]] + R[2:])
        a.e('s_waitcnt lgkmcnt(0)')
        step(mfmas(0, AR[15, 0], False), reads(1, 1, AR[15, 1], False))
        a.e('s_waitcnt lgkmcnt(0)')
        bar_stamped()
        step(mfmas(1, AR[15, 1], False), [])
    a.vm = []
    stamp(a, 5)
    PK = [16, 24]; VBF = [32, 40]; T0, T1, E0, E1, MN = 48, 49, 50, 51, 56
    KVA = 240; ZA = [52, 60]
    if not ND:
        a.e('s_waitcnt lgkmcnt(0)')
    for cb in range(2):
        a.e('v_add_u32 v%d, %d, v%d', VB + cb, 2 * SLOT, VBB + cb)
    for p in range(2):
        phi16(a, KA_ + 16 * p, PK[p], T0, T1, E0, E1, MN)
        for j in range(8):
            a.e('v_cvt_pk_bf16_f32 v%d, v%d, v%d', VBF[p] + j, VA_ + 16 * p + 2 * j, VA_ + 16 * p + 2 * j + 1)
            if j in (1, 2):
                db = j - 1
                a.e('%s %s, %s, %s, %s', M16, vr(ZA[db], 4), vr(ONES, 4), vr(PK[p] + 4 * db, 4), '0' if p == 0 else vr(ZA[db], 4))
            if j in (5, 6):
                db = j - 5
                d = vr(KVA + db * 4, 4)
                a.e('%s %s, %s, %s, %s', M16, d, vr(PK[p] + 4 * db, 4), vr(VBF[p], 4), '0' if p == 0 else d)
        a.e('s_nop 1')
        for db in range(2):
            d = vr(KVA + 8 + db * 4, 4)
            a.e('%s %s, %s, %s, %s', M16, d, vr(PK[p] + 4 * db, 4), vr(VBF[p] + 4, 4), '0' if p == 0 else d)
    a.e('s_cmp_eq_u32 s6, 0')
    a.e('s_cbranch_scc0 C_ex1')
    a.e('ds_write_b32 v%d, v%d offset:%d', X + 3, ZA[1], L_ZX)
    a.e('s_nop 5')
    a.e('ds_write_b128 v%d, %s offset:%d', X, vr(KVA + 8, 4), L_EX)
    a.e('ds_write_b128 v%d, %s offset:%d', X, vr(KVA + 12, 4), L_EX + 1024)
    a.e('C_ex2:')
    with a.cold():
        a.e('C_ex1:')
        a.e('ds_write_b32 v%d, v%d offset:%d', X + 3, ZA[0], L_ZX)
        a.e('ds_write_b128 v%d, %s offset:%d', X, vr(KVA, 4), L_EX)
        a.e('ds_write_b128 v%d, %s offset:%d', X, vr(KVA + 4, 4), L_EX + 1024)
        a.e('s_nop 4')
        a.e('v_mov_b32 v%d, v%d', ZA[0], ZA[1])
        for r in range(8):
            a.e('v_mov_b32 v%d, v%d', KVA + r, KVA + 8 + r)
        a.e('s_branch C_ex2')
    a.e('ds_write_b32 v%d, v%d offset:%d', X + 5, X + 7, L_FLG)
    a.e('C_ps:')
    a.e('ds_read_b32 v25, v%d offset:%d', X + 6, L_FLG)
    a.e('ds_read_b128 v[16:19], v%d offset:%d', X + 1, L_EX)
    a.e('ds_read_b128 v[20:23], v%d offset:%d', X + 1, L_EX + 1024)
    a.e('ds_read_b32 v24, v%d offset:%d', X + 4, L_ZX)
    a.e('s_waitcnt lgkmcnt(0)')
    a.e('v_cmp_eq_u32 vcc, 0, v25')
    a.e('s_cbranch_vccnz C_ps')
    for r in range(8):
        a.e('v_add_f32 v%d, v%d, v%d', 16 + r, 16 + r, KVA + r)
    a.e('v_add_f32 v24, v24, v%d', ZA[0])
    for r in range(4):
        a.e('v_cvt_pk_bf16_f32 v%d, v%d, v%d', 28 + r, 16 + 2 * r, 17 + 2 * r)
    a.vm_issue('kvp', 'buffer_store_dwordx4 v[28:31], v3, %s, s43 offen' + WT, WSR)
    a.e('s_mov_b64 exec, 0xffff')
    a.vm_issue('kvp', 'buffer_store_dword v24, v%d, %s, s43 offen offset:%d' + WT, X + 8, WSR, KVZ)
    a.e('s_mov_b64 exec, 1')
    a.vm_issue('f1', 'buffer_atomic_or v%d, v%d, %s, 0 offen', X + 9, X + 10, WSR)
    a.e('s_mov_b64 exec, -1')
    stamp(a, 6)
    if STAMPS == 2:
        a.e('v_mov_b32 v250, v14')
    if ND:
        steps = [(14, 0), (14, 1), (15, 0), (15, 1)]
        for n, (sg, st) in enumerate(steps):
            for cb in range(2):
                for tt in range(2):
                    a.e('ds_read_b64_tr_b16 %s, v%d offset:%d', vr(96 + 8 * n + 4 * cb + 2 * tt, 2), (VB if sg == 14 else VBB) + cb, st * 4096 + tt * 512)
        for n, (sg, st) in enumerate(steps):
            a.e('s_waitcnt lgkmcnt(%d)', 12 - 4 * n)
            for cb in range(2):
                for b in range(4):
                    d = vr(qt(b, cb), 4)
                    a.e('%s %s, %s, %s, %s', M16, d, vr(96 + 8 * n + 4 * cb, 4), vr(AR[sg, st] + 4 * b, 4), d)
    stamp(a, 7)
    xo_loads(a)
    a.e('v_lshlrev_b32 v3, 4, v2')
    a.e('s_lshl_b32 s64, s7, 11')
    a.e('v_add_u32 v4, s64, v3')
    a.e('v_lshrrev_b32 v5, 4, v2')
    a.e('v_lshlrev_b32 v5, 4, v5')
    a.e('s_lshl_b32 s64, s7, 6')
    a.e('v_add_u32 v5, s64, v5')
    a.e('v_mov_b32 v6, %d', L_KEY + 32)
    a.e('ds_read_b32 v6, v6')
    PQ = 32
    for p in range(2):
        phi16(a, QA + 16 * p, PQ + 8 * p, T0, T1, E0, E1, MN)
    a.e('s_waitcnt lgkmcnt(0)')
    a.e('v_readfirstlane_b32 s75, v6')
    a.vm_wait('xo')
    t2_fill(a)
    a.e('s_cmp_lg_u32 s3, 0')
    a.e('s_cbranch_scc1 C_nh')
    h_compute(a)
    a.e('s_waitcnt lgkmcnt(0)')
    a.e('C_nh:')
    a.e('v_lshlrev_b32 v3, 4, v2')
    a.e('s_barrier')
    stamp(a, 8)
    KF, ZF = 16, 24
    NA, DA, OF = 64, 96, 128
    a.e('ds_read_b128 %s, v5 offset:%d', vr(ZF, 4), L_ZF)
    a.e('ds_read_b128 %s, v4 offset:%d', vr(KF, 4), L_KF)
    a.e('ds_read_b128 %s, v4 offset:%d', vr(KF + 4, 4), L_KF + 1024)
    a.e('s_waitcnt lgkmcnt(2)')
    for sb in range(4):
        a.e('%s %s, %s, %s, 0', M16, vr(DA + 4 * sb, 4), vr(ZF, 4), vr(PQ + 4 * sb, 4))
    a.e('s_waitcnt lgkmcnt(0)')
    for sb in range(4):
        for eb in range(2):
            a.e('%s %s, %s, %s, 0', M16, vr(NA + 8 * sb + 4 * eb, 4), vr(KF + 4 * eb, 4), vr(PQ + 4 * sb, 4))
    D = [48 + sb for sb in range(4)]
    for sb in range(4):
        a.e('v_cvt_pk_bf16_f32 v%d, v%d, v%d', D[sb], DA + 4 * sb, DA + 4 * sb)
    for d in D:
        a.e('v_lshlrev_b32 v%d, 16, v%d', d, d)
    for d in D:
        a.e('v_add_f32 v%d, s%d, v%d', d, S_EPS, d)
    for d in D:
        a.e('v_cvt_pk_bf16_f32 v%d, v%d, v%d', d, d, d)
    for d in D:
        a.e('v_lshlrev_b32 v%d, 16, v%d', d, d)
    for d in D:
        a.e('v_rcp_f32 v%d, v%d', d, d)
    a.e('s_nop 0')
    for sb in range(4):
        for j in range(4):
            r = NA + 8 * sb + 2 * j
            a.e('v_mul_f32 v%d, v%d, v%d', r, r, D[sb])
            a.e('v_mul_f32 v%d, v%d, v%d', r + 1, r + 1, D[sb])
            a.e('v_cvt_pk_bf16_f32 v%d, v%d, v%d', OF + 4 * sb + j, r, r + 1)
        a.vm_issue('o', 'buffer_store_dwordx4 %s, v3, %s, s42 offen offset:%d' + WT, vr(OF + 4 * sb, 4), WSR, (sb & 1) * 1024)
        if sb == 1:
            a.e('s_add_u32 s42, s42, 65536')
    if 'latep' not in EXP:
        f2_poll_first(a)
    a.vm_wait('o')
    a.e('s_mov_b64 exec, 3')
    a.vm_issue('f2', 'buffer_atomic_or v13, v12, %s, 0 offen', WSR)
    a.e('s_mov_b64 exec, -1')
    stamp(a, 9)


def gen_p2(a):
    a.e('P2_start:')
    a.vm = []
    a.e('s_and_b32 s6, s3, 3')
    a.e('s_lshr_b32 s7, s3, 2')
    srd(a, S_OUT, 58, 4194304)
    a.e('s_and_b32 s67, s75, 0x7ff')
    a.e('s_sub_u32 s67, 2047, s67')
    VO = 4
    a.e('s_lshl_b32 s64, s4, 2')
    a.e('s_add_u32 s64, s64, s6')
    a.e('s_lshl_b32 s64, s64, 16')
    a.e('s_lshl_b32 s65, s7, 15')
    a.e('s_add_u32 s64, s64, s65')
    a.e('v_lshlrev_b32 v%d, 4, v2', VO)
    a.e('v_add_u32 v%d, s64, v%d', VO, VO)
    M16 = 'v_mfma_f32_16x16x32_bf16'
    VWL = [5, 6, 1, 3]; VW = [8, 9, 10, 11]
    a.e('v_lshrrev_b32 v10, 4, v2')
    a.e('v_bfe_u32 v11, v2, 2, 2')
    a.e('v_lshl_add_u32 v12, v10, 2, v11')
    a.e('v_bfe_u32 v13, v12, 1, 2')
    a.e('v_lshlrev_b32 v12, 7, v12')
    a.e('v_lshl_add_u32 v12, v13, 5, v12')
    a.e('v_and_b32 v13, 3, v2')
    a.e('v_lshl_add_u32 v%d, v13, 3, v12', VWL[0])
    for nb in range(1, 4):
        a.e('v_xor_b32 v%d, %d, v%d', VWL[nb], 32 * nb, VWL[0])
    SB = 32
    VT, VF, VP = 7, 14, 15
    if 'latep' in EXP:
        f2_poll_first(a)

    def poll():
        return ['s_mov_b64 exec, 1', 'v_mov_b32 v%d, 0' % VP,
                'buffer_atomic_or v%d, v%d, %s, 0 offen sc0' % (VP, VF, WSR), 's_mov_b64 exec, -1']
    a.e('s_lshl_b32 s74, s74, 1') if 'norot2' not in EXP else a.e('s_mov_b32 s74, 0')
    a.e('s_cmp_eq_u32 s7, 0')
    for j in range(8):
        a.e('s_mov_b32 s64, %d', POS[8 + j])
        a.e('s_cselect_b32 s64, %d, s64', POS[j])
        a.e('s_sub_u32 m0, %d, s74', 2 * j + 16)
        a.e('s_and_b32 m0, m0, 15')
        a.e('v_writelane_b32 v%d, s64, m0', VT)
        a.e('s_cmp_eq_u32 s7, 0')
    ACO = [16, 32]
    WOF = [48, 64]
    OB = 80
    YL = 208
    for r in range(16, 48):
        a.e('v_mov_b32 v%d, 0', r)
    if 'p2prio' in EXP:
        a.e('s_cmp_lt_u32 s3, 4')
        a.e('s_cbranch_scc1 P2_np')
        a.e('s_setprio 1')
        a.e('P2_np:')
    if STAMPS == 2:
        a.e('s_mov_b32 s71, 0')
        for l in range(48, 64):
            a.e('v_writelane_b32 v250, 0, %d', l)
    a.e('s_mov_b32 s66, 0x5555')
    a.e('s_mov_b32 s65, 0')
    stamp(a, 10)

    def issue(c):
        L = ['s_ff1_i32_b32 s64, s68', 's_bitset0_b32 s68, s64', 'v_readlane_b32 s%d, v%d, s64' % (SB + c, VT),
             's_add_u32 s69, s64, s74', 's_and_b32 s69, s69, 15', 's_lshl_b32 s69, s69, 11']
        for q in range(4):
            L.append('buffer_load_dwordx4 %s, v%d, %s, s69 offen offset:%d sc1' % (vr(OB + 16 * c + 4 * q, 4), VO, WSR, q * 1024))
        return L

    def wo_reads(c, u):
        L = []
        for nb in range(4):
            if u == 0:
                L.append('v_add_u32 v%d, s%d, v%d' % (VW[nb], SB + c, VWL[nb]))
            for tt in range(2):
                L.append('ds_read_b64_tr_b16 %s, v%d offset:%d' % (vr(WOF[u] + 4 * nb + 2 * tt, 2), VW[nb], u * 4096 + tt * 2048))
        return L

    def Mm(c, u):
        L = []
        for nb in range(4):
            for sub in range(2):
                d = vr(16 + (sub * 4 + nb) * 4, 4)
                L.append('%s %s, %s, %s, %s' % (M16, d, vr(WOF[u] + 4 * nb, 4), vr(OB + 16 * c + 8 * u + 4 * sub, 4), d))
        return L

    if 'latep' not in EXP:
        a.e('s_cmp_lt_u32 s3, 4')
        a.e('s_cbranch_scc0 D_wait')
        a.e('s_waitcnt vmcnt(1)')
        a.e('s_branch D_got')
    a.e('D_wait:')
    a.e('s_waitcnt vmcnt(0)')
    a.e('D_got:')
    a.e('v_readfirstlane_b32 s68, v%d', VP)
    a.e('s_mul_i32 s68, s68, 0x10001')
    a.e('s_lshr_b32 s68, s68, s74')
    a.e('s_lshr_b32 s64, s68, 1')
    a.e('s_and_b32 s68, s68, s64')
    a.e('s_and_b32 s68, s68, s66')
    a.e('s_cbranch_scc1 D_go')
    a.e('s_add_u32 s65, s65, 1')
    a.e('s_cmp_ge_u32 s65, 40000')
    a.e('s_cbranch_scc1 D_end')
    if E('PSL', 1):
        a.e('s_sleep %d', E('PSL', 1))
    for p in poll():
        a.e(p)
    a.e('s_branch D_wait')
    a.e('D_go:')
    a.e('s_andn2_b32 s66, s66, s68')
    if STAMPS == 2:
        a.e('s_memrealtime s[86:87]')
        a.e('s_min_u32 s64, s71, 7')
        a.e('s_lshl_b32 s64, s64, 1')
        a.e('s_add_u32 m0, s64, 48')
        a.e('s_waitcnt lgkmcnt(0)')
        a.e('v_writelane_b32 v250, s86, m0')
        a.e('s_add_u32 m0, m0, 1')
        a.e('s_nop 0')
        a.e('v_writelane_b32 v250, s66, m0')
        a.e('s_add_u32 s71, s71, 1')
    a.e('s_lshr_b32 s64, s67, 7')
    a.e('s_xor_b32 s64, s64, s4')
    a.e('s_or_b32 s64, s64, s66')
    a.e('s_cbranch_scc0 P2_yl')
    with a.cold():
        a.e('P2_yl:')
        a.e('s_lshl_b32 s64, s5, 8')
        a.e('s_lshl_b32 s69, s3, 15')
        a.e('s_add_u32 s64, s64, s69')
        a.e('s_add_u32 s64, s64, %d', WS_YP)
        a.e('v_lshlrev_b32 v13, 2, v2')
        a.e('v_add_u32 v13, s64, v13')
        for q in range(8):
            a.e('s_mov_b32 s69, %d', q * 4096)
            a.e('buffer_load_dword v%d, v13, %s, s69 offen sc1' % (YL + q, WSR))
        a.e('s_branch P2_nyl')
    a.e('P2_nyl:')
    a.e('s_bcnt1_i32_b32 s70, s68')
    a.e('s_cmp_gt_u32 s70, 4')
    a.e('s_cbranch_scc1 D_t58')
    a.e('s_cmp_gt_u32 s70, 2')
    a.e('s_cbranch_scc1 D_t34')
    a.e('s_cmp_eq_u32 s70, 2')
    a.e('s_cbranch_scc1 D_e2')

    def entry(n, last=False):
        a.e('D_e%d:', n)
        L = issue(n - 1)
        if n >= 2:
            L += issue(n - 2)
        if n <= 2:
            L += poll()
        for x in L + wo_reads(n - 1, 0):
            a.e(x)
        if not last:
            a.e('s_branch D_p%d', n - 1)
    entry(1); entry(2)
    a.e('D_t34:')
    a.e('s_cmp_eq_u32 s70, 4')
    a.e('s_cbranch_scc1 D_e4')
    entry(3); entry(4)
    a.e('D_t58:')
    a.e('s_cmp_gt_u32 s70, 6')
    a.e('s_cbranch_scc1 D_t78')
    a.e('s_cmp_eq_u32 s70, 6')
    a.e('s_cbranch_scc1 D_e6')
    entry(5); entry(6)
    a.e('D_t78:')
    a.e('s_cmp_eq_u32 s70, 8')
    a.e('s_cbranch_scc1 D_e8')
    entry(7); entry(8, True)
    for c in range(7, -1, -1):
        a.e('D_p%d:', c)
        G = issue(c - 2) if c >= 2 else []
        Gs = [G[:7], G[7:8], G[8:9], G[9:10] + (poll() if c == 2 else [])] if G else [[], [], [], []]
        for u in range(2):
            if u == 0:
                a.e('s_waitcnt vmcnt(%d) lgkmcnt(0)', 4 if c >= 2 else (5 if c == 1 else 1))
            else:
                a.e('s_waitcnt lgkmcnt(0)')
            F = wo_reads(c, 1) if u == 0 else (wo_reads(c - 1, 0) if c >= 1 else [])
            M = Mm(c, u)
            per = -(-len(F) // 6) if F else 0
            for k in range(8):
                a.e(M[k])
                for f in F[k * per:(k + 1) * per]:
                    a.e(f)
                if k in (3, 6):
                    for x in Gs[2 * u + k // 6]:
                        a.e(x)
    a.e('s_cmp_lg_u32 s66, 0')
    a.e('s_cbranch_scc1 D_wait')
    a.e('D_end:')
    stamp(a, 11)
    a.e('v_and_b32 v8, 15, v2')
    a.e('s_lshl_b32 s64, s6, 5')
    a.e('v_add_u32 v8, s64, v8')
    a.e('v_mul_u32_u24 v8, %d, v8', TP)
    a.e('v_lshrrev_b32 v9, 4, v2')
    a.e('v_lshl_add_u32 v8, v9, 4, v8')
    a.e('s_mul_i32 s64, s7, %d', TK)
    a.e('s_add_u32 s64, s64, %d', RB)
    a.e('v_add_u32 v8, s64, v8')
    a.e('v_lshrrev_b32 v6, 3, v0')
    a.e('v_mul_u32_u24 v5, %d, v6', TP)
    a.e('v_and_b32 v6, 7, v0')
    a.e('v_lshl_add_u32 v5, v6, 5, v5')
    a.e('v_add_u32 v5, %d, v5', RB)
    a.e('v_lshlrev_b32 v9, 5, v6')
    a.e('s_barrier')
    stamp(a, 3, lvl=3)
    for sub in range(2):
        for nb in range(4):
            a.e('ds_write_b128 v8, %s offset:%d', vr(16 + (sub * 4 + nb) * 4, 4), sub * 16 * TP + nb * 64)
    a.e('s_lshr_b32 s64, s67, 7')
    a.e('s_cmp_lg_u32 s64, s4')
    a.e('s_cbranch_scc0 P2_y')
    with a.cold():
        a.e('P2_y:')
        a.e('s_mov_b32 s66, 0')
        a.e('P2_ychk:')
        a.e('s_waitcnt vmcnt(0)')
        a.e('v_max3_u32 v10, v%d, v%d, v%d', YL, YL + 1, YL + 2)
        a.e('v_max3_u32 v10, v%d, v%d, v10', YL + 3, YL + 4)
        a.e('v_max3_u32 v10, v%d, v%d, v10', YL + 5, YL + 6)
        a.e('v_max_u32 v10, v%d, v10', YL + 7)
        a.e('v_cmp_eq_u32 vcc, -1, v10')
        a.e('s_cbranch_vccz P2_yok')
        a.e('s_add_u32 s66, s66, 1')
        a.e('s_cmp_ge_u32 s66, 100000')
        a.e('s_cbranch_scc1 P2_yok')
        a.e('s_sleep 4')
        for q in range(8):
            a.e('s_mov_b32 s65, %d', q * 4096)
            a.e('buffer_load_dword v%d, v13, %s, s65 offen sc1' % (YL + q, WSR))
        a.e('s_branch P2_ychk')
        a.e('P2_yok:')
        for q in range(1, 8):
            a.e('v_add_f32 v%d, v%d, v%d', YL, YL, YL + q)
        a.e('v_lshlrev_b32 v7, 2, v2')
        a.e('s_lshl_b32 s64, s3, 8')
        a.e('v_add_u32 v7, s64, v7')
        a.e('v_add_u32 v7, %d, v7', L_YS)
        a.e('ds_write_b32 v7, v%d', YL)
        a.e('s_branch P2_ny')
    a.e('P2_ny:')
    a.e('s_waitcnt lgkmcnt(0)')
    stamp(a, 4, lvl=3)
    a.e('s_barrier')
    stamp(a, 6, lvl=3)
    AB = 64
    for half in range(2):
        for k in range(2):
            for q in range(2):
                a.e('ds_read_b128 %s, v5 offset:%d', vr(AB + 16 * half + 8 * k + 4 * q, 4), half * 64 * TP + k * TK + q * 16)
    a.e('v_add_u32 v9, %d, v9', L_YS)
    a.e('s_mov_b32 s68, 131072')
    for half in range(2):
        A = AB + 16 * half
        X = XO + 4 * half
        Gr = XO + 8 + half
        T = T2 + 8 * half
        om = OM[half]
        a.e('v_add_u32 v6, %d, v%d', 64 * half, VRO)
        a.e('v_cmp_eq_u32 vcc, s67, v6')
        lab = a.label('P2_nr')
        a.e('s_cbranch_vccnz %s_fix', lab)
        a.e('%s:', lab)
        with a.cold():
            a.e('%s_fix:', lab)
            a.e('s_and_saveexec_b64 s[70:71], vcc')
            Y = 128
            for w in range(8):
                a.e('ds_read_b128 %s, v9 offset:%d', vr(Y + 8 * w, 4), w * 256)
                a.e('ds_read_b128 %s, v9 offset:%d', vr(Y + 8 * w + 4, 4), w * 256 + 16)
            a.e('s_and_b32 s64, s75, 0xffff0000')
            a.e('s_xor_b32 s65, s64, 0x80000000')
            a.e('s_not_b32 s66, s64')
            a.e('s_and_b32 s66, s66, 0xffff0000')
            a.e('s_cmp_ge_u32 s64, 0x80000000')
            a.e('s_cselect_b32 s64, s65, s66')
            a.e('v_mov_b32 v100, s64')
            sigmoid_bf16(a, [100])
            a.e('s_waitcnt lgkmcnt(0)')
            for w in range(1, 8):
                for q in range(8):
                    a.e('v_add_f32 v%d, v%d, v%d', Y + q, Y + q, Y + 8 * w + q)
            for q in range(4):
                y0, y1 = Y + 2 * q, Y + 2 * q + 1
                x0, x1 = T + 2 * q, T + 2 * q + 1
                a.e('v_cvt_pk_bf16_f32 v116, v%d, v%d', y0, y1)
                a.e('v_lshlrev_b32 v%d, 16, v116', y0)
                a.e('v_and_b32 v%d, 0xffff0000, v116', y1)
                a.e('v_mul_f32 v%d, v%d, v100', y0, y0)
                a.e('v_mul_f32 v%d, v%d, v100', y1, y1)
                a.e('v_cvt_pk_bf16_f32 v116, v%d, v%d', y0, y1)
                a.e('v_lshlrev_b32 v%d, 16, v116', y0)
                a.e('v_and_b32 v%d, 0xffff0000, v116', y1)
                a.e('v_lshlrev_b32 v%d, 16, v%d', x0, X + q)
                a.e('v_and_b32 v%d, 0xffff0000, v%d', x1, X + q)
                a.e('v_add_f32 v%d, v%d, v%d', x0, x0, y0)
                a.e('v_add_f32 v%d, v%d, v%d', x1, x1, y1)
                a.e('v_cvt_pk_bf16_f32 v116, v%d, v%d', x0, x1)
                a.e('v_lshlrev_b32 v%d, 16, v116', x0)
                a.e('v_and_b32 v%d, 0xffff0000, v116', x1)
                a.e('v_mul_f32 v%d, v%d, v%d', x0, x0, om)
                a.e('v_mul_f32 v%d, v%d, v%d', x1, x1, om)
                a.e('v_cvt_pk_bf16_f32 v116, v%d, v%d', x0, x1)
                a.e('v_lshlrev_b32 v%d, 16, v116', x0)
                a.e('v_and_b32 v%d, 0xffff0000, v116', x1)
            a.e('s_mov_b64 exec, s[70:71]')
            a.e('s_branch %s', lab)
        a.e('s_waitcnt lgkmcnt(%d)', 4 if half == 0 else 0)
        O = 120 + 4 * half
        for q in range(4):
            a0, a1 = A + 2 * q, A + 2 * q + 1
            a.e('v_add_f32 v%d, v%d, v%d', a0, a0, a0 + 8)
            a.e('v_add_f32 v%d, v%d, v%d', a1, a1, a1 + 8)
            a.e('v_cvt_pk_bf16_f32 v116, v%d, v%d', a0, a1)
            a.e('v_lshlrev_b32 v%d, 16, v116', a0)
            a.e('v_and_b32 v%d, 0xffff0000, v116', a1)
            a.e('v_mul_f32 v%d, v%d, v%d', a0, a0, Gr)
            a.e('v_mul_f32 v%d, v%d, v%d', a1, a1, Gr)
            a.e('v_cvt_pk_bf16_f32 v116, v%d, v%d', a0, a1)
            a.e('v_lshlrev_b32 v%d, 16, v116', a0)
            a.e('v_and_b32 v%d, 0xffff0000, v116', a1)
            a.e('v_add_f32 v%d, v%d, v%d', a0, a0, T + 2 * q)
            a.e('v_add_f32 v%d, v%d, v%d', a1, a1, T + 2 * q + 1)
            a.e('v_cvt_pk_bf16_f32 v%d, v%d, v%d', O + q, a0, a1)
        a.e('buffer_store_dwordx4 %s, v%d, %s, %s offen ' + os.environ.get('OUTF', 'nt'), vr(O, 4), VXO, sr(S_OUT, 4), '0' if half == 0 else 's68')
    stamp(a, 7, lvl=3)
    if STAMPS:
        a.e('s_waitcnt vmcnt(0)')
    stamp(a, 12, True); stamp(a, 2, False)
    stamp_flush(a)
    a.e('K_end:')
    a.e('s_endpgm')
    a.flush_cold()


def main():
    hdr = open(os.path.join(os.path.dirname(os.path.abspath(__file__)), '..', NAME + '.s.ref')).read().split('; Override launch')[0]
    a = Asm()
    a.e('.amdgcn_target "amdgcn-amd-amdhsa--gfx950"')
    a.e('.text')
    gen(a)
    a.e('CODE_END:')
    out = hdr + '; @launch grid=(256,1,1) block=(512,1,1) lds=%d\n' % LDS_BYTES + a.text() + '.section .rodata,"a"\n' + kd(NAME + '_kernel', 256)
    path = sys.argv[1] if len(sys.argv) > 1 else os.path.join(os.path.dirname(os.path.abspath(__file__)), '..', NAME + '.s')
    open(path, 'w').write(out)


if __name__ == '__main__':
    main()
```

```python
import sys, os
sys.path.insert(0, os.path.dirname(os.path.abspath(__file__)))
from asmlib import *

NAME = 'gated_mix__linear_attn_block__moe_arch_mod__prompt'
E = lambda k, d: int(os.environ.get(k, str(d)))
EXP = os.environ.get('EXP', '').split(',')

WS_O = 0
WS_KVP = 4 << 20
KVB = 1152
KVZ = 1024
WS_F1 = WS_KVP + 16 * 4 * 16 * KVB
WS_F2 = WS_F1 + 64 * 128
WS_HP = WS_F2 + 128 * 128
WS_YP = WS_HP + 64 * 2 * 32 * 256
WS_G = WS_YP + 64 * 4096
WS_KEY = WS_G + 8192
WS_END = WS_KEY + 4096
WS_BYTES = 268435456
WS_ST = 16 << 20

STAMPS = E('STAMPS', 0)
WT = ' sc1' if 'wt1' in EXP else ' sc0 sc1'
NTA = ' nt' if 'ntA' in EXP else ''
NTB = ' nt' if 'ntB' in EXP else ''
NTO = ' nt' if 'ntO' in EXP else ''
NTW = '' if 'nontW' in EXP else ' nt'
LOG2E = 0x3fb8aa3b
EPS6 = 0x358637bd

SLOT = 40960
MISC = 0
RB = 8192
SP = RB + 3 * SLOT
L_KF = MISC
L_ZF = MISC + 4096
L_KEY = MISC + 4224
L_FLG = MISC + 4288
L_H = MISC + 4352
L_ZX = MISC + 4608
L_YS = MISC + 5632
L_EX = RB + 24576
LDS_BYTES = 163840
EARLY = [SP, SP + 8192, RB + SLOT + 24576, RB + 2 * SLOT + 24576, SP + 16384, SP + 24576, RB + SLOT + 32768, RB + 2 * SLOT + 32768]
LATE = [RB + x for x in (32768, 0, 8192, 2 * SLOT + 8192, SLOT, SLOT + 8192, SLOT + 16384, 2 * SLOT)]
POS = EARLY[0:4] + LATE[0:4] + EARLY[4:8] + LATE[4:8]
TP = 272
TK = 128 * TP

S_X, S_W, S_WS, S_DBG, S_WR, S_GW, S_WG, S_WU = 8, 12, 16, 20, 24, 28, 32, 36
S_WO, S_OUT, S_WD = 12, 20, 24
WSR = sr(S_WS, 4)
S_LOG2E, S_EPS = 72, 73


def stamp(a, idx, real=True, lvl=0):
    if STAMPS in (3, 4) and idx in (3, 4, 6, 7, 9, 10) and lvl != STAMPS:
        return
    if lvl and STAMPS != lvl:
        return
    if STAMPS:
        a.e('%s s[%d:%d]', 's_memrealtime' if real else 's_memtime', 76 + 2 * idx, 77 + 2 * idx)


def stamp_flush(a):
    if not STAMPS:
        return
    a.e('s_waitcnt lgkmcnt(0)')
    a.e('s_lshl_b32 s64, s2, 3')
    a.e('s_add_u32 s64, s64, s3')
    a.e('s_lshl_b32 s64, s64, 7')
    a.e('s_add_u32 s64, s64, %d', WS_ST)
    a.e('v_mov_b32 v1, s64')
    a.e('s_mov_b64 exec, 1')
    for i in range(13):
        a.e('v_mov_b32 v2, s%d', 76 + 2 * i)
        a.e('v_mov_b32 v3, s%d', 77 + 2 * i)
        a.e('buffer_store_dwordx2 v[2:3], v1, %s, 0 offen offset:%d', WSR, 8 * i)
        a.e('s_nop 1')
    a.e('s_mov_b64 exec, -1')
    if STAMPS == 2:
        a.e('s_lshl_b32 s64, s2, 3')
        a.e('s_add_u32 s64, s64, s3')
        a.e('s_lshl_b32 s64, s64, 8')
        a.e('s_add_u32 s64, s64, %d', WS_ST + (1 << 20))
        a.e('v_and_b32 v1, 63, v0')
        a.e('v_lshlrev_b32 v1, 2, v1')
        a.e('v_add_u32 v1, s64, v1')
        a.e('buffer_store_dword v250, v1, %s, 0 offen', WSR)


def phi16_fast(a, acc, out, e0, mn, sp):
    for j in range(8):
        a0, a1, p = acc + 2 * j, acc + 2 * j + 1, out + j
        e = e0 + 2 * (j & 1)
        a.e('v_pk_mul_f32 v[%d:%d], v[%d:%d], s[%d:%d]', e, e + 1, a0, a1, sp, sp + 1)
        a.e('v_pk_add_f32 v[%d:%d], v[%d:%d], s[%d:%d]', a0, a1, a0, a1, sp + 2, sp + 3)
        a.e('v_exp_f32 v%d, v%d clamp', e, e)
        a.e('v_exp_f32 v%d, v%d clamp', e + 1, e + 1)
        if j:
            phi_tail(a, acc, out, e0, mn, j - 1)
    phi_tail(a, acc, out, e0, mn, 7)
    phi_fix(a, out, e0, e0 + 1, mn)


def phi_tail(a, acc, out, e0, mn, j):
    a0, a1, p = acc + 2 * j, acc + 2 * j + 1, out + j
    e = e0 + 2 * (j & 1)
    a.e('v_max_f32 v%d, v%d, v%d', a0, a0, e)
    a.e('v_max_f32 v%d, v%d, v%d', a1, a1, e + 1)
    if j == 0:
        a.e('v_min_f32 v%d, v%d, v%d', mn, a0, a1)
    else:
        a.e('v_min3_f32 v%d, v%d, v%d, v%d', mn, a0, a1, mn)
    a.e('v_cvt_pk_bf16_f32 v%d, v%d, v%d', p, a0, a1)


def phi16(a, acc, out, t0, t1, e0, e1, mn):
    for j in range(8):
        a0, a1, p = acc + 2 * j, acc + 2 * j + 1, out + j
        a.e('v_cvt_pk_bf16_f32 v%d, v%d, v%d', p, a0, a1)
        a.e('v_lshlrev_b32 v%d, 16, v%d', t0, p)
        a.e('v_and_b32 v%d, 0xffff0000, v%d', t1, p)
        a.e('v_mul_f32 v%d, s%d, v%d', e0, S_LOG2E, t0)
        a.e('v_mul_f32 v%d, s%d, v%d', e1, S_LOG2E, t1)
        a.e('v_exp_f32 v%d, v%d clamp', e0, e0)
        a.e('v_exp_f32 v%d, v%d clamp', e1, e1)
        a.e('v_max_f32 v%d, 0, v%d', t0, t0)
        a.e('v_max_f32 v%d, 0, v%d', t1, t1)
        a.e('v_add_f32 v%d, v%d, v%d', t0, t0, e0)
        a.e('v_add_f32 v%d, v%d, v%d', t1, t1, e1)
        if j == 0:
            a.e('v_min_f32 v%d, v%d, v%d', mn, t0, t1)
        else:
            a.e('v_min3_f32 v%d, v%d, v%d, v%d', mn, t0, t1, mn)
        a.e('v_cvt_pk_bf16_f32 v%d, v%d, v%d', p, t0, t1)
    phi_fix(a, out, t0, t1, mn)


def phi_fix(a, out, t0, t1, mn):
    lab = a.label('phi')
    a.e('v_cmp_gt_f32 vcc, 0x3a800000, v%d', mn)
    a.e('s_cbranch_vccnz %s_fix', lab)
    a.e('%s_done:', lab)
    with a.cold():
        a.e('%s_fix:', lab)
        for j in range(8):
            p = out + j
            a.e('v_lshlrev_b32 v%d, 16, v%d', t0, p)
            a.e('v_and_b32 v%d, 0xffff0000, v%d', t1, p)
            a.e('v_add_f32 v%d, s%d, v%d', t0, S_EPS, t0)
            a.e('v_add_f32 v%d, s%d, v%d', t1, S_EPS, t1)
            a.e('v_cvt_pk_bf16_f32 v%d, v%d, v%d', p, t0, t1)
        a.e('s_branch %s_done', lab)


def wave_reduce(a, regs, op, stmp):
    pats = ['quad_perm:[1,0,3,2]', 'quad_perm:[2,3,0,1]', 'row_half_mirror', 'row_mirror']
    a.e('s_nop 1')
    for p in pats:
        if len(regs) < 3:
            a.e('s_nop 1')
        for r in regs:
            a.e('%s_dpp v%d, v%d, v%d %s row_mask:0xf bank_mask:0xf', op, r, r, r, p)
    a.e('s_nop 1')
    for r in regs:
        for q in range(4):
            a.e('v_readlane_b32 s%d, v%d, %d', stmp + q, r, 16 * q)
        a.e('s_nop 1')
        a.e('v_mov_b32 v%d, s%d', r, stmp)
        for q in range(1, 4):
            a.e('%s v%d, s%d, v%d', op, r, stmp + q, r)


def sigmoid_bf16(a, regs):
    for r in regs:
        a.e('v_mul_f32 v%d, s%d, v%d', r, S_LOG2E, r)
    for r in regs:
        a.e('v_exp_f32 v%d, -v%d', r, r)
    a.e('s_nop 0')
    for r in regs:
        a.e('v_add_f32 v%d, 1.0, v%d', r, r)
    for r in regs:
        a.e('v_rcp_f32 v%d, v%d', r, r)
    a.e('s_nop 0')
    for r in regs:
        a.e('v_cvt_pk_bf16_f32 v%d, v%d, v%d', r, r, r)
    for r in regs:
        a.e('v_lshlrev_b32 v%d, 16, v%d', r, r)


def p2_ids(a):
    a.e('s_and_b32 s64, s2, 7')
    a.e('s_lshr_b32 s65, s2, 3')
    a.e('s_and_b32 s4, s64, 3')
    a.e('s_lshl_b32 s4, s4, 2')
    a.e('s_and_b32 s66, s65, 3')
    a.e('s_add_u32 s4, s4, s66')
    a.e('s_lshr_b32 s5, s64, 2')
    a.e('s_lshl_b32 s5, s5, 3')
    a.e('s_lshr_b32 s74, s65, 2')
    a.e('s_add_u32 s5, s5, s74')


def wo_voff(a, vdst, t0, t1, s_piece):
    a.e('v_lshrrev_b32 v%d, 3, v2', t0)
    a.e('s_lshl_b32 s64, s%d, 3', s_piece)
    a.e('v_add_u32 v%d, s64, v%d', t0, t0)
    a.e('v_lshlrev_b32 v%d, 11, v%d', t0, t0)
    a.e('v_lshrrev_b32 v%d, 4, v2', t1)
    a.e('v_lshlrev_b32 v%d, 1, v%d', t1, t1)
    a.e('v_and_b32 v%d, 7, v2', vdst)
    a.e('v_xor_b32 v%d, v%d, v%d', t1, t1, vdst)
    a.e('v_lshl_add_u32 v%d, v%d, 4, v%d', t0, t1, t0)
    a.e('s_lshl_b32 s64, s5, 7')
    a.e('v_add_u32 v%d, s64, v%d', vdst, t0)


def wo_dma(a, pos, voff, s_w1k, tag):
    a.e('s_mov_b32 s65, %d', pos << 17)
    for b in range(2):
        a.e('s_add_u32 m0, s%d, %d', s_w1k, POS[pos] + b * 4096)
        if b:
            a.e('s_add_u32 s65, s65, 65536')
        else:
            a.e('s_nop 0')
        a.vm_issue(tag, 'buffer_load_dwordx4 v%d, %s, s65 offen' + NTO + ' lds', voff, sr(S_WO, 4))


XO = 220
T2 = 232
VRO, VXO = 230, 231


def xo_loads(a):
    a.e('s_and_b32 s64, s3, 3')
    a.e('s_lshl_b32 s64, s64, 1')
    a.e('s_lshr_b32 s65, s3, 2')
    a.e('s_add_u32 s64, s64, s65')
    a.e('s_lshl_b32 s64, s64, 4')
    a.e('s_lshl_b32 s65, s4, 7')
    a.e('s_add_u32 s64, s64, s65')
    a.e('v_and_b32 v%d, 15, v2', VRO)
    a.e('v_add_u32 v%d, s64, v%d', VRO, VRO)
    a.e('v_bfe_u32 v3, v2, 4, 1')
    a.e('v_lshlrev_b32 v%d, 5, v3', VCO)
    a.e('v_lshrrev_b32 v3, 5, v2')
    a.e('v_lshl_add_u32 v%d, v3, 4, v%d', VCO, VCO)
    a.e('v_lshl_add_u32 v%d, v%d, 11, v%d', VXO, VRO, VCO)
    a.e('s_lshl_b32 s64, s5, 7')
    a.e('v_add_u32 v%d, s64, v%d', VXO, VXO)
    a.e('v_lshlrev_b32 v3, 2, v%d', VRO)
    a.e('v_add_u32 v3, %d, v3', WS_G)
    a.vm_issue('xo', 'buffer_load_dwordx4 %s, v%d, %s, 0 offen', vr(XO, 4), VXO, sr(S_X, 4))
    a.vm_issue('xo', 'buffer_load_dwordx4 %s, v%d, %s, 0 offen offset:64', vr(XO + 4, 4), VXO, sr(S_X, 4))
    a.vm_issue('xo', 'buffer_load_dword v%d, v3, %s, 0 offen sc1', XO + 8, WSR)


OM = 248
VCO = 229


def t2_fill(a):
    a.e('v_sub_f32 v%d, 1.0, v%d', OM, XO + 8)
    a.e('v_cvt_pk_bf16_f32 v%d, v%d, v%d', OM, OM, OM)
    a.e('v_lshlrev_b32 v%d, 16, v%d', OM, OM)
    for q in range(8):
        x0, x1 = T2 + 2 * q, T2 + 2 * q + 1
        a.e('v_lshlrev_b32 v%d, 16, v%d', x0, XO + q)
        a.e('v_and_b32 v%d, 0xffff0000, v%d', x1, XO + q)
        a.e('v_mul_f32 v%d, v%d, v%d', x0, x0, OM)
        a.e('v_mul_f32 v%d, v%d, v%d', x1, x1, OM)
        a.e('v_cvt_pk_bf16_f32 v3, v%d, v%d', x0, x1)
        a.e('v_lshlrev_b32 v%d, 16, v3', x0)
        a.e('v_and_b32 v%d, 0xffff0000, v3', x1)


MASK14 = 's_mov_b32 exec_lo, 0x3fff3fff\ns_mov_b32 exec_hi, 0x3fff3fff'


def h_compute(a):
    HB = 64
    a.e('s_lshr_b32 s64, s2, 2')
    a.e('s_lshl_b32 s64, s64, 14')
    a.e('s_add_u32 s64, s64, %d', WS_HP)
    a.e('v_lshl_add_u32 v16, v2, 4, s64')
    a.e('v_lshrrev_b32 v8, 4, v2')
    a.e('s_mov_b32 s65, 0')
    a.e('H_hl:')
    for q in range(16):
        a.e('s_mov_b32 s64, %d', (q >> 2) * 4096)
        a.e('buffer_load_dwordx4 %s, v16, %s, s64 offen offset:%d sc1', vr(HB + 4 * q, 4), WSR, (q & 3) * 1024)
    a.e('s_waitcnt vmcnt(0)')
    a.e('v_max3_u32 v17, v%d, v%d, v%d', HB, HB + 1, HB + 2)
    for r in range(3, 63, 2):
        a.e('v_max3_u32 v17, v%d, v%d, v17', HB + r, HB + r + 1)
    a.e('v_max_u32 v17, v%d, v17', HB + 63)
    a.e(MASK14)
    a.e('v_cmp_eq_u32 vcc, -1, v17')
    a.e('s_mov_b64 exec, -1')
    a.e('s_cbranch_vccz H_hok')
    a.e('s_add_u32 s65, s65, 1')
    a.e('s_cmp_ge_u32 s65, 100000')
    a.e('s_cbranch_scc1 H_hok')
    a.e('s_sleep 8')
    a.e('s_branch H_hl')
    a.e('H_hok:')
    for m in range(2):
        for i in range(1, 8):
            for q in range(4):
                a.e('v_add_f32 v%d, v%d, v%d', HB + 32 * m + q, HB + 32 * m + q, HB + 32 * m + 4 * i + q)
    a.e('s_nop 1')
    for q in range(4):
        a.e('v_permlane16_swap_b32 v%d, v%d', HB + q, HB + 32 + q)
    for q in range(4):
        a.e('v_add_f32 v%d, v%d, v%d', HB + q, HB + q, HB + 32 + q)
    a.e('s_nop 1')
    for q in range(2):
        a.e('v_permlane32_swap_b32 v%d, v%d', HB + q, HB + 2 + q)
    for q in range(2):
        a.e('v_add_f32 v%d, v%d, v%d', HB + q, HB + q, HB + 2 + q)
    a.e('s_nop 1')
    a.e('v_permlane16_swap_b32 v%d, v%d', HB, HB + 1)
    G_, U_, T_ = HB, HB + 1, HB + 2
    a.e('v_cvt_pk_bf16_f32 v%d, v%d, v%d', T_, G_, U_)
    a.e('v_lshlrev_b32 v%d, 16, v%d', G_, T_)
    a.e('v_and_b32 v%d, 0xffff0000, v%d', U_, T_)
    a.e('v_mul_f32 v%d, s%d, v%d', T_, S_LOG2E, G_)
    a.e('v_exp_f32 v%d, -v%d', T_, T_)
    a.e('v_and_b32 v16, 15, v2')
    a.e('v_add_f32 v%d, 1.0, v%d', T_, T_)
    a.e('v_rcp_f32 v%d, v%d', T_, T_)
    a.e('v_lshl_add_u32 v16, v16, 2, v8')
    a.e('v_mul_f32 v%d, v%d, v%d', T_, T_, G_)
    a.e('v_cvt_pk_bf16_f32 v%d, v%d, v%d', T_, T_, T_)
    a.e('v_lshlrev_b32 v%d, 16, v%d', T_, T_)
    a.e('v_mul_f32 v%d, v%d, v%d', T_, T_, U_)
    a.e('v_cvt_pk_bf16_f32 v%d, v%d, v%d', T_, T_, T_)
    a.e('v_lshlrev_b32 v%d, 16, v%d', T_, T_)
    a.e('v_lshlrev_b32 v16, 2, v16')
    a.e('ds_write_b32 v16, v%d offset:%d', T_, L_H)


def f2_poll_first(a):
    a.e('s_lshl_b32 s64, s4, 3')
    a.e('s_add_u32 s64, s64, s3')
    a.e('s_lshl_b32 s64, s64, 7')
    a.e('s_add_u32 s64, s64, %d', WS_F2)
    a.e('v_mov_b32 v14, s64')
    a.e('s_mov_b64 exec, 1')
    a.e('v_mov_b32 v15, 0')
    a.vm_issue('p', 'buffer_atomic_or v15, v14, %s, 0 offen sc0', WSR)
    a.e('s_mov_b64 exec, -1')


def gen(a):
    kn = NAME + '_kernel'
    a.e('.globl %s\n.p2align 8\n.type %s,@function\n%s:' % (kn, kn, kn))
    a.e('s_load_dwordx16 s[40:55], s[0:1], 0')
    a.e('s_load_dwordx8 s[56:63], s[0:1], 64')
    a.e('s_cmp_ge_u32 s2, 256')
    a.e('s_cbranch_scc1 K_end')
    stamp(a, 0, True); stamp(a, 1, False)
    a.e('v_lshrrev_b32 v1, 6, v0')
    a.e('v_and_b32 v2, 63, v0')
    a.e('s_and_b32 s6, s2, 7')
    a.e('v_readfirstlane_b32 s3, v1')
    a.e('s_lshr_b32 s7, s2, 3')
    a.e('s_and_b32 s4, s6, 1')
    a.e('s_lshl_b32 s4, s4, 3')
    a.e('s_and_b32 s64, s7, 7')
    a.e('s_add_u32 s4, s4, s64')
    a.e('s_lshr_b32 s5, s6, 1')
    a.e('s_lshl_b32 s5, s5, 2')
    a.e('s_lshr_b32 s64, s7, 3')
    a.e('s_add_u32 s5, s5, s64')
    ROT = os.environ.get('ROT', 'rt')
    if ROT == 'rt':
        a.e('s_lshl_b32 s74, s4, 1')
    elif ROT == 'xcd':
        a.e('s_lshl_b32 s74, s6, 1')
    elif ROT == 'xcd1':
        a.e('s_mov_b32 s74, s6')
    elif ROT == 'r4':
        a.e('s_and_b32 s74, s4, 3')
        a.e('s_lshl_b32 s74, s74, 2')
    elif ROT == 'r2':
        a.e('s_and_b32 s74, s4, 1')
        a.e('s_lshl_b32 s74, s74, 3')
    elif ROT == 'r4b':
        a.e('s_bfe_u32 s74, s4, 0x20001')
        a.e('s_lshl_b32 s74, s74, 2')
    elif ROT == 'r5':
        a.e('s_mul_i32 s74, s4, 3')
    elif ROT == 'rt1':
        a.e('s_mov_b32 s74, s4')
    else:
        a.e('s_mov_b32 s74, 0')
    a.e('v_lshrrev_b32 v6, 3, v2')
    a.e('s_lshl_b32 s65, s3, 3')
    a.e('v_add_u32 v6, s65, v6')
    a.e('s_lshl_b32 s64, s4, 7')
    a.e('v_add_u32 v7, s64, v6')
    a.e('v_lshlrev_b32 v7, 11, v7')
    a.e('v_lshrrev_b32 v8, 4, v2')
    a.e('s_and_b32 s64, s3, 1')
    a.e('s_lshl_b32 s64, s64, 2')
    a.e('v_add_u32 v9, s64, v8')
    a.e('v_and_b32 v10, 7, v2')
    a.e('v_xor_b32 v9, v9, v10')
    a.e('v_lshl_add_u32 v7, v9, 4, v7')
    a.e('v_mul_u32_u24 v6, 6144, v6')
    a.e('v_and_b32 v9, 1, v8')
    a.e('s_lshr_b32 s64, s64, 1')
    a.e('v_lshl_add_u32 v9, v9, 2, s64')
    a.e('v_xor_b32 v9, v9, v10')
    a.e('v_lshl_add_u32 v6, v9, 4, v6')
    a.e('s_lshl_b32 s64, s5, 7')
    a.e('v_add_u32 v6, s64, v6')
    a.e('s_lshl_b32 s66, s3, 10')
    a.e('s_mov_b32 s10, 4194304')
    a.e('s_mov_b32 s11, 0x00020000')
    a.e('s_mov_b32 s14, 6291456')
    a.e('s_mov_b32 s15, 0x00020000')

    def dma8(stage):
        a.e('s_add_u32 s65, s74, %d', stage)
        a.e('s_and_b32 s65, s65, 15')
        a.e('s_lshl_b32 s67, s65, 7')
        a.e('s_mul_i32 s65, s65, 393216')
        if stage == 0:
            a.e('s_waitcnt lgkmcnt(0)')
            a.e('s_mov_b32 s8, s40'); a.e('s_mov_b32 s9, s41')
            a.e('s_mov_b32 s12, s42'); a.e('s_mov_b32 s13, s43')
        for aa in range(2):
            a.e('s_add_u32 m0, s66, %d', RB + stage * SLOT + aa * 8192)
            a.e('s_add_u32 s64, s67, %d', aa * 131072)
            a.vm_issue('d%d' % stage, 'buffer_load_dwordx4 v7, %s, s64 offen' + NTA + ' lds', sr(S_X, 4))
        for ty in range(3):
            a.e('s_add_u32 m0, s66, %d', RB + stage * SLOT + 16384 + ty * 8192)
            a.e('s_add_u32 s64, s65, %d', ty * 2048)
            a.vm_issue('d%d' % stage, 'buffer_load_dwordx4 v6, %s, s64 offen' + NTB + ' lds', sr(S_W, 4))
    dma8(0)
    if 'pfw' in EXP:
        a.e('s_mul_i32 s64, s2, 24576')
        a.e('s_mul_i32 s65, s3, 3072')
        a.e('s_add_u32 s64, s64, s65')
        a.e('v_lshlrev_b32 v11, 4, v2')
        for q in range(3):
            a.vm_issue('t', 'buffer_load_dwordx4 v[252:255], v11, %s, s64 offen offset:%d', sr(S_W, 4), q * 1024)
    a.e('s_barrier')
    a.e('s_mov_b32 s%d, 0x%x', S_LOG2E, LOG2E)
    a.e('s_mov_b32 s%d, 0x%x', S_EPS, EPS6)
    srd(a, S_WS, 62, WS_BYTES)
    a.e('s_cmp_lt_u32 s3, 4')
    a.e('s_cbranch_scc1 C_start')
    vm_entry = list(a.vm)
    gen_h1(a)
    a.vm = list(vm_entry)
    gen_c1(a)
    gen_p2(a)


def gen_h1(a):
    VOA, VOB = 4, 5
    a.e('s_sub_u32 s6, s3, 4')
    a.e('s_lshl_b32 s7, s6, 10')
    a.e('v_lshrrev_b32 v6, 3, v2')
    a.e('s_lshl_b32 s64, s4, 7')
    a.e('s_lshl_b32 s65, s6, 3')
    a.e('s_add_u32 s64, s64, s65')
    a.e('v_add_u32 v7, s64, v6')
    a.e('v_lshlrev_b32 v7, 11, v7')
    a.e('s_and_b32 s64, s6, 1')
    a.e('s_lshl_b32 s64, s64, 2')
    a.e('v_add_u32 v9, s64, v8')
    a.e('v_xor_b32 v9, v9, v10')
    a.e('v_lshl_add_u32 v%d, v9, 4, v7', VOA)
    a.e('v_add_u32 v7, s65, v6')
    a.e('v_mul_u32_u24 v7, 6144, v7')
    a.e('v_and_b32 v9, 1, v8')
    a.e('s_lshr_b32 s64, s64, 1')
    a.e('v_lshl_add_u32 v9, v9, 2, s64')
    a.e('v_xor_b32 v9, v9, v10')
    a.e('v_lshl_add_u32 v7, v9, 4, v7')
    a.e('s_lshl_b32 s64, s5, 7')
    a.e('v_add_u32 v%d, s64, v7', VOB)

    def spread(fill, n):
        fill = list(fill or [])
        per = -(-len(fill) // n)

        def put():
            for _ in range(per):
                if fill:
                    for ln in fill.pop(0):
                        a.e(ln)
        return put

    def dma(stage, fill=None):
        slot = stage % 3
        put = spread(fill, 10)
        a.e('s_add_u32 s41, s74, %d', stage)
        a.e('s_and_b32 s41, s41, 15')
        a.e('s_lshl_b32 s42, s41, 7')
        a.e('s_mul_i32 s41, s41, 393216')
        for aa in range(4):
            a.e('s_add_u32 m0, s7, %d', RB + slot * SLOT + aa * 4096)
            a.e('s_add_u32 s40, s42, %d', aa * 65536)
            a.vm_issue('d%d' % stage, 'buffer_load_dwordx4 v%d, %s, s40 offen' + NTA + ' lds', VOA, sr(S_X, 4))
            put()
        for ty in range(3):
            for b in range(2):
                a.e('s_add_u32 m0, s7, %d', RB + slot * SLOT + 16384 + ty * 8192 + b * 4096)
                a.e('s_add_u32 s40, s41, %d', b * 196608 + ty * 2048)
                a.vm_issue('d%d' % stage, 'buffer_load_dwordx4 v%d, %s, s40 offen' + NTB + ' lds', VOB, sr(S_W, 4))
                put()

    def wo_units(ps, fill=None):
        put = spread(fill, 2 * len(ps))
        for p in ps:
            for b in range(2):
                a.e('s_add_u32 m0, s7, %d', POS[p] + b * 4096)
                a.e('s_mov_b32 s40, %d', (p << 17) + b * 65536)
                a.vm_issue('wo', 'buffer_load_dwordx4 v%d, %s, s40 offen' + NTO + ' lds', VOW, sr(S_WO, 4))
                put()

    def cap(fn, n=4):
        saved = a.lines
        a.lines = []
        fn()
        L = [ln.strip() for ln in a.lines]
        a.lines = saved
        return [L[k:k + n] for k in range(0, len(L), n)]
    VOW = 10
    V16 = 6
    a.e('v_lshlrev_b32 v%d, 4, v2', V16)
    a.e('s_and_b32 s64, s2, 1')
    a.e('s_lshl_b32 s68, s64, 10')
    a.e('s_bfe_u32 s64, s2, 0x20001')
    a.e('s_lshl_b32 s64, s64, 8')
    a.e('s_add_u32 s68, s68, s64')
    a.e('s_and_b32 s64, s2, 0xf8')
    a.e('s_add_u32 s68, s68, s64')
    a.e('s_lshl_b32 s64, s6, 1')
    a.e('s_add_u32 s68, s68, s64')
    a.e('s_lshl_b32 s64, s68, 11')
    a.e('v_add_u32 v13, s64, v%d', V16)
    XR, WR, GW, WF = 24, 40, 48, 56
    RL = E('RL', -1)

    def x_rows():
        for q in range(4):
            a.vm_issue('r', 'buffer_load_dwordx4 %s, v13, %s, 0 offen offset:%d', vr(XR + 4 * q, 4), sr(S_X, 4), q * 1024)
    if 'rows0' in EXP:
        x_rows()
    dma(1)
    a.e('s_or_b32 s64, s2, s6')
    a.e('s_cmp_lg_u32 s64, 0')
    a.e('s_cbranch_scc1 H_nn')
    a.e('s_mov_b32 s64, %d', WS_KEY)
    a.e('s_load_dwordx2 s[66:67], s[62:63], s64')
    srd(a, S_DBG, 60, 256)
    a.e('s_waitcnt lgkmcnt(0)')
    a.e('s_xor_b32 s64, s66, s67')
    a.e('s_add_u32 s64, s64, 1')
    a.e('s_max_u32 s64, s64, 1')
    a.e('v_mov_b32 v72, s64')
    a.e('v_mov_b32 v73, 0')
    a.e('s_mov_b64 exec, 1')
    a.vm_uncounted('buffer_store_dword v72, v73, %s, 0 offen' % sr(S_DBG, 4) + WT)
    a.e('s_mov_b64 exec, -1')
    a.e('H_nn:')
    stamp(a, 3)
    srd(a, S_DBG, 60, 256)
    srd(a, S_WR, 48, 2048)
    srd(a, S_GW, 56, 2048)
    srd(a, S_WG, 50, 7340032)
    srd(a, S_WU, 52, 7340032)
    VWG, VHP, VKB = 11, 12, 14
    a.e('s_lshr_b32 s69, s2, 3')
    a.e('s_and_b32 s64, s2, 7')
    a.e('v_and_b32 v9, 15, v2')
    a.e('v_min_u32 v9, 13, v9')
    a.e('s_lshl_b32 s65, s69, 5')
    a.e('v_lshl_add_u32 v7, v8, 3, s65')
    a.e('v_mul_u32_u24 v7, 7168, v7')
    a.e('s_mul_i32 s65, s64, 896')
    a.e('s_mul_i32 s66, s6, 224')
    a.e('s_add_u32 s65, s65, s66')
    a.e('v_lshl_add_u32 v7, v9, 4, v7')
    a.e('v_add_u32 v%d, s65, v7', VWG)
    a.e('v_cmp_le_u32 vcc, 7, v9')
    a.e('v_mov_b32 v15, %d', 16384 - 7 * 32)
    a.e('s_nop 0')
    a.e('v_cndmask_b32 v7, 0, v15, vcc')
    a.e('v_lshl_add_u32 v7, v9, 5, v7')
    a.e('v_lshrrev_b32 v15, 1, v8')
    a.e('v_lshl_add_u32 v7, v15, 13, v7')
    a.e('v_and_b32 v15, 1, v8')
    a.e('v_lshl_add_u32 v7, v15, 4, v7')
    a.e('s_lshl_b32 s64, s64, 17')
    a.e('s_lshl_b32 s65, s6, 15')
    a.e('s_add_u32 s64, s64, s65')
    a.e('s_lshl_b32 s65, s69, 8')
    a.e('s_add_u32 s64, s64, s65')
    a.e('s_add_u32 s64, s64, %d', WS_HP)
    a.e('v_add_u32 v%d, s64, v7', VHP)
    a.e('s_lshl_b32 s70, s5, 2')
    a.e('s_add_u32 s70, s70, s6')
    a.e('s_mul_i32 s70, s70, %d', 16 * KVB)
    a.e('s_add_u32 s70, s70, %d', WS_KVP)
    a.e('s_mul_i32 s64, s4, %d', KVB)
    a.e('s_add_u32 s64, s64, s70')
    a.e('s_mov_b32 s67, s64')
    a.e('v_lshl_add_u32 v15, v2, 2, s64')
    a.e('v_add_u32 v15, %d, v15', KVZ - 64)
    a.e('s_lshl_b32 s64, s5, 2')
    a.e('s_add_u32 s64, s64, s6')
    a.e('s_lshl_b32 s64, s64, 7')
    a.e('s_add_u32 s64, s64, %d', WS_F1)
    a.e('v_mov_b32 v23, s64')
    a.e('s_lshl_b32 s65, s4, 10')
    a.e('s_add_u32 s65, s65, %d', WS_F2 - 128)
    a.e('v_lshl_add_u32 v20, v2, 7, s65')
    a.e('v_cmp_gt_u32 vcc, 16, v2')
    a.e('s_nop 1')
    a.e('v_cndmask_b32 v15, v15, v20, vcc')
    a.e('v_writelane_b32 v15, s64, 0')
    a.e('s_cmp_eq_u32 s4, 0')
    a.e('s_cselect_b32 s75, 1, 0')
    a.e('s_or_b32 s64, s5, s6')
    a.e('s_cmp_eq_u32 s64, 0')
    a.e('s_cselect_b32 s64, 0x1fe, 0')
    a.e('s_or_b32 s75, s75, s64')
    a.e('s_or_b32 s75, s75, 0xffff0000')
    a.e('v_add_u32 v22, s67, v%d', V16)
    for r in range(4):
        a.e('v_mov_b32 v%d, -1', 16 + r)
    a.e('v_cndmask_b32 v20, -1, 0, vcc')
    a.vm_wait('d0')
    stamp(a, 4)
    a.e('s_barrier')
    dma(2)

    def init_stores():
        a.vm_issue('init', 'buffer_store_dwordx4 v[16:19], v22, %s, 0 offen' + WT, WSR)
        a.e('s_mov_b32 exec_lo, s75\ns_mov_b32 exec_hi, 0')
        a.vm_issue('init', 'buffer_store_dword v20, v15, %s, 0 offen' + WT, WSR)
        a.e(MASK14)
        a.vm_issue('init', 'buffer_store_dwordx4 v[16:19], v%d, %s, 0 offen' + WT, VHP, WSR)
        a.e('s_mov_b64 exec, 0xffff')
        a.e('s_lshl_b32 s64, s2, 10')
        a.e('s_lshl_b32 s65, s6, 8')
        a.e('s_add_u32 s64, s64, s65')
        a.e('s_add_u32 s64, s64, %d', WS_YP)
        a.vm_issue('init', 'buffer_store_dwordx4 v[16:19], v%d, %s, s64 offen' + WT, V16, WSR)
        a.e('s_mov_b64 exec, -1')

    def row_loads():
        if 'rows0' not in EXP:
            x_rows()
        for q in range(2):
            a.vm_issue('r', 'buffer_load_dwordx4 %s, v%d, %s, 0 offen offset:%d', vr(WR + 4 * q, 4), V16, sr(S_WR, 4), q * 1024)
        for q in range(2):
            a.vm_issue('r', 'buffer_load_dwordx4 %s, v%d, %s, 0 offen offset:%d', vr(GW + 4 * q, 4), V16, sr(S_GW, 4), q * 1024)

    WGT = 96
    XS = 88
    WD = 192
    wl = [(m, j) for j in range(8) for m in range(2)]
    TR = [int(c) for c in os.environ.get('TR', '00005005006007000')]
    assert len(TR) == 17 and sum(TR) == 23, sum(TR)
    allw = [('w', x) for x in wl] + [('d', j) for j in range(7)]
    wsched, dsched = {}, {}
    for k, n in enumerate(TR):
        for kind, x in allw[sum(TR[:k]):sum(TR[:k + 1])]:
            (wsched if kind == 'w' else dsched).setdefault(k - 1, []).append(x)
    D0 = min(dsched)
    GV = E('GV', 13)
    VWD = 21

    def wload(lst):
        if 'now' in EXP:
            return
        a.e(MASK14)
        for (m, j) in lst:
            a.e('s_mov_b32 s64, %d', j * 7168)
            a.vm_issue('w', 'buffer_load_dwordx4 %s, v%d, %s, s64 offen' + NTW, vr(WGT + 32 * m + 4 * j, 4), VWG, sr(S_WG if m == 0 else S_WU, 4))
        a.e('s_mov_b64 exec, -1')

    GA = 32
    MK = 40

    def gemv1_part(pairs):
        if pairs[0] == 0:
            a.e('v_and_b32 v48, 15, v2')
            a.e('v_and_b32 v49, 1, v2')
            a.e('v_lshlrev_b32 v49, 4, v49')
            a.e('v_mov_b32 v50, 0xffff')
            a.e('v_lshlrev_b32 v49, v49, v50')
            a.e('v_lshrrev_b32 v48, 1, v48')
            for q in range(4):
                a.e('v_cmp_eq_u32 vcc, %d, v48', q)
                a.e('s_nop 1')
                a.e('v_cndmask_b32 v%d, 0, v49, vcc', MK + q)
        a.e('s_mov_b32 s64, 0x01000100')
        a.e('s_mov_b32 s65, 0x03020302')
        for jp in pairs:
            for k in range(2):
                j = 2 * jp + k
                t = 44 + 8 * (j & 1)
                a.e('v_perm_b32 v48, v%d, v%d, s%d', XS + jp, XS + jp, 64 + k)
                for q in range(4):
                    a.e('v_and_b32 v%d, v48, v%d', t + q, MK + q)
                a.e('s_nop 1')
                for m in range(2):
                    d = vr(GA + 4 * m, 4)
                    a.e('v_mfma_f32_16x16x32_bf16 %s, %s, %s, %s', d, vr(t, 4), vr(WGT + 32 * m + 4 * j, 4), '0' if j == 0 else d)

    def gemv1_fin():
        a.e('s_nop 7')
        for q in range(4):
            a.e('v_permlane32_swap_b32 v%d, v%d', GA + q, GA + 4 + q)
        a.e(MASK14)
        a.vm_issue('hp', 'buffer_store_dwordx4 %s, v%d, %s, 0 offen' + WT, vr(GA, 4), VHP, WSR)
        a.e('s_mov_b64 exec, -1')
        stamp(a, 7)

    def h0_only(name):
        a.e('s_cmp_lg_u32 s6, 0')
        a.e('s_cbranch_scc1 %s', name)

    IN = E('IN', 0)
    PB = E('PB', 10)
    KP = E('KP', RL + 7)
    gv = {'a': {GV: [0, 1], GV + 1: [2, 3]}, 'b': {GV: [0], GV + 1: [1, 2], GV + 2: [3]}, 'c': {GV: [0], GV + 1: [1], GV + 2: [2, 3]},
          'd': {GV: [0, 1, 2, 3]}}[os.environ.get('GVS', 'd')]
    WOS = {'a': {13: (0, 8, 1, 9, 2, 10), 14: (3, 11), 15: (4, 12, 5, 13, 6, 14, 7, 15)},
           'b': {13: (0, 8, 1, 9), 14: (2, 10), 15: (3, 11, 4, 12, 5, 13, 6, 14, 7, 15)},
           'c': {13: (0, 8), 14: (1, 9), 15: (2, 10, 3, 11, 4, 12, 5, 13, 6, 14, 7, 15)}}[os.environ.get('WOSCH', 'a')]
    if RL == -1:
        row_loads()
    if IN == -1:
        init_stores()
    if -1 in wsched:
        wload(wsched[-1])
    def wd_addr():
        srd(a, S_WD, 54, 7340032)
        a.e('s_lshr_b32 s64, s2, 2')
        a.e('s_mul_i32 s64, s64, %d', 56 * 2048)
        a.e('s_and_b32 s65, s2, 3')
        a.e('s_lshl_b32 s65, s65, 9')
        a.e('s_add_u32 s64, s64, s65')
        a.e('s_lshl_b32 s65, s6, 7')
        a.e('s_add_u32 s64, s64, s65')
        a.e('v_lshrrev_b32 v7, 3, v2')
        a.e('v_lshlrev_b32 v7, 11, v7')
        a.e('v_and_b32 v9, 7, v2')
        a.e('v_lshl_add_u32 v7, v9, 4, v7')
        a.e('v_add_u32 v%d, s64, v7', VWD)

    def key_loads():
        a.e('s_mov_b32 s64, %d', WS_KEY)
        for q in range(2):
            a.vm_uncounted('buffer_load_dwordx4 %s, v%d, %s, s64 offen offset:%d sc1' % (vr(24 + 4 * q, 4), V16, WSR, q * 1024))

    def dots():
        for q in range(8):
            for k, (x, w) in enumerate(((XR + q, GW + q), (XR + 8 + q, GW + q), (XR + q, WR + q), (XR + 8 + q, WR + q))):
                a.e('v_dot2_f32_bf16 v%d, v%d, v%d, %s', 72 + k, x, w, '0' if q == 0 else 'v%d' % (72 + k))

    def router_fin():
        a.e('v_permlane32_swap_b32 v72, v74')
        a.e('v_permlane32_swap_b32 v73, v75')
        a.e('v_add_f32 v72, v72, v74')
        a.e('v_add_f32 v73, v73, v75')
        a.e('s_lshl_b32 s64, s68, 2')
        a.e('s_add_u32 s64, s64, %d', WS_G)
        a.e('v_permlane16_swap_b32 v72, v73')
        a.e('v_add_f32 v72, v72, v73')
        a.e('v_and_b32 v75, 1, v8')
        a.e('v_lshl_add_u32 v76, v75, 2, s64')
        for pat in ('quad_perm:[1,0,3,2]', 'quad_perm:[2,3,0,1]', 'row_half_mirror', 'row_mirror'):
            a.e('v_add_f32_dpp v72, v72, v72 %s row_mask:0xf bank_mask:0xf', pat)
            a.e('s_nop 1')
        a.e('v_cvt_pk_bf16_f32 v72, v72, v72')
        a.e('s_sub_u32 s64, %d, s68', 2047 + 0x8000)
        a.e('v_lshlrev_b32 v72, 16, v72')
        a.e('v_ashrrev_i32 v73, 31, v72')
        a.e('v_sub_u32 v77, s64, v75')
        a.e('v_or_b32 v73, 0x80000000, v73')
        a.e('s_lshl_b32 s64, s6, 3')
        a.e('v_xor_b32 v73, v72, v73')
        a.e('v_lshl_add_u32 v75, v75, 2, s64')
        a.e('v_and_b32 v73, 0xffff0000, v73')
        a.e('v_or_b32 v73, v77, v73')
        sigmoid_bf16(a, [72])

    def key_max():
        a.e('v_max_u32 v3, v24, v26')
        a.e('v_max3_u32 v3, v3, v28, v30')
        a.e('s_nop 1')
        for pat in ('quad_perm:[1,0,3,2]', 'quad_perm:[2,3,0,1]', 'row_half_mirror', 'row_mirror'):
            a.e('v_max_u32_dpp v3, v3, v3 %s row_mask:0xf bank_mask:0xf', pat)
            a.e('s_nop 1')
        for swp in ('v_permlane16_swap_b32', 'v_permlane32_swap_b32'):
            a.e('v_mov_b32 v7, v3')
            a.e('s_nop 1')
            a.e('%s v3, v7', swp)
            a.e('v_max_u32 v3, v3, v7')
        a.e('v_mov_b32 v7, %d', L_KEY + 32)

    marks = {}
    for i in range(16):
        if i + 1 < 16:
            a.vm_wait('d%d' % (i + 1))
        if i == KP:
            a.vm_wait('g')
        if i in (RL + 5, PB + 2):
            a.e('s_waitcnt lgkmcnt(0)')
        a.e('s_barrier')
        fill = []
        if i == RL + 2:
            a.e('v_mov_b32 v79, 0')
            h0_only('H_nc')
            a.vm_uncounted('buffer_load_dword v78, v79, %s, 0 offen sc1' % sr(S_DBG, 4))
            a.e('H_nc:')
        if i == PB:
            h0_only('H_np')
            key_loads()
            a.e('H_np:')
            marks['poll'] = a.issued
        if i == PB + 1:
            h0_only('H_nq')
            a.e('s_waitcnt vmcnt(%d)', a.issued - marks['poll'])
            a.e('s_mov_b32 s65, 0')
            a.e('H_spin:')
            for q in range(4):
                a.e('v_xor_b32 v%d, v%d, v%d', 25 + 2 * q, 24 + 2 * q, 25 + 2 * q)
            a.e('v_xor_b32 v3, s71, v25')
            a.e('v_xor_b32 v7, s71, v27')
            a.e('v_xor_b32 v25, s71, v29')
            a.e('v_xor_b32 v27, s71, v31')
            a.e('v_or3_b32 v3, v3, v7, v25')
            a.e('v_or_b32 v3, v3, v27')
            a.e('v_cmp_ne_u32 vcc, 0, v3')
            a.e('s_cbranch_vccnz H_retry')
            with a.cold():
                a.e('H_retry:')
                a.e('s_add_u32 s65, s65, 1')
                a.e('s_cmp_ge_u32 s65, 200000')
                a.e('s_cbranch_scc1 H_nq')
                a.e('s_sleep 8')
                key_loads()
                a.e('s_waitcnt vmcnt(0)')
                a.e('s_branch H_spin')
            a.e('H_nq:')
            fill += cap(key_max)
        if i == PB + 2:
            a.e('v_mov_b32 v7, %d', L_KEY + 32)
            a.e('ds_read_b32 v3, v7')
            a.e('s_lshl_b32 s65, s69, 6')
            a.e('v_lshl_add_u32 v7, v8, 4, s65')
            a.e('s_waitcnt lgkmcnt(0)')
            a.e('v_readfirstlane_b32 s75, v3')
            a.e('s_nop 3')
            a.e('s_and_b32 s64, s75, 0x7ff')
            a.e('s_sub_u32 s64, 2047, s64')
            a.e('s_lshl_b32 s64, s64, 11')
            a.vm_issue('xs', 'buffer_load_dwordx4 %s, v7, %s, s64 offen', vr(XS, 4), sr(S_X, 4))
        if i == RL + 3:
            a.vm_wait('r')
            fill += cap(dots)
        if i == RL + 4:
            fill += cap(router_fin)
        if i in gv:
            if gv[i][0] == 0:
                a.vm_wait('xs')
                a.vm_wait('w')
                stamp(a, 6)
            fill += cap(lambda: gemv1_part(gv[i]))
        if i + 3 < 16:
            dma(i + 3, fill)
        else:
            if i == 13:
                p2_ids(a)
                srd(a, S_WO, 44, 2097152)
                wo_voff(a, VOW, 7, 9, 6)
            if i == 15:
                xo_loads(a)
            wo_units(WOS[i], fill)
        if i == RL:
            row_loads()
        if i == IN:
            init_stores()
        if i == RL + 4:
            a.e('s_mov_b32 exec_lo, 0\ns_mov_b32 exec_hi, 0x10001')
            a.e('ds_write_b32 v75, v73 offset:%d', L_KEY)
            a.e('s_mov_b32 exec_lo, 0x10001\ns_mov_b32 exec_hi, 0')
            a.vm_issue('g', 'buffer_store_dword v72, v76, %s, 0 offen' + WT, WSR)
            a.e('s_mov_b64 exec, -1')
        if i == KP:
            assert IN <= RL + 4 < KP
            h0_only('H_nk')
            a.e('v_mov_b32 v3, %d', L_KEY)
            a.e('ds_read_b128 v[72:75], v3')
            a.e('ds_read_b128 v[24:27], v3 offset:16')
            a.e('s_mov_b32 s65, 0')
            a.e('H_nspin:')
            a.e('v_readfirstlane_b32 s71, v78')
            a.e('s_cmp_eq_u32 s71, 0')
            a.e('s_cbranch_scc1 H_nre')
            with a.cold():
                a.e('H_nre:')
                a.e('s_add_u32 s65, s65, 1')
                a.e('s_cmp_ge_u32 s65, 200000')
                a.e('s_cbranch_scc1 H_nok')
                a.e('s_sleep 4')
                a.e('buffer_load_dword v78, v79, %s, 0 offen sc1' % sr(S_DBG, 4))
                a.e('s_waitcnt vmcnt(0)')
                a.e('s_branch H_nspin')
            a.e('H_nok:')
            a.e('s_lshl_b32 s64, s2, 3')
            a.e('s_add_u32 s64, s64, %d', WS_KEY)
            a.e('v_mov_b32 v3, s64')
            a.e('s_waitcnt lgkmcnt(0)')
            a.e('v_max3_u32 v72, v72, v73, v74')
            a.e('v_max3_u32 v24, v24, v25, v26')
            a.e('v_max3_u32 v72, v72, v75, v27')
            a.e('v_max_u32 v72, v72, v24')
            a.e('v_xor_b32 v73, s71, v72')
            a.e('s_mov_b64 exec, 1')
            a.vm_uncounted('buffer_store_dwordx2 v[72:73], v3, %s, 0 offen' % WSR + WT)
            a.e('s_mov_b64 exec, -1')
            a.e('H_nk:')
        if i == PB + 1:
            h0_only('H_nw')
            a.e('ds_write_b32 v7, v3')
            a.e('H_nw:')
        if i in wsched:
            wload(wsched[i])
        if i == D0:
            wd_addr()
        if i in dsched and 'now' not in EXP:
            for j in dsched[i]:
                a.e('s_mov_b32 s64, %d', j * 16384)
                a.vm_issue('wd', 'buffer_load_dwordx4 %s, v%d, %s, s64 offen' + NTW, vr(WD + 4 * j, 4), VWD, sr(S_WD, 4))
        if i == max(gv):
            gemv1_fin()
    stamp(a, 5)
    if 'gprio' in EXP:
        a.e('s_setprio 3')
    KB, KA, PA = 64, 128, 48
    SL = 40

    def f1_poll():
        a.e('s_mov_b64 exec, 1')
        a.e('v_mov_b32 v20, 0')
        a.e('buffer_atomic_or v20, v23, %s, 0 offen sc0', WSR)
        a.e('s_mov_b64 exec, -1')
    f1_poll()
    a.e('v_add_u32 v17, s70, v%d', V16)
    a.e('v_lshrrev_b32 v18, 2, v2')
    a.e('v_mul_u32_u24 v18, %d, v18', KVB)
    a.e('v_and_b32 v19, 3, v2')
    a.e('v_lshl_add_u32 v18, v19, 4, v18')
    a.e('s_add_u32 s64, s70, %d', KVZ)
    a.e('v_add_u32 v18, s64, v18')
    a.e('v_bfe_u32 v26, v2, 3, 1')
    a.e('v_lshl_add_u32 v26, v26, 2, v19')
    a.e('v_bfe_u32 v27, v2, 2, 1')
    a.e('v_lshrrev_b32 v28, 5, v2')
    a.e('v_cmp_eq_u32 vcc, v27, v28')
    a.e('v_and_b32 v27, 16, v2')
    a.e('v_cmp_eq_u32 s[64:65], 0, v27')
    a.e('s_and_b64 vcc, vcc, s[64:65]')
    a.e('v_and_b32 v27, 1, v26')
    a.e('v_lshlrev_b32 v27, 4, v27')
    a.e('v_mov_b32 v28, 0x3f80')
    a.e('v_lshlrev_b32 v27, v27, v28')
    a.e('v_cndmask_b32 v27, 0, v27, vcc')
    a.e('v_lshrrev_b32 v26, 1, v26')
    for q in range(4):
        a.e('v_cmp_eq_u32 vcc, %d, v26', q)
        a.e('s_nop 1')
        a.e('v_cndmask_b32 v%d, 0, v27, vcc', PA + q)
    for r in range(16):
        a.e('v_mov_b32 v%d, 0', KA + r)
    a.e('s_mov_b32 s66, 0xffff')
    a.e('s_mov_b32 s65, 0')
    a.e('s_waitcnt vmcnt(0)')
    a.e('G_loop:')
    a.e('v_readfirstlane_b32 s68, v20')
    if E('SPEC', 0):
        a.e('s_bcnt1_i32_b32 s64, s66')
        a.e('s_cmp_le_u32 s64, %d', E('SPEC', 0))
        a.e('s_cselect_b32 s68, 0xffff, s68')
    a.e('s_and_b32 s68, s68, s66')
    a.e('s_andn2_b32 s66, s66, s68')
    if STAMPS == 2:
        a.e('s_memrealtime s[86:87]')
        a.e('s_min_u32 s64, s65, 30')
        a.e('s_lshl_b32 m0, s64, 1')
        a.e('s_waitcnt lgkmcnt(0)')
        a.e('v_writelane_b32 v250, s86, m0')
        a.e('s_add_u32 m0, m0, 1')
        a.e('s_nop 0')
        a.e('v_writelane_b32 v250, s66, m0')
        a.e('v_writelane_b32 v250, s65, 63')
    a.e('s_bcnt1_i32_b32 s67, s68')

    def jump_n(pref):
        def rec(lo, hi, last):
            if lo == hi:
                if not (last and lo == 16):
                    a.e('s_branch %s%d', pref, lo)
                return
            mid = lo if hi - lo < 3 else (lo + hi) // 2
            if mid == lo:
                a.e('s_cmp_eq_u32 s67, %d', lo)
                a.e('s_cbranch_scc1 %s%d', pref, lo)
                rec(lo + 1, hi, last)
            else:
                lab = a.label(pref + 't')
                a.e('s_cmp_gt_u32 s67, %d', mid)
                a.e('s_cbranch_scc1 %s', lab)
                rec(lo, mid, False)
                a.e('%s:', lab)
                rec(mid + 1, hi, last)
        a.e('s_cmp_eq_u32 s67, 0')
        a.e('s_cbranch_scc1 %s0', pref)
        rec(1, 16, True)
    jump_n('G_l')
    for c in range(15, -1, -1):
        a.e('G_l%d:', c + 1)
        a.e('s_ff1_i32_b32 s%d, s68', SL + c)
        a.e('s_bitset0_b32 s68, s%d', SL + c)
        a.e('s_mul_i32 s64, s%d, %d', SL + c, KVB)
        a.e('buffer_load_dwordx4 %s, v17, %s, s64 offen sc1', vr(KB + 4 * c, 4), WSR)
    a.e('G_l0:')
    a.e('s_mov_b32 s68, s66')
    a.e('s_cmp_eq_u32 s66, 0')
    a.e('s_cbranch_scc1 G_z')
    a.e('s_cmp_lg_u32 s67, 0')
    a.e('s_cbranch_scc1 G_p')
    a.e('s_sleep %d', E('GSL', 2))
    a.e('G_p:')
    f1_poll()
    a.e('s_branch G_proc')
    a.e('G_z:')
    a.e('buffer_load_dwordx4 v[56:59], v18, %s, 0 offen sc1', WSR)
    a.e('G_proc:')
    jump_n('G_q')
    for c in range(15, -1, -1):
        b = KB + 4 * c
        a.e('G_q%d:', c + 1)
        a.e('s_waitcnt vmcnt(%d)', c + 1)
        a.e('v_max3_u32 v21, v%d, v%d, v%d', b, b + 1, b + 2)
        a.e('v_max_u32 v21, v21, v%d', b + 3)
        a.e('v_cmp_eq_u32 vcc, -1, v21')
        a.e('s_cbranch_vccnz G_f%d', c)
        a.e('v_mfma_f32_32x32x16_bf16 %s, %s, %s, %s', vr(KA, 16), vr(PA, 4), vr(b, 4), vr(KA, 16))
        with a.cold():
            a.e('G_f%d:', c)
            a.e('s_bitset1_b32 s66, s%d', SL + c)
            a.e('s_branch G_q%d', c)
    a.e('G_q0:')
    a.e('s_waitcnt vmcnt(0)')
    a.e('s_add_u32 s65, s65, 1')
    a.e('s_cmp_ge_u32 s65, 40000')
    a.e('s_cbranch_scc1 G_done')
    a.e('s_cmp_lg_u32 s68, 0')
    a.e('s_cbranch_scc1 G_loop')
    a.e('v_mov_b32 v20, -1')
    a.e('s_cmp_lg_u32 s66, 0')
    a.e('s_cbranch_scc1 G_loop')
    a.e('v_max3_u32 v21, v56, v57, v58')
    a.e('v_max_u32 v21, v21, v59')
    a.e('v_cmp_eq_u32 vcc, -1, v21')
    a.e('s_cbranch_vccnz G_loop')
    a.e('G_done:')
    a.vm = []
    stamp(a, 8)
    a.e('v_add_u32 v16, s7, v%d', V16)
    for pat in ('row_ror:4', 'row_ror:8'):
        for q in range(4):
            a.e('v_add_f32_dpp v%d, v%d, v%d %s row_mask:0xf bank_mask:0xf', 56 + q, 56 + q, 56 + q, pat)
    for swp in ('v_permlane16_swap_b32', 'v_permlane32_swap_b32'):
        for q in range(4):
            a.e('v_mov_b32 v%d, v%d', 64 + q, 56 + q)
        a.e('s_nop 0')
        for q in range(4):
            a.e('%s v%d, v%d', swp, 56 + q, 64 + q)
        for q in range(4):
            a.e('v_add_f32 v%d, v%d, v%d', 56 + q, 56 + q, 64 + q)
    for q in range(4):
        a.e('v_cvt_pk_bf16_f32 v%d, v%d, v%d', 60 + q, KA + 2 * q, KA + 2 * q + 1)
    a.e('ds_write_b128 v16, v[60:63] offset:%d', L_KF)
    a.e('v_cvt_pk_bf16_f32 v56, v56, v57')
    a.e('v_cvt_pk_bf16_f32 v57, v58, v59')
    a.e('s_lshr_b32 s64, s6, 1')
    a.e('s_lshl_b32 s64, s64, 6')
    a.e('s_and_b32 s65, s6, 1')
    a.e('s_lshl_b32 s65, s65, 3')
    a.e('s_add_u32 s64, s64, s65')
    a.e('v_lshl_add_u32 v16, v2, 4, s64')
    a.e('s_mov_b64 exec, 15')
    a.e('ds_write_b64 v16, v[56:57] offset:%d', L_ZF)
    a.e('s_mov_b64 exec, -1')
    a.e('s_waitcnt lgkmcnt(0)')
    a.e('s_barrier')
    if 'gprio' in EXP:
        a.e('s_setprio 0')
    a.e('v_lshrrev_b32 v18, 3, v2')
    a.e('v_lshlrev_b32 v18, 2, v18')
    for j in range(7):
        a.e('ds_read_b32 v%d, v18 offset:%d', 24 + j, L_H + 32 * j)
    a.e('s_waitcnt lgkmcnt(0)')
    YA = 32
    for j in range(7):
        for q in range(4):
            w = WD + 4 * j + q
            a.e('v_lshlrev_b32 v48, 16, v%d', w)
            a.e('v_and_b32 v49, 0xffff0000, v%d', w)
            if j == 0:
                a.e('v_mul_f32 v%d, v48, v%d', YA + 2 * q, 24 + j)
                a.e('v_mul_f32 v%d, v49, v%d', YA + 2 * q + 1, 24 + j)
            else:
                a.e('v_fmac_f32 v%d, v48, v%d', YA + 2 * q, 24 + j)
                a.e('v_fmac_f32 v%d, v49, v%d', YA + 2 * q + 1, 24 + j)
    a.e('s_nop 1')
    for q in range(4):
        a.e('v_permlane32_swap_b32 v%d, v%d', YA + q, YA + 4 + q)
    for q in range(4):
        a.e('v_add_f32 v%d, v%d, v%d', YA + q, YA + q, YA + 4 + q)
    a.e('s_nop 1')
    for q in range(2):
        a.e('v_permlane16_swap_b32 v%d, v%d', YA + q, YA + 2 + q)
    for q in range(2):
        a.e('v_add_f32 v%d, v%d, v%d', YA + q, YA + q, YA + 2 + q)
    a.e('s_nop 1')
    for q in range(2):
        a.e('v_add_f32_dpp v%d, v%d, v%d row_ror:8 row_mask:0xf bank_mask:0xf', YA + q, YA + q, YA + q)
    a.e('v_and_b32 v16, 7, v2')
    a.e('v_lshlrev_b32 v16, 5, v16')
    a.e('v_lshl_add_u32 v16, v8, 3, v16')
    a.e('s_lshl_b32 s64, s2, 10')
    a.e('s_lshl_b32 s65, s6, 8')
    a.e('s_add_u32 s64, s64, s65')
    a.e('s_add_u32 s64, s64, %d', WS_YP)
    a.e('s_mov_b32 exec_lo, 0x00ff00ff\ns_mov_b32 exec_hi, 0x00ff00ff')
    a.e('buffer_store_dwordx2 %s, v16, %s, s64 offen' + WT, vr(YA, 2), WSR)
    a.e('s_mov_b64 exec, -1')
    stamp(a, 9)
    if 'latep' not in EXP:
        f2_poll_first(a)
    t2_fill(a)
    a.e('s_branch P2_start')


def gen_c1(a):
    a.e('C_start:')
    TOUCH = E('TOUCH', 0)
    if TOUCH:
        a.e('s_mul_i32 s64, s2, 24576')
        a.e('s_mul_i32 s65, s3, 6144')
        a.e('s_add_u32 s64, s64, s65')
        a.e('v_mul_u32_u24 v3, %d, v2', TOUCH)
        a.e('s_mov_b32 exec_hi, 0xffff')
        for q in range(128 // TOUCH):
            a.vm_issue('t', 'buffer_load_dword v60, v3, %s, s64 offen offset:%d', sr(S_W, 4), q * 3072)
        a.e('s_mov_b32 exec_hi, -1')
    if 'noscode' not in EXP:
        NS = 4
        a.e('s_getpc_b64 s[68:69]')
        a.e('C_pc:')
        a.e('s_sub_u32 s68, s68, C_pc-%s_kernel' % NAME)
        a.e('s_subb_u32 s69, s69, 0')
        a.e('s_lshr_b32 s64, s2, 3')
        a.e('s_lshl_b32 s64, s64, 2')
        a.e('s_add_u32 s64, s64, s3')
        a.e('s_mul_i32 s64, s64, %d', NS * 64)
        a.e('s_mov_b32 s65, CODE_END-%s_kernel-4' % NAME)
        for q in range(NS):
            a.e('s_min_u32 s66, s64, s65')
            a.e('s_load_dword s75, s[68:69], s66')
            a.e('s_add_u32 s64, s64, 64')
    M16 = 'v_mfma_f32_16x16x32_bf16'
    VAB, VBB, VA, VB = 4, 6, 8, 10
    BF = [16, 40]
    AB = [192, 208]
    QA, KA_, VA_ = 64, 96, 128
    qt = lambda sb, db: QA + (sb * 2 + db) * 4
    kt = lambda base, sb, db: base + (((sb >> 1) * 2 + db) * 2 + (sb & 1)) * 4
    X = 224
    ONES = 236
    a.e('s_and_b32 s6, s3, 1')
    a.e('s_lshr_b32 s7, s3, 1')
    a.e('v_and_b32 v3, 15, v2')
    a.e('s_lshl_b32 s64, s6, 6')
    a.e('v_add_u32 v3, s64, v3')
    a.e('v_lshlrev_b32 v3, 7, v3')
    a.e('v_add_u32 v3, %d, v3', RB)
    a.e('v_bfe_u32 v56, v2, 1, 3')
    a.e('v_lshrrev_b32 v57, 4, v2')
    a.e('v_xor_b32 v56, v56, v57')
    a.e('v_lshl_add_u32 v%d, v56, 4, v3', VAB)
    a.e('v_xor_b32 v%d, 64, v%d', VAB + 1, VAB)
    a.e('v_bfe_u32 v56, v2, 2, 2')
    a.e('v_lshl_add_u32 v58, v57, 3, v56')
    a.e('v_lshlrev_b32 v58, 7, v58')
    a.e('v_lshrrev_b32 v56, 1, v56')
    a.e('v_xor_b32 v56, s7, v56')
    a.e('v_lshl_add_u32 v58, v56, 6, v58')
    a.e('v_and_b32 v57, 1, v57')
    a.e('v_lshl_add_u32 v58, v57, 5, v58')
    a.e('v_and_b32 v56, 3, v2')
    a.e('v_lshl_add_u32 v58, v56, 3, v58')
    a.e('v_add_u32 v%d, %d, v58', VBB, RB + 16384)
    a.e('v_xor_b32 v%d, 32, v%d', VBB + 1, VBB)
    for t in range(2):
        a.e('v_mov_b32 v%d, v%d', VA + t, VAB + t)
        a.e('v_mov_b32 v%d, v%d', VB + t, VBB + t)
    for r in range(64, 160):
        a.e('v_mov_b32 v%d, 0', r)
    a.e('s_lshl_b32 s64, s3, 2')
    a.e('v_mov_b32 v%d, s64', X + 5)
    a.e('ds_write_b32 v%d, v64 offset:%d', X + 5, L_FLG)
    a.e('v_lshlrev_b32 v3, 4, v2')
    a.e('s_lshl_b32 s64, s3, 11')
    a.e('v_add_u32 v%d, s64, v3', X)
    a.e('v_xor_b32 v%d, 2048, v%d', X + 1, X)
    a.e('s_lshl_b32 s64, s3, 8')
    a.e('v_lshl_add_u32 v%d, v2, 2, s64', X + 3)
    a.e('v_xor_b32 v%d, 256, v%d', X + 4, X + 3)
    a.e('v_xor_b32 v%d, 4, v%d', X + 6, X + 5)
    a.e('v_mov_b32 v%d, 1', X + 7)
    a.e('v_lshlrev_b32 v%d, 2, v2', X + 8)
    a.e('s_lshl_b32 s64, 1, s4')
    a.e('v_mov_b32 v%d, s64', X + 9)
    a.e('s_lshl_b32 s43, s5, 2')
    a.e('s_add_u32 s43, s43, s3')
    a.e('s_lshl_b32 s64, s43, 7')
    a.e('s_add_u32 s64, s64, %d', WS_F1)
    a.e('v_mov_b32 v%d, s64', X + 10)
    a.e('s_lshl_b32 s43, s43, 4')
    a.e('s_add_u32 s43, s43, s4')
    a.e('s_mul_i32 s43, s43, %d', KVB)
    a.e('s_add_u32 s43, s43, %d', WS_KVP)
    a.e('s_lshl_b32 s42, s4, 2')
    a.e('s_lshl_b32 s64, s6, 1')
    a.e('s_add_u32 s42, s42, s64')
    a.e('s_lshl_b32 s42, s42, 5')
    a.e('s_lshl_b32 s64, s5, 1')
    a.e('s_add_u32 s42, s42, s64')
    a.e('s_add_u32 s42, s42, s7')
    a.e('s_lshl_b32 s42, s42, 11')
    a.e('s_and_b32 s64, s5, 7')
    a.e('s_lshl_b32 s64, s64, 1')
    a.e('s_add_u32 s64, s64, s7')
    a.e('s_lshl_b32 s64, 1, s64')
    a.e('v_mov_b32 v13, s64')
    a.e('s_lshr_b32 s64, s5, 3')
    a.e('s_lshl_b32 s64, s64, 1')
    a.e('s_add_u32 s64, s64, s6')
    a.e('s_lshl_b32 s64, s64, 8')
    a.e('s_lshl_b32 s65, s4, 10')
    a.e('s_add_u32 s64, s64, s65')
    a.e('s_add_u32 s64, s64, %d', WS_F2)
    a.e('v_lshl_add_u32 v12, v2, 7, s64')
    p2_ids(a)
    a.e('s_mov_b32 s65, 0')
    a.e('s_mov_b32 s66, 0')
    for r in range(4):
        a.e('v_mov_b32 v%d, 0x3f803f80', ONES + r)

    def reads(st, buf, areg, q=True):
        B = lambda ty, cb: ['ds_read_b64_tr_b16 %s, v%d offset:%d' % (vr(BF[buf] + 8 * ty + 4 * cb + 2 * tt, 2), VB + cb, ty * 8192 + st * 4096 + tt * 512)
                            for tt in range(2)]
        A = ['ds_read_b128 %s, v%d offset:%d' % (vr(areg + 4 * b, 4), VA + st, b * 2048) for b in range(4)]
        L = []
        for ty in ((0, 1, 2) if q else (1, 2)):
            for cb in range(2):
                L += B(ty, cb)
        return L[:2] + A + L[2:]

    def mfmas(buf, areg, q=True):
        L = []
        tys = (0, 1, 2) if q else (1, 2)
        order = [(ty, cb, b) for ty in tys for cb in range(2) for b in range(4)]
        if 'ordb' in EXP:
            order = [(ty, cb, b) for b in range(4) for ty in tys for cb in range(2)]
        if 'ords' in EXP:
            order = [(ty, cb, b if (2 * k + cb) % 2 == 0 else 3 - b) for k, ty in enumerate(tys) for cb in range(2) for b in range(4)]
        for (ty, cb, b) in order:
            if True:
                w = vr(BF[buf] + 8 * ty + 4 * cb, 4)
                if True:
                    x = vr(areg + 4 * b, 4)
                    if ty == 0:
                        d = vr(qt(b, cb), 4)
                        L.append('%s %s, %s, %s, %s' % (M16, d, w, x, d))
                    else:
                        d = vr(kt(KA_ if ty == 1 else VA_, b, cb), 4)
                        L.append('%s %s, %s, %s, %s' % (M16, d, x, w, d))
        return L

    def bar_stamped():
        if STAMPS == 2:
            a.e('s_memtime s[68:69]')
        a.e('s_barrier')
        if STAMPS == 2:
            a.e('s_memtime s[70:71]')
            a.e('s_waitcnt lgkmcnt(0)')
            a.e('s_mov_b32 m0, s66')
            a.e('s_nop 0')
            a.e('v_writelane_b32 v14, s68, m0')
            a.e('s_add_u32 m0, s66, 16')
            a.e('s_nop 0')
            a.e('v_writelane_b32 v14, s70, m0')
            a.e('s_memrealtime s[70:71]')
            a.e('s_add_u32 m0, s66, 32')
            a.e('s_waitcnt lgkmcnt(0)')
            a.e('v_writelane_b32 v14, s70, m0')

    def step(M, F):
        for i, m_ in enumerate(M):
            a.e(m_)
            if i < len(F):
                a.e(F[i])
        for f in F[len(M):]:
            a.e(f)

    stamp(a, 3)
    a.vm_wait('d0', 'lgkmcnt(0)')
    stamp(a, 4)
    a.e('s_barrier')
    for r in reads(0, 0, AB[0]):
        a.e(r)
    ND = E('ND', 2)
    a.e('.p2align 3')
    a.e('C_loop:')
    a.e('s_waitcnt lgkmcnt(0)')
    step(mfmas(0, AB[0]), reads(1, 1, AB[1]))
    a.e('s_waitcnt lgkmcnt(0)')
    bar_stamped()
    a.e('s_add_u32 s65, s65, %d', SLOT)
    a.e('s_cmp_eq_u32 s65, %d', 3 * SLOT)
    a.e('s_cselect_b32 s65, 0, s65')
    AD = ['v_add_u32 v%d, s65, v%d' % (r + 4, r) for r in (VBB, VAB, VBB + 1, VAB + 1)]
    R = reads(0, 0, AB[0])
    step(mfmas(1, AB[1]), [AD[0] + '\n' + AD[1]] + R[:6] + [AD[2]] + R[6:] + [AD[3]])
    a.e('s_add_u32 s66, s66, 1')
    a.e('s_cmp_lt_u32 s66, %d', 16 - ND)
    a.e('s_cbranch_scc1 C_loop')
    AR = {(14, 0): 192, (14, 1): 160, (15, 0): 176, (15, 1): 208}
    if ND:
        a.e('s_waitcnt lgkmcnt(0)')
        step(mfmas(0, AR[14, 0], False), reads(1, 1, AR[14, 1], False))
        a.e('s_waitcnt lgkmcnt(0)')
        bar_stamped()
        a.e('s_add_u32 s66, s66, 1')
        AD = ['v_mov_b32 v%d, v%d' % (r + 4, r) for r in (VBB, VAB, VBB + 1, VAB + 1)]
        R = reads(0, 0, AR[15, 0], False)
        step(mfmas(1, AR[14, 1], False), [AD[0] + '\n' + AD[1]] + R[:2] + [AD[2] + '\n' + AD[3]] + R[2:])
        a.e('s_waitcnt lgkmcnt(0)')
        step(mfmas(0, AR[15, 0], False), reads(1, 1, AR[15, 1], False))
        a.e('s_waitcnt lgkmcnt(0)')
        bar_stamped()
        step(mfmas(1, AR[15, 1], False), [])
    a.vm = []
    stamp(a, 5)
    PK = [16, 24]; VBF = [32, 40]; T0, T1, E0, E1, MN = 48, 49, 50, 51, 56
    KVA = 240; ZA = [52, 60]
    if not ND:
        a.e('s_waitcnt lgkmcnt(0)')
    for cb in range(2):
        a.e('v_add_u32 v%d, %d, v%d', VB + cb, 2 * SLOT, VBB + cb)
    for p in range(2):
        phi16(a, KA_ + 16 * p, PK[p], T0, T1, E0, E1, MN)
        for j in range(8):
            a.e('v_cvt_pk_bf16_f32 v%d, v%d, v%d', VBF[p] + j, VA_ + 16 * p + 2 * j, VA_ + 16 * p + 2 * j + 1)
            if j in (1, 2):
                db = j - 1
                a.e('%s %s, %s, %s, %s', M16, vr(ZA[db], 4), vr(ONES, 4), vr(PK[p] + 4 * db, 4), '0' if p == 0 else vr(ZA[db], 4))
            if j in (5, 6):
                db = j - 5
                d = vr(KVA + db * 4, 4)
                a.e('%s %s, %s, %s, %s', M16, d, vr(PK[p] + 4 * db, 4), vr(VBF[p], 4), '0' if p == 0 else d)
        a.e('s_nop 1')
        for db in range(2):
            d = vr(KVA + 8 + db * 4, 4)
            a.e('%s %s, %s, %s, %s', M16, d, vr(PK[p] + 4 * db, 4), vr(VBF[p] + 4, 4), '0' if p == 0 else d)
    a.e('s_cmp_eq_u32 s6, 0')
    a.e('s_cbranch_scc0 C_ex1')
    a.e('ds_write_b32 v%d, v%d offset:%d', X + 3, ZA[1], L_ZX)
    a.e('s_nop 5')
    a.e('ds_write_b128 v%d, %s offset:%d', X, vr(KVA + 8, 4), L_EX)
    a.e('ds_write_b128 v%d, %s offset:%d', X, vr(KVA + 12, 4), L_EX + 1024)
    a.e('C_ex2:')
    with a.cold():
        a.e('C_ex1:')
        a.e('ds_write_b32 v%d, v%d offset:%d', X + 3, ZA[0], L_ZX)
        a.e('ds_write_b128 v%d, %s offset:%d', X, vr(KVA, 4), L_EX)
        a.e('ds_write_b128 v%d, %s offset:%d', X, vr(KVA + 4, 4), L_EX + 1024)
        a.e('s_nop 4')
        a.e('v_mov_b32 v%d, v%d', ZA[0], ZA[1])
        for r in range(8):
            a.e('v_mov_b32 v%d, v%d', KVA + r, KVA + 8 + r)
        a.e('s_branch C_ex2')
    a.e('ds_write_b32 v%d, v%d offset:%d', X + 5, X + 7, L_FLG)
    a.e('C_ps:')
    a.e('ds_read_b32 v25, v%d offset:%d', X + 6, L_FLG)
    a.e('ds_read_b128 v[16:19], v%d offset:%d', X + 1, L_EX)
    a.e('ds_read_b128 v[20:23], v%d offset:%d', X + 1, L_EX + 1024)
    a.e('ds_read_b32 v24, v%d offset:%d', X + 4, L_ZX)
    a.e('s_waitcnt lgkmcnt(0)')
    a.e('v_cmp_eq_u32 vcc, 0, v25')
    a.e('s_cbranch_vccnz C_ps')
    for r in range(8):
        a.e('v_add_f32 v%d, v%d, v%d', 16 + r, 16 + r, KVA + r)
    a.e('v_add_f32 v24, v24, v%d', ZA[0])
    for r in range(4):
        a.e('v_cvt_pk_bf16_f32 v%d, v%d, v%d', 28 + r, 16 + 2 * r, 17 + 2 * r)
    a.vm_issue('kvp', 'buffer_store_dwordx4 v[28:31], v3, %s, s43 offen' + WT, WSR)
    a.e('s_mov_b64 exec, 0xffff')
    a.vm_issue('kvp', 'buffer_store_dword v24, v%d, %s, s43 offen offset:%d' + WT, X + 8, WSR, KVZ)
    a.e('s_mov_b64 exec, 1')
    a.vm_issue('f1', 'buffer_atomic_or v%d, v%d, %s, 0 offen', X + 9, X + 10, WSR)
    a.e('s_mov_b64 exec, -1')
    stamp(a, 6)
    if STAMPS == 2:
        a.e('v_mov_b32 v250, v14')
    if ND:
        steps = [(14, 0), (14, 1), (15, 0), (15, 1)]
        for n, (sg, st) in enumerate(steps):
            for cb in range(2):
                for tt in range(2):
                    a.e('ds_read_b64_tr_b16 %s, v%d offset:%d', vr(96 + 8 * n + 4 * cb + 2 * tt, 2), (VB if sg == 14 else VBB) + cb, st * 4096 + tt * 512)
        for n, (sg, st) in enumerate(steps):
            a.e('s_waitcnt lgkmcnt(%d)', 12 - 4 * n)
            for cb in range(2):
                for b in range(4):
                    d = vr(qt(b, cb), 4)
                    a.e('%s %s, %s, %s, %s', M16, d, vr(96 + 8 * n + 4 * cb, 4), vr(AR[sg, st] + 4 * b, 4), d)
    stamp(a, 7)
    xo_loads(a)
    a.e('v_lshlrev_b32 v3, 4, v2')
    a.e('s_lshl_b32 s64, s7, 11')
    a.e('v_add_u32 v4, s64, v3')
    a.e('v_lshrrev_b32 v5, 4, v2')
    a.e('v_lshlrev_b32 v5, 4, v5')
    a.e('s_lshl_b32 s64, s7, 6')
    a.e('v_add_u32 v5, s64, v5')
    a.e('v_mov_b32 v6, %d', L_KEY + 32)
    a.e('ds_read_b32 v6, v6')
    PQ = 32
    for p in range(2):
        phi16(a, QA + 16 * p, PQ + 8 * p, T0, T1, E0, E1, MN)
    a.e('s_waitcnt lgkmcnt(0)')
    a.e('v_readfirstlane_b32 s75, v6')
    a.vm_wait('xo')
    t2_fill(a)
    a.e('s_cmp_lg_u32 s3, 0')
    a.e('s_cbranch_scc1 C_nh')
    h_compute(a)
    a.e('s_waitcnt lgkmcnt(0)')
    a.e('C_nh:')
    a.e('v_lshlrev_b32 v3, 4, v2')
    a.e('s_barrier')
    stamp(a, 8)
    KF, ZF = 16, 24
    NA, DA, OF = 64, 96, 128
    a.e('ds_read_b128 %s, v5 offset:%d', vr(ZF, 4), L_ZF)
    a.e('ds_read_b128 %s, v4 offset:%d', vr(KF, 4), L_KF)
    a.e('ds_read_b128 %s, v4 offset:%d', vr(KF + 4, 4), L_KF + 1024)
    a.e('s_waitcnt lgkmcnt(2)')
    for sb in range(4):
        a.e('%s %s, %s, %s, 0', M16, vr(DA + 4 * sb, 4), vr(ZF, 4), vr(PQ + 4 * sb, 4))
    a.e('s_waitcnt lgkmcnt(0)')
    for sb in range(4):
        for eb in range(2):
            a.e('%s %s, %s, %s, 0', M16, vr(NA + 8 * sb + 4 * eb, 4), vr(KF + 4 * eb, 4), vr(PQ + 4 * sb, 4))
    D = [48 + sb for sb in range(4)]
    for sb in range(4):
        a.e('v_cvt_pk_bf16_f32 v%d, v%d, v%d', D[sb], DA + 4 * sb, DA + 4 * sb)
    for d in D:
        a.e('v_lshlrev_b32 v%d, 16, v%d', d, d)
    for d in D:
        a.e('v_add_f32 v%d, s%d, v%d', d, S_EPS, d)
    for d in D:
        a.e('v_cvt_pk_bf16_f32 v%d, v%d, v%d', d, d, d)
    for d in D:
        a.e('v_lshlrev_b32 v%d, 16, v%d', d, d)
    for d in D:
        a.e('v_rcp_f32 v%d, v%d', d, d)
    a.e('s_nop 0')
    for sb in range(4):
        for j in range(4):
            r = NA + 8 * sb + 2 * j
            a.e('v_mul_f32 v%d, v%d, v%d', r, r, D[sb])
            a.e('v_mul_f32 v%d, v%d, v%d', r + 1, r + 1, D[sb])
            a.e('v_cvt_pk_bf16_f32 v%d, v%d, v%d', OF + 4 * sb + j, r, r + 1)
        a.vm_issue('o', 'buffer_store_dwordx4 %s, v3, %s, s42 offen offset:%d' + WT, vr(OF + 4 * sb, 4), WSR, (sb & 1) * 1024)
        if sb == 1:
            a.e('s_add_u32 s42, s42, 65536')
    if 'latep' not in EXP:
        f2_poll_first(a)
    a.vm_wait('o')
    a.e('s_mov_b64 exec, 3')
    a.vm_issue('f2', 'buffer_atomic_or v13, v12, %s, 0 offen', WSR)
    a.e('s_mov_b64 exec, -1')
    stamp(a, 9)


def gen_p2(a):
    a.e('P2_start:')
    a.vm = []
    a.e('s_and_b32 s6, s3, 3')
    a.e('s_lshr_b32 s7, s3, 2')
    srd(a, S_OUT, 58, 4194304)
    a.e('s_and_b32 s67, s75, 0x7ff')
    a.e('s_sub_u32 s67, 2047, s67')
    VO, VO2 = 4, 12
    a.e('s_lshl_b32 s64, s4, 2')
    a.e('s_add_u32 s64, s64, s6')
    a.e('s_lshl_b32 s64, s64, 16')
    a.e('s_lshl_b32 s65, s7, 15')
    a.e('s_add_u32 s64, s64, s65')
    a.e('s_lshl_b32 s65, s7, 10')
    a.e('s_add_u32 s66, s64, s65')
    a.e('s_sub_u32 s64, s64, s65')
    a.e('v_lshl_add_u32 v%d, v2, 4, s66', VO)
    a.e('v_lshl_add_u32 v%d, v2, 4, s64', VO2)
    M16 = 'v_mfma_f32_16x16x32_bf16'
    VWL = [5, 6, 1, 3]; VW = [8, 9, 10, 11]
    a.e('v_lshrrev_b32 v10, 4, v2')
    a.e('v_bfe_u32 v11, v2, 2, 2')
    a.e('v_lshl_add_u32 v10, v10, 2, v11')
    a.e('v_bfe_u32 v13, v10, 1, 2')
    a.e('v_lshlrev_b32 v10, 7, v10')
    a.e('v_lshl_add_u32 v10, v13, 5, v10')
    a.e('v_and_b32 v13, 3, v2')
    a.e('v_lshl_add_u32 v%d, v13, 3, v10', VWL[0])
    for nb in range(1, 4):
        a.e('v_xor_b32 v%d, %d, v%d', VWL[nb], 32 * nb, VWL[0])
    SB = 32
    VT, VF, VP = 7, 14, 15
    if 'latep' in EXP:
        f2_poll_first(a)

    def poll():
        return ['s_mov_b64 exec, 1', 'v_mov_b32 v%d, 0' % VP,
                'buffer_atomic_or v%d, v%d, %s, 0 offen sc0' % (VP, VF, WSR), 's_mov_b64 exec, -1']
    a.e('s_lshl_b32 s74, s74, 1') if 'norot2' not in EXP else a.e('s_mov_b32 s74, 0')
    a.e('s_cmp_eq_u32 s7, 0')
    for j in range(8):
        a.e('s_mov_b32 s64, %d', POS[8 + j])
        a.e('s_cselect_b32 s64, %d, s64', POS[j])
        a.e('s_sub_u32 m0, %d, s74', 2 * j + 16)
        a.e('s_and_b32 m0, m0, 15')
        a.e('v_writelane_b32 v%d, s64, m0', VT)
        a.e('s_cmp_eq_u32 s7, 0')
    ACO = [16, 32]
    WOF = [48, 64]
    OB = 80
    YL = 208
    for r in range(16, 48):
        a.e('v_mov_b32 v%d, 0', r)
    if 'p2prio' in EXP:
        a.e('s_cmp_lt_u32 s3, 4')
        a.e('s_cbranch_scc1 P2_np')
        a.e('s_setprio 1')
        a.e('P2_np:')
    if STAMPS == 2:
        a.e('s_mov_b32 s71, 0')
        for l in range(48, 64):
            a.e('v_writelane_b32 v250, 0, %d', l)
    a.e('s_lshr_b32 s46, s67, 7')
    a.e('s_xor_b32 s46, s46, s4')
    a.e('s_or_b32 s46, s46, s3')
    a.e('s_mov_b32 s47, 0')
    a.e('s_cbranch_scc0 P2_ys')
    with a.cold():
        a.e('P2_ys:')
        a.e('v_lshrrev_b32 v13, 4, v2')
        a.e('v_lshlrev_b32 v13, 12, v13')
        a.e('v_and_b32 v208, 15, v2')
        a.e('v_lshl_add_u32 v13, v208, 4, v13')
        a.e('s_lshl_b32 s64, s5, 8')
        a.e('v_add_u32 v13, s64, v13')
        a.e('s_lshl_b32 s64, s67, 11')
        a.e('s_lshl_b32 s65, s5, 7')
        a.e('s_add_u32 s64, s64, s65')
        a.e('v_lshl_add_u32 v209, v208, 3, s64')
        a.e('s_lshl_b32 s64, s67, 2')
        a.e('s_add_u32 s64, s64, %d', WS_G)
        a.e('v_mov_b32 v215, s64')
        a.e('s_branch P2_ysd')
    a.e('P2_ysd:')
    a.e('s_mov_b32 s66, 0x5555')
    a.e('s_mov_b32 s65, 0')
    stamp(a, 10)

    def issue(c):
        L = ['s_ff1_i32_b32 s64, s68', 's_bitset0_b32 s68, s64', 'v_readlane_b32 s%d, v%d, s64' % (SB + c, VT),
             's_add_u32 s69, s64, s74', 's_and_b32 s69, s69, 15', 's_lshl_b32 s69, s69, 11']
        for q in range(4):
            L.append('buffer_load_dwordx4 %s, v%d, %s, s69 offen offset:%d sc1' % (vr(OB + 16 * c + 4 * q, 4), VO2 if q & 1 else VO, WSR, q * 1024))
        return L

    def wo_reads(c, u):
        L = []
        for nb in range(4):
            if u == 0:
                L.append('v_add_u32 v%d, s%d, v%d' % (VW[nb], SB + c, VWL[nb]))
            for tt in range(2):
                L.append('ds_read_b64_tr_b16 %s, v%d offset:%d' % (vr(WOF[u] + 4 * nb + 2 * tt, 2), VW[nb], u * 4096 + tt * 2048))
        return L

    def Mm(c, u):
        L = []
        for nb in range(4):
            for sub in range(2):
                d = vr(16 + (sub * 4 + nb) * 4, 4)
                L.append('%s %s, %s, %s, %s' % (M16, d, vr(WOF[u] + 4 * nb, 4), vr(OB + 16 * c + 8 * u + 4 * sub, 4), d))
        return L

    if 'latep' not in EXP:
        a.e('s_cmp_lt_u32 s3, 4')
        a.e('s_cbranch_scc0 D_wait')
        a.e('s_waitcnt vmcnt(1)')
        a.e('s_branch D_got')
    a.e('D_wait:')
    a.e('s_waitcnt vmcnt(0)')
    a.e('D_got:')
    a.e('v_readfirstlane_b32 s68, v%d', VP)
    a.e('s_mul_i32 s68, s68, 0x10001')
    a.e('s_lshr_b32 s68, s68, s74')
    a.e('s_lshr_b32 s64, s68, 1')
    a.e('s_and_b32 s68, s68, s64')
    a.e('s_and_b32 s68, s68, s66')
    a.e('s_cbranch_scc1 D_go')
    a.e('s_add_u32 s65, s65, 1')
    a.e('s_cmp_ge_u32 s65, 40000')
    a.e('s_cbranch_scc1 D_end')
    if E('PSL', 1):
        a.e('s_sleep %d', E('PSL', 1))
    for p in poll():
        a.e(p)
    a.e('s_branch D_wait')
    a.e('D_go:')
    a.e('s_andn2_b32 s66, s66, s68')
    if STAMPS == 2:
        a.e('s_memrealtime s[86:87]')
        a.e('s_min_u32 s64, s71, 7')
        a.e('s_lshl_b32 s64, s64, 1')
        a.e('s_add_u32 m0, s64, 48')
        a.e('s_waitcnt lgkmcnt(0)')
        a.e('v_writelane_b32 v250, s86, m0')
        a.e('s_add_u32 m0, m0, 1')
        a.e('s_nop 0')
        a.e('v_writelane_b32 v250, s66, m0')
        a.e('s_add_u32 s71, s71, 1')
    a.e('s_bcnt1_i32_b32 s70, s68')
    a.e('s_or_b32 s64, s46, s66')
    a.e('s_cbranch_scc0 P2_yl')
    YB = OB + 64

    def y_loads():
        a.e('buffer_load_dwordx2 v[210:211], v209, %s, 0 offen', sr(S_X, 4))
        a.e('buffer_load_dword v212, v215, %s, 0 offen sc1', WSR)
        for q in range(16):
            a.e('s_mov_b32 s69, %d', WS_YP + q * 16384)
            a.e('buffer_load_dwordx4 %s, v13, %s, s69 offen sc1' % (vr(YB + 4 * q, 4), WSR))
    with a.cold():
        a.e('P2_yl:')
        a.e('s_cmp_gt_u32 s70, 4')
        a.e('s_cbranch_scc1 P2_nyl')
        y_loads()
        a.e('s_mov_b32 s47, 1')
        a.e('s_branch P2_nyl')
    a.e('P2_nyl:')
    a.e('s_cmp_gt_u32 s70, 4')
    a.e('s_cbranch_scc1 D_t58')
    a.e('s_cmp_gt_u32 s70, 2')
    a.e('s_cbranch_scc1 D_t34')
    a.e('s_cmp_eq_u32 s70, 2')
    a.e('s_cbranch_scc1 D_e2')

    LA = E('LA', 2)

    def entry(n, last=False):
        a.e('D_e%d:', n)
        L = []
        for k in range(min(LA, n)):
            L += issue(n - 1 - k)
        if n <= LA:
            L += poll()
        for x in L + wo_reads(n - 1, 0):
            a.e(x)
        if not last:
            a.e('s_branch D_p%d', n - 1)
    entry(1); entry(2)
    a.e('D_t34:')
    a.e('s_cmp_eq_u32 s70, 4')
    a.e('s_cbranch_scc1 D_e4')
    entry(3); entry(4)
    a.e('D_t58:')
    a.e('s_cmp_gt_u32 s70, 6')
    a.e('s_cbranch_scc1 D_t78')
    a.e('s_cmp_eq_u32 s70, 6')
    a.e('s_cbranch_scc1 D_e6')
    entry(5); entry(6)
    a.e('D_t78:')
    a.e('s_cmp_eq_u32 s70, 8')
    a.e('s_cbranch_scc1 D_e8')
    entry(7); entry(8, True)
    for c in range(7, -1, -1):
        a.e('D_p%d:', c)
        G = issue(c - LA) if c >= LA else []
        Gs = [G[:7], G[7:8], G[8:9], G[9:10] + (poll() if c == LA else [])] if G else [[], [], [], []]
        for u in range(2):
            if u == 0:
                a.e('s_waitcnt vmcnt(%d) lgkmcnt(0)', 4 * (LA - 1) if c >= LA else 4 * c + 1)
            else:
                a.e('s_waitcnt lgkmcnt(0)')
            F = wo_reads(c, 1) if u == 0 else (wo_reads(c - 1, 0) if c >= 1 else [])
            M = Mm(c, u)
            per = -(-len(F) // 6) if F else 0
            for k in range(8):
                a.e(M[k])
                for f in F[k * per:(k + 1) * per]:
                    a.e(f)
                if k in (3, 6):
                    for x in Gs[2 * u + k // 6]:
                        a.e(x)
    a.e('s_cmp_lg_u32 s66, 0')
    a.e('s_cbranch_scc1 D_wait')
    a.e('D_end:')
    stamp(a, 11)
    a.e('s_lshl_b32 s64, s3, 12')
    a.e('s_add_u32 s64, s64, %d', RB)
    a.e('v_lshl_add_u32 v8, v2, 4, s64')
    a.e('s_xor_b32 s65, s3, 4')
    a.e('s_lshl_b32 s65, s65, 12')
    a.e('s_add_u32 s65, s65, %d', RB)
    a.e('v_lshl_add_u32 v5, v2, 4, s65')
    a.e('v_lshlrev_b32 v9, 1, v%d', VCO)
    a.e('v_cmp_eq_u32 s[70:71], s67, v%d', VRO)
    a.e('s_cmp_eq_u32 s46, 0')
    a.e('s_cbranch_scc1 P2_y')
    with a.cold():
        a.e('P2_y:')
        a.e('s_mov_b32 s66, 0')
        a.e('s_cmp_lg_u32 s47, 0')
        a.e('s_cbranch_scc1 P2_ychk')
        a.e('P2_yre:')
        y_loads()
        a.e('P2_ychk:')
        a.e('s_and_b32 s64, s75, 0xffff0000')
        a.e('s_xor_b32 s65, s64, 0x80000000')
        a.e('s_not_b32 s69, s64')
        a.e('s_and_b32 s69, s69, 0xffff0000')
        a.e('s_cmp_ge_u32 s64, 0x80000000')
        a.e('s_cselect_b32 s64, s65, s69')
        a.e('v_mov_b32 v213, s64')
        sigmoid_bf16(a, [213])
        a.e('s_waitcnt vmcnt(0)')
        a.e('v_sub_f32 v214, 1.0, v212')
        a.e('v_cvt_pk_bf16_f32 v214, v214, v214')
        a.e('v_lshlrev_b32 v214, 16, v214')
        a.e('v_max3_u32 v10, v%d, v%d, v%d', YB, YB + 1, YB + 2)
        for r in range(3, 63, 2):
            a.e('v_max3_u32 v10, v%d, v%d, v10', YB + r, YB + r + 1)
        a.e('v_max_u32 v10, v%d, v10', YB + 63)
        a.e('v_cmp_eq_u32 vcc, -1, v10')
        a.e('s_cbranch_vccz P2_yok')
        a.e('s_add_u32 s66, s66, 1')
        a.e('s_cmp_ge_u32 s66, 40000')
        a.e('s_cbranch_scc1 P2_yok')
        a.e('s_sleep 4')
        a.e('s_branch P2_yre')
        a.e('P2_yok:')
        for d in (32, 16, 8, 4):
            for r in range(0, d, 2):
                a.e('v_pk_add_f32 %s, %s, %s', vr(YB + r, 2), vr(YB + r, 2), vr(YB + d + r, 2))
        Y = YB
        for swp in ('v_permlane16_swap_b32', 'v_permlane32_swap_b32'):
            for q in range(4):
                a.e('v_mov_b32 v%d, v%d', Y + 4 + q, Y + q)
            a.e('s_nop 0')
            for q in range(4):
                a.e('%s v%d, v%d', swp, Y + q, Y + 4 + q)
            for q in range(4):
                a.e('v_add_f32 v%d, v%d, v%d', Y + q, Y + q, Y + 4 + q)
        for q in range(2):
            y0, y1, x0, x1, t = Y + 2 * q, Y + 2 * q + 1, Y + 4 + 2 * q, Y + 5 + 2 * q, Y + 8
            a.e('v_cvt_pk_bf16_f32 v%d, v%d, v%d', t, y0, y1)
            a.e('v_lshlrev_b32 v%d, 16, v%d', y0, t)
            a.e('v_and_b32 v%d, 0xffff0000, v%d', y1, t)
            a.e('v_mul_f32 v%d, v%d, v213', y0, y0)
            a.e('v_mul_f32 v%d, v%d, v213', y1, y1)
            a.e('v_cvt_pk_bf16_f32 v%d, v%d, v%d', t, y0, y1)
            a.e('v_lshlrev_b32 v%d, 16, v%d', y0, t)
            a.e('v_and_b32 v%d, 0xffff0000, v%d', y1, t)
            a.e('v_lshlrev_b32 v%d, 16, v%d', x0, 210 + q)
            a.e('v_and_b32 v%d, 0xffff0000, v%d', x1, 210 + q)
            a.e('v_add_f32 v%d, v%d, v%d', y0, x0, y0)
            a.e('v_add_f32 v%d, v%d, v%d', y1, x1, y1)
            a.e('v_cvt_pk_bf16_f32 v%d, v%d, v%d', t, y0, y1)
            a.e('v_lshlrev_b32 v%d, 16, v%d', y0, t)
            a.e('v_and_b32 v%d, 0xffff0000, v%d', y1, t)
            a.e('v_mul_f32 v%d, v%d, v214', y0, y0)
            a.e('v_mul_f32 v%d, v%d, v214', y1, y1)
            a.e('v_cvt_pk_bf16_f32 v%d, v%d, v%d', t, y0, y1)
            a.e('v_lshlrev_b32 v%d, 16, v%d', y0, t)
            a.e('v_and_b32 v%d, 0xffff0000, v%d', y1, t)
        a.e('v_lshlrev_b32 v208, 4, v208')
        a.e('ds_write_b128 v208, %s offset:%d', vr(Y, 4), L_YS)
        a.e('s_waitcnt lgkmcnt(0)')
        a.e('s_branch P2_ny')
    a.e('P2_ny:')
    a.e('s_barrier')
    stamp(a, 3, lvl=3)
    for nb in range(4):
        a.e('ds_write_b128 v8, %s offset:%d', vr(32 + 4 * nb, 4), nb * 1024)
    a.e('s_cmp_lg_u64 s[70:71], 0')
    a.e('s_cbranch_scc1 P2_fix')
    a.e('P2_nr:')
    with a.cold():
        a.e('P2_fix:')
        a.e('s_mov_b64 exec, s[70:71]')
        for q in range(4):
            a.e('ds_read_b128 %s, v9 offset:%d', vr(T2 + 4 * q, 4), L_YS + (q >> 1) * 128 + (q & 1) * 16)
        a.e('s_mov_b64 exec, -1')
        a.e('s_branch P2_nr')
    a.e('s_waitcnt lgkmcnt(0)')
    stamp(a, 4, lvl=3)
    a.e('s_barrier')
    stamp(a, 6, lvl=3)
    AB = 64
    for nb in range(4):
        a.e('ds_read_b128 %s, v5 offset:%d', vr(AB + 4 * nb, 4), nb * 1024)
    Gr = XO + 8
    PKOP = 'nopk' not in EXP
    for half in range(2):
        A = 16 + 8 * half
        T = T2 + 8 * half
        a.e('s_waitcnt lgkmcnt(%d)', 2 if half == 0 else 0)
        for q in range(4):
            a0_ = A + 2 * q
            if PKOP:
                a.e('v_pk_add_f32 %s, %s, %s', vr(a0_, 2), vr(a0_, 2), vr(AB + 8 * half + 2 * q, 2))
            else:
                for k in range(2):
                    a.e('v_add_f32 v%d, v%d, v%d', a0_ + k, a0_ + k, AB + 8 * half + 2 * q + k)
        P = 48 + 4 * half
        for q in range(4):
            a.e('v_cvt_pk_bf16_f32 v%d, v%d, v%d', P + q, A + 2 * q, A + 2 * q + 1)
        a.e('s_nop 0')
        a.e('v_permlane16_swap_b32 v%d, v%d', P, P + 2)
        a.e('v_permlane16_swap_b32 v%d, v%d', P + 1, P + 3)
        O = 120 + 4 * half
        for q in range(4):
            a.e('v_lshlrev_b32 v%d, 16, v%d', A + 2 * q, P + q)
            a.e('v_and_b32 v%d, 0xffff0000, v%d', A + 2 * q + 1, P + q)
        for q in range(4):
            a0_ = A + 2 * q
            if PKOP:
                a.e('v_pk_mul_f32 %s, %s, %s op_sel_hi:[1,0]', vr(a0_, 2), vr(a0_, 2), vr(Gr, 2))
            else:
                for k in range(2):
                    a.e('v_mul_f32 v%d, v%d, v%d', a0_ + k, a0_ + k, Gr)
        for q in range(4):
            a.e('v_cvt_pk_bf16_f32 v%d, v%d, v%d', P + q, A + 2 * q, A + 2 * q + 1)
        for q in range(4):
            a.e('v_lshlrev_b32 v%d, 16, v%d', A + 2 * q, P + q)
            a.e('v_and_b32 v%d, 0xffff0000, v%d', A + 2 * q + 1, P + q)
        for q in range(4):
            a0_ = A + 2 * q
            if PKOP:
                a.e('v_pk_add_f32 %s, %s, %s', vr(a0_, 2), vr(a0_, 2), vr(T + 2 * q, 2))
            else:
                for k in range(2):
                    a.e('v_add_f32 v%d, v%d, v%d', a0_ + k, a0_ + k, T + 2 * q + k)
        for q in range(4):
            a.e('v_cvt_pk_bf16_f32 v%d, v%d, v%d', O + q, A + 2 * q, A + 2 * q + 1)
        if 'seg64' in EXP:
            a.e('buffer_store_dwordx4 %s, v%d, %s, 0 offen offset:%d ' + os.environ.get('OUTF', 'nt'), vr(O, 4), VXO, sr(S_OUT, 4), 64 * half)
        elif half == 0:
            a.e('v_and_b32 v6, 1, v2')
            a.e('v_mul_u32_u24 v6, %d, v6', 2048 - 64)
            a.e('v_sub_u32 v%d, v%d, v6', VXO, VXO)
            a.e('s_mov_b32 vcc_lo, 0x55555555')
            a.e('s_mov_b32 vcc_hi, 0x55555555')
    if 'seg64' not in EXP:
        a.e('s_nop 1')
        for q in range(4):
            a.e('v_cndmask_b32_dpp v%d, v%d, v%d, vcc quad_perm:[1,0,3,2] row_mask:0xf bank_mask:0xf', 56 + q, 124 + q, 120 + q)
        a.e('buffer_store_dwordx4 v[56:59], v%d, %s, 0 offen ' + os.environ.get('OUTF', 'nt'), VXO, sr(S_OUT, 4))
        a.e('s_not_b64 vcc, vcc')
        for q in range(4):
            a.e('v_cndmask_b32_dpp v%d, v%d, v%d, vcc quad_perm:[1,0,3,2] row_mask:0xf bank_mask:0xf', 60 + q, 120 + q, 124 + q)
        a.e('buffer_store_dwordx4 v[60:63], v%d, %s, 0 offen offset:2048 ' + os.environ.get('OUTF', 'nt'), VXO, sr(S_OUT, 4))
    stamp(a, 7, lvl=3)
    if STAMPS:
        a.e('s_waitcnt vmcnt(0)')
    stamp(a, 12, True); stamp(a, 2, False)
    stamp_flush(a)
    a.e('K_end:')
    a.e('s_endpgm')
    a.flush_cold()


def main():
    hdr = open(os.path.join(os.path.dirname(os.path.abspath(__file__)), '..', NAME + '.s.ref')).read().split('; Override launch')[0]
    a = Asm()
    a.e('.amdgcn_target "amdgcn-amd-amdhsa--gfx950"')
    a.e('.text')
    gen(a)
    a.e('CODE_END:')
    out = hdr + '; @launch grid=(256,1,1) block=(512,1,1) lds=%d\n' % LDS_BYTES + a.text() + '.section .rodata,"a"\n' + kd(NAME + '_kernel', 256)
    path = sys.argv[1] if len(sys.argv) > 1 else os.path.join(os.path.dirname(os.path.abspath(__file__)), '..', NAME + '.s')
    open(path, 'w').write(out)


if __name__ == '__main__':
    main()
```

```python
import sys, os
sys.path.insert(0, os.path.dirname(os.path.abspath(__file__)))
from asmlib import *

NAME = 'gated_mix__linear_attn_block__moe_arch_mod__prompt'
E = lambda k, d: int(os.environ.get(k, str(d)))
EXP = os.environ.get('EXP', '').split(',')

WS_O = 0
WS_KVP = 4 << 20
KVB = 1152
KVZ = 1024
WS_F1 = WS_KVP + 16 * 4 * 16 * KVB
WS_F2 = WS_F1 + 64 * 128
WS_HP = WS_F2 + 128 * 128
WS_YP = WS_HP + 64 * 2 * 32 * 256
WS_G = WS_YP + 64 * 4096
WS_KEY = WS_G + 8192
WS_END = WS_KEY + 4096
WS_BYTES = 268435456
WS_ST = 16 << 20

STAMPS = E('STAMPS', 0)
WT = ' sc1' if 'wt1' in EXP else ' sc0 sc1'
NTA = ' nt' if 'ntA' in EXP else ''
NTB = ' nt' if 'ntB' in EXP else ''
NTO = ' nt' if 'ntO' in EXP else ''
NTW = '' if 'nontW' in EXP else ' nt'
LOG2E = 0x3fb8aa3b
EPS6 = 0x358637bd

SLOT = 40960
MISC = 0
RB = 8192
SP = RB + 3 * SLOT
L_KF = MISC
L_ZF = MISC + 4096
L_KEY = MISC + 4224
L_FLG = MISC + 4288
L_H = MISC + 4352
L_ZX = MISC + 4608
L_YS = MISC + 5632
L_EX = RB + 24576
LDS_BYTES = 163840
EARLY = [SP, SP + 8192, RB + SLOT + 24576, RB + 2 * SLOT + 24576, SP + 16384, SP + 24576, RB + SLOT + 32768, RB + 2 * SLOT + 32768]
LATE = [RB + x for x in (32768, 0, 8192, 2 * SLOT + 8192, SLOT, SLOT + 8192, SLOT + 16384, 2 * SLOT)]
POS = EARLY[0:4] + LATE[0:4] + EARLY[4:8] + LATE[4:8]
TP = 272
TK = 128 * TP

S_X, S_W, S_WS, S_DBG, S_WR, S_GW, S_WG, S_WU = 8, 12, 16, 20, 24, 28, 32, 36
S_WO, S_OUT, S_WD = 12, 20, 24
WSR = sr(S_WS, 4)
S_LOG2E, S_EPS = 72, 73


def stamp(a, idx, real=True, lvl=0):
    if STAMPS in (3, 4) and idx in (3, 4, 6, 7, 9, 10) and lvl != STAMPS:
        return
    if lvl and STAMPS != lvl:
        return
    if STAMPS:
        a.e('%s s[%d:%d]', 's_memrealtime' if real else 's_memtime', 76 + 2 * idx, 77 + 2 * idx)


def stamp_flush(a):
    if not STAMPS:
        return
    a.e('s_waitcnt lgkmcnt(0)')
    a.e('s_lshl_b32 s64, s2, 3')
    a.e('s_add_u32 s64, s64, s3')
    a.e('s_lshl_b32 s64, s64, 7')
    a.e('s_add_u32 s64, s64, %d', WS_ST)
    a.e('v_mov_b32 v1, s64')
    a.e('s_mov_b64 exec, 1')
    for i in range(13):
        a.e('v_mov_b32 v2, s%d', 76 + 2 * i)
        a.e('v_mov_b32 v3, s%d', 77 + 2 * i)
        a.e('buffer_store_dwordx2 v[2:3], v1, %s, 0 offen offset:%d', WSR, 8 * i)
        a.e('s_nop 1')
    a.e('s_mov_b64 exec, -1')
    if STAMPS == 2:
        a.e('s_lshl_b32 s64, s2, 3')
        a.e('s_add_u32 s64, s64, s3')
        a.e('s_lshl_b32 s64, s64, 8')
        a.e('s_add_u32 s64, s64, %d', WS_ST + (1 << 20))
        a.e('v_and_b32 v1, 63, v0')
        a.e('v_lshlrev_b32 v1, 2, v1')
        a.e('v_add_u32 v1, s64, v1')
        a.e('buffer_store_dword v250, v1, %s, 0 offen', WSR)


def phi16_fast(a, acc, out, e0, mn, sp):
    for j in range(8):
        a0, a1, p = acc + 2 * j, acc + 2 * j + 1, out + j
        e = e0 + 2 * (j & 1)
        a.e('v_pk_mul_f32 v[%d:%d], v[%d:%d], s[%d:%d]', e, e + 1, a0, a1, sp, sp + 1)
        a.e('v_pk_add_f32 v[%d:%d], v[%d:%d], s[%d:%d]', a0, a1, a0, a1, sp + 2, sp + 3)
        a.e('v_exp_f32 v%d, v%d clamp', e, e)
        a.e('v_exp_f32 v%d, v%d clamp', e + 1, e + 1)
        if j:
            phi_tail(a, acc, out, e0, mn, j - 1)
    phi_tail(a, acc, out, e0, mn, 7)
    phi_fix(a, out, e0, e0 + 1, mn)


def phi_tail(a, acc, out, e0, mn, j):
    a0, a1, p = acc + 2 * j, acc + 2 * j + 1, out + j
    e = e0 + 2 * (j & 1)
    a.e('v_max_f32 v%d, v%d, v%d', a0, a0, e)
    a.e('v_max_f32 v%d, v%d, v%d', a1, a1, e + 1)
    if j == 0:
        a.e('v_min_f32 v%d, v%d, v%d', mn, a0, a1)
    else:
        a.e('v_min3_f32 v%d, v%d, v%d, v%d', mn, a0, a1, mn)
    a.e('v_cvt_pk_bf16_f32 v%d, v%d, v%d', p, a0, a1)


def phi16(a, acc, out, t0, t1, e0, e1, mn):
    for j in range(8):
        a0, a1, p = acc + 2 * j, acc + 2 * j + 1, out + j
        a.e('v_cvt_pk_bf16_f32 v%d, v%d, v%d', p, a0, a1)
        a.e('v_lshlrev_b32 v%d, 16, v%d', t0, p)
        a.e('v_and_b32 v%d, 0xffff0000, v%d', t1, p)
        a.e('v_mul_f32 v%d, s%d, v%d', e0, S_LOG2E, t0)
        a.e('v_mul_f32 v%d, s%d, v%d', e1, S_LOG2E, t1)
        a.e('v_exp_f32 v%d, v%d clamp', e0, e0)
        a.e('v_exp_f32 v%d, v%d clamp', e1, e1)
        a.e('v_max_f32 v%d, 0, v%d', t0, t0)
        a.e('v_max_f32 v%d, 0, v%d', t1, t1)
        a.e('v_add_f32 v%d, v%d, v%d', t0, t0, e0)
        a.e('v_add_f32 v%d, v%d, v%d', t1, t1, e1)
        if j == 0:
            a.e('v_min_f32 v%d, v%d, v%d', mn, t0, t1)
        else:
            a.e('v_min3_f32 v%d, v%d, v%d, v%d', mn, t0, t1, mn)
        a.e('v_cvt_pk_bf16_f32 v%d, v%d, v%d', p, t0, t1)
    phi_fix(a, out, t0, t1, mn)


def phi_fix(a, out, t0, t1, mn):
    lab = a.label('phi')
    a.e('v_cmp_gt_f32 vcc, 0x3a800000, v%d', mn)
    a.e('s_cbranch_vccnz %s_fix', lab)
    a.e('%s_done:', lab)
    with a.cold():
        a.e('%s_fix:', lab)
        for j in range(8):
            p = out + j
            a.e('v_lshlrev_b32 v%d, 16, v%d', t0, p)
            a.e('v_and_b32 v%d, 0xffff0000, v%d', t1, p)
            a.e('v_add_f32 v%d, s%d, v%d', t0, S_EPS, t0)
            a.e('v_add_f32 v%d, s%d, v%d', t1, S_EPS, t1)
            a.e('v_cvt_pk_bf16_f32 v%d, v%d, v%d', p, t0, t1)
        a.e('s_branch %s_done', lab)


def wave_reduce(a, regs, op, stmp):
    pats = ['quad_perm:[1,0,3,2]', 'quad_perm:[2,3,0,1]', 'row_half_mirror', 'row_mirror']
    a.e('s_nop 1')
    for p in pats:
        if len(regs) < 3:
            a.e('s_nop 1')
        for r in regs:
            a.e('%s_dpp v%d, v%d, v%d %s row_mask:0xf bank_mask:0xf', op, r, r, r, p)
    a.e('s_nop 1')
    for r in regs:
        for q in range(4):
            a.e('v_readlane_b32 s%d, v%d, %d', stmp + q, r, 16 * q)
        a.e('s_nop 1')
        a.e('v_mov_b32 v%d, s%d', r, stmp)
        for q in range(1, 4):
            a.e('%s v%d, s%d, v%d', op, r, stmp + q, r)


def sigmoid_bf16(a, regs):
    for r in regs:
        a.e('v_mul_f32 v%d, s%d, v%d', r, S_LOG2E, r)
    for r in regs:
        a.e('v_exp_f32 v%d, -v%d', r, r)
    a.e('s_nop 0')
    for r in regs:
        a.e('v_add_f32 v%d, 1.0, v%d', r, r)
    for r in regs:
        a.e('v_rcp_f32 v%d, v%d', r, r)
    a.e('s_nop 0')
    for r in regs:
        a.e('v_cvt_pk_bf16_f32 v%d, v%d, v%d', r, r, r)
    for r in regs:
        a.e('v_lshlrev_b32 v%d, 16, v%d', r, r)


def p2_ids(a):
    if os.environ.get('P2MAP', 'a') == 'b':
        a.e('s_and_b32 s4, s2, 7')
        a.e('s_lshl_b32 s4, s4, 1')
        a.e('s_bfe_u32 s64, s2, 0x10003')
        a.e('s_add_u32 s4, s4, s64')
        a.e('s_lshr_b32 s5, s2, 4')
        a.e('s_and_b32 s74, s5, 7')
        return
    a.e('s_and_b32 s64, s2, 7')
    a.e('s_lshr_b32 s65, s2, 3')
    a.e('s_and_b32 s4, s64, 3')
    a.e('s_lshl_b32 s4, s4, 2')
    a.e('s_and_b32 s66, s65, 3')
    a.e('s_add_u32 s4, s4, s66')
    a.e('s_lshr_b32 s5, s64, 2')
    a.e('s_lshl_b32 s5, s5, 3')
    a.e('s_lshr_b32 s74, s65, 2')
    if 'ctperm' in EXP:
        a.e('s_add_u32 s74, s74, 2')
        a.e('s_and_b32 s74, s74, 7')
    a.e('s_add_u32 s5, s5, s74')


def wo_voff(a, vdst, t0, t1, s_piece):
    a.e('v_lshrrev_b32 v%d, 3, v2', t0)
    a.e('s_lshl_b32 s64, s%d, 3', s_piece)
    a.e('v_add_u32 v%d, s64, v%d', t0, t0)
    a.e('v_lshlrev_b32 v%d, 11, v%d', t0, t0)
    a.e('v_lshrrev_b32 v%d, 4, v2', t1)
    a.e('v_lshlrev_b32 v%d, 1, v%d', t1, t1)
    a.e('v_and_b32 v%d, 7, v2', vdst)
    a.e('v_xor_b32 v%d, v%d, v%d', t1, t1, vdst)
    a.e('v_lshl_add_u32 v%d, v%d, 4, v%d', t0, t1, t0)
    a.e('s_lshl_b32 s64, s5, 7')
    a.e('v_add_u32 v%d, s64, v%d', vdst, t0)


def wo_dma(a, pos, voff, s_w1k, tag):
    a.e('s_mov_b32 s65, %d', pos << 17)
    for b in range(2):
        a.e('s_add_u32 m0, s%d, %d', s_w1k, POS[pos] + b * 4096)
        if b:
            a.e('s_add_u32 s65, s65, 65536')
        else:
            a.e('s_nop 0')
        a.vm_issue(tag, 'buffer_load_dwordx4 v%d, %s, s65 offen' + NTO + ' lds', voff, sr(S_WO, 4))


XO = 220
T2 = 232
VRO, VXO = 230, 231


def xo_loads(a):
    a.e('s_and_b32 s64, s3, 3')
    a.e('s_lshl_b32 s64, s64, 1')
    a.e('s_lshr_b32 s65, s3, 2')
    a.e('s_add_u32 s64, s64, s65')
    a.e('s_lshl_b32 s64, s64, 4')
    a.e('s_lshl_b32 s65, s4, 7')
    a.e('s_add_u32 s64, s64, s65')
    a.e('v_and_b32 v%d, 15, v2', VRO)
    a.e('v_add_u32 v%d, s64, v%d', VRO, VRO)
    a.e('v_bfe_u32 v3, v2, 4, 1')
    a.e('v_lshlrev_b32 v%d, 5, v3', VCO)
    a.e('v_lshrrev_b32 v3, 5, v2')
    a.e('v_lshl_add_u32 v%d, v3, 4, v%d', VCO, VCO)
    a.e('v_lshl_add_u32 v%d, v%d, 11, v%d', VXO, VRO, VCO)
    a.e('s_lshl_b32 s64, s5, 7')
    a.e('v_add_u32 v%d, s64, v%d', VXO, VXO)
    a.e('v_lshlrev_b32 v3, 2, v%d', VRO)
    a.e('v_add_u32 v3, %d, v3', WS_G)
    a.vm_issue('xo', 'buffer_load_dwordx4 %s, v%d, %s, 0 offen', vr(XO, 4), VXO, sr(S_X, 4))
    a.vm_issue('xo', 'buffer_load_dwordx4 %s, v%d, %s, 0 offen offset:64', vr(XO + 4, 4), VXO, sr(S_X, 4))
    a.vm_issue('xo', 'buffer_load_dword v%d, v3, %s, 0 offen sc1', XO + 8, WSR)


OM = 248
VCO = 229


def t2_fill(a):
    a.e('v_sub_f32 v%d, 1.0, v%d', OM, XO + 8)
    a.e('v_cvt_pk_bf16_f32 v%d, v%d, v%d', OM, OM, OM)
    a.e('v_lshlrev_b32 v%d, 16, v%d', OM, OM)
    for q in range(8):
        x0, x1 = T2 + 2 * q, T2 + 2 * q + 1
        a.e('v_lshlrev_b32 v%d, 16, v%d', x0, XO + q)
        a.e('v_and_b32 v%d, 0xffff0000, v%d', x1, XO + q)
        a.e('v_mul_f32 v%d, v%d, v%d', x0, x0, OM)
        a.e('v_mul_f32 v%d, v%d, v%d', x1, x1, OM)
        a.e('v_cvt_pk_bf16_f32 v3, v%d, v%d', x0, x1)
        a.e('v_lshlrev_b32 v%d, 16, v3', x0)
        a.e('v_and_b32 v%d, 0xffff0000, v3', x1)


MASK14 = 's_mov_b32 exec_lo, 0x3fff3fff\ns_mov_b32 exec_hi, 0x3fff3fff'


def h_compute(a):
    HB = 64
    a.e('s_lshr_b32 s64, s2, 2')
    a.e('s_lshl_b32 s64, s64, 14')
    a.e('s_add_u32 s64, s64, %d', WS_HP)
    a.e('v_lshl_add_u32 v16, v2, 4, s64')
    a.e('v_lshrrev_b32 v8, 4, v2')
    a.e('s_mov_b32 s65, 0')
    a.e('H_hl:')
    for q in range(16):
        a.e('s_mov_b32 s64, %d', (q >> 2) * 4096)
        a.e('buffer_load_dwordx4 %s, v16, %s, s64 offen offset:%d sc1', vr(HB + 4 * q, 4), WSR, (q & 3) * 1024)
    a.e('s_waitcnt vmcnt(0)')
    a.e('v_max3_u32 v17, v%d, v%d, v%d', HB, HB + 1, HB + 2)
    for r in range(3, 63, 2):
        a.e('v_max3_u32 v17, v%d, v%d, v17', HB + r, HB + r + 1)
    a.e('v_max_u32 v17, v%d, v17', HB + 63)
    a.e(MASK14)
    a.e('v_cmp_eq_u32 vcc, -1, v17')
    a.e('s_mov_b64 exec, -1')
    a.e('s_cbranch_vccz H_hok')
    a.e('s_add_u32 s65, s65, 1')
    a.e('s_cmp_ge_u32 s65, 100000')
    a.e('s_cbranch_scc1 H_hok')
    a.e('s_sleep 8')
    a.e('s_branch H_hl')
    a.e('H_hok:')
    for m in range(2):
        for i in range(1, 8):
            for q in range(4):
                a.e('v_add_f32 v%d, v%d, v%d', HB + 32 * m + q, HB + 32 * m + q, HB + 32 * m + 4 * i + q)
    a.e('s_nop 1')
    for q in range(4):
        a.e('v_permlane16_swap_b32 v%d, v%d', HB + q, HB + 32 + q)
    for q in range(4):
        a.e('v_add_f32 v%d, v%d, v%d', HB + q, HB + q, HB + 32 + q)
    a.e('s_nop 1')
    for q in range(2):
        a.e('v_permlane32_swap_b32 v%d, v%d', HB + q, HB + 2 + q)
    for q in range(2):
        a.e('v_add_f32 v%d, v%d, v%d', HB + q, HB + q, HB + 2 + q)
    a.e('s_nop 1')
    a.e('v_permlane16_swap_b32 v%d, v%d', HB, HB + 1)
    G_, U_, T_ = HB, HB + 1, HB + 2
    a.e('v_cvt_pk_bf16_f32 v%d, v%d, v%d', T_, G_, U_)
    a.e('v_lshlrev_b32 v%d, 16, v%d', G_, T_)
    a.e('v_and_b32 v%d, 0xffff0000, v%d', U_, T_)
    a.e('v_mul_f32 v%d, s%d, v%d', T_, S_LOG2E, G_)
    a.e('v_exp_f32 v%d, -v%d', T_, T_)
    a.e('v_and_b32 v16, 15, v2')
    a.e('v_add_f32 v%d, 1.0, v%d', T_, T_)
    a.e('v_rcp_f32 v%d, v%d', T_, T_)
    a.e('v_lshl_add_u32 v16, v16, 2, v8')
    a.e('v_mul_f32 v%d, v%d, v%d', T_, T_, G_)
    a.e('v_cvt_pk_bf16_f32 v%d, v%d, v%d', T_, T_, T_)
    a.e('v_lshlrev_b32 v%d, 16, v%d', T_, T_)
    a.e('v_mul_f32 v%d, v%d, v%d', T_, T_, U_)
    a.e('v_cvt_pk_bf16_f32 v%d, v%d, v%d', T_, T_, T_)
    a.e('v_lshlrev_b32 v%d, 16, v%d', T_, T_)
    a.e('v_lshlrev_b32 v16, 2, v16')
    a.e('ds_write_b32 v16, v%d offset:%d', T_, L_H)


def f2_poll_first(a):
    a.e('s_lshl_b32 s64, s4, 3')
    a.e('s_add_u32 s64, s64, s3')
    a.e('s_lshl_b32 s64, s64, 7')
    a.e('s_add_u32 s64, s64, %d', WS_F2)
    a.e('v_mov_b32 v14, s64')
    a.e('s_mov_b64 exec, 1')
    a.e('v_mov_b32 v15, 0')
    a.vm_issue('p', 'buffer_atomic_or v15, v14, %s, 0 offen sc0', WSR)
    a.e('s_mov_b64 exec, -1')


def gen(a):
    kn = NAME + '_kernel'
    a.e('.globl %s\n.p2align 8\n.type %s,@function\n%s:' % (kn, kn, kn))
    a.e('s_load_dwordx16 s[40:55], s[0:1], 0')
    a.e('s_load_dwordx8 s[56:63], s[0:1], 64')
    a.e('s_cmp_ge_u32 s2, 256')
    a.e('s_cbranch_scc1 K_end')
    stamp(a, 0, True); stamp(a, 1, False)
    a.e('v_lshrrev_b32 v1, 6, v0')
    a.e('v_and_b32 v2, 63, v0')
    a.e('s_and_b32 s6, s2, 7')
    a.e('v_readfirstlane_b32 s3, v1')
    a.e('s_lshr_b32 s7, s2, 3')
    a.e('s_and_b32 s4, s6, 1')
    a.e('s_lshl_b32 s4, s4, 3')
    a.e('s_and_b32 s64, s7, 7')
    a.e('s_add_u32 s4, s4, s64')
    a.e('s_lshr_b32 s5, s6, 1')
    a.e('s_lshl_b32 s5, s5, 2')
    a.e('s_lshr_b32 s64, s7, 3')
    a.e('s_add_u32 s5, s5, s64')
    ROT = os.environ.get('ROT', 'rt')
    if ROT == 'rt':
        a.e('s_lshl_b32 s74, s4, 1')
    elif ROT == 'xcd':
        a.e('s_lshl_b32 s74, s6, 1')
    elif ROT == 'xcd1':
        a.e('s_mov_b32 s74, s6')
    elif ROT == 'r4':
        a.e('s_and_b32 s74, s4, 3')
        a.e('s_lshl_b32 s74, s74, 2')
    elif ROT == 'r2':
        a.e('s_and_b32 s74, s4, 1')
        a.e('s_lshl_b32 s74, s74, 3')
    elif ROT == 'r4b':
        a.e('s_bfe_u32 s74, s4, 0x20001')
        a.e('s_lshl_b32 s74, s74, 2')
    elif ROT == 'r5':
        a.e('s_mul_i32 s74, s4, 3')
    elif ROT == 'rt1':
        a.e('s_mov_b32 s74, s4')
    else:
        a.e('s_mov_b32 s74, 0')
    a.e('v_lshrrev_b32 v6, 3, v2')
    a.e('s_lshl_b32 s65, s3, 3')
    a.e('v_add_u32 v6, s65, v6')
    a.e('s_lshl_b32 s64, s4, 7')
    a.e('v_add_u32 v7, s64, v6')
    a.e('v_lshlrev_b32 v7, 11, v7')
    a.e('v_lshrrev_b32 v8, 4, v2')
    a.e('s_and_b32 s64, s3, 1')
    a.e('s_lshl_b32 s64, s64, 2')
    a.e('v_add_u32 v9, s64, v8')
    a.e('v_and_b32 v10, 7, v2')
    a.e('v_xor_b32 v9, v9, v10')
    a.e('v_lshl_add_u32 v7, v9, 4, v7')
    a.e('v_mul_u32_u24 v6, 6144, v6')
    a.e('v_and_b32 v9, 1, v8')
    a.e('s_lshr_b32 s64, s64, 1')
    a.e('v_lshl_add_u32 v9, v9, 2, s64')
    a.e('v_xor_b32 v9, v9, v10')
    a.e('v_lshl_add_u32 v6, v9, 4, v6')
    a.e('s_lshl_b32 s64, s5, 7')
    a.e('v_add_u32 v6, s64, v6')
    a.e('s_lshl_b32 s66, s3, 10')
    a.e('s_mov_b32 s10, 4194304')
    a.e('s_mov_b32 s11, 0x00020000')
    a.e('s_mov_b32 s14, 6291456')
    a.e('s_mov_b32 s15, 0x00020000')

    def dma8(stage):
        a.e('s_add_u32 s65, s74, %d', stage)
        a.e('s_and_b32 s65, s65, 15')
        a.e('s_lshl_b32 s67, s65, 7')
        a.e('s_mul_i32 s65, s65, 393216')
        if stage == 0:
            a.e('s_waitcnt lgkmcnt(0)')
            a.e('s_mov_b32 s8, s40'); a.e('s_mov_b32 s9, s41')
            a.e('s_mov_b32 s12, s42'); a.e('s_mov_b32 s13, s43')
        for aa in range(2):
            a.e('s_add_u32 m0, s66, %d', RB + stage * SLOT + aa * 8192)
            a.e('s_add_u32 s64, s67, %d', aa * 131072)
            a.vm_issue('d%d' % stage, 'buffer_load_dwordx4 v7, %s, s64 offen' + NTA + ' lds', sr(S_X, 4))
        for ty in range(3):
            a.e('s_add_u32 m0, s66, %d', RB + stage * SLOT + 16384 + ty * 8192)
            a.e('s_add_u32 s64, s65, %d', ty * 2048)
            a.vm_issue('d%d' % stage, 'buffer_load_dwordx4 v6, %s, s64 offen' + NTB + ' lds', sr(S_W, 4))
    dma8(0)
    if 'pfw' in EXP:
        a.e('s_mul_i32 s64, s2, 24576')
        a.e('s_mul_i32 s65, s3, 3072')
        a.e('s_add_u32 s64, s64, s65')
        a.e('v_lshlrev_b32 v11, 4, v2')
        for q in range(3):
            a.vm_issue('t', 'buffer_load_dwordx4 v[252:255], v11, %s, s64 offen offset:%d', sr(S_W, 4), q * 1024)
    a.e('s_barrier')
    a.e('s_mov_b32 s%d, 0x%x', S_LOG2E, LOG2E)
    a.e('s_mov_b32 s%d, 0x%x', S_EPS, EPS6)
    srd(a, S_WS, 62, WS_BYTES)
    a.e('s_cmp_lt_u32 s3, 4')
    a.e('s_cbranch_scc1 C_start')
    vm_entry = list(a.vm)
    gen_h1(a)
    a.vm = list(vm_entry)
    gen_c1(a)
    gen_p2(a)


def gen_h1(a):
    VOA, VOB = 4, 5
    a.e('s_sub_u32 s6, s3, 4')
    a.e('s_lshl_b32 s7, s6, 10')
    a.e('v_lshrrev_b32 v6, 3, v2')
    a.e('s_lshl_b32 s64, s4, 7')
    a.e('s_lshl_b32 s65, s6, 3')
    a.e('s_add_u32 s64, s64, s65')
    a.e('v_add_u32 v7, s64, v6')
    a.e('v_lshlrev_b32 v7, 11, v7')
    a.e('s_and_b32 s64, s6, 1')
    a.e('s_lshl_b32 s64, s64, 2')
    a.e('v_add_u32 v9, s64, v8')
    a.e('v_xor_b32 v9, v9, v10')
    a.e('v_lshl_add_u32 v%d, v9, 4, v7', VOA)
    a.e('v_add_u32 v7, s65, v6')
    a.e('v_mul_u32_u24 v7, 6144, v7')
    a.e('v_and_b32 v9, 1, v8')
    a.e('s_lshr_b32 s64, s64, 1')
    a.e('v_lshl_add_u32 v9, v9, 2, s64')
    a.e('v_xor_b32 v9, v9, v10')
    a.e('v_lshl_add_u32 v7, v9, 4, v7')
    a.e('s_lshl_b32 s64, s5, 7')
    a.e('v_add_u32 v%d, s64, v7', VOB)

    def spread(fill, n):
        fill = list(fill or [])
        per = -(-len(fill) // n)

        def put():
            for _ in range(per):
                if fill:
                    for ln in fill.pop(0):
                        a.e(ln)
        return put

    def dma(stage, fill=None):
        slot = stage % 3
        put = spread(fill, 10)
        a.e('s_add_u32 s41, s74, %d', stage)
        a.e('s_and_b32 s41, s41, 15')
        a.e('s_lshl_b32 s42, s41, 7')
        a.e('s_mul_i32 s41, s41, 393216')
        for aa in range(4):
            a.e('s_add_u32 m0, s7, %d', RB + slot * SLOT + aa * 4096)
            a.e('s_add_u32 s40, s42, %d', aa * 65536)
            a.vm_issue('d%d' % stage, 'buffer_load_dwordx4 v%d, %s, s40 offen' + NTA + ' lds', VOA, sr(S_X, 4))
            put()
        for ty in range(3):
            for b in range(2):
                a.e('s_add_u32 m0, s7, %d', RB + slot * SLOT + 16384 + ty * 8192 + b * 4096)
                a.e('s_add_u32 s40, s41, %d', b * 196608 + ty * 2048)
                a.vm_issue('d%d' % stage, 'buffer_load_dwordx4 v%d, %s, s40 offen' + NTB + ' lds', VOB, sr(S_W, 4))
                put()

    def wo_units(ps, fill=None):
        put = spread(fill, 2 * len(ps))
        for p in ps:
            for b in range(2):
                a.e('s_add_u32 m0, s7, %d', POS[p] + b * 4096)
                a.e('s_mov_b32 s40, %d', (p << 17) + b * 65536)
                a.vm_issue('wo', 'buffer_load_dwordx4 v%d, %s, s40 offen' + NTO + ' lds', VOW, sr(S_WO, 4))
                put()

    def cap(fn, n=4):
        saved = a.lines
        a.lines = []
        fn()
        L = [ln.strip() for ln in a.lines]
        a.lines = saved
        return [L[k:k + n] for k in range(0, len(L), n)]
    VOW = 10
    V16 = 6
    a.e('v_lshlrev_b32 v%d, 4, v2', V16)
    a.e('s_and_b32 s64, s2, 1')
    a.e('s_lshl_b32 s68, s64, 10')
    a.e('s_bfe_u32 s64, s2, 0x20001')
    a.e('s_lshl_b32 s64, s64, 8')
    a.e('s_add_u32 s68, s68, s64')
    a.e('s_and_b32 s64, s2, 0xf8')
    a.e('s_add_u32 s68, s68, s64')
    a.e('s_lshl_b32 s64, s6, 1')
    a.e('s_add_u32 s68, s68, s64')
    a.e('s_lshl_b32 s64, s68, 11')
    a.e('v_add_u32 v13, s64, v%d', V16)
    XR, WR, GW, WF = 24, 40, 48, 56
    RL = E('RL', -1)

    def x_rows():
        for q in range(4):
            a.vm_issue('r', 'buffer_load_dwordx4 %s, v13, %s, 0 offen offset:%d', vr(XR + 4 * q, 4), sr(S_X, 4), q * 1024)
    if 'rows0' in EXP:
        x_rows()
    dma(1)
    a.e('s_or_b32 s64, s2, s6')
    a.e('s_cmp_lg_u32 s64, 0')
    a.e('s_cbranch_scc1 H_nn')
    a.e('s_mov_b32 s64, %d', WS_KEY)
    a.e('s_load_dwordx2 s[66:67], s[62:63], s64')
    srd(a, S_DBG, 60, 256)
    a.e('s_waitcnt lgkmcnt(0)')
    a.e('s_xor_b32 s64, s66, s67')
    a.e('s_add_u32 s64, s64, 1')
    a.e('s_max_u32 s64, s64, 1')
    a.e('v_mov_b32 v72, s64')
    a.e('v_mov_b32 v73, 0')
    a.e('s_mov_b64 exec, 1')
    a.vm_uncounted('buffer_store_dword v72, v73, %s, 0 offen' % sr(S_DBG, 4) + WT)
    a.e('s_mov_b64 exec, -1')
    a.e('H_nn:')
    stamp(a, 3)
    srd(a, S_DBG, 60, 256)
    srd(a, S_WR, 48, 2048)
    srd(a, S_GW, 56, 2048)
    srd(a, S_WG, 50, 7340032)
    srd(a, S_WU, 52, 7340032)
    VWG, VHP, VKB = 11, 12, 14
    a.e('s_lshr_b32 s69, s2, 3')
    a.e('s_and_b32 s64, s2, 7')
    a.e('v_and_b32 v9, 15, v2')
    a.e('v_min_u32 v9, 13, v9')
    a.e('s_lshl_b32 s65, s69, 5')
    a.e('v_lshl_add_u32 v7, v8, 3, s65')
    a.e('v_mul_u32_u24 v7, 7168, v7')
    a.e('s_mul_i32 s65, s64, 896')
    a.e('s_mul_i32 s66, s6, 224')
    a.e('s_add_u32 s65, s65, s66')
    a.e('v_lshl_add_u32 v7, v9, 4, v7')
    a.e('v_add_u32 v%d, s65, v7', VWG)
    a.e('v_cmp_le_u32 vcc, 7, v9')
    a.e('v_mov_b32 v15, %d', 16384 - 7 * 32)
    a.e('s_nop 0')
    a.e('v_cndmask_b32 v7, 0, v15, vcc')
    a.e('v_lshl_add_u32 v7, v9, 5, v7')
    a.e('v_lshrrev_b32 v15, 1, v8')
    a.e('v_lshl_add_u32 v7, v15, 13, v7')
    a.e('v_and_b32 v15, 1, v8')
    a.e('v_lshl_add_u32 v7, v15, 4, v7')
    a.e('s_lshl_b32 s64, s64, 17')
    a.e('s_lshl_b32 s65, s6, 15')
    a.e('s_add_u32 s64, s64, s65')
    a.e('s_lshl_b32 s65, s69, 8')
    a.e('s_add_u32 s64, s64, s65')
    a.e('s_add_u32 s64, s64, %d', WS_HP)
    a.e('v_add_u32 v%d, s64, v7', VHP)
    a.e('s_lshl_b32 s70, s5, 2')
    a.e('s_add_u32 s70, s70, s6')
    a.e('s_mul_i32 s70, s70, %d', 16 * KVB)
    a.e('s_add_u32 s70, s70, %d', WS_KVP)
    a.e('s_mul_i32 s64, s4, %d', KVB)
    a.e('s_add_u32 s64, s64, s70')
    a.e('s_mov_b32 s67, s64')
    a.e('v_lshl_add_u32 v15, v2, 2, s64')
    a.e('v_add_u32 v15, %d, v15', KVZ - 64)
    a.e('s_lshl_b32 s64, s5, 2')
    a.e('s_add_u32 s64, s64, s6')
    a.e('s_lshl_b32 s64, s64, 7')
    a.e('s_add_u32 s64, s64, %d', WS_F1)
    a.e('v_mov_b32 v23, s64')
    a.e('s_lshl_b32 s65, s4, 10')
    a.e('s_add_u32 s65, s65, %d', WS_F2 - 128)
    a.e('v_lshl_add_u32 v20, v2, 7, s65')
    a.e('v_cmp_gt_u32 vcc, 16, v2')
    a.e('s_nop 1')
    a.e('v_cndmask_b32 v15, v15, v20, vcc')
    a.e('v_writelane_b32 v15, s64, 0')
    a.e('s_cmp_eq_u32 s4, 0')
    a.e('s_cselect_b32 s75, 1, 0')
    a.e('s_or_b32 s64, s5, s6')
    a.e('s_cmp_eq_u32 s64, 0')
    a.e('s_cselect_b32 s64, 0x1fe, 0')
    a.e('s_or_b32 s75, s75, s64')
    a.e('s_or_b32 s75, s75, 0xffff0000')
    a.e('v_add_u32 v22, s67, v%d', V16)
    for r in range(4):
        a.e('v_mov_b32 v%d, -1', 16 + r)
    a.e('v_cndmask_b32 v20, -1, 0, vcc')
    a.vm_wait('d0')
    stamp(a, 4)
    a.e('s_barrier')
    dma(2)

    def init_stores():
        a.vm_issue('init', 'buffer_store_dwordx4 v[16:19], v22, %s, 0 offen' + WT, WSR)
        a.e('s_mov_b32 exec_lo, s75\ns_mov_b32 exec_hi, 0')
        a.vm_issue('init', 'buffer_store_dword v20, v15, %s, 0 offen' + WT, WSR)
        a.e(MASK14)
        a.vm_issue('init', 'buffer_store_dwordx4 v[16:19], v%d, %s, 0 offen' + WT, VHP, WSR)
        a.e('s_mov_b64 exec, 0xffff')
        a.e('s_lshl_b32 s64, s2, 10')
        a.e('s_lshl_b32 s65, s6, 8')
        a.e('s_add_u32 s64, s64, s65')
        a.e('s_add_u32 s64, s64, %d', WS_YP)
        a.vm_issue('init', 'buffer_store_dwordx4 v[16:19], v%d, %s, s64 offen' + WT, V16, WSR)
        a.e('s_mov_b64 exec, -1')

    def row_loads():
        if 'rows0' not in EXP:
            x_rows()
        for q in range(2):
            a.vm_issue('r', 'buffer_load_dwordx4 %s, v%d, %s, 0 offen offset:%d', vr(WR + 4 * q, 4), V16, sr(S_WR, 4), q * 1024)
        for q in range(2):
            a.vm_issue('r', 'buffer_load_dwordx4 %s, v%d, %s, 0 offen offset:%d', vr(GW + 4 * q, 4), V16, sr(S_GW, 4), q * 1024)

    WGT = 96
    XS = 88
    WD = 192
    wl = [(m, j) for j in range(8) for m in range(2)]
    TR = [int(c) for c in os.environ.get('TR', '00005005006007000')]
    assert len(TR) == 17 and sum(TR) == 23, sum(TR)
    allw = [('w', x) for x in wl] + [('d', j) for j in range(7)]
    wsched, dsched = {}, {}
    for k, n in enumerate(TR):
        for kind, x in allw[sum(TR[:k]):sum(TR[:k + 1])]:
            (wsched if kind == 'w' else dsched).setdefault(k - 1, []).append(x)
    D0 = min(dsched)
    GV = E('GV', 13)
    VWD = 21

    def wload(lst):
        if 'now' in EXP:
            return
        a.e(MASK14)
        for (m, j) in lst:
            a.e('s_mov_b32 s64, %d', j * 7168)
            a.vm_issue('w', 'buffer_load_dwordx4 %s, v%d, %s, s64 offen' + NTW, vr(WGT + 32 * m + 4 * j, 4), VWG, sr(S_WG if m == 0 else S_WU, 4))
        a.e('s_mov_b64 exec, -1')

    GA = 32
    MK = 40

    def gemv1_part(pairs):
        if pairs[0] == 0:
            a.e('v_and_b32 v48, 15, v2')
            a.e('v_and_b32 v49, 1, v2')
            a.e('v_lshlrev_b32 v49, 4, v49')
            a.e('v_mov_b32 v50, 0xffff')
            a.e('v_lshlrev_b32 v49, v49, v50')
            a.e('v_lshrrev_b32 v48, 1, v48')
            for q in range(4):
                a.e('v_cmp_eq_u32 vcc, %d, v48', q)
                a.e('s_nop 1')
                a.e('v_cndmask_b32 v%d, 0, v49, vcc', MK + q)
        a.e('s_mov_b32 s64, 0x01000100')
        a.e('s_mov_b32 s65, 0x03020302')
        for jp in pairs:
            for k in range(2):
                j = 2 * jp + k
                t = 44 + 8 * (j & 1)
                a.e('v_perm_b32 v48, v%d, v%d, s%d', XS + jp, XS + jp, 64 + k)
                for q in range(4):
                    a.e('v_and_b32 v%d, v48, v%d', t + q, MK + q)
                a.e('s_nop 1')
                for m in range(2):
                    d = vr(GA + 4 * m, 4)
                    a.e('v_mfma_f32_16x16x32_bf16 %s, %s, %s, %s', d, vr(t, 4), vr(WGT + 32 * m + 4 * j, 4), '0' if j == 0 else d)

    def gemv1_fin():
        a.e('s_nop 7')
        for q in range(4):
            a.e('v_permlane32_swap_b32 v%d, v%d', GA + q, GA + 4 + q)
        a.e(MASK14)
        a.vm_issue('hp', 'buffer_store_dwordx4 %s, v%d, %s, 0 offen' + WT, vr(GA, 4), VHP, WSR)
        a.e('s_mov_b64 exec, -1')
        stamp(a, 7)

    def h0_only(name):
        a.e('s_cmp_lg_u32 s6, 0')
        a.e('s_cbranch_scc1 %s', name)

    IN = E('IN', 0)
    PB = E('PB', 10)
    KP = E('KP', RL + 7)
    gv = {'a': {GV: [0, 1], GV + 1: [2, 3]}, 'b': {GV: [0], GV + 1: [1, 2], GV + 2: [3]}, 'c': {GV: [0], GV + 1: [1], GV + 2: [2, 3]},
          'd': {GV: [0, 1, 2, 3]}}[os.environ.get('GVS', 'd')]
    WOS = {'a': {13: (0, 8, 1, 9, 2, 10), 14: (3, 11), 15: (4, 12, 5, 13, 6, 14, 7, 15)},
           'b': {13: (0, 8, 1, 9), 14: (2, 10), 15: (3, 11, 4, 12, 5, 13, 6, 14, 7, 15)},
           'c': {13: (0, 8), 14: (1, 9), 15: (2, 10, 3, 11, 4, 12, 5, 13, 6, 14, 7, 15)},
           'd': {13: (0,), 14: (8, 1, 9, 2), 15: (10, 3, 11, 4, 12, 5, 13, 6, 14, 7, 15)},
           'e': {13: (0, 8), 14: (1, 9, 2, 10), 15: (3, 11, 4, 12, 5, 13, 6, 14, 7, 15)}}[os.environ.get('WOSCH', 'e')]
    if RL == -1:
        row_loads()
    if IN == -1:
        init_stores()
    if -1 in wsched:
        wload(wsched[-1])
    def wd_addr():
        srd(a, S_WD, 54, 7340032)
        a.e('s_lshr_b32 s64, s2, 2')
        a.e('s_mul_i32 s64, s64, %d', 56 * 2048)
        a.e('s_and_b32 s65, s2, 3')
        a.e('s_lshl_b32 s65, s65, 9')
        a.e('s_add_u32 s64, s64, s65')
        a.e('s_lshl_b32 s65, s6, 7')
        a.e('s_add_u32 s64, s64, s65')
        a.e('v_lshrrev_b32 v7, 3, v2')
        a.e('v_lshlrev_b32 v7, 11, v7')
        a.e('v_and_b32 v9, 7, v2')
        a.e('v_lshl_add_u32 v7, v9, 4, v7')
        a.e('v_add_u32 v%d, s64, v7', VWD)

    def key_loads():
        a.e('s_mov_b32 s64, %d', WS_KEY)
        for q in range(2):
            a.vm_uncounted('buffer_load_dwordx4 %s, v%d, %s, s64 offen offset:%d sc1' % (vr(24 + 4 * q, 4), V16, WSR, q * 1024))

    def dots():
        for q in range(8):
            for k, (x, w) in enumerate(((XR + q, GW + q), (XR + 8 + q, GW + q), (XR + q, WR + q), (XR + 8 + q, WR + q))):
                a.e('v_dot2_f32_bf16 v%d, v%d, v%d, %s', 72 + k, x, w, '0' if q == 0 else 'v%d' % (72 + k))

    def router_fin():
        a.e('v_permlane32_swap_b32 v72, v74')
        a.e('v_permlane32_swap_b32 v73, v75')
        a.e('v_add_f32 v72, v72, v74')
        a.e('v_add_f32 v73, v73, v75')
        a.e('s_lshl_b32 s64, s68, 2')
        a.e('s_add_u32 s64, s64, %d', WS_G)
        a.e('v_permlane16_swap_b32 v72, v73')
        a.e('v_add_f32 v72, v72, v73')
        a.e('v_and_b32 v75, 1, v8')
        a.e('v_lshl_add_u32 v76, v75, 2, s64')
        for pat in ('quad_perm:[1,0,3,2]', 'quad_perm:[2,3,0,1]', 'row_half_mirror', 'row_mirror'):
            a.e('v_add_f32_dpp v72, v72, v72 %s row_mask:0xf bank_mask:0xf', pat)
            a.e('s_nop 1')
        a.e('v_cvt_pk_bf16_f32 v72, v72, v72')
        a.e('s_sub_u32 s64, %d, s68', 2047 + 0x8000)
        a.e('v_lshlrev_b32 v72, 16, v72')
        a.e('v_ashrrev_i32 v73, 31, v72')
        a.e('v_sub_u32 v77, s64, v75')
        a.e('v_or_b32 v73, 0x80000000, v73')
        a.e('s_lshl_b32 s64, s6, 3')
        a.e('v_xor_b32 v73, v72, v73')
        a.e('v_lshl_add_u32 v75, v75, 2, s64')
        a.e('v_and_b32 v73, 0xffff0000, v73')
        a.e('v_or_b32 v73, v77, v73')
        sigmoid_bf16(a, [72])

    def key_max():
        a.e('v_max_u32 v3, v24, v26')
        a.e('v_max3_u32 v3, v3, v28, v30')
        a.e('s_nop 1')
        for pat in ('quad_perm:[1,0,3,2]', 'quad_perm:[2,3,0,1]', 'row_half_mirror', 'row_mirror'):
            a.e('v_max_u32_dpp v3, v3, v3 %s row_mask:0xf bank_mask:0xf', pat)
            a.e('s_nop 1')
        for swp in ('v_permlane16_swap_b32', 'v_permlane32_swap_b32'):
            a.e('v_mov_b32 v7, v3')
            a.e('s_nop 1')
            a.e('%s v3, v7', swp)
            a.e('v_max_u32 v3, v3, v7')
        a.e('v_mov_b32 v7, %d', L_KEY + 32)

    marks = {}
    for i in range(16):
        if i + 1 < 16:
            a.vm_wait('d%d' % (i + 1))
        if i == KP:
            a.vm_wait('g')
        if i in (RL + 5, PB + 2):
            a.e('s_waitcnt lgkmcnt(0)')
        a.e('s_barrier')
        fill = []
        if i == RL + 2:
            a.e('v_mov_b32 v79, 0')
            h0_only('H_nc')
            a.vm_uncounted('buffer_load_dword v78, v79, %s, 0 offen sc1' % sr(S_DBG, 4))
            a.e('H_nc:')
        if i == PB:
            h0_only('H_np')
            key_loads()
            a.e('H_np:')
            marks['poll'] = a.issued
        if i == PB + 1:
            h0_only('H_nq')
            a.e('s_waitcnt vmcnt(%d)', a.issued - marks['poll'])
            a.e('s_mov_b32 s65, 0')
            a.e('H_spin:')
            for q in range(4):
                a.e('v_xor_b32 v%d, v%d, v%d', 25 + 2 * q, 24 + 2 * q, 25 + 2 * q)
            a.e('v_xor_b32 v3, s71, v25')
            a.e('v_xor_b32 v7, s71, v27')
            a.e('v_xor_b32 v25, s71, v29')
            a.e('v_xor_b32 v27, s71, v31')
            a.e('v_or3_b32 v3, v3, v7, v25')
            a.e('v_or_b32 v3, v3, v27')
            a.e('v_cmp_ne_u32 vcc, 0, v3')
            a.e('s_cbranch_vccnz H_retry')
            with a.cold():
                a.e('H_retry:')
                a.e('s_add_u32 s65, s65, 1')
                a.e('s_cmp_ge_u32 s65, 200000')
                a.e('s_cbranch_scc1 H_nq')
                a.e('s_sleep 8')
                key_loads()
                a.e('s_waitcnt vmcnt(0)')
                a.e('s_branch H_spin')
            a.e('H_nq:')
            fill += cap(key_max)
        if i == PB + 2:
            a.e('v_mov_b32 v7, %d', L_KEY + 32)
            a.e('ds_read_b32 v3, v7')
            a.e('s_lshl_b32 s65, s69, 6')
            a.e('v_lshl_add_u32 v7, v8, 4, s65')
            a.e('s_waitcnt lgkmcnt(0)')
            a.e('v_readfirstlane_b32 s75, v3')
            a.e('s_nop 3')
            a.e('s_and_b32 s64, s75, 0x7ff')
            a.e('s_sub_u32 s64, 2047, s64')
            a.e('s_lshl_b32 s64, s64, 11')
            a.vm_issue('xs', 'buffer_load_dwordx4 %s, v7, %s, s64 offen', vr(XS, 4), sr(S_X, 4))
        if i == RL + 3:
            a.vm_wait('r')
            fill += cap(dots)
        if i == RL + 4:
            fill += cap(router_fin)
        if i in gv:
            if gv[i][0] == 0:
                a.vm_wait('xs')
                a.vm_wait('w')
                stamp(a, 6)
            fill += cap(lambda: gemv1_part(gv[i]))
        if i + 3 < 16:
            dma(i + 3, fill)
        else:
            if i == 13:
                p2_ids(a)
                srd(a, S_WO, 44, 2097152)
                wo_voff(a, VOW, 7, 9, 6)
            if i == 15:
                xo_loads(a)
            wo_units(WOS[i], fill)
        if i == RL:
            row_loads()
        if i == IN:
            init_stores()
        if i == RL + 4:
            a.e('s_mov_b32 exec_lo, 0\ns_mov_b32 exec_hi, 0x10001')
            a.e('ds_write_b32 v75, v73 offset:%d', L_KEY)
            a.e('s_mov_b32 exec_lo, 0x10001\ns_mov_b32 exec_hi, 0')
            a.vm_issue('g', 'buffer_store_dword v72, v76, %s, 0 offen' + WT, WSR)
            a.e('s_mov_b64 exec, -1')
        if i == KP:
            assert IN <= RL + 4 < KP
            h0_only('H_nk')
            a.e('v_mov_b32 v3, %d', L_KEY)
            a.e('ds_read_b128 v[72:75], v3')
            a.e('ds_read_b128 v[24:27], v3 offset:16')
            a.e('s_mov_b32 s65, 0')
            a.e('H_nspin:')
            a.e('v_readfirstlane_b32 s71, v78')
            a.e('s_cmp_eq_u32 s71, 0')
            a.e('s_cbranch_scc1 H_nre')
            with a.cold():
                a.e('H_nre:')
                a.e('s_add_u32 s65, s65, 1')
                a.e('s_cmp_ge_u32 s65, 200000')
                a.e('s_cbranch_scc1 H_nok')
                a.e('s_sleep 4')
                a.e('buffer_load_dword v78, v79, %s, 0 offen sc1' % sr(S_DBG, 4))
                a.e('s_waitcnt vmcnt(0)')
                a.e('s_branch H_nspin')
            a.e('H_nok:')
            a.e('s_lshl_b32 s64, s2, 3')
            a.e('s_add_u32 s64, s64, %d', WS_KEY)
            a.e('v_mov_b32 v3, s64')
            a.e('s_waitcnt lgkmcnt(0)')
            a.e('v_max3_u32 v72, v72, v73, v74')
            a.e('v_max3_u32 v24, v24, v25, v26')
            a.e('v_max3_u32 v72, v72, v75, v27')
            a.e('v_max_u32 v72, v72, v24')
            a.e('v_xor_b32 v73, s71, v72')
            a.e('s_mov_b64 exec, 1')
            a.vm_uncounted('buffer_store_dwordx2 v[72:73], v3, %s, 0 offen' % WSR + WT)
            a.e('s_mov_b64 exec, -1')
            a.e('H_nk:')
        if i == PB + 1:
            h0_only('H_nw')
            a.e('ds_write_b32 v7, v3')
            a.e('H_nw:')
        if i == E('PFO', 99):
            srd(a, S_GW, 44, 2097152)
            a.e('s_lshl_b32 s64, s2, 13')
            a.e('s_lshl_b32 s65, s6, 11')
            a.e('s_add_u32 s64, s64, s65')
            for q in range(2):
                a.vm_issue('t', 'buffer_load_dwordx4 v[56:59], v%d, %s, s64 offen offset:%d', V16, sr(S_GW, 4), q * 1024)
        if i in wsched:
            wload(wsched[i])
        if i == D0:
            wd_addr()
        if i in dsched and 'now' not in EXP:
            for j in dsched[i]:
                a.e('s_mov_b32 s64, %d', j * 16384)
                a.vm_issue('wd', 'buffer_load_dwordx4 %s, v%d, %s, s64 offen' + NTW, vr(WD + 4 * j, 4), VWD, sr(S_WD, 4))
        if i == max(gv):
            gemv1_fin()
    stamp(a, 5)
    if STAMPS == 4:
        a.e('s_waitcnt vmcnt(19)')
        stamp(a, 3, lvl=4)
        a.e('s_waitcnt vmcnt(16)')
        stamp(a, 4, lvl=4)
        a.e('s_waitcnt vmcnt(8)')
        stamp(a, 6, lvl=4)
        a.e('s_waitcnt vmcnt(0)')
        stamp(a, 7, lvl=4)
    if 'gprio' in EXP:
        a.e('s_setprio 3')
    KB, KA, PA = 64, 128, 48
    SL = 40

    def f1_poll():
        a.e('s_mov_b64 exec, 1')
        a.e('v_mov_b32 v20, 0')
        a.e('buffer_atomic_or v20, v23, %s, 0 offen sc0', WSR)
        a.e('s_mov_b64 exec, -1')
    f1_poll()
    a.e('v_add_u32 v17, s70, v%d', V16)
    a.e('v_lshrrev_b32 v18, 2, v2')
    a.e('v_mul_u32_u24 v18, %d, v18', KVB)
    a.e('v_and_b32 v19, 3, v2')
    a.e('v_lshl_add_u32 v18, v19, 4, v18')
    a.e('s_add_u32 s64, s70, %d', KVZ)
    a.e('v_add_u32 v18, s64, v18')
    a.e('v_bfe_u32 v26, v2, 3, 1')
    a.e('v_lshl_add_u32 v26, v26, 2, v19')
    a.e('v_bfe_u32 v27, v2, 2, 1')
    a.e('v_lshrrev_b32 v28, 5, v2')
    a.e('v_cmp_eq_u32 vcc, v27, v28')
    a.e('v_and_b32 v27, 16, v2')
    a.e('v_cmp_eq_u32 s[64:65], 0, v27')
    a.e('s_and_b64 vcc, vcc, s[64:65]')
    a.e('v_and_b32 v27, 1, v26')
    a.e('v_lshlrev_b32 v27, 4, v27')
    a.e('v_mov_b32 v28, 0x3f80')
    a.e('v_lshlrev_b32 v27, v27, v28')
    a.e('v_cndmask_b32 v27, 0, v27, vcc')
    a.e('v_lshrrev_b32 v26, 1, v26')
    for q in range(4):
        a.e('v_cmp_eq_u32 vcc, %d, v26', q)
        a.e('s_nop 1')
        a.e('v_cndmask_b32 v%d, 0, v27, vcc', PA + q)
    for r in range(16):
        a.e('v_mov_b32 v%d, 0', KA + r)
    a.e('s_mov_b32 s66, 0xffff')
    a.e('s_mov_b32 s65, 0')
    a.e('s_waitcnt vmcnt(0)')
    a.e('G_loop:')
    a.e('v_readfirstlane_b32 s68, v20')
    if E('SPEC', 0):
        a.e('s_bcnt1_i32_b32 s64, s66')
        a.e('s_cmp_le_u32 s64, %d', E('SPEC', 0))
        a.e('s_cselect_b32 s68, 0xffff, s68')
    a.e('s_and_b32 s68, s68, s66')
    a.e('s_andn2_b32 s66, s66, s68')
    if STAMPS == 2:
        a.e('s_memrealtime s[86:87]')
        a.e('s_min_u32 s64, s65, 30')
        a.e('s_lshl_b32 m0, s64, 1')
        a.e('s_waitcnt lgkmcnt(0)')
        a.e('v_writelane_b32 v250, s86, m0')
        a.e('s_add_u32 m0, m0, 1')
        a.e('s_nop 0')
        a.e('v_writelane_b32 v250, s66, m0')
        a.e('v_writelane_b32 v250, s65, 63')
    a.e('s_bcnt1_i32_b32 s67, s68')

    def jump_n(pref):
        def rec(lo, hi, last):
            if lo == hi:
                if not (last and lo == 16):
                    a.e('s_branch %s%d', pref, lo)
                return
            mid = lo if hi - lo < 3 else (lo + hi) // 2
            if mid == lo:
                a.e('s_cmp_eq_u32 s67, %d', lo)
                a.e('s_cbranch_scc1 %s%d', pref, lo)
                rec(lo + 1, hi, last)
            else:
                lab = a.label(pref + 't')
                a.e('s_cmp_gt_u32 s67, %d', mid)
                a.e('s_cbranch_scc1 %s', lab)
                rec(lo, mid, False)
                a.e('%s:', lab)
                rec(mid + 1, hi, last)
        a.e('s_cmp_eq_u32 s67, 0')
        a.e('s_cbranch_scc1 %s0', pref)
        rec(1, 16, True)
    jump_n('G_l')
    for c in range(15, -1, -1):
        a.e('G_l%d:', c + 1)
        a.e('s_ff1_i32_b32 s%d, s68', SL + c)
        a.e('s_bitset0_b32 s68, s%d', SL + c)
        a.e('s_mul_i32 s64, s%d, %d', SL + c, KVB)
        a.e('buffer_load_dwordx4 %s, v17, %s, s64 offen sc1', vr(KB + 4 * c, 4), WSR)
    a.e('G_l0:')
    a.e('s_mov_b32 s68, s66')
    a.e('s_cmp_eq_u32 s66, 0')
    a.e('s_cbranch_scc1 G_z')
    a.e('s_cmp_lg_u32 s67, 0')
    a.e('s_cbranch_scc1 G_p')
    a.e('s_sleep %d', E('GSL', 2))
    a.e('G_p:')
    f1_poll()
    a.e('s_branch G_proc')
    a.e('G_z:')
    a.e('buffer_load_dwordx4 v[56:59], v18, %s, 0 offen sc1', WSR)
    a.e('G_proc:')
    jump_n('G_q')
    for c in range(15, -1, -1):
        b = KB + 4 * c
        a.e('G_q%d:', c + 1)
        a.e('s_waitcnt vmcnt(%d)', c + 1)
        a.e('v_max3_u32 v21, v%d, v%d, v%d', b, b + 1, b + 2)
        a.e('v_max_u32 v21, v21, v%d', b + 3)
        a.e('v_cmp_eq_u32 vcc, -1, v21')
        a.e('s_cbranch_vccnz G_f%d', c)
        a.e('v_mfma_f32_32x32x16_bf16 %s, %s, %s, %s', vr(KA, 16), vr(PA, 4), vr(b, 4), vr(KA, 16))
        with a.cold():
            a.e('G_f%d:', c)
            a.e('s_bitset1_b32 s66, s%d', SL + c)
            a.e('s_branch G_q%d', c)
    a.e('G_q0:')
    a.e('s_waitcnt vmcnt(0)')
    a.e('s_add_u32 s65, s65, 1')
    a.e('s_cmp_ge_u32 s65, 40000')
    a.e('s_cbranch_scc1 G_done')
    a.e('s_cmp_lg_u32 s68, 0')
    a.e('s_cbranch_scc1 G_loop')
    a.e('v_mov_b32 v20, -1')
    a.e('s_cmp_lg_u32 s66, 0')
    a.e('s_cbranch_scc1 G_loop')
    a.e('v_max3_u32 v21, v56, v57, v58')
    a.e('v_max_u32 v21, v21, v59')
    a.e('v_cmp_eq_u32 vcc, -1, v21')
    a.e('s_cbranch_vccnz G_loop')
    a.e('G_done:')
    a.vm = []
    stamp(a, 8)
    a.e('v_add_u32 v16, s7, v%d', V16)
    for pat in ('row_ror:4', 'row_ror:8'):
        for q in range(4):
            a.e('v_add_f32_dpp v%d, v%d, v%d %s row_mask:0xf bank_mask:0xf', 56 + q, 56 + q, 56 + q, pat)
    for swp in ('v_permlane16_swap_b32', 'v_permlane32_swap_b32'):
        for q in range(4):
            a.e('v_mov_b32 v%d, v%d', 64 + q, 56 + q)
        a.e('s_nop 0')
        for q in range(4):
            a.e('%s v%d, v%d', swp, 56 + q, 64 + q)
        for q in range(4):
            a.e('v_add_f32 v%d, v%d, v%d', 56 + q, 56 + q, 64 + q)
    for q in range(4):
        a.e('v_cvt_pk_bf16_f32 v%d, v%d, v%d', 60 + q, KA + 2 * q, KA + 2 * q + 1)
    a.e('ds_write_b128 v16, v[60:63] offset:%d', L_KF)
    a.e('v_cvt_pk_bf16_f32 v56, v56, v57')
    a.e('v_cvt_pk_bf16_f32 v57, v58, v59')
    a.e('s_lshr_b32 s64, s6, 1')
    a.e('s_lshl_b32 s64, s64, 6')
    a.e('s_and_b32 s65, s6, 1')
    a.e('s_lshl_b32 s65, s65, 3')
    a.e('s_add_u32 s64, s64, s65')
    a.e('v_lshl_add_u32 v16, v2, 4, s64')
    a.e('s_mov_b64 exec, 15')
    a.e('ds_write_b64 v16, v[56:57] offset:%d', L_ZF)
    a.e('s_mov_b64 exec, -1')
    a.e('s_waitcnt lgkmcnt(0)')
    a.e('s_barrier')
    if 'gprio' in EXP:
        a.e('s_setprio 0')
    a.e('v_lshrrev_b32 v18, 3, v2')
    a.e('v_lshlrev_b32 v18, 2, v18')
    for j in range(7):
        a.e('ds_read_b32 v%d, v18 offset:%d', 24 + j, L_H + 32 * j)
    a.e('s_waitcnt lgkmcnt(0)')
    YA = 32
    for j in range(7):
        for q in range(4):
            w = WD + 4 * j + q
            a.e('v_lshlrev_b32 v48, 16, v%d', w)
            a.e('v_and_b32 v49, 0xffff0000, v%d', w)
            if j == 0:
                a.e('v_mul_f32 v%d, v48, v%d', YA + 2 * q, 24 + j)
                a.e('v_mul_f32 v%d, v49, v%d', YA + 2 * q + 1, 24 + j)
            else:
                a.e('v_fmac_f32 v%d, v48, v%d', YA + 2 * q, 24 + j)
                a.e('v_fmac_f32 v%d, v49, v%d', YA + 2 * q + 1, 24 + j)
    a.e('s_nop 1')
    for q in range(4):
        a.e('v_permlane32_swap_b32 v%d, v%d', YA + q, YA + 4 + q)
    for q in range(4):
        a.e('v_add_f32 v%d, v%d, v%d', YA + q, YA + q, YA + 4 + q)
    a.e('s_nop 1')
    for q in range(2):
        a.e('v_permlane16_swap_b32 v%d, v%d', YA + q, YA + 2 + q)
    for q in range(2):
        a.e('v_add_f32 v%d, v%d, v%d', YA + q, YA + q, YA + 2 + q)
    a.e('s_nop 1')
    for q in range(2):
        a.e('v_add_f32_dpp v%d, v%d, v%d row_ror:8 row_mask:0xf bank_mask:0xf', YA + q, YA + q, YA + q)
    a.e('v_and_b32 v16, 7, v2')
    a.e('v_lshlrev_b32 v16, 5, v16')
    a.e('v_lshl_add_u32 v16, v8, 3, v16')
    a.e('s_lshl_b32 s64, s2, 10')
    a.e('s_lshl_b32 s65, s6, 8')
    a.e('s_add_u32 s64, s64, s65')
    a.e('s_add_u32 s64, s64, %d', WS_YP)
    a.e('s_mov_b32 exec_lo, 0x00ff00ff\ns_mov_b32 exec_hi, 0x00ff00ff')
    a.e('buffer_store_dwordx2 %s, v16, %s, s64 offen' + WT, vr(YA, 2), WSR)
    a.e('s_mov_b64 exec, -1')
    stamp(a, 9)
    if 'latep' not in EXP:
        f2_poll_first(a)
    t2_fill(a)
    a.e('s_branch P2_start')


def gen_c1(a):
    a.e('C_start:')
    TOUCH = E('TOUCH', 0)
    if TOUCH:
        a.e('s_mul_i32 s64, s2, 24576')
        a.e('s_mul_i32 s65, s3, 6144')
        a.e('s_add_u32 s64, s64, s65')
        a.e('v_mul_u32_u24 v3, %d, v2', TOUCH)
        a.e('s_mov_b32 exec_hi, 0xffff')
        for q in range(128 // TOUCH):
            a.vm_issue('t', 'buffer_load_dword v60, v3, %s, s64 offen offset:%d', sr(S_W, 4), q * 3072)
        a.e('s_mov_b32 exec_hi, -1')
    if 'noscode' not in EXP:
        NS = 4
        a.e('s_getpc_b64 s[68:69]')
        a.e('C_pc:')
        a.e('s_sub_u32 s68, s68, C_pc-%s_kernel' % NAME)
        a.e('s_subb_u32 s69, s69, 0')
        a.e('s_lshr_b32 s64, s2, 3')
        a.e('s_lshl_b32 s64, s64, 2')
        a.e('s_add_u32 s64, s64, s3')
        a.e('s_mul_i32 s64, s64, %d', NS * 64)
        a.e('s_mov_b32 s65, CODE_END-%s_kernel-4' % NAME)
        for q in range(NS):
            a.e('s_min_u32 s66, s64, s65')
            a.e('s_load_dword s75, s[68:69], s66')
            a.e('s_add_u32 s64, s64, 64')
    M16 = 'v_mfma_f32_16x16x32_bf16'
    VAB, VBB, VA, VB = 4, 6, 8, 10
    BF = [16, 40]
    AB = [192, 208]
    QA, KA_, VA_ = 64, 96, 128
    qt = lambda sb, db: QA + (sb * 2 + db) * 4
    kt = lambda base, sb, db: base + (((sb >> 1) * 2 + db) * 2 + (sb & 1)) * 4
    X = 224
    ONES = 236
    a.e('s_and_b32 s6, s3, 1')
    a.e('s_lshr_b32 s7, s3, 1')
    a.e('v_and_b32 v3, 15, v2')
    a.e('s_lshl_b32 s64, s6, 6')
    a.e('v_add_u32 v3, s64, v3')
    a.e('v_lshlrev_b32 v3, 7, v3')
    a.e('v_add_u32 v3, %d, v3', RB)
    a.e('v_bfe_u32 v56, v2, 1, 3')
    a.e('v_lshrrev_b32 v57, 4, v2')
    a.e('v_xor_b32 v56, v56, v57')
    a.e('v_lshl_add_u32 v%d, v56, 4, v3', VAB)
    a.e('v_xor_b32 v%d, 64, v%d', VAB + 1, VAB)
    a.e('v_bfe_u32 v56, v2, 2, 2')
    a.e('v_lshl_add_u32 v58, v57, 3, v56')
    a.e('v_lshlrev_b32 v58, 7, v58')
    a.e('v_lshrrev_b32 v56, 1, v56')
    a.e('v_xor_b32 v56, s7, v56')
    a.e('v_lshl_add_u32 v58, v56, 6, v58')
    a.e('v_and_b32 v57, 1, v57')
    a.e('v_lshl_add_u32 v58, v57, 5, v58')
    a.e('v_and_b32 v56, 3, v2')
    a.e('v_lshl_add_u32 v58, v56, 3, v58')
    a.e('v_add_u32 v%d, %d, v58', VBB, RB + 16384)
    a.e('v_xor_b32 v%d, 32, v%d', VBB + 1, VBB)
    for t in range(2):
        a.e('v_mov_b32 v%d, v%d', VA + t, VAB + t)
        a.e('v_mov_b32 v%d, v%d', VB + t, VBB + t)
    for r in range(64, 160):
        a.e('v_mov_b32 v%d, 0', r)
    a.e('s_lshl_b32 s64, s3, 2')
    a.e('v_mov_b32 v%d, s64', X + 5)
    a.e('ds_write_b32 v%d, v64 offset:%d', X + 5, L_FLG)
    a.e('v_lshlrev_b32 v3, 4, v2')
    a.e('s_lshl_b32 s64, s3, 11')
    a.e('v_add_u32 v%d, s64, v3', X)
    a.e('v_xor_b32 v%d, 2048, v%d', X + 1, X)
    a.e('s_lshl_b32 s64, s3, 8')
    a.e('v_lshl_add_u32 v%d, v2, 2, s64', X + 3)
    a.e('v_xor_b32 v%d, 256, v%d', X + 4, X + 3)
    a.e('v_xor_b32 v%d, 4, v%d', X + 6, X + 5)
    a.e('v_mov_b32 v%d, 1', X + 7)
    a.e('v_lshlrev_b32 v%d, 2, v2', X + 8)
    a.e('s_lshl_b32 s64, 1, s4')
    a.e('v_mov_b32 v%d, s64', X + 9)
    a.e('s_lshl_b32 s43, s5, 2')
    a.e('s_add_u32 s43, s43, s3')
    a.e('s_lshl_b32 s64, s43, 7')
    a.e('s_add_u32 s64, s64, %d', WS_F1)
    a.e('v_mov_b32 v%d, s64', X + 10)
    a.e('s_lshl_b32 s43, s43, 4')
    a.e('s_add_u32 s43, s43, s4')
    a.e('s_mul_i32 s43, s43, %d', KVB)
    a.e('s_add_u32 s43, s43, %d', WS_KVP)
    a.e('s_lshl_b32 s42, s4, 2')
    a.e('s_lshl_b32 s64, s6, 1')
    a.e('s_add_u32 s42, s42, s64')
    a.e('s_lshl_b32 s42, s42, 5')
    a.e('s_lshl_b32 s64, s5, 1')
    a.e('s_add_u32 s42, s42, s64')
    a.e('s_add_u32 s42, s42, s7')
    a.e('s_lshl_b32 s42, s42, 11')
    a.e('s_and_b32 s64, s5, 7')
    a.e('s_lshl_b32 s64, s64, 1')
    a.e('s_add_u32 s64, s64, s7')
    a.e('s_lshl_b32 s64, 1, s64')
    a.e('v_mov_b32 v13, s64')
    a.e('s_lshr_b32 s64, s5, 3')
    a.e('s_lshl_b32 s64, s64, 1')
    a.e('s_add_u32 s64, s64, s6')
    a.e('s_lshl_b32 s64, s64, 8')
    a.e('s_lshl_b32 s65, s4, 10')
    a.e('s_add_u32 s64, s64, s65')
    a.e('s_add_u32 s64, s64, %d', WS_F2)
    a.e('v_lshl_add_u32 v12, v2, 7, s64')
    p2_ids(a)
    a.e('s_mov_b32 s65, 0')
    a.e('s_mov_b32 s66, 0')
    for r in range(4):
        a.e('v_mov_b32 v%d, 0x3f803f80', ONES + r)

    def reads(st, buf, areg, q=True):
        B = lambda ty, cb: ['ds_read_b64_tr_b16 %s, v%d offset:%d' % (vr(BF[buf] + 8 * ty + 4 * cb + 2 * tt, 2), VB + cb, ty * 8192 + st * 4096 + tt * 512)
                            for tt in range(2)]
        A = ['ds_read_b128 %s, v%d offset:%d' % (vr(areg + 4 * b, 4), VA + st, b * 2048) for b in range(4)]
        L = []
        for ty in ((0, 1, 2) if q else (1, 2)):
            for cb in range(2):
                L += B(ty, cb)
        return L[:2] + A + L[2:]

    def mfmas(buf, areg, q=True):
        L = []
        tys = (0, 1, 2) if q else (1, 2)
        order = [(ty, cb, b) for ty in tys for cb in range(2) for b in range(4)]
        if 'ordb' in EXP:
            order = [(ty, cb, b) for b in range(4) for ty in tys for cb in range(2)]
        if 'ords' in EXP:
            order = [(ty, cb, b if (2 * k + cb) % 2 == 0 else 3 - b) for k, ty in enumerate(tys) for cb in range(2) for b in range(4)]
        for (ty, cb, b) in order:
            if True:
                w = vr(BF[buf] + 8 * ty + 4 * cb, 4)
                if True:
                    x = vr(areg + 4 * b, 4)
                    if ty == 0:
                        d = vr(qt(b, cb), 4)
                        L.append('%s %s, %s, %s, %s' % (M16, d, w, x, d))
                    else:
                        d = vr(kt(KA_ if ty == 1 else VA_, b, cb), 4)
                        L.append('%s %s, %s, %s, %s' % (M16, d, x, w, d))
        return L

    def bar_stamped():
        if STAMPS == 2:
            a.e('s_memtime s[68:69]')
        a.e('s_barrier')
        if STAMPS == 2:
            a.e('s_memtime s[70:71]')
            a.e('s_waitcnt lgkmcnt(0)')
            a.e('s_mov_b32 m0, s66')
            a.e('s_nop 0')
            a.e('v_writelane_b32 v14, s68, m0')
            a.e('s_add_u32 m0, s66, 16')
            a.e('s_nop 0')
            a.e('v_writelane_b32 v14, s70, m0')
            a.e('s_memrealtime s[70:71]')
            a.e('s_add_u32 m0, s66, 32')
            a.e('s_waitcnt lgkmcnt(0)')
            a.e('v_writelane_b32 v14, s70, m0')

    def step(M, F):
        for i, m_ in enumerate(M):
            a.e(m_)
            if i < len(F):
                a.e(F[i])
        for f in F[len(M):]:
            a.e(f)

    stamp(a, 3)
    a.vm_wait('d0', 'lgkmcnt(0)')
    stamp(a, 4)
    a.e('s_barrier')
    for r in reads(0, 0, AB[0]):
        a.e(r)
    ND = E('ND', 2)
    a.e('.p2align 3')
    a.e('C_loop:')
    a.e('s_waitcnt lgkmcnt(0)')
    step(mfmas(0, AB[0]), reads(1, 1, AB[1]))
    a.e('s_waitcnt lgkmcnt(0)')
    bar_stamped()
    a.e('s_add_u32 s65, s65, %d', SLOT)
    a.e('s_cmp_eq_u32 s65, %d', 3 * SLOT)
    a.e('s_cselect_b32 s65, 0, s65')
    AD = ['v_add_u32 v%d, s65, v%d' % (r + 4, r) for r in (VBB, VAB, VBB + 1, VAB + 1)]
    R = reads(0, 0, AB[0])
    step(mfmas(1, AB[1]), [AD[0] + '\n' + AD[1]] + R[:6] + [AD[2]] + R[6:] + [AD[3]])
    a.e('s_add_u32 s66, s66, 1')
    a.e('s_cmp_lt_u32 s66, %d', 16 - ND)
    a.e('s_cbranch_scc1 C_loop')
    AR = {(14, 0): 192, (14, 1): 160, (15, 0): 176, (15, 1): 208}
    if ND:
        a.e('s_waitcnt lgkmcnt(0)')
        step(mfmas(0, AR[14, 0], False), reads(1, 1, AR[14, 1], False))
        a.e('s_waitcnt lgkmcnt(0)')
        bar_stamped()
        a.e('s_add_u32 s66, s66, 1')
        AD = ['v_mov_b32 v%d, v%d' % (r + 4, r) for r in (VBB, VAB, VBB + 1, VAB + 1)]
        R = reads(0, 0, AR[15, 0], False)
        step(mfmas(1, AR[14, 1], False), [AD[0] + '\n' + AD[1]] + R[:2] + [AD[2] + '\n' + AD[3]] + R[2:])
        a.e('s_waitcnt lgkmcnt(0)')
        step(mfmas(0, AR[15, 0], False), reads(1, 1, AR[15, 1], False))
        a.e('s_waitcnt lgkmcnt(0)')
        bar_stamped()
        step(mfmas(1, AR[15, 1], False), [])
    a.vm = []
    stamp(a, 5)
    PK = [16, 24]; VBF = [32, 40]; T0, T1, E0, E1, MN = 48, 49, 50, 51, 56
    KVA = 240; ZA = [52, 60]
    if not ND:
        a.e('s_waitcnt lgkmcnt(0)')
    for cb in range(2):
        a.e('v_add_u32 v%d, %d, v%d', VB + cb, 2 * SLOT, VBB + cb)
    for p in range(2):
        phi16(a, KA_ + 16 * p, PK[p], T0, T1, E0, E1, MN)
        for j in range(8):
            a.e('v_cvt_pk_bf16_f32 v%d, v%d, v%d', VBF[p] + j, VA_ + 16 * p + 2 * j, VA_ + 16 * p + 2 * j + 1)
            if j in (1, 2):
                db = j - 1
                a.e('%s %s, %s, %s, %s', M16, vr(ZA[db], 4), vr(ONES, 4), vr(PK[p] + 4 * db, 4), '0' if p == 0 else vr(ZA[db], 4))
            if j in (5, 6):
                db = j - 5
                d = vr(KVA + db * 4, 4)
                a.e('%s %s, %s, %s, %s', M16, d, vr(PK[p] + 4 * db, 4), vr(VBF[p], 4), '0' if p == 0 else d)
        a.e('s_nop 1')
        for db in range(2):
            d = vr(KVA + 8 + db * 4, 4)
            a.e('%s %s, %s, %s, %s', M16, d, vr(PK[p] + 4 * db, 4), vr(VBF[p] + 4, 4), '0' if p == 0 else d)
    a.e('s_cmp_eq_u32 s6, 0')
    a.e('s_cbranch_scc0 C_ex1')
    a.e('ds_write_b32 v%d, v%d offset:%d', X + 3, ZA[1], L_ZX)
    a.e('s_nop 5')
    a.e('ds_write_b128 v%d, %s offset:%d', X, vr(KVA + 8, 4), L_EX)
    a.e('ds_write_b128 v%d, %s offset:%d', X, vr(KVA + 12, 4), L_EX + 1024)
    a.e('C_ex2:')
    with a.cold():
        a.e('C_ex1:')
        a.e('ds_write_b32 v%d, v%d offset:%d', X + 3, ZA[0], L_ZX)
        a.e('ds_write_b128 v%d, %s offset:%d', X, vr(KVA, 4), L_EX)
        a.e('ds_write_b128 v%d, %s offset:%d', X, vr(KVA + 4, 4), L_EX + 1024)
        a.e('s_nop 4')
        a.e('v_mov_b32 v%d, v%d', ZA[0], ZA[1])
        for r in range(8):
            a.e('v_mov_b32 v%d, v%d', KVA + r, KVA + 8 + r)
        a.e('s_branch C_ex2')
    a.e('ds_write_b32 v%d, v%d offset:%d', X + 5, X + 7, L_FLG)
    a.e('C_ps:')
    a.e('ds_read_b32 v25, v%d offset:%d', X + 6, L_FLG)
    a.e('ds_read_b128 v[16:19], v%d offset:%d', X + 1, L_EX)
    a.e('ds_read_b128 v[20:23], v%d offset:%d', X + 1, L_EX + 1024)
    a.e('ds_read_b32 v24, v%d offset:%d', X + 4, L_ZX)
    a.e('s_waitcnt lgkmcnt(0)')
    a.e('v_cmp_eq_u32 vcc, 0, v25')
    a.e('s_cbranch_vccnz C_ps')
    for r in range(8):
        a.e('v_add_f32 v%d, v%d, v%d', 16 + r, 16 + r, KVA + r)
    a.e('v_add_f32 v24, v24, v%d', ZA[0])
    for r in range(4):
        a.e('v_cvt_pk_bf16_f32 v%d, v%d, v%d', 28 + r, 16 + 2 * r, 17 + 2 * r)
    a.vm_issue('kvp', 'buffer_store_dwordx4 v[28:31], v3, %s, s43 offen' + WT, WSR)
    a.e('s_mov_b64 exec, 0xffff')
    a.vm_issue('kvp', 'buffer_store_dword v24, v%d, %s, s43 offen offset:%d' + WT, X + 8, WSR, KVZ)
    a.e('s_mov_b64 exec, 1')
    a.vm_issue('f1', 'buffer_atomic_or v%d, v%d, %s, 0 offen', X + 9, X + 10, WSR)
    a.e('s_mov_b64 exec, -1')
    stamp(a, 6)
    if STAMPS == 2:
        a.e('v_mov_b32 v250, v14')
    if ND:
        steps = [(14, 0), (14, 1), (15, 0), (15, 1)]
        for n, (sg, st) in enumerate(steps):
            for cb in range(2):
                for tt in range(2):
                    a.e('ds_read_b64_tr_b16 %s, v%d offset:%d', vr(96 + 8 * n + 4 * cb + 2 * tt, 2), (VB if sg == 14 else VBB) + cb, st * 4096 + tt * 512)
        for n, (sg, st) in enumerate(steps):
            a.e('s_waitcnt lgkmcnt(%d)', 12 - 4 * n)
            for cb in range(2):
                for b in range(4):
                    d = vr(qt(b, cb), 4)
                    a.e('%s %s, %s, %s, %s', M16, d, vr(96 + 8 * n + 4 * cb, 4), vr(AR[sg, st] + 4 * b, 4), d)
    stamp(a, 7)
    xo_loads(a)
    a.e('v_lshlrev_b32 v3, 4, v2')
    a.e('s_lshl_b32 s64, s7, 11')
    a.e('v_add_u32 v4, s64, v3')
    a.e('v_lshrrev_b32 v5, 4, v2')
    a.e('v_lshlrev_b32 v5, 4, v5')
    a.e('s_lshl_b32 s64, s7, 6')
    a.e('v_add_u32 v5, s64, v5')
    a.e('v_mov_b32 v6, %d', L_KEY + 32)
    a.e('ds_read_b32 v6, v6')
    PQ = 32
    for p in range(2):
        phi16(a, QA + 16 * p, PQ + 8 * p, T0, T1, E0, E1, MN)
    a.e('s_waitcnt lgkmcnt(0)')
    a.e('v_readfirstlane_b32 s75, v6')
    a.vm_wait('xo')
    t2_fill(a)
    a.e('s_cmp_lg_u32 s3, 0')
    a.e('s_cbranch_scc1 C_nh')
    stamp(a, 3, lvl=4)
    h_compute(a)
    stamp(a, 4, lvl=4)
    if STAMPS == 4:
        a.e('s_mov_b32 s88, s65')
        a.e('s_mov_b32 s89, 0')
    a.e('s_waitcnt lgkmcnt(0)')
    a.e('C_nh:')
    a.e('v_lshlrev_b32 v3, 4, v2')
    a.e('s_barrier')
    stamp(a, 8)
    KF, ZF = 16, 24
    NA, DA, OF = 64, 96, 128
    a.e('ds_read_b128 %s, v5 offset:%d', vr(ZF, 4), L_ZF)
    a.e('ds_read_b128 %s, v4 offset:%d', vr(KF, 4), L_KF)
    a.e('ds_read_b128 %s, v4 offset:%d', vr(KF + 4, 4), L_KF + 1024)
    a.e('s_waitcnt lgkmcnt(2)')
    for sb in range(4):
        a.e('%s %s, %s, %s, 0', M16, vr(DA + 4 * sb, 4), vr(ZF, 4), vr(PQ + 4 * sb, 4))
    a.e('s_waitcnt lgkmcnt(0)')
    for sb in range(4):
        for eb in range(2):
            a.e('%s %s, %s, %s, 0', M16, vr(NA + 8 * sb + 4 * eb, 4), vr(KF + 4 * eb, 4), vr(PQ + 4 * sb, 4))
    D = [48 + sb for sb in range(4)]
    for sb in range(4):
        a.e('v_cvt_pk_bf16_f32 v%d, v%d, v%d', D[sb], DA + 4 * sb, DA + 4 * sb)
    for d in D:
        a.e('v_lshlrev_b32 v%d, 16, v%d', d, d)
    for d in D:
        a.e('v_add_f32 v%d, s%d, v%d', d, S_EPS, d)
    for d in D:
        a.e('v_cvt_pk_bf16_f32 v%d, v%d, v%d', d, d, d)
    for d in D:
        a.e('v_lshlrev_b32 v%d, 16, v%d', d, d)
    for d in D:
        a.e('v_rcp_f32 v%d, v%d', d, d)
    a.e('s_nop 0')
    for sb in range(4):
        for j in range(4):
            r = NA + 8 * sb + 2 * j
            a.e('v_mul_f32 v%d, v%d, v%d', r, r, D[sb])
            a.e('v_mul_f32 v%d, v%d, v%d', r + 1, r + 1, D[sb])
            a.e('v_cvt_pk_bf16_f32 v%d, v%d, v%d', OF + 4 * sb + j, r, r + 1)
        a.vm_issue('o', 'buffer_store_dwordx4 %s, v3, %s, s42 offen offset:%d' + WT, vr(OF + 4 * sb, 4), WSR, (sb & 1) * 1024)
        if sb == 1:
            a.e('s_add_u32 s42, s42, 65536')
    if 'latep' not in EXP:
        f2_poll_first(a)
    a.vm_wait('o')
    a.e('s_mov_b64 exec, 3')
    a.vm_issue('f2', 'buffer_atomic_or v13, v12, %s, 0 offen', WSR)
    a.e('s_mov_b64 exec, -1')
    stamp(a, 9)


def gen_p2(a):
    a.e('P2_start:')
    a.vm = []
    a.e('s_and_b32 s6, s3, 3')
    a.e('s_lshr_b32 s7, s3, 2')
    srd(a, S_OUT, 58, 4194304)
    a.e('s_and_b32 s67, s75, 0x7ff')
    a.e('s_sub_u32 s67, 2047, s67')
    VO, VO2 = 4, 12
    a.e('s_lshl_b32 s64, s4, 2')
    a.e('s_add_u32 s64, s64, s6')
    a.e('s_lshl_b32 s64, s64, 16')
    a.e('s_lshl_b32 s65, s7, 15')
    a.e('s_add_u32 s64, s64, s65')
    a.e('s_lshl_b32 s65, s7, 10')
    a.e('s_add_u32 s66, s64, s65')
    a.e('s_sub_u32 s64, s64, s65')
    a.e('v_lshl_add_u32 v%d, v2, 4, s66', VO)
    a.e('v_lshl_add_u32 v%d, v2, 4, s64', VO2)
    M16 = 'v_mfma_f32_16x16x32_bf16'
    VWL = [5, 6, 1, 3]; VW = [8, 9, 10, 11]
    a.e('v_lshrrev_b32 v10, 4, v2')
    a.e('v_bfe_u32 v11, v2, 2, 2')
    a.e('v_lshl_add_u32 v10, v10, 2, v11')
    a.e('v_bfe_u32 v13, v10, 1, 2')
    a.e('v_lshlrev_b32 v10, 7, v10')
    a.e('v_lshl_add_u32 v10, v13, 5, v10')
    a.e('v_and_b32 v13, 3, v2')
    a.e('v_lshl_add_u32 v%d, v13, 3, v10', VWL[0])
    for nb in range(1, 4):
        a.e('v_xor_b32 v%d, %d, v%d', VWL[nb], 32 * nb, VWL[0])
    SB = 32
    VT, VF, VP = 7, 14, 15
    if 'latep' in EXP:
        f2_poll_first(a)

    def poll():
        return ['s_mov_b64 exec, 1', 'v_mov_b32 v%d, 0' % VP,
                'buffer_atomic_or v%d, v%d, %s, 0 offen sc0' % (VP, VF, WSR), 's_mov_b64 exec, -1']
    a.e('s_lshl_b32 s74, s74, 1') if 'norot2' not in EXP else a.e('s_mov_b32 s74, 0')
    a.e('s_cmp_eq_u32 s7, 0')
    for j in range(8):
        a.e('s_mov_b32 s64, %d', POS[8 + j])
        a.e('s_cselect_b32 s64, %d, s64', POS[j])
        a.e('s_sub_u32 m0, %d, s74', 2 * j + 16)
        a.e('s_and_b32 m0, m0, 15')
        a.e('v_writelane_b32 v%d, s64, m0', VT)
        a.e('s_cmp_eq_u32 s7, 0')
    ACO = [16, 32]
    WOF = [48, 64]
    OB = 80
    YL = 208
    for r in range(16, 48):
        a.e('v_mov_b32 v%d, 0', r)
    if 'p2prio' in EXP:
        a.e('s_cmp_lt_u32 s3, 4')
        a.e('s_cbranch_scc1 P2_np')
        a.e('s_setprio 1')
        a.e('P2_np:')
    if STAMPS == 2:
        a.e('s_mov_b32 s71, 0')
        for l in range(48, 64):
            a.e('v_writelane_b32 v250, 0, %d', l)
    a.e('v_mov_b32 v209, 0')
    a.e('v_mov_b32 v215, 0')
    a.e('s_lshr_b32 s46, s67, 7')
    a.e('s_xor_b32 s46, s46, s4')
    a.e('s_or_b32 s46, s46, s3')
    a.e('s_mov_b32 s47, 0')
    a.e('s_cbranch_scc0 P2_ys')
    with a.cold():
        a.e('P2_ys:')
        a.e('v_lshrrev_b32 v13, 4, v2')
        a.e('v_lshlrev_b32 v13, 12, v13')
        a.e('v_and_b32 v208, 15, v2')
        a.e('v_lshl_add_u32 v13, v208, 4, v13')
        a.e('s_lshl_b32 s64, s5, 8')
        a.e('v_add_u32 v13, s64, v13')
        a.e('s_lshl_b32 s64, s67, 11')
        a.e('s_lshl_b32 s65, s5, 7')
        a.e('s_add_u32 s64, s64, s65')
        a.e('v_lshl_add_u32 v209, v208, 3, s64')
        a.e('s_lshl_b32 s64, s67, 2')
        a.e('s_add_u32 s64, s64, %d', WS_G)
        a.e('v_mov_b32 v215, s64')
        a.e('s_branch P2_ysd')
    a.e('P2_ysd:')
    a.e('s_mov_b32 s66, 0x5555')
    a.e('s_mov_b32 s65, 0')
    stamp(a, 10)

    def issue(c):
        L = ['s_ff1_i32_b32 s64, s68', 's_bitset0_b32 s68, s64', 'v_readlane_b32 s%d, v%d, s64' % (SB + c, VT),
             's_add_u32 s69, s64, s74', 's_and_b32 s69, s69, 15', 's_lshl_b32 s69, s69, 11']
        for q in range(4):
            L.append('buffer_load_dwordx4 %s, v%d, %s, s69 offen offset:%d sc1' % (vr(OB + 16 * c + 4 * q, 4), VO2 if q & 1 else VO, WSR, q * 1024))
        return L

    def wo_reads(c, u):
        L = []
        for nb in range(4):
            if u == 0:
                L.append('v_add_u32 v%d, s%d, v%d' % (VW[nb], SB + c, VWL[nb]))
            for tt in range(2):
                L.append('ds_read_b64_tr_b16 %s, v%d offset:%d' % (vr(WOF[u] + 4 * nb + 2 * tt, 2), VW[nb], u * 4096 + tt * 2048))
        return L

    def Mm(c, u):
        L = []
        for nb in range(4):
            for sub in range(2):
                d = vr(16 + (sub * 4 + nb) * 4, 4)
                L.append('%s %s, %s, %s, %s' % (M16, d, vr(WOF[u] + 4 * nb, 4), vr(OB + 16 * c + 8 * u + 4 * sub, 4), d))
        return L

    if 'latep' not in EXP:
        a.e('s_cmp_lt_u32 s3, 4')
        a.e('s_cbranch_scc0 D_wait')
        a.e('s_waitcnt vmcnt(1)')
        a.e('s_branch D_got')
    a.e('D_wait:')
    a.e('s_waitcnt vmcnt(0)')
    a.e('D_got:')
    a.e('v_readfirstlane_b32 s68, v%d', VP)
    a.e('s_mul_i32 s68, s68, 0x10001')
    a.e('s_lshr_b32 s68, s68, s74')
    a.e('s_lshr_b32 s64, s68, 1')
    a.e('s_and_b32 s68, s68, s64')
    a.e('s_and_b32 s68, s68, s66')
    a.e('s_cbranch_scc1 D_go')
    a.e('s_add_u32 s65, s65, 1')
    a.e('s_cmp_ge_u32 s65, 40000')
    a.e('s_cbranch_scc1 D_end')
    if E('PSL', 1):
        a.e('s_sleep %d', E('PSL', 1))
    for p in poll():
        a.e(p)
    a.e('s_branch D_wait')
    a.e('D_go:')
    a.e('s_andn2_b32 s66, s66, s68')
    if STAMPS == 2:
        a.e('s_memrealtime s[86:87]')
        a.e('s_min_u32 s64, s71, 7')
        a.e('s_lshl_b32 s64, s64, 1')
        a.e('s_add_u32 m0, s64, 48')
        a.e('s_waitcnt lgkmcnt(0)')
        a.e('v_writelane_b32 v250, s86, m0')
        a.e('s_add_u32 m0, m0, 1')
        a.e('s_nop 0')
        a.e('v_writelane_b32 v250, s66, m0')
        a.e('s_add_u32 s71, s71, 1')
    a.e('s_bcnt1_i32_b32 s70, s68')
    a.e('s_or_b32 s64, s46, s66')
    a.e('s_cbranch_scc0 P2_yl')
    YB = OB + 64

    def y_loads():
        a.e('buffer_load_dwordx2 v[210:211], v209, %s, 0 offen', sr(S_X, 4))
        a.e('buffer_load_dword v212, v215, %s, 0 offen sc1', WSR)
        for q in range(16):
            a.e('s_mov_b32 s69, %d', WS_YP + q * 16384)
            a.e('buffer_load_dwordx4 %s, v13, %s, s69 offen sc1' % (vr(YB + 4 * q, 4), WSR))
    with a.cold():
        a.e('P2_yl:')
        a.e('s_cmp_gt_u32 s70, 4')
        a.e('s_cbranch_scc1 P2_nyl')
        y_loads()
        a.e('s_mov_b32 s47, 1')
        a.e('s_branch P2_nyl')
    a.e('P2_nyl:')
    a.e('s_cmp_gt_u32 s70, 4')
    a.e('s_cbranch_scc1 D_t58')
    a.e('s_cmp_gt_u32 s70, 2')
    a.e('s_cbranch_scc1 D_t34')
    a.e('s_cmp_eq_u32 s70, 2')
    a.e('s_cbranch_scc1 D_e2')

    LA = E('LA', 2)

    def entry(n, last=False):
        a.e('D_e%d:', n)
        L = []
        for k in range(min(LA, n)):
            L += issue(n - 1 - k)
        if n <= LA:
            L += poll()
        for x in L + wo_reads(n - 1, 0):
            a.e(x)
        if not last:
            a.e('s_branch D_p%d', n - 1)
    entry(1); entry(2)
    a.e('D_t34:')
    a.e('s_cmp_eq_u32 s70, 4')
    a.e('s_cbranch_scc1 D_e4')
    entry(3); entry(4)
    a.e('D_t58:')
    a.e('s_cmp_gt_u32 s70, 6')
    a.e('s_cbranch_scc1 D_t78')
    a.e('s_cmp_eq_u32 s70, 6')
    a.e('s_cbranch_scc1 D_e6')
    entry(5); entry(6)
    a.e('D_t78:')
    a.e('s_cmp_eq_u32 s70, 8')
    a.e('s_cbranch_scc1 D_e8')
    entry(7); entry(8, True)
    for c in range(7, -1, -1):
        a.e('D_p%d:', c)
        G = issue(c - LA) if c >= LA else []
        Gs = [G[:7], G[7:8], G[8:9], G[9:10] + (poll() if c == LA else [])] if G else [[], [], [], []]
        for u in range(2):
            if u == 0:
                a.e('s_waitcnt vmcnt(%d) lgkmcnt(0)', 4 * (LA - 1) if c >= LA else 4 * c + 1)
            else:
                a.e('s_waitcnt lgkmcnt(0)')
            F = wo_reads(c, 1) if u == 0 else (wo_reads(c - 1, 0) if c >= 1 else [])
            M = Mm(c, u)
            per = -(-len(F) // 6) if F else 0
            for k in range(8):
                a.e(M[k])
                for f in F[k * per:(k + 1) * per]:
                    a.e(f)
                if k in (3, 6):
                    for x in Gs[2 * u + k // 6]:
                        a.e(x)
    a.e('s_cmp_lg_u32 s66, 0')
    a.e('s_cbranch_scc1 D_wait')
    a.e('D_end:')
    stamp(a, 11)
    a.e('s_lshl_b32 s64, s3, 12')
    a.e('s_add_u32 s64, s64, %d', RB)
    a.e('v_lshl_add_u32 v8, v2, 4, s64')
    a.e('s_xor_b32 s65, s3, 4')
    a.e('s_lshl_b32 s65, s65, 12')
    a.e('s_add_u32 s65, s65, %d', RB)
    a.e('v_lshl_add_u32 v5, v2, 4, s65')
    a.e('v_lshlrev_b32 v9, 1, v%d', VCO)
    a.e('v_cmp_eq_u32 s[70:71], s67, v%d', VRO)
    a.e('s_cmp_eq_u32 s46, 0')
    a.e('s_cbranch_scc1 P2_y')
    with a.cold():
        a.e('P2_y:')
        a.e('s_mov_b32 s66, 0')
        a.e('s_cmp_lg_u32 s47, 0')
        a.e('s_cbranch_scc1 P2_ychk')
        a.e('P2_yre:')
        y_loads()
        a.e('P2_ychk:')
        a.e('s_and_b32 s64, s75, 0xffff0000')
        a.e('s_xor_b32 s65, s64, 0x80000000')
        a.e('s_not_b32 s69, s64')
        a.e('s_and_b32 s69, s69, 0xffff0000')
        a.e('s_cmp_ge_u32 s64, 0x80000000')
        a.e('s_cselect_b32 s64, s65, s69')
        a.e('v_mov_b32 v213, s64')
        sigmoid_bf16(a, [213])
        a.e('s_waitcnt vmcnt(0)')
        a.e('v_sub_f32 v214, 1.0, v212')
        a.e('v_cvt_pk_bf16_f32 v214, v214, v214')
        a.e('v_lshlrev_b32 v214, 16, v214')
        a.e('v_max3_u32 v10, v%d, v%d, v%d', YB, YB + 1, YB + 2)
        for r in range(3, 63, 2):
            a.e('v_max3_u32 v10, v%d, v%d, v10', YB + r, YB + r + 1)
        a.e('v_max_u32 v10, v%d, v10', YB + 63)
        a.e('v_cmp_eq_u32 vcc, -1, v10')
        a.e('s_cbranch_vccz P2_yok')
        a.e('s_add_u32 s66, s66, 1')
        a.e('s_cmp_ge_u32 s66, 40000')
        a.e('s_cbranch_scc1 P2_yok')
        a.e('s_sleep 4')
        a.e('s_branch P2_yre')
        a.e('P2_yok:')
        for d in (32, 16, 8, 4):
            for r in range(0, d, 2):
                a.e('v_pk_add_f32 %s, %s, %s', vr(YB + r, 2), vr(YB + r, 2), vr(YB + d + r, 2))
        Y = YB
        for swp in ('v_permlane16_swap_b32', 'v_permlane32_swap_b32'):
            for q in range(4):
                a.e('v_mov_b32 v%d, v%d', Y + 4 + q, Y + q)
            a.e('s_nop 0')
            for q in range(4):
                a.e('%s v%d, v%d', swp, Y + q, Y + 4 + q)
            for q in range(4):
                a.e('v_add_f32 v%d, v%d, v%d', Y + q, Y + q, Y + 4 + q)
        for q in range(2):
            y0, y1, x0, x1, t = Y + 2 * q, Y + 2 * q + 1, Y + 4 + 2 * q, Y + 5 + 2 * q, Y + 8
            a.e('v_cvt_pk_bf16_f32 v%d, v%d, v%d', t, y0, y1)
            a.e('v_lshlrev_b32 v%d, 16, v%d', y0, t)
            a.e('v_and_b32 v%d, 0xffff0000, v%d', y1, t)
            a.e('v_mul_f32 v%d, v%d, v213', y0, y0)
            a.e('v_mul_f32 v%d, v%d, v213', y1, y1)
            a.e('v_cvt_pk_bf16_f32 v%d, v%d, v%d', t, y0, y1)
            a.e('v_lshlrev_b32 v%d, 16, v%d', y0, t)
            a.e('v_and_b32 v%d, 0xffff0000, v%d', y1, t)
            a.e('v_lshlrev_b32 v%d, 16, v%d', x0, 210 + q)
            a.e('v_and_b32 v%d, 0xffff0000, v%d', x1, 210 + q)
            a.e('v_add_f32 v%d, v%d, v%d', y0, x0, y0)
            a.e('v_add_f32 v%d, v%d, v%d', y1, x1, y1)
            a.e('v_cvt_pk_bf16_f32 v%d, v%d, v%d', t, y0, y1)
            a.e('v_lshlrev_b32 v%d, 16, v%d', y0, t)
            a.e('v_and_b32 v%d, 0xffff0000, v%d', y1, t)
            a.e('v_mul_f32 v%d, v%d, v214', y0, y0)
            a.e('v_mul_f32 v%d, v%d, v214', y1, y1)
            a.e('v_cvt_pk_bf16_f32 v%d, v%d, v%d', t, y0, y1)
            a.e('v_lshlrev_b32 v%d, 16, v%d', y0, t)
            a.e('v_and_b32 v%d, 0xffff0000, v%d', y1, t)
        a.e('v_lshlrev_b32 v208, 4, v208')
        a.e('ds_write_b128 v208, %s offset:%d', vr(Y, 4), L_YS)
        a.e('s_waitcnt lgkmcnt(0)')
        a.e('s_branch P2_ny')
    a.e('P2_ny:')
    a.e('s_barrier')
    stamp(a, 3, lvl=3)
    for nb in range(4):
        a.e('ds_write_b128 v8, %s offset:%d', vr(32 + 4 * nb, 4), nb * 1024)
    a.e('s_cmp_lg_u64 s[70:71], 0')
    a.e('s_cbranch_scc1 P2_fix')
    a.e('P2_nr:')
    with a.cold():
        a.e('P2_fix:')
        a.e('s_mov_b64 exec, s[70:71]')
        for q in range(4):
            a.e('ds_read_b128 %s, v9 offset:%d', vr(T2 + 4 * q, 4), L_YS + (q >> 1) * 128 + (q & 1) * 16)
        a.e('s_mov_b64 exec, -1')
        a.e('s_branch P2_nr')
    a.e('s_waitcnt lgkmcnt(0)')
    stamp(a, 4, lvl=3)
    a.e('s_barrier')
    stamp(a, 6, lvl=3)
    AB = 64
    for nb in range(4):
        a.e('ds_read_b128 %s, v5 offset:%d', vr(AB + 4 * nb, 4), nb * 1024)
    Gr = XO + 8
    PKOP = 'nopk' not in EXP
    for half in range(2):
        A = 16 + 8 * half
        T = T2 + 8 * half
        a.e('s_waitcnt lgkmcnt(%d)', 2 if half == 0 else 0)
        for q in range(4):
            a0_ = A + 2 * q
            if PKOP:
                a.e('v_pk_add_f32 %s, %s, %s', vr(a0_, 2), vr(a0_, 2), vr(AB + 8 * half + 2 * q, 2))
            else:
                for k in range(2):
                    a.e('v_add_f32 v%d, v%d, v%d', a0_ + k, a0_ + k, AB + 8 * half + 2 * q + k)
        P = 48 + 4 * half
        for q in range(4):
            a.e('v_cvt_pk_bf16_f32 v%d, v%d, v%d', P + q, A + 2 * q, A + 2 * q + 1)
        a.e('s_nop 0')
        a.e('v_permlane16_swap_b32 v%d, v%d', P, P + 2)
        a.e('v_permlane16_swap_b32 v%d, v%d', P + 1, P + 3)
        O = 120 + 4 * half
        for q in range(4):
            a.e('v_lshlrev_b32 v%d, 16, v%d', A + 2 * q, P + q)
            a.e('v_and_b32 v%d, 0xffff0000, v%d', A + 2 * q + 1, P + q)
        for q in range(4):
            a0_ = A + 2 * q
            if PKOP:
                a.e('v_pk_mul_f32 %s, %s, %s op_sel_hi:[1,0]', vr(a0_, 2), vr(a0_, 2), vr(Gr, 2))
            else:
                for k in range(2):
                    a.e('v_mul_f32 v%d, v%d, v%d', a0_ + k, a0_ + k, Gr)
        for q in range(4):
            a.e('v_cvt_pk_bf16_f32 v%d, v%d, v%d', P + q, A + 2 * q, A + 2 * q + 1)
        for q in range(4):
            a.e('v_lshlrev_b32 v%d, 16, v%d', A + 2 * q, P + q)
            a.e('v_and_b32 v%d, 0xffff0000, v%d', A + 2 * q + 1, P + q)
        for q in range(4):
            a0_ = A + 2 * q
            if PKOP:
                a.e('v_pk_add_f32 %s, %s, %s', vr(a0_, 2), vr(a0_, 2), vr(T + 2 * q, 2))
            else:
                for k in range(2):
                    a.e('v_add_f32 v%d, v%d, v%d', a0_ + k, a0_ + k, T + 2 * q + k)
        for q in range(4):
            a.e('v_cvt_pk_bf16_f32 v%d, v%d, v%d', O + q, A + 2 * q, A + 2 * q + 1)
        if 'seg64' in EXP:
            a.e('buffer_store_dwordx4 %s, v%d, %s, 0 offen offset:%d ' + os.environ.get('OUTF', 'nt'), vr(O, 4), VXO, sr(S_OUT, 4), 64 * half)
        elif half == 0:
            a.e('v_and_b32 v6, 1, v2')
            a.e('v_mul_u32_u24 v6, %d, v6', 2048 - 64)
            a.e('v_sub_u32 v%d, v%d, v6', VXO, VXO)
            a.e('s_mov_b32 vcc_lo, 0x55555555')
            a.e('s_mov_b32 vcc_hi, 0x55555555')
    if 'seg64' not in EXP:
        a.e('s_nop 1')
        for q in range(4):
            a.e('v_cndmask_b32_dpp v%d, v%d, v%d, vcc quad_perm:[1,0,3,2] row_mask:0xf bank_mask:0xf', 56 + q, 124 + q, 120 + q)
        a.e('buffer_store_dwordx4 v[56:59], v%d, %s, 0 offen ' + os.environ.get('OUTF', 'nt'), VXO, sr(S_OUT, 4))
        a.e('s_not_b64 vcc, vcc')
        for q in range(4):
            a.e('v_cndmask_b32_dpp v%d, v%d, v%d, vcc quad_perm:[1,0,3,2] row_mask:0xf bank_mask:0xf', 60 + q, 120 + q, 124 + q)
        a.e('buffer_store_dwordx4 v[60:63], v%d, %s, 0 offen offset:2048 ' + os.environ.get('OUTF', 'nt'), VXO, sr(S_OUT, 4))
    stamp(a, 7, lvl=3)
    if STAMPS:
        a.e('s_waitcnt vmcnt(0)')
    stamp(a, 12, True); stamp(a, 2, False)
    stamp_flush(a)
    a.e('K_end:')
    a.e('s_endpgm')
    a.flush_cold()


def main():
    hdr = open(os.path.join(os.path.dirname(os.path.abspath(__file__)), '..', NAME + '.s.ref')).read().split('; Override launch')[0]
    a = Asm()
    a.e('.amdgcn_target "amdgcn-amd-amdhsa--gfx950"')
    a.e('.text')
    gen(a)
    a.e('CODE_END:')
    out = hdr + '; @launch grid=(256,1,1) block=(512,1,1) lds=%d\n' % LDS_BYTES + a.text() + '.section .rodata,"a"\n' + kd(NAME + '_kernel', 256)
    path = sys.argv[1] if len(sys.argv) > 1 else os.path.join(os.path.dirname(os.path.abspath(__file__)), '..', NAME + '.s')
    open(path, 'w').write(out)


if __name__ == '__main__':
    main()
```

```python
import sys, os
sys.path.insert(0, os.path.dirname(os.path.abspath(__file__)))
from asmlib import *

NAME = 'gated_mix__linear_attn_block__moe_arch_mod__prompt'
E = lambda k, d: int(os.environ.get(k, str(d)))
EXP = os.environ.get('EXP', '').split(',')

WS_O = 0
WS_KVP = 4 << 20
KVB = 1152
KVZ = 1024
WS_F1 = WS_KVP + 16 * 4 * 16 * KVB
WS_F2 = WS_F1 + 64 * 128
WS_HP = WS_F2 + 128 * 128
WS_YP = WS_HP + 64 * 2 * 32 * 256
WS_G = WS_YP + 64 * 4096
WS_KEY = WS_G + 8192
WS_END = WS_KEY + 4096
WS_BYTES = 268435456
WS_ST = 16 << 20

STAMPS = E('STAMPS', 0)
NFIX = E('NFIX', 0)
WT = ' sc1' if 'wt1' in EXP else ' sc0 sc1'
NTA = ' nt' if 'ntA' in EXP else ''
NTB = ' nt' if 'ntB' in EXP else ''
NTO = ' nt' if 'ntO' in EXP else ''
NTW = '' if 'nontW' in EXP else ' nt'
LOG2E = 0x3fb8aa3b
EPS6 = 0x358637bd

SLOT = 40960
MISC = 0
RB = 8192
SP = RB + 3 * SLOT
L_KF = MISC
L_ZF = MISC + 4096
L_KEY = MISC + 4224
L_FLG = MISC + 4288
L_H = MISC + 4352
L_ZX = MISC + 4608
L_YS = MISC + 5632
L_EX = RB + 24576
LDS_BYTES = 163840
EARLY = [SP, SP + 8192, RB + SLOT + 24576, RB + 2 * SLOT + 24576, SP + 16384, SP + 24576, RB + SLOT + 32768, RB + 2 * SLOT + 32768]
LATE = [RB + x for x in (32768, 0, 8192, 2 * SLOT + 8192, SLOT, SLOT + 8192, SLOT + 16384, 2 * SLOT)]
POS = EARLY[0:4] + LATE[0:4] + EARLY[4:8] + LATE[4:8]
TP = 272
TK = 128 * TP

S_X, S_W, S_WS, S_DBG, S_WR, S_GW, S_WG, S_WU = 8, 12, 16, 20, 24, 28, 32, 36
S_WO, S_OUT, S_WD = 28, 20, 24
WSR = sr(S_WS, 4)
S_LOG2E, S_EPS = 72, 73


def stamp(a, idx, real=True, lvl=0):
    if STAMPS in (3, 4) and idx in (3, 4, 6, 7, 9, 10) and lvl != STAMPS:
        return
    if lvl and STAMPS != lvl:
        return
    if STAMPS:
        a.e('%s s[%d:%d]', 's_memrealtime' if real else 's_memtime', 76 + 2 * idx, 77 + 2 * idx)


def stamp_flush(a):
    if not STAMPS:
        return
    a.e('s_waitcnt lgkmcnt(0)')
    a.e('s_lshl_b32 s64, s2, 3')
    a.e('s_add_u32 s64, s64, s3')
    a.e('s_lshl_b32 s64, s64, 7')
    a.e('s_add_u32 s64, s64, %d', WS_ST)
    a.e('v_mov_b32 v1, s64')
    a.e('s_mov_b64 exec, 1')
    for i in range(13):
        a.e('v_mov_b32 v2, s%d', 76 + 2 * i)
        a.e('v_mov_b32 v3, s%d', 77 + 2 * i)
        a.e('buffer_store_dwordx2 v[2:3], v1, %s, 0 offen offset:%d', WSR, 8 * i)
        a.e('s_nop 1')
    a.e('s_mov_b64 exec, -1')
    if STAMPS == 2:
        a.e('s_lshl_b32 s64, s2, 3')
        a.e('s_add_u32 s64, s64, s3')
        a.e('s_lshl_b32 s64, s64, 8')
        a.e('s_add_u32 s64, s64, %d', WS_ST + (1 << 20))
        a.e('v_and_b32 v1, 63, v0')
        a.e('v_lshlrev_b32 v1, 2, v1')
        a.e('v_add_u32 v1, s64, v1')
        a.e('buffer_store_dword v250, v1, %s, 0 offen', WSR)


def phi16_fast(a, acc, out, e0, mn, sp):
    for j in range(8):
        a0, a1, p = acc + 2 * j, acc + 2 * j + 1, out + j
        e = e0 + 2 * (j & 1)
        a.e('v_pk_mul_f32 v[%d:%d], v[%d:%d], s[%d:%d]', e, e + 1, a0, a1, sp, sp + 1)
        a.e('v_pk_add_f32 v[%d:%d], v[%d:%d], s[%d:%d]', a0, a1, a0, a1, sp + 2, sp + 3)
        a.e('v_exp_f32 v%d, v%d clamp', e, e)
        a.e('v_exp_f32 v%d, v%d clamp', e + 1, e + 1)
        if j:
            phi_tail(a, acc, out, e0, mn, j - 1)
    phi_tail(a, acc, out, e0, mn, 7)
    phi_fix(a, out, e0, e0 + 1, mn)


def phi_tail(a, acc, out, e0, mn, j):
    a0, a1, p = acc + 2 * j, acc + 2 * j + 1, out + j
    e = e0 + 2 * (j & 1)
    a.e('v_max_f32 v%d, v%d, v%d', a0, a0, e)
    a.e('v_max_f32 v%d, v%d, v%d', a1, a1, e + 1)
    if j == 0:
        a.e('v_min_f32 v%d, v%d, v%d', mn, a0, a1)
    else:
        a.e('v_min3_f32 v%d, v%d, v%d, v%d', mn, a0, a1, mn)
    a.e('v_cvt_pk_bf16_f32 v%d, v%d, v%d', p, a0, a1)


def phi16_pk(a, acc, out, mn, sp):
    def head(j):
        t, e, p = 48 + 4 * (j & 1), 50 + 4 * (j & 1), out + j
        a.e('v_cvt_pk_bf16_f32 v%d, v%d, v%d', p, acc + 2 * j, acc + 2 * j + 1)
        a.e('v_lshlrev_b32 v%d, 16, v%d', t, p)
        a.e('v_and_b32 v%d, 0xffff0000, v%d', t + 1, p)
        a.e('v_pk_mul_f32 v[%d:%d], v[%d:%d], s[%d:%d]', e, e + 1, t, t + 1, sp, sp + 1)
        a.e('v_pk_add_f32 v[%d:%d], v[%d:%d], s[%d:%d]', t, t + 1, t, t + 1, sp + 2, sp + 3)
        a.e('v_exp_f32 v%d, v%d clamp', e, e)
        a.e('v_exp_f32 v%d, v%d clamp', e + 1, e + 1)

    def tail(j):
        t, e, p = 48 + 4 * (j & 1), 50 + 4 * (j & 1), out + j
        a.e('v_max_f32 v%d, v%d, v%d', t, t, e)
        a.e('v_max_f32 v%d, v%d, v%d', t + 1, t + 1, e + 1)
        if j == 0:
            a.e('v_min_f32 v%d, v%d, v%d', mn, t, t + 1)
        else:
            a.e('v_min3_f32 v%d, v%d, v%d, v%d', mn, t, t + 1, mn)
        a.e('v_cvt_pk_bf16_f32 v%d, v%d, v%d', p, t, t + 1)
    for j in range(8):
        head(j)
        if j:
            tail(j - 1)
    a.e('s_nop 0')
    tail(7)
    phi_fix(a, out, 48, 49, mn)


def phi16(a, acc, out, t0, t1, e0, e1, mn):
    for j in range(8):
        a0, a1, p = acc + 2 * j, acc + 2 * j + 1, out + j
        a.e('v_cvt_pk_bf16_f32 v%d, v%d, v%d', p, a0, a1)
        a.e('v_lshlrev_b32 v%d, 16, v%d', t0, p)
        a.e('v_and_b32 v%d, 0xffff0000, v%d', t1, p)
        a.e('v_mul_f32 v%d, s%d, v%d', e0, S_LOG2E, t0)
        a.e('v_mul_f32 v%d, s%d, v%d', e1, S_LOG2E, t1)
        a.e('v_exp_f32 v%d, v%d clamp', e0, e0)
        a.e('v_exp_f32 v%d, v%d clamp', e1, e1)
        a.e('v_max_f32 v%d, 0, v%d', t0, t0)
        a.e('v_max_f32 v%d, 0, v%d', t1, t1)
        a.e('v_add_f32 v%d, v%d, v%d', t0, t0, e0)
        a.e('v_add_f32 v%d, v%d, v%d', t1, t1, e1)
        if j == 0:
            a.e('v_min_f32 v%d, v%d, v%d', mn, t0, t1)
        else:
            a.e('v_min3_f32 v%d, v%d, v%d, v%d', mn, t0, t1, mn)
        a.e('v_cvt_pk_bf16_f32 v%d, v%d, v%d', p, t0, t1)
    phi_fix(a, out, t0, t1, mn)


def phi_fix(a, out, t0, t1, mn):
    lab = a.label('phi')
    a.e('v_cmp_gt_f32 vcc, 0x3a800000, v%d', mn)
    a.e('s_cbranch_vccnz %s_fix', lab)
    a.e('%s_done:', lab)
    with a.cold():
        a.e('%s_fix:', lab)
        for j in range(8):
            p = out + j
            a.e('v_lshlrev_b32 v%d, 16, v%d', t0, p)
            a.e('v_and_b32 v%d, 0xffff0000, v%d', t1, p)
            a.e('v_add_f32 v%d, s%d, v%d', t0, S_EPS, t0)
            a.e('v_add_f32 v%d, s%d, v%d', t1, S_EPS, t1)
            a.e('v_cvt_pk_bf16_f32 v%d, v%d, v%d', p, t0, t1)
        a.e('s_branch %s_done', lab)


def wave_reduce(a, regs, op, stmp):
    pats = ['quad_perm:[1,0,3,2]', 'quad_perm:[2,3,0,1]', 'row_half_mirror', 'row_mirror']
    a.e('s_nop 1')
    for p in pats:
        if len(regs) < 3:
            a.e('s_nop 1')
        for r in regs:
            a.e('%s_dpp v%d, v%d, v%d %s row_mask:0xf bank_mask:0xf', op, r, r, r, p)
    a.e('s_nop 1')
    for r in regs:
        for q in range(4):
            a.e('v_readlane_b32 s%d, v%d, %d', stmp + q, r, 16 * q)
        a.e('s_nop 1')
        a.e('v_mov_b32 v%d, s%d', r, stmp)
        for q in range(1, 4):
            a.e('%s v%d, s%d, v%d', op, r, stmp + q, r)


def sigmoid_bf16(a, regs):
    for r in regs:
        a.e('v_mul_f32 v%d, s%d, v%d', r, S_LOG2E, r)
    for r in regs:
        a.e('v_exp_f32 v%d, -v%d', r, r)
    a.e('s_nop 0')
    for r in regs:
        a.e('v_add_f32 v%d, 1.0, v%d', r, r)
    for r in regs:
        a.e('v_rcp_f32 v%d, v%d', r, r)
    a.e('s_nop 0')
    for r in regs:
        a.e('v_cvt_pk_bf16_f32 v%d, v%d, v%d', r, r, r)
    for r in regs:
        a.e('v_lshlrev_b32 v%d, 16, v%d', r, r)


def p2_ids(a):
    if os.environ.get('P2MAP', 'a') == 'b':
        a.e('s_and_b32 s4, s2, 7')
        a.e('s_lshl_b32 s4, s4, 1')
        a.e('s_bfe_u32 s64, s2, 0x10003')
        a.e('s_add_u32 s4, s4, s64')
        a.e('s_lshr_b32 s5, s2, 4')
        return
    a.e('s_and_b32 s64, s2, 7')
    a.e('s_lshr_b32 s65, s2, 3')
    a.e('s_and_b32 s4, s64, 3')
    a.e('s_lshl_b32 s4, s4, 2')
    a.e('s_and_b32 s66, s65, 3')
    a.e('s_add_u32 s4, s4, s66')
    a.e('s_lshr_b32 s5, s64, 2')
    a.e('s_lshl_b32 s5, s5, 3')
    a.e('s_lshr_b32 s66, s65, 2')
    a.e('s_add_u32 s5, s5, s66')


def wo_voff(a, vdst, t0, t1, s_piece):
    a.e('v_lshrrev_b32 v%d, 3, v2', t0)
    a.e('s_lshl_b32 s64, s%d, 3', s_piece)
    a.e('v_add_u32 v%d, s64, v%d', t0, t0)
    a.e('v_lshlrev_b32 v%d, 11, v%d', t0, t0)
    a.e('v_lshrrev_b32 v%d, 4, v2', t1)
    a.e('v_lshlrev_b32 v%d, 1, v%d', t1, t1)
    a.e('v_and_b32 v%d, 7, v2', vdst)
    a.e('v_xor_b32 v%d, v%d, v%d', t1, t1, vdst)
    a.e('v_lshl_add_u32 v%d, v%d, 4, v%d', t0, t1, t0)
    a.e('s_lshl_b32 s64, s5, 7')
    a.e('v_add_u32 v%d, s64, v%d', vdst, t0)


def wo_dma(a, pos, voff, s_w1k, tag):
    a.e('s_mov_b32 s65, %d', pos << 17)
    for b in range(2):
        a.e('s_add_u32 m0, s%d, %d', s_w1k, POS[pos] + b * 4096)
        if b:
            a.e('s_add_u32 s65, s65, 65536')
        else:
            a.e('s_nop 0')
        a.vm_issue(tag, 'buffer_load_dwordx4 v%d, %s, s65 offen' + NTO + ' lds', voff, sr(S_WO, 4))


XO = 220
T2 = 232
VRO, VXO = 230, 231


def xo_loads(a):
    a.e('s_and_b32 s64, s3, 3')
    a.e('s_lshl_b32 s64, s64, 1')
    a.e('s_lshr_b32 s65, s3, 2')
    a.e('s_add_u32 s64, s64, s65')
    a.e('s_lshl_b32 s64, s64, 4')
    a.e('s_lshl_b32 s65, s4, 7')
    a.e('s_add_u32 s64, s64, s65')
    a.e('v_and_b32 v%d, 15, v2', VRO)
    a.e('v_add_u32 v%d, s64, v%d', VRO, VRO)
    a.e('v_bfe_u32 v3, v2, 4, 1')
    a.e('v_lshlrev_b32 v%d, 5, v3', VCO)
    a.e('v_lshrrev_b32 v3, 5, v2')
    a.e('v_lshl_add_u32 v%d, v3, 4, v%d', VCO, VCO)
    a.e('v_lshl_add_u32 v%d, v%d, 11, v%d', VXO, VRO, VCO)
    a.e('s_lshl_b32 s64, s5, 7')
    a.e('v_add_u32 v%d, s64, v%d', VXO, VXO)
    a.e('v_lshlrev_b32 v3, 2, v%d', VRO)
    a.e('v_add_u32 v3, %d, v3', WS_G)
    a.vm_issue('xo', 'buffer_load_dwordx4 %s, v%d, %s, 0 offen', vr(XO, 4), VXO, sr(S_X, 4))
    a.vm_issue('xo', 'buffer_load_dwordx4 %s, v%d, %s, 0 offen offset:64', vr(XO + 4, 4), VXO, sr(S_X, 4))
    a.vm_issue('xo', 'buffer_load_dword v%d, v3, %s, 0 offen sc1', XO + 8, WSR)


OM = 248
VCO = 229


def t2_fill(a):
    a.e('v_sub_f32 v%d, 1.0, v%d', OM, XO + 8)
    a.e('v_cvt_pk_bf16_f32 v%d, v%d, v%d', OM, OM, OM)
    a.e('v_lshlrev_b32 v%d, 16, v%d', OM, OM)
    for q in range(8):
        x0, x1 = T2 + 2 * q, T2 + 2 * q + 1
        a.e('v_lshlrev_b32 v%d, 16, v%d', x0, XO + q)
        a.e('v_and_b32 v%d, 0xffff0000, v%d', x1, XO + q)
        a.e('v_mul_f32 v%d, v%d, v%d', x0, x0, OM)
        a.e('v_mul_f32 v%d, v%d, v%d', x1, x1, OM)
        a.e('v_cvt_pk_bf16_f32 v3, v%d, v%d', x0, x1)
        a.e('v_lshlrev_b32 v%d, 16, v3', x0)
        a.e('v_and_b32 v%d, 0xffff0000, v3', x1)


MASK14 = 's_mov_b32 exec_lo, 0x3fff3fff\ns_mov_b32 exec_hi, 0x3fff3fff'


def h_compute(a):
    HB = 64
    a.e('s_lshr_b32 s64, s2, 2')
    a.e('s_lshl_b32 s64, s64, 14')
    a.e('s_add_u32 s64, s64, %d', WS_HP)
    a.e('v_lshl_add_u32 v16, v2, 4, s64')
    a.e('v_lshrrev_b32 v8, 4, v2')
    a.e('s_mov_b32 s65, 0')
    a.e('H_hl:')
    for q in range(16):
        a.e('s_mov_b32 s64, %d', (q >> 2) * 4096)
        a.e('buffer_load_dwordx4 %s, v16, %s, s64 offen offset:%d sc1', vr(HB + 4 * q, 4), WSR, (q & 3) * 1024)
    a.e('s_waitcnt vmcnt(0)')
    a.e('v_max3_u32 v17, v%d, v%d, v%d', HB, HB + 1, HB + 2)
    for r in range(3, 63, 2):
        a.e('v_max3_u32 v17, v%d, v%d, v17', HB + r, HB + r + 1)
    a.e('v_max_u32 v17, v%d, v17', HB + 63)
    a.e(MASK14)
    a.e('v_cmp_eq_u32 vcc, -1, v17')
    a.e('s_mov_b64 exec, -1')
    a.e('s_cbranch_vccz H_hok')
    a.e('s_add_u32 s65, s65, 1')
    a.e('s_cmp_ge_u32 s65, 100000')
    a.e('s_cbranch_scc1 H_hok')
    a.e('s_sleep 8')
    a.e('s_branch H_hl')
    a.e('H_hok:')
    for m in range(2):
        for i in range(1, 8):
            for q in range(4):
                a.e('v_add_f32 v%d, v%d, v%d', HB + 32 * m + q, HB + 32 * m + q, HB + 32 * m + 4 * i + q)
    a.e('s_nop 1')
    for q in range(4):
        a.e('v_permlane16_swap_b32 v%d, v%d', HB + q, HB + 32 + q)
    for q in range(4):
        a.e('v_add_f32 v%d, v%d, v%d', HB + q, HB + q, HB + 32 + q)
    a.e('s_nop 1')
    for q in range(2):
        a.e('v_permlane32_swap_b32 v%d, v%d', HB + q, HB + 2 + q)
    for q in range(2):
        a.e('v_add_f32 v%d, v%d, v%d', HB + q, HB + q, HB + 2 + q)
    a.e('s_nop 1')
    a.e('v_permlane16_swap_b32 v%d, v%d', HB, HB + 1)
    G_, U_, T_ = HB, HB + 1, HB + 2
    a.e('v_cvt_pk_bf16_f32 v%d, v%d, v%d', T_, G_, U_)
    a.e('v_lshlrev_b32 v%d, 16, v%d', G_, T_)
    a.e('v_and_b32 v%d, 0xffff0000, v%d', U_, T_)
    a.e('v_mul_f32 v%d, s%d, v%d', T_, S_LOG2E, G_)
    a.e('v_exp_f32 v%d, -v%d', T_, T_)
    a.e('v_and_b32 v16, 15, v2')
    a.e('v_add_f32 v%d, 1.0, v%d', T_, T_)
    a.e('v_rcp_f32 v%d, v%d', T_, T_)
    a.e('v_lshl_add_u32 v16, v16, 2, v8')
    a.e('v_mul_f32 v%d, v%d, v%d', T_, T_, G_)
    a.e('v_cvt_pk_bf16_f32 v%d, v%d, v%d', T_, T_, T_)
    a.e('v_lshlrev_b32 v%d, 16, v%d', T_, T_)
    a.e('v_mul_f32 v%d, v%d, v%d', T_, T_, U_)
    a.e('v_cvt_pk_bf16_f32 v%d, v%d, v%d', T_, T_, T_)
    a.e('v_lshlrev_b32 v%d, 16, v%d', T_, T_)
    a.e('v_lshlrev_b32 v16, 2, v16')
    a.e('ds_write_b32 v16, v%d offset:%d', T_, L_H)


def f2_poll_first(a):
    a.e('s_lshl_b32 s64, s4, 3')
    a.e('s_add_u32 s64, s64, s3')
    a.e('s_lshl_b32 s64, s64, 7')
    a.e('s_add_u32 s64, s64, %d', WS_F2)
    a.e('v_mov_b32 v14, s64')
    a.e('s_mov_b64 exec, 1')
    a.e('v_mov_b32 v15, 0')
    a.vm_issue('p', 'buffer_atomic_or v15, v14, %s, 0 offen sc0', WSR)
    a.e('s_mov_b64 exec, -1')


def gen(a):
    kn = NAME + '_kernel'
    a.e('.globl %s\n.p2align 8\n.type %s,@function\n%s:' % (kn, kn, kn))
    a.e('s_load_dwordx16 s[40:55], s[0:1], 0')
    a.e('s_load_dwordx8 s[56:63], s[0:1], 64')
    a.e('s_cmp_ge_u32 s2, 256')
    a.e('s_cbranch_scc1 K_end')
    stamp(a, 0, True); stamp(a, 1, False)
    a.e('v_lshrrev_b32 v1, 6, v0')
    a.e('v_and_b32 v2, 63, v0')
    a.e('s_and_b32 s6, s2, 7')
    a.e('v_readfirstlane_b32 s3, v1')
    a.e('s_lshr_b32 s7, s2, 3')
    a.e('s_and_b32 s4, s6, 1')
    a.e('s_lshl_b32 s4, s4, 3')
    a.e('s_and_b32 s64, s7, 7')
    a.e('s_add_u32 s4, s4, s64')
    a.e('s_lshr_b32 s5, s6, 1')
    a.e('s_lshl_b32 s5, s5, 2')
    a.e('s_lshr_b32 s64, s7, 3')
    a.e('s_add_u32 s5, s5, s64')
    ROT = os.environ.get('ROT', 'x4')
    if ROT == 'rt':
        a.e('s_lshl_b32 s74, s4, 1')
    elif ROT == 'xcd':
        a.e('s_lshl_b32 s74, s6, 1')
    elif ROT == 'xcd1':
        a.e('s_mov_b32 s74, s6')
    elif ROT == 'x2':
        a.e('s_and_b32 s74, s4, 1')
        a.e('s_lshl_b32 s74, s74, 3')
        a.e('s_add_u32 s74, s74, s6')
    elif ROT == 'x4':
        a.e('s_and_b32 s74, s4, 3')
        a.e('s_lshl_b32 s74, s74, 2')
        a.e('s_add_u32 s74, s74, s6')
        C3 = os.environ.get('C3', '')
        if C3:
            a.e('s_mul_i32 s64, s4, %d', int(C3[0]))
            if len(C3) > 1:
                a.e('s_add_u32 s64, s64, s6')
            a.e('s_and_b32 s65, s5, 7')
            a.e('s_cmp_eq_u32 s65, 3')
            a.e('s_cselect_b32 s74, s64, s74')
    elif ROT.startswith('g'):
        A_, M_, B_, C_, D_ = [int(c, 16) for c in ROT[1:]]
        a.e('s_and_b32 s74, s4, %d', M_)
        a.e('s_mul_i32 s74, s74, %d', A_)
        a.e('s_mul_i32 s64, s6, %d', B_)
        a.e('s_add_u32 s74, s74, s64')
        a.e('s_lshr_b32 s64, s6, 1')
        a.e('s_mul_i32 s64, s64, %d', C_)
        a.e('s_add_u32 s74, s74, s64')
        a.e('s_bfe_u32 s64, s4, 0x10002')
        a.e('s_mul_i32 s64, s64, %d', D_)
        a.e('s_add_u32 s74, s74, s64')
    elif ROT == 'x8':
        a.e('s_lshl_b32 s74, s4, 1')
        a.e('s_lshr_b32 s64, s6, 1')
        a.e('s_add_u32 s74, s74, s64')
    elif ROT == 'x8b':
        a.e('s_lshl_b32 s74, s4, 1')
        a.e('s_and_b32 s64, s6, 1')
        a.e('s_add_u32 s74, s74, s64')
    elif ROT == 'r4':
        a.e('s_and_b32 s74, s4, 3')
        a.e('s_lshl_b32 s74, s74, 2')
    elif ROT == 'r2':
        a.e('s_and_b32 s74, s4, 1')
        a.e('s_lshl_b32 s74, s74, 3')
    elif ROT == 'r4b':
        a.e('s_bfe_u32 s74, s4, 0x20001')
        a.e('s_lshl_b32 s74, s74, 2')
    elif ROT == 'r5':
        a.e('s_mul_i32 s74, s4, 3')
    elif ROT == 'rt1':
        a.e('s_mov_b32 s74, s4')
    else:
        a.e('s_mov_b32 s74, 0')
    a.e('v_lshrrev_b32 v6, 3, v2')
    a.e('s_lshl_b32 s65, s3, 3')
    a.e('v_add_u32 v6, s65, v6')
    a.e('s_lshl_b32 s64, s4, 7')
    a.e('v_add_u32 v7, s64, v6')
    a.e('v_lshlrev_b32 v7, 11, v7')
    a.e('v_lshrrev_b32 v8, 4, v2')
    a.e('s_and_b32 s64, s3, 1')
    a.e('s_lshl_b32 s64, s64, 2')
    a.e('v_add_u32 v9, s64, v8')
    a.e('v_and_b32 v10, 7, v2')
    a.e('v_xor_b32 v9, v9, v10')
    a.e('v_lshl_add_u32 v7, v9, 4, v7')
    a.e('v_mul_u32_u24 v6, 6144, v6')
    a.e('v_and_b32 v9, 1, v8')
    a.e('s_lshr_b32 s64, s64, 1')
    a.e('v_lshl_add_u32 v9, v9, 2, s64')
    a.e('v_xor_b32 v9, v9, v10')
    a.e('v_lshl_add_u32 v6, v9, 4, v6')
    a.e('s_lshl_b32 s64, s5, 7')
    a.e('v_add_u32 v6, s64, v6')
    a.e('s_lshl_b32 s66, s3, 10')
    a.e('s_mov_b32 s10, 4194304')
    a.e('s_mov_b32 s11, 0x00020000')
    a.e('s_mov_b32 s14, 6291456')
    a.e('s_mov_b32 s15, 0x00020000')

    def dma8(stage):
        a.e('s_add_u32 s65, s74, %d', stage)
        a.e('s_and_b32 s65, s65, 15' if NFIX == 0 else 's_mov_b32 s65, 0')
        a.e('s_lshl_b32 s67, s65, 7')
        a.e('s_mul_i32 s65, s65, 393216')
        if stage == 0:
            a.e('s_waitcnt lgkmcnt(0)')
            a.e('s_mov_b32 s8, s40'); a.e('s_mov_b32 s9, s41')
            a.e('s_mov_b32 s12, s42'); a.e('s_mov_b32 s13, s43')
        for aa in range(2):
            a.e('s_add_u32 m0, s66, %d', RB + stage * SLOT + aa * 8192)
            a.e('s_add_u32 s64, s67, %d', aa * 131072)
            a.vm_issue('d%d' % stage, 'buffer_load_dwordx4 v7, %s, s64 offen' + NTA + ' lds', sr(S_X, 4))
        for ty in range(3):
            a.e('s_add_u32 m0, s66, %d', RB + stage * SLOT + 16384 + ty * 8192)
            a.e('s_add_u32 s64, s65, %d', ty * 2048)
            a.vm_issue('d%d' % stage, 'buffer_load_dwordx4 v6, %s, s64 offen' + NTB + ' lds', sr(S_W, 4))
    dma8(0)
    if 'noste' not in EXP:
        a.e('s_cmp_lt_u32 s3, 4')
        a.e('s_cbranch_scc1 K_nt')
        a.e('s_lshl_b32 s64, s2, 2')
        a.e('s_add_u32 s64, s64, s3')
        a.e('s_sub_u32 s64, s64, 4')
        a.e('s_mul_i32 s64, s64, 6144')
        a.e('s_add_u32 s46, s12, s64')
        a.e('s_addc_u32 s47, s13, 0')
        for o in [t * 1024 + 384 + h for t in range(6) for h in (0, 64)]:
            a.e('s_load_dword s43, s[46:47], %d', o)
        a.e('K_nt:')
    if 'pfw' in EXP:
        a.e('s_mul_i32 s64, s2, 24576')
        a.e('s_mul_i32 s65, s3, 3072')
        a.e('s_add_u32 s64, s64, s65')
        a.e('v_lshlrev_b32 v11, 4, v2')
        for q in range(3):
            a.vm_issue('t', 'buffer_load_dwordx4 v[252:255], v11, %s, s64 offen offset:%d', sr(S_W, 4), q * 1024)
    a.e('s_barrier')
    a.e('s_mov_b32 s%d, 0x%x', S_LOG2E, LOG2E)
    a.e('s_mov_b32 s%d, 0x%x', S_EPS, EPS6)
    srd(a, S_WS, 62, WS_BYTES)
    a.e('s_cmp_lt_u32 s3, 4')
    a.e('s_cbranch_scc1 C_start')
    vm_entry = list(a.vm)
    gen_h1(a)
    a.vm = list(vm_entry)
    gen_c1(a)
    gen_p2(a)


def gen_h1(a):
    VOA, VOB = 4, 5
    a.e('s_sub_u32 s6, s3, 4')
    a.e('s_lshl_b32 s7, s6, 10')
    a.e('v_lshrrev_b32 v6, 3, v2')
    a.e('s_lshl_b32 s64, s4, 7')
    a.e('s_lshl_b32 s65, s6, 3')
    a.e('s_add_u32 s64, s64, s65')
    a.e('v_add_u32 v7, s64, v6')
    a.e('v_lshlrev_b32 v7, 11, v7')
    a.e('s_and_b32 s64, s6, 1')
    a.e('s_lshl_b32 s64, s64, 2')
    a.e('v_add_u32 v9, s64, v8')
    a.e('v_xor_b32 v9, v9, v10')
    a.e('v_lshl_add_u32 v%d, v9, 4, v7', VOA)
    a.e('v_add_u32 v7, s65, v6')
    a.e('v_mul_u32_u24 v7, 6144, v7')
    a.e('v_and_b32 v9, 1, v8')
    a.e('s_lshr_b32 s64, s64, 1')
    a.e('v_lshl_add_u32 v9, v9, 2, s64')
    a.e('v_xor_b32 v9, v9, v10')
    a.e('v_lshl_add_u32 v7, v9, 4, v7')
    a.e('s_lshl_b32 s64, s5, 7')
    a.e('v_add_u32 v%d, s64, v7', VOB)

    def spread(fill, n):
        fill = list(fill or [])
        per = -(-len(fill) // n)

        def put():
            for _ in range(per):
                if fill:
                    for ln in fill.pop(0):
                        a.e(ln)
        return put

    if NFIX:
        a.e('s_and_b32 s74, s4, 7')
        a.e('s_mul_i32 s74, s74, %d', 16 - NFIX)
        a.e('s_lshr_b32 s74, s74, 3')

    def dma(stage, fill=None):
        slot = stage % 3
        put = spread(fill, 10)
        if NFIX == 0:
            a.e('s_add_u32 s41, s74, %d', stage)
            a.e('s_and_b32 s41, s41, 15')
        elif stage < NFIX:
            a.e('s_mov_b32 s41, %d', stage)
        else:
            a.e('s_add_u32 s41, s74, %d', stage - NFIX)
            a.e('s_cmp_ge_u32 s41, %d', 16 - NFIX)
            a.e('s_cselect_b32 s42, %d, 0', 16 - NFIX)
            a.e('s_sub_u32 s41, s41, s42')
            a.e('s_add_u32 s41, s41, %d', NFIX)
        a.e('s_lshl_b32 s42, s41, 7')
        a.e('s_mul_i32 s41, s41, 393216')
        for aa in range(4):
            a.e('s_add_u32 m0, s7, %d', RB + slot * SLOT + aa * 4096)
            a.e('s_add_u32 s40, s42, %d', aa * 65536)
            a.vm_issue('d%d' % stage, 'buffer_load_dwordx4 v%d, %s, s40 offen' + NTA + ' lds', VOA, sr(S_X, 4))
            put()
        for ty in range(3):
            for b in range(2):
                a.e('s_add_u32 m0, s7, %d', RB + slot * SLOT + 16384 + ty * 8192 + b * 4096)
                a.e('s_add_u32 s40, s41, %d', b * 196608 + ty * 2048)
                a.vm_issue('d%d' % stage, 'buffer_load_dwordx4 v%d, %s, s40 offen' + NTB + ' lds', VOB, sr(S_W, 4))
                put()

    def wo_units(ps, fill=None):
        put = spread(fill, 2 * len(ps))
        for p in ps:
            for b in range(2):
                a.e('s_add_u32 m0, s7, %d', POS[p] + b * 4096)
                a.e('s_mov_b32 s40, %d', (p << 17) + b * 65536)
                a.vm_issue('wo', 'buffer_load_dwordx4 v%d, %s, s40 offen' + NTO + ' lds', VOW, sr(S_WO, 4))
                put()

    def cap(fn, n=4):
        saved = a.lines
        a.lines = []
        fn()
        L = [ln.strip() for ln in a.lines]
        a.lines = saved
        return [L[k:k + n] for k in range(0, len(L), n)]
    VOW = 10
    V16 = 6
    a.e('v_lshlrev_b32 v%d, 4, v2', V16)
    a.e('s_and_b32 s64, s2, 1')
    a.e('s_lshl_b32 s68, s64, 10')
    a.e('s_bfe_u32 s64, s2, 0x20001')
    a.e('s_lshl_b32 s64, s64, 8')
    a.e('s_add_u32 s68, s68, s64')
    a.e('s_and_b32 s64, s2, 0xf8')
    a.e('s_add_u32 s68, s68, s64')
    a.e('s_lshl_b32 s64, s6, 1')
    a.e('s_add_u32 s68, s68, s64')
    a.e('s_lshl_b32 s64, s68, 11')
    a.e('v_add_u32 v13, s64, v%d', V16)
    XR, WR, GW, WF = 24, 40, 48, 56
    RL = E('RL', -1)

    def x_rows():
        for q in range(4):
            a.vm_issue('r', 'buffer_load_dwordx4 %s, v13, %s, 0 offen offset:%d', vr(XR + 4 * q, 4), sr(S_X, 4), q * 1024)
    if 'rows0' in EXP:
        x_rows()

    def slow_touch(ptr, stride, offs):
        a.e('s_lshl_b32 s64, s2, 2')
        a.e('s_add_u32 s64, s64, s6')
        a.e('s_mul_i32 s64, s64, %d', stride)
        a.e('s_add_u32 s46, s%d, s64', ptr)
        a.e('s_addc_u32 s47, s%d, 0', ptr + 1)
        for o in offs:
            a.e('s_load_dword s43, s[46:47], %d', o)
    SPF = 'spf' in EXP

    def spf(k, x=False):
        if not SPF or k > 15:
            return
        a.e('s_add_u32 s50, s46, %d', k * 393216)
        a.e('s_addc_u32 s51, s47, 0')
        if 'spfl' in EXP:
            for r in range(2):
                for ty in range(3):
                    for h in ((0,) if 'spfh' in EXP else (0, 64)):
                        a.e('s_load_dword s43, s[50:51], %d', r * 6144 + ty * 2048 + h)
        else:
            for o in range(6):
                a.e('s_load_dword s43, s[50:51], %d', o * 64)
        if x:
            for o in (0, 64, 2048, 2112):
                a.e('s_load_dword s43, s[52:53], %d', o + k * 128)
    if 'st0' in EXP:
        slow_touch(12, 6144, [t * 1024 + 384 + h for t in range(6) for h in (0, 64)])
    dma(1)
    if 'st1' in EXP:
        slow_touch(12, 6144, [t * 1024 + 384 + h for t in range(6) for h in (0, 64)])
    srd(a, S_WG, 50, 7340032)
    srd(a, S_WU, 52, 7340032)
    if SPF:
        a.e('s_lshl_b32 s64, s2, 2')
        a.e('s_add_u32 s64, s64, s6')
        a.e('s_lshl_b32 s65, s64, 12')
        a.e('s_add_u32 s52, s8, s65')
        a.e('s_addc_u32 s53, s9, 0')
        a.e('s_lshr_b32 s65, s64, 4')
        a.e('s_mul_i32 s65, s65, 6144')
        a.e('s_and_b32 s64, s64, 15')
        a.e('s_mul_i32 s64, s64, 384')
        a.e('s_add_u32 s64, s64, s65')
        if 'spfl' in EXP:
            a.e('s_and_b32 s64, s4, 7')
            a.e('s_lshl_b32 s64, s64, 2')
            a.e('s_add_u32 s64, s64, s6')
            a.e('s_mul_i32 s64, s64, 12288')
            a.e('s_lshl_b32 s65, s5, 7')
            a.e('s_add_u32 s64, s64, s65')
        a.e('s_add_u32 s46, s12, s64')
        a.e('s_addc_u32 s47, s13, 0')
    XT = 'spfx' in EXP
    SL0 = [int(c, 16) for c in os.environ.get('SL0', '34')]
    SL1 = [int(c, 16) for c in os.environ.get('SL1', '56')]
    for k in SL0:
        spf(k)
    a.e('s_or_b32 s64, s2, s6')
    a.e('s_cmp_lg_u32 s64, 0')
    a.e('s_cbranch_scc1 H_nn')
    a.e('s_mov_b32 s64, %d', WS_KEY)
    a.e('s_load_dwordx2 s[66:67], s[62:63], s64')
    srd(a, S_DBG, 60, 256)
    a.e('s_waitcnt lgkmcnt(0)')
    a.e('s_xor_b32 s64, s66, s67')
    a.e('s_add_u32 s64, s64, 1')
    a.e('s_max_u32 s64, s64, 1')
    a.e('v_mov_b32 v72, s64')
    a.e('v_mov_b32 v73, 0')
    a.e('s_mov_b64 exec, 1')
    a.vm_uncounted('buffer_store_dword v72, v73, %s, 0 offen' % sr(S_DBG, 4) + WT)
    a.e('s_mov_b64 exec, -1')
    a.e('H_nn:')
    stamp(a, 3)
    srd(a, S_DBG, 60, 256)
    srd(a, S_WR, 48, 2048)
    srd(a, S_GW, 56, 2048)
    VWG, VHP, VKB = 11, 12, 14
    a.e('s_lshr_b32 s69, s2, 3')
    a.e('s_and_b32 s64, s2, 7')
    a.e('v_and_b32 v9, 15, v2')
    a.e('v_min_u32 v9, 13, v9')
    a.e('s_lshl_b32 s65, s69, 5')
    a.e('v_lshl_add_u32 v7, v8, 3, s65')
    a.e('v_mul_u32_u24 v7, 7168, v7')
    a.e('s_mul_i32 s65, s64, 896')
    a.e('s_mul_i32 s66, s6, 224')
    a.e('s_add_u32 s65, s65, s66')
    a.e('v_lshl_add_u32 v7, v9, 4, v7')
    a.e('v_add_u32 v%d, s65, v7', VWG)
    a.e('v_cmp_le_u32 vcc, 7, v9')
    a.e('v_mov_b32 v15, %d', 16384 - 7 * 32)
    a.e('s_nop 0')
    a.e('v_cndmask_b32 v7, 0, v15, vcc')
    a.e('v_lshl_add_u32 v7, v9, 5, v7')
    a.e('v_lshrrev_b32 v15, 1, v8')
    a.e('v_lshl_add_u32 v7, v15, 13, v7')
    a.e('v_and_b32 v15, 1, v8')
    a.e('v_lshl_add_u32 v7, v15, 4, v7')
    a.e('s_lshl_b32 s64, s64, 17')
    a.e('s_lshl_b32 s65, s6, 15')
    a.e('s_add_u32 s64, s64, s65')
    a.e('s_lshl_b32 s65, s69, 8')
    a.e('s_add_u32 s64, s64, s65')
    a.e('s_add_u32 s64, s64, %d', WS_HP)
    a.e('v_add_u32 v%d, s64, v7', VHP)
    a.e('s_lshl_b32 s70, s5, 2')
    a.e('s_add_u32 s70, s70, s6')
    a.e('s_mul_i32 s70, s70, %d', 16 * KVB)
    a.e('s_add_u32 s70, s70, %d', WS_KVP)
    a.e('s_mul_i32 s64, s4, %d', KVB)
    a.e('s_add_u32 s64, s64, s70')
    a.e('s_mov_b32 s67, s64')
    a.e('v_lshl_add_u32 v15, v2, 2, s64')
    a.e('v_add_u32 v15, %d, v15', KVZ - 64)
    a.e('s_lshl_b32 s64, s5, 2')
    a.e('s_add_u32 s64, s64, s6')
    a.e('s_lshl_b32 s64, s64, 7')
    a.e('s_add_u32 s64, s64, %d', WS_F1)
    a.e('v_mov_b32 v23, s64')
    a.e('s_lshl_b32 s65, s4, 10')
    a.e('s_add_u32 s65, s65, %d', WS_F2 - 128)
    a.e('v_lshl_add_u32 v20, v2, 7, s65')
    a.e('v_cmp_gt_u32 vcc, 16, v2')
    a.e('s_nop 1')
    a.e('v_cndmask_b32 v15, v15, v20, vcc')
    a.e('v_writelane_b32 v15, s64, 0')
    a.e('s_cmp_eq_u32 s4, 0')
    a.e('s_cselect_b32 s75, 1, 0')
    a.e('s_or_b32 s64, s5, s6')
    a.e('s_cmp_eq_u32 s64, 0')
    a.e('s_cselect_b32 s64, 0x1fe, 0')
    a.e('s_or_b32 s75, s75, s64')
    a.e('s_or_b32 s75, s75, 0xffff0000')
    a.e('v_add_u32 v22, s67, v%d', V16)
    for r in range(4):
        a.e('v_mov_b32 v%d, -1', 16 + r)
    a.e('v_cndmask_b32 v20, -1, 0, vcc')
    a.vm_wait('d0')
    stamp(a, 4)
    a.e('s_barrier')
    dma(2)
    if 'stx' in EXP:
        slow_touch(8, 4096, [r * 2048 + t * 1024 + 384 + h for r in range(2) for t in range(2) for h in (0, 64)])
    for k in SL1:
        spf(k)

    def init_stores():
        a.vm_issue('init', 'buffer_store_dwordx4 v[16:19], v22, %s, 0 offen' + WT, WSR)
        a.e('s_mov_b32 exec_lo, s75\ns_mov_b32 exec_hi, 0')
        a.vm_issue('init', 'buffer_store_dword v20, v15, %s, 0 offen' + WT, WSR)
        a.e(MASK14)
        a.vm_issue('init', 'buffer_store_dwordx4 v[16:19], v%d, %s, 0 offen' + WT, VHP, WSR)
        a.e('s_mov_b64 exec, 0xffff')
        a.e('s_lshl_b32 s64, s2, 10')
        a.e('s_lshl_b32 s65, s6, 8')
        a.e('s_add_u32 s64, s64, s65')
        a.e('s_add_u32 s64, s64, %d', WS_YP)
        a.vm_issue('init', 'buffer_store_dwordx4 v[16:19], v%d, %s, s64 offen' + WT, V16, WSR)
        a.e('s_mov_b64 exec, -1')

    def row_loads():
        if 'rows0' not in EXP:
            x_rows()
        if 'wrv' in EXP:
            for q in range(2):
                a.vm_issue('r', 'buffer_load_dwordx4 %s, v%d, %s, 0 offen offset:%d', vr(WR + 4 * q, 4), V16, sr(S_WR, 4), q * 1024)
            for q in range(2):
                a.vm_issue('r', 'buffer_load_dwordx4 %s, v%d, %s, 0 offen offset:%d', vr(GW + 4 * q, 4), V16, sr(S_GW, 4), q * 1024)
            return
        a.e('s_cmp_lt_u32 s6, 2')
        a.e('s_cselect_b32 s%d, s48, s56', S_WR)
        a.e('s_cselect_b32 s%d, s49, s57', S_WR + 1)
        a.e('s_and_b32 s64, s7, 1024')
        a.e('s_add_u32 m0, s7, %d', L_KF)
        a.e('s_nop 0')
        a.vm_issue('r', 'buffer_load_dwordx4 v%d, %s, s64 offen lds', V16, sr(S_WR, 4))

    WGT = 96
    XS = 88
    WD = 192
    wl = [(m, j) for j in range(8) for m in range(2)]
    def mk_sched(txt):
        TR = [int(c) for c in txt]
        assert len(TR) == 17 and sum(TR) == 23, sum(TR)
        allw = [('w', x) for x in wl] + [('d', j) for j in range(7)]
        ws_, ds_ = {}, {}
        for k, n in enumerate(TR):
            for kind, x in allw[sum(TR[:k]):sum(TR[:k + 1])]:
                (ws_ if kind == 'w' else ds_).setdefault(k - 1, []).append(x)
        return ws_, ds_, min(ds_)
    wsched, dsched, D0 = mk_sched(os.environ.get('TR', '00005005006007000'))
    TR2 = os.environ.get('TR2')
    GV = E('GV', 13)
    VWD = 21

    def wload(lst):
        if 'now' in EXP:
            return
        a.e(MASK14)
        for (m, j) in lst:
            a.e('s_mov_b32 s64, %d', j * 7168)
            a.vm_issue('w', 'buffer_load_dwordx4 %s, v%d, %s, s64 offen' + NTW, vr(WGT + 32 * m + 4 * j, 4), VWG, sr(S_WG if m == 0 else S_WU, 4))
        a.e('s_mov_b64 exec, -1')

    GA = 32
    MK = 40

    def gemv1_part(pairs):
        if pairs[0] == 0:
            a.e('v_and_b32 v48, 15, v2')
            a.e('v_and_b32 v49, 1, v2')
            a.e('v_lshlrev_b32 v49, 4, v49')
            a.e('v_mov_b32 v50, 0xffff')
            a.e('v_lshlrev_b32 v49, v49, v50')
            a.e('v_lshrrev_b32 v48, 1, v48')
            for q in range(4):
                a.e('v_cmp_eq_u32 vcc, %d, v48', q)
                a.e('s_nop 1')
                a.e('v_cndmask_b32 v%d, 0, v49, vcc', MK + q)
        a.e('s_mov_b32 s64, 0x01000100')
        a.e('s_mov_b32 s65, 0x03020302')
        for jp in pairs:
            for k in range(2):
                j = 2 * jp + k
                t = 44 + 8 * (j & 1)
                a.e('v_perm_b32 v48, v%d, v%d, s%d', XS + jp, XS + jp, 64 + k)
                for q in range(4):
                    a.e('v_and_b32 v%d, v48, v%d', t + q, MK + q)
                a.e('s_nop 1')
                for m in range(2):
                    d = vr(GA + 4 * m, 4)
                    a.e('v_mfma_f32_16x16x32_bf16 %s, %s, %s, %s', d, vr(t, 4), vr(WGT + 32 * m + 4 * j, 4), '0' if j == 0 else d)

    def gemv1_fin():
        a.e('s_nop 7')
        for q in range(4):
            a.e('v_permlane32_swap_b32 v%d, v%d', GA + q, GA + 4 + q)
        a.e(MASK14)
        a.vm_issue('hp', 'buffer_store_dwordx4 %s, v%d, %s, 0 offen' + WT, vr(GA, 4), VHP, WSR)
        a.e('s_mov_b64 exec, -1')
        stamp(a, 7)

    def h0_only(name):
        a.e('s_cmp_lg_u32 s6, 0')
        a.e('s_cbranch_scc1 %s', name)

    IN = E('IN', 0)
    PB = E('PB', 10)
    KP = E('KP', RL + 7)
    gv = {'a': {GV: [0, 1], GV + 1: [2, 3]}, 'b': {GV: [0], GV + 1: [1, 2], GV + 2: [3]}, 'c': {GV: [0], GV + 1: [1], GV + 2: [2, 3]},
          'd': {GV: [0, 1, 2, 3]}}[os.environ.get('GVS', 'd')]
    WOS = {'a': {13: (0, 8, 1, 9, 2, 10), 14: (3, 11), 15: (4, 12, 5, 13, 6, 14, 7, 15)},
           'b': {13: (0, 8, 1, 9), 14: (2, 10), 15: (3, 11, 4, 12, 5, 13, 6, 14, 7, 15)},
           'c': {13: (0, 8), 14: (1, 9), 15: (2, 10, 3, 11, 4, 12, 5, 13, 6, 14, 7, 15)},
           'd': {13: (0,), 14: (8, 1, 9, 2), 15: (10, 3, 11, 4, 12, 5, 13, 6, 14, 7, 15)},
           'e': {13: (0, 8), 14: (1, 9, 2, 10), 15: (3, 11, 4, 12, 5, 13, 6, 14, 7, 15)}}[os.environ.get('WOSCH', 'e')]
    if RL == -1:
        row_loads()
    if IN == -1:
        init_stores()
    if -1 in wsched:
        wload(wsched[-1])
    def wd_addr():
        srd(a, S_WD, 54, 7340032)
        a.e('s_lshr_b32 s64, s2, 2')
        a.e('s_mul_i32 s64, s64, %d', 56 * 2048)
        a.e('s_and_b32 s65, s2, 3')
        a.e('s_lshl_b32 s65, s65, 9')
        a.e('s_add_u32 s64, s64, s65')
        a.e('s_lshl_b32 s65, s6, 7')
        a.e('s_add_u32 s64, s64, s65')
        a.e('v_lshrrev_b32 v7, 3, v2')
        a.e('v_lshlrev_b32 v7, 11, v7')
        a.e('v_and_b32 v9, 7, v2')
        a.e('v_lshl_add_u32 v7, v9, 4, v7')
        a.e('v_add_u32 v%d, s64, v7', VWD)

    def key_loads():
        a.e('s_mov_b32 s64, %d', WS_KEY)
        for q in range(2):
            a.vm_uncounted('buffer_load_dwordx4 %s, v%d, %s, s64 offen offset:%d sc1' % (vr(24 + 4 * q, 4), V16, WSR, q * 1024))

    def dots():
        for q in range(8):
            for k, (x, w) in enumerate(((XR + q, GW + q), (XR + 8 + q, GW + q), (XR + q, WR + q), (XR + 8 + q, WR + q))):
                a.e('v_dot2_f32_bf16 v%d, v%d, v%d, %s', 72 + k, x, w, '0' if q == 0 else 'v%d' % (72 + k))

    def router_fin():
        a.e('v_permlane32_swap_b32 v72, v74')
        a.e('v_permlane32_swap_b32 v73, v75')
        a.e('v_add_f32 v72, v72, v74')
        a.e('v_add_f32 v73, v73, v75')
        a.e('s_lshl_b32 s64, s68, 2')
        a.e('s_add_u32 s64, s64, %d', WS_G)
        a.e('v_permlane16_swap_b32 v72, v73')
        a.e('v_add_f32 v72, v72, v73')
        a.e('v_and_b32 v75, 1, v8')
        a.e('v_lshl_add_u32 v76, v75, 2, s64')
        for pat in ('quad_perm:[1,0,3,2]', 'quad_perm:[2,3,0,1]', 'row_half_mirror', 'row_mirror'):
            a.e('v_add_f32_dpp v72, v72, v72 %s row_mask:0xf bank_mask:0xf', pat)
            a.e('s_nop 1')
        a.e('v_cvt_pk_bf16_f32 v72, v72, v72')
        a.e('s_sub_u32 s64, %d, s68', 2047 + 0x8000)
        a.e('v_lshlrev_b32 v72, 16, v72')
        a.e('v_ashrrev_i32 v73, 31, v72')
        a.e('v_sub_u32 v77, s64, v75')
        a.e('v_or_b32 v73, 0x80000000, v73')
        a.e('s_lshl_b32 s64, s6, 3')
        a.e('v_xor_b32 v73, v72, v73')
        a.e('v_lshl_add_u32 v75, v75, 2, s64')
        a.e('v_and_b32 v73, 0xffff0000, v73')
        a.e('v_or_b32 v73, v77, v73')
        sigmoid_bf16(a, [72])

    def key_max():
        a.e('v_max_u32 v3, v24, v26')
        a.e('v_max3_u32 v3, v3, v28, v30')
        a.e('s_nop 1')
        for pat in ('quad_perm:[1,0,3,2]', 'quad_perm:[2,3,0,1]', 'row_half_mirror', 'row_mirror'):
            a.e('v_max_u32_dpp v3, v3, v3 %s row_mask:0xf bank_mask:0xf', pat)
            a.e('s_nop 1')
        for swp in ('v_permlane16_swap_b32', 'v_permlane32_swap_b32'):
            a.e('v_mov_b32 v7, v3')
            a.e('s_nop 1')
            a.e('%s v3, v7', swp)
            a.e('v_max_u32 v3, v3, v7')
        a.e('v_mov_b32 v7, %d', L_KEY + 32)

    sched0 = (wsched, dsched, D0)
    marks = {}
    nxt = [max(SL1) + 1]
    def stage(i, slow, sched=None):
        wsched, dsched, D0 = sched or sched0
        if i + 1 < 16:
            a.vm_wait('d%d' % (i + 1))
        if i == KP:
            a.vm_wait('g')
        if i == RL + 3:
            a.vm_wait('r')
        if i in (RL + 5, PB + 2):
            a.e('s_waitcnt lgkmcnt(0)')
        a.e('s_barrier')
        fill = []
        if i == RL + 2:
            a.e('v_mov_b32 v79, 0')
            h0_only('H_nc')
            a.vm_uncounted('buffer_load_dword v78, v79, %s, 0 offen sc1' % sr(S_DBG, 4))
            a.e('H_nc:')
        if i == PB:
            h0_only('H_np')
            key_loads()
            a.e('H_np:')
            marks['poll'] = a.issued
        if i == PB + 1:
            h0_only('H_nq')
            a.e('s_waitcnt vmcnt(%d)', a.issued - marks['poll'])
            a.e('s_mov_b32 s65, 0')
            a.e('H_spin:')
            for q in range(4):
                a.e('v_xor_b32 v%d, v%d, v%d', 25 + 2 * q, 24 + 2 * q, 25 + 2 * q)
            a.e('v_xor_b32 v3, s71, v25')
            a.e('v_xor_b32 v7, s71, v27')
            a.e('v_xor_b32 v25, s71, v29')
            a.e('v_xor_b32 v27, s71, v31')
            a.e('v_or3_b32 v3, v3, v7, v25')
            a.e('v_or_b32 v3, v3, v27')
            a.e('v_cmp_ne_u32 vcc, 0, v3')
            a.e('s_cbranch_vccnz H_retry')
            with a.cold():
                a.e('H_retry:')
                a.e('s_add_u32 s65, s65, 1')
                a.e('s_cmp_ge_u32 s65, 200000')
                a.e('s_cbranch_scc1 H_nq')
                a.e('s_sleep 8')
                key_loads()
                a.e('s_waitcnt vmcnt(0)')
                a.e('s_branch H_spin')
            a.e('H_nq:')
            fill += cap(key_max)
        if i == PB + 2:
            a.e('v_mov_b32 v7, %d', L_KEY + 32)
            a.e('ds_read_b32 v3, v7')
            a.e('s_lshl_b32 s65, s69, 6')
            a.e('v_lshl_add_u32 v7, v8, 4, s65')
            a.e('s_waitcnt lgkmcnt(0)')
            a.e('v_readfirstlane_b32 s75, v3')
            a.e('s_nop 3')
            a.e('s_and_b32 s64, s75, 0x7ff')
            a.e('s_sub_u32 s64, 2047, s64')
            a.e('s_lshl_b32 s64, s64, 11')
            a.vm_issue('xs', 'buffer_load_dwordx4 %s, v7, %s, s64 offen', vr(XS, 4), sr(S_X, 4))
        if i == RL + 3:
            a.vm_wait('r')
            if 'wrv' not in EXP:
                for q in range(4):
                    a.e('ds_read_b128 %s, v%d offset:%d', vr(WR + 4 * q, 4), V16, L_KF + q * 1024)
                fill += [['s_waitcnt lgkmcnt(0)']]
            fill += cap(dots)
        if i == RL + 4:
            fill += cap(router_fin)
        if i in gv:
            if gv[i][0] == 0:
                a.vm_wait('xs')
                a.vm_wait('w')
                stamp(a, 6)
            fill += cap(lambda: gemv1_part(gv[i]))
        if i + 3 < 16:
            dma(i + 3, fill)
        else:
            if i == 13 and not slow:
                wo_setup()
            if i == 15:
                xo_loads(a)
            wo_units((WOSS if slow else WOS)[i], fill)
        if slow and i in WOSS and i < 13:
            assert i != PB + 1
            if i == min(WOSS):
                wo_setup()
            wo_units(WOSS[i])
        if slow and i == E('ET2', 99):
            assert i >= min(WOSS) and i != PB + 1
            a.e('s_and_b32 s64, s4, 3')
            a.e('s_lshl_b32 s64, s64, 6')
            a.e('s_lshl_b32 s65, s6, 4')
            a.e('s_add_u32 s64, s64, s65')
            a.e('s_and_b32 s65, s64, 128')
            a.e('s_mul_i32 s65, s65, 3')
            a.e('s_add_u32 s64, s64, s65')
            a.e('s_add_u32 s64, s64, 128')
            a.e('s_lshl_b32 s64, s64, 11')
            a.e('s_lshl_b32 s65, s5, 7')
            a.e('s_add_u32 s64, s64, s65')
            a.e('v_lshrrev_b32 v7, 1, v2')
            a.e('v_lshlrev_b32 v7, 11, v7')
            a.e('v_and_b32 v9, 1, v2')
            a.e('v_lshl_add_u32 v7, v9, 6, v7')
            a.e('s_mov_b32 exec_hi, 0')
            a.vm_issue('t', 'buffer_load_dword v56, v7, %s, s64 offen', sr(S_WO, 4))
            a.e('s_mov_b32 exec_hi, -1')
        if slow and i == E('ET', 99):
            assert i >= min(WOSS) and i != PB + 1
            a.e('s_and_b32 s64, s4, 3')
            a.e('s_lshl_b32 s64, s64, 7')
            a.e('s_lshl_b32 s65, s6, 5')
            a.e('s_add_u32 s64, s64, s65')
            a.e('s_and_b32 s65, s64, 256')
            a.e('s_add_u32 s64, s64, s65')
            a.e('s_add_u32 s64, s64, 256')
            a.e('s_lshl_b32 s64, s64, 11')
            a.e('s_lshl_b32 s65, s5, 7')
            a.e('s_add_u32 s64, s64, s65')
            a.e('v_lshrrev_b32 v7, 1, v2')
            a.e('v_lshlrev_b32 v7, 11, v7')
            a.e('v_and_b32 v9, 1, v2')
            a.e('v_lshl_add_u32 v7, v9, 6, v7')
            a.vm_issue('t', 'buffer_load_dword v56, v7, %s, s64 offen', sr(S_WO, 4))
        if i not in (RL + 4, KP - 1, KP, PB, PB + 1) or 'spfs' not in EXP:
            spf(nxt[0]); nxt[0] += 1
        if i == RL:
            row_loads()
        if i == IN:
            init_stores()
        if i == RL + 4:
            a.e('s_mov_b32 exec_lo, 0\ns_mov_b32 exec_hi, 0x10001')
            a.e('ds_write_b32 v75, v73 offset:%d', L_KEY)
            a.e('s_mov_b32 exec_lo, 0x10001\ns_mov_b32 exec_hi, 0')
            a.vm_issue('g', 'buffer_store_dword v72, v76, %s, 0 offen' + WT, WSR)
            a.e('s_mov_b64 exec, -1')
        if i == KP:
            assert IN <= RL + 4 < KP
            h0_only('H_nk')
            a.e('v_mov_b32 v3, %d', L_KEY)
            a.e('ds_read_b128 v[72:75], v3')
            a.e('ds_read_b128 v[24:27], v3 offset:16')
            a.e('s_mov_b32 s65, 0')
            a.e('H_nspin:')
            a.e('v_readfirstlane_b32 s71, v78')
            a.e('s_cmp_eq_u32 s71, 0')
            a.e('s_cbranch_scc1 H_nre')
            with a.cold():
                a.e('H_nre:')
                a.e('s_add_u32 s65, s65, 1')
                a.e('s_cmp_ge_u32 s65, 200000')
                a.e('s_cbranch_scc1 H_nok')
                a.e('s_sleep 4')
                a.e('buffer_load_dword v78, v79, %s, 0 offen sc1' % sr(S_DBG, 4))
                a.e('s_waitcnt vmcnt(0)')
                a.e('s_branch H_nspin')
            a.e('H_nok:')
            a.e('s_lshl_b32 s64, s2, 3')
            a.e('s_add_u32 s64, s64, %d', WS_KEY)
            a.e('v_mov_b32 v3, s64')
            a.e('s_waitcnt lgkmcnt(0)')
            a.e('v_max3_u32 v72, v72, v73, v74')
            a.e('v_max3_u32 v24, v24, v25, v26')
            a.e('v_max3_u32 v72, v72, v75, v27')
            a.e('v_max_u32 v72, v72, v24')
            a.e('v_xor_b32 v73, s71, v72')
            a.e('s_mov_b64 exec, 1')
            a.vm_uncounted('buffer_store_dwordx2 v[72:73], v3, %s, 0 offen' % WSR + WT)
            a.e('s_mov_b64 exec, -1')
            a.e('H_nk:')
        if i == PB + 1:
            h0_only('H_nw')
            a.e('ds_write_b32 v7, v3')
            a.e('H_nw:')
        if i == E('PFO', 99):
            srd(a, S_GW, 44, 2097152)
            a.e('s_lshl_b32 s64, s2, 13')
            a.e('s_lshl_b32 s65, s6, 11')
            a.e('s_add_u32 s64, s64, s65')
            for q in range(2):
                a.vm_issue('t', 'buffer_load_dwordx4 v[56:59], v%d, %s, s64 offen offset:%d', V16, sr(S_GW, 4), q * 1024)
        PFL = [int(c, 16) for c in os.environ.get('PFL', '')]
        if i in PFL:
            n = 8 // len(PFL)
            srd(a, S_GW, 44, 2097152)
            a.e('s_lshr_b32 s64, s2, 3')
            a.e('s_lshl_b32 s64, s64, 2')
            a.e('s_add_u32 s64, s64, s6')
            a.e('s_lshl_b32 s64, s64, 14')
            a.e('s_bfe_u32 s65, s2, 0x10002')
            a.e('s_lshl_b32 s65, s65, 10')
            a.e('s_add_u32 s64, s64, s65')
            a.e('s_add_u32 s64, s64, %d', PFL.index(i) * n * 2048)
            for q in range(n):
                a.vm_issue('t', 'buffer_load_dwordx4 v[56:59], v%d, %s, s64 offen', V16, sr(S_GW, 4))
                a.e('s_add_u32 s64, s64, 2048')
        SPD = [int(c, 16) for c in os.environ.get('SPD', '')]
        if i in SPD:
            if i == SPD[0]:
                a.e('s_lshr_b32 s64, s2, 2')
                a.e('s_mul_i32 s64, s64, %d', 56 * 2048)
                a.e('s_and_b32 s65, s2, 3')
                a.e('s_lshl_b32 s65, s65, 9')
                a.e('s_add_u32 s64, s64, s65')
                a.e('s_lshl_b32 s65, s6, 7')
                a.e('s_add_u32 s64, s64, s65')
                a.e('s_add_u32 s46, s54, s64')
                a.e('s_addc_u32 s47, s55, 0')
            per = -(-56 // len(SPD))
            for r in range(SPD.index(i) * per, min(56, (SPD.index(i) + 1) * per)):
                for h in (0, 64):
                    a.e('s_load_dword s43, s[46:47], %d', r * 2048 + h)
        if i == E('STO', 7):
            slow_touch(44, 2048, [t * 1024 + 384 + h for t in range(2) for h in (0, 64)])
        if i in wsched:
            wload(wsched[i])
        if i == D0:
            wd_addr()
        if i in dsched and 'now' not in EXP:
            for j in dsched[i]:
                a.e('s_mov_b32 s64, %d', j * 16384)
                a.vm_issue('wd', 'buffer_load_dwordx4 %s, v%d, %s, s64 offen' + NTW, vr(WD + 4 * j, 4), VWD, sr(S_WD, 4))
        if i == max(gv):
            gemv1_fin()

    def wo_setup():
        p2_ids(a)
        srd(a, S_WO, 44, 2097152)
        wo_voff(a, VOW, 7, 9, 6)
    EW = E('EW', 99)
    WOSS = {EW: (0, 8), EW + 3: (1, 9), 13: (2, 10), 14: (3, 11), 15: (4, 12, 5, 13, 6, 14, 7, 15)}
    if os.environ.get('EWS') == 'b':
        WOSS = {EW: (0, 8, 1, 9), 13: (2, 10), 14: (3, 11), 15: (4, 12, 5, 13, 6, 14, 7, 15)}
    if TR2:
        EW = 1
    for i in range(min(EW, 16)):
        stage(i, False)
    if EW < 13:
        if TR2:
            a.e('s_bitcmp1_b32 s2, %d', E('TRB', 3))
        else:
            a.e('s_lshr_b32 s64, s2, 5')
            a.e('s_cmp_eq_u32 s64, 3')
        a.e('s_cbranch_scc1 H_slow')
        st_ = (list(a.vm), a.issued, dict(marks), list(nxt))
        main, cold0 = a.lines, list(getattr(a, 'cold_lines', []))
        a.lines, a.cold_lines = [], []
        a.e('H_slow:')
        for i in range(EW, 16):
            stage(i, not TR2, mk_sched(TR2) if TR2 else None)
        a.e('s_branch H_join')
        import re as _re
        ren = lambda ln: _re.sub(r'\b(H_n[a-z]+|H_spin|H_retry)\b', lambda m: m.group(1) + '_S', ln)
        slow_code = [ren(ln) for ln in a.lines + a.cold_lines]
        a.lines, a.cold_lines = main, cold0 + slow_code
        a.vm, a.issued = st_[0], st_[1]
        marks.clear(); marks.update(st_[2]); nxt[:] = st_[3]
        for i in range(EW, 16):
            stage(i, False)
        a.e('H_join:')
    stamp(a, 5)
    if STAMPS == 4:
        a.e('s_waitcnt vmcnt(19)')
        stamp(a, 3, lvl=4)
        a.e('s_waitcnt vmcnt(16)')
        stamp(a, 4, lvl=4)
        a.e('s_waitcnt vmcnt(8)')
        stamp(a, 6, lvl=4)
        a.e('s_waitcnt vmcnt(0)')
        stamp(a, 7, lvl=4)
    if 'gprio' in EXP:
        a.e('s_setprio 3')
    KB, KA, PA = 64, 128, 48
    SL = 40

    def f1_poll():
        a.e('s_mov_b64 exec, 1')
        a.e('v_mov_b32 v20, 0')
        a.e('buffer_atomic_or v20, v23, %s, 0 offen sc0', WSR)
        a.e('s_mov_b64 exec, -1')
    f1_poll()
    a.e('v_add_u32 v17, s70, v%d', V16)
    a.e('v_lshrrev_b32 v18, 2, v2')
    a.e('v_mul_u32_u24 v18, %d, v18', KVB)
    a.e('v_and_b32 v19, 3, v2')
    a.e('v_lshl_add_u32 v18, v19, 4, v18')
    a.e('s_add_u32 s64, s70, %d', KVZ)
    a.e('v_add_u32 v18, s64, v18')
    a.e('v_bfe_u32 v26, v2, 3, 1')
    a.e('v_lshl_add_u32 v26, v26, 2, v19')
    a.e('v_bfe_u32 v27, v2, 2, 1')
    a.e('v_lshrrev_b32 v28, 5, v2')
    a.e('v_cmp_eq_u32 vcc, v27, v28')
    a.e('v_and_b32 v27, 16, v2')
    a.e('v_cmp_eq_u32 s[64:65], 0, v27')
    a.e('s_and_b64 vcc, vcc, s[64:65]')
    a.e('v_and_b32 v27, 1, v26')
    a.e('v_lshlrev_b32 v27, 4, v27')
    a.e('v_mov_b32 v28, 0x3f80')
    a.e('v_lshlrev_b32 v27, v27, v28')
    a.e('v_cndmask_b32 v27, 0, v27, vcc')
    a.e('v_lshrrev_b32 v26, 1, v26')
    for q in range(4):
        a.e('v_cmp_eq_u32 vcc, %d, v26', q)
        a.e('s_nop 1')
        a.e('v_cndmask_b32 v%d, 0, v27, vcc', PA + q)
    for r in range(16):
        a.e('v_mov_b32 v%d, 0', KA + r)
    a.e('s_mov_b32 s66, 0xffff')
    a.e('s_mov_b32 s65, 0')
    a.e('s_waitcnt vmcnt(0)')
    a.e('G_loop:')
    a.e('v_readfirstlane_b32 s68, v20')
    if E('SPEC', 0):
        a.e('s_bcnt1_i32_b32 s64, s66')
        a.e('s_cmp_le_u32 s64, %d', E('SPEC', 0))
        a.e('s_cselect_b32 s68, 0xffff, s68')
    a.e('s_and_b32 s68, s68, s66')
    a.e('s_andn2_b32 s66, s66, s68')
    if STAMPS == 2:
        a.e('s_memrealtime s[86:87]')
        a.e('s_min_u32 s64, s65, 30')
        a.e('s_lshl_b32 m0, s64, 1')
        a.e('s_waitcnt lgkmcnt(0)')
        a.e('v_writelane_b32 v250, s86, m0')
        a.e('s_add_u32 m0, m0, 1')
        a.e('s_nop 0')
        a.e('v_writelane_b32 v250, s66, m0')
        a.e('v_writelane_b32 v250, s65, 63')
    a.e('s_bcnt1_i32_b32 s67, s68')

    def jump_n(pref):
        def rec(lo, hi, last):
            if lo == hi:
                if not (last and lo == 16):
                    a.e('s_branch %s%d', pref, lo)
                return
            mid = lo if hi - lo < 3 else (lo + hi) // 2
            if mid == lo:
                a.e('s_cmp_eq_u32 s67, %d', lo)
                a.e('s_cbranch_scc1 %s%d', pref, lo)
                rec(lo + 1, hi, last)
            else:
                lab = a.label(pref + 't')
                a.e('s_cmp_gt_u32 s67, %d', mid)
                a.e('s_cbranch_scc1 %s', lab)
                rec(lo, mid, False)
                a.e('%s:', lab)
                rec(mid + 1, hi, last)
        a.e('s_cmp_eq_u32 s67, 0')
        a.e('s_cbranch_scc1 %s0', pref)
        rec(1, 16, True)
    jump_n('G_l')
    for c in range(15, -1, -1):
        a.e('G_l%d:', c + 1)
        a.e('s_ff1_i32_b32 s%d, s68', SL + c)
        a.e('s_bitset0_b32 s68, s%d', SL + c)
        a.e('s_mul_i32 s64, s%d, %d', SL + c, KVB)
        a.e('buffer_load_dwordx4 %s, v17, %s, s64 offen sc1', vr(KB + 4 * c, 4), WSR)
    a.e('G_l0:')
    a.e('s_mov_b32 s68, s66')
    a.e('s_cmp_eq_u32 s66, 0')
    a.e('s_cbranch_scc1 G_z')
    a.e('s_cmp_lg_u32 s67, 0')
    a.e('s_cbranch_scc1 G_p')
    a.e('s_sleep %d', E('GSL', 2))
    a.e('G_p:')
    f1_poll()
    a.e('s_branch G_proc')
    a.e('G_z:')
    a.e('buffer_load_dwordx4 v[56:59], v18, %s, 0 offen sc1', WSR)
    a.e('G_proc:')
    jump_n('G_q')
    for c in range(15, -1, -1):
        b = KB + 4 * c
        a.e('G_q%d:', c + 1)
        a.e('s_waitcnt vmcnt(%d)', c + 1)
        a.e('v_max3_u32 v21, v%d, v%d, v%d', b, b + 1, b + 2)
        a.e('v_max_u32 v21, v21, v%d', b + 3)
        a.e('v_cmp_eq_u32 vcc, -1, v21')
        a.e('s_cbranch_vccnz G_f%d', c)
        a.e('v_mfma_f32_32x32x16_bf16 %s, %s, %s, %s', vr(KA, 16), vr(PA, 4), vr(b, 4), vr(KA, 16))
        with a.cold():
            a.e('G_f%d:', c)
            a.e('s_bitset1_b32 s66, s%d', SL + c)
            a.e('s_branch G_q%d', c)
    a.e('G_q0:')
    a.e('s_waitcnt vmcnt(0)')
    a.e('s_add_u32 s65, s65, 1')
    a.e('s_cmp_ge_u32 s65, 40000')
    a.e('s_cbranch_scc1 G_done')
    a.e('s_cmp_lg_u32 s68, 0')
    a.e('s_cbranch_scc1 G_loop')
    a.e('v_mov_b32 v20, -1')
    a.e('s_cmp_lg_u32 s66, 0')
    a.e('s_cbranch_scc1 G_loop')
    a.e('v_max3_u32 v21, v56, v57, v58')
    a.e('v_max_u32 v21, v21, v59')
    a.e('v_cmp_eq_u32 vcc, -1, v21')
    a.e('s_cbranch_vccnz G_loop')
    a.e('G_done:')
    a.vm = []
    stamp(a, 8)
    a.e('v_add_u32 v16, s7, v%d', V16)
    for pat in ('row_ror:4', 'row_ror:8'):
        for q in range(4):
            a.e('v_add_f32_dpp v%d, v%d, v%d %s row_mask:0xf bank_mask:0xf', 56 + q, 56 + q, 56 + q, pat)
    for swp in ('v_permlane16_swap_b32', 'v_permlane32_swap_b32'):
        for q in range(4):
            a.e('v_mov_b32 v%d, v%d', 64 + q, 56 + q)
        a.e('s_nop 0')
        for q in range(4):
            a.e('%s v%d, v%d', swp, 56 + q, 64 + q)
        for q in range(4):
            a.e('v_add_f32 v%d, v%d, v%d', 56 + q, 56 + q, 64 + q)
    for q in range(4):
        a.e('v_cvt_pk_bf16_f32 v%d, v%d, v%d', 60 + q, KA + 2 * q, KA + 2 * q + 1)
    a.e('ds_write_b128 v16, v[60:63] offset:%d', L_KF)
    a.e('v_cvt_pk_bf16_f32 v56, v56, v57')
    a.e('v_cvt_pk_bf16_f32 v57, v58, v59')
    a.e('s_lshr_b32 s64, s6, 1')
    a.e('s_lshl_b32 s64, s64, 6')
    a.e('s_and_b32 s65, s6, 1')
    a.e('s_lshl_b32 s65, s65, 3')
    a.e('s_add_u32 s64, s64, s65')
    a.e('v_lshl_add_u32 v16, v2, 4, s64')
    a.e('s_mov_b64 exec, 15')
    a.e('ds_write_b64 v16, v[56:57] offset:%d', L_ZF)
    a.e('s_mov_b64 exec, -1')
    a.e('s_waitcnt lgkmcnt(0)')
    a.e('s_barrier')
    if 'gprio' in EXP:
        a.e('s_setprio 0')
    a.e('v_lshrrev_b32 v18, 3, v2')
    a.e('v_lshlrev_b32 v18, 2, v18')
    for j in range(7):
        a.e('ds_read_b32 v%d, v18 offset:%d', 24 + j, L_H + 32 * j)
    a.e('s_waitcnt lgkmcnt(0)')
    YA = 32
    for j in range(7):
        for q in range(4):
            w = WD + 4 * j + q
            a.e('v_lshlrev_b32 v48, 16, v%d', w)
            a.e('v_and_b32 v49, 0xffff0000, v%d', w)
            if j == 0:
                a.e('v_mul_f32 v%d, v48, v%d', YA + 2 * q, 24 + j)
                a.e('v_mul_f32 v%d, v49, v%d', YA + 2 * q + 1, 24 + j)
            else:
                a.e('v_fmac_f32 v%d, v48, v%d', YA + 2 * q, 24 + j)
                a.e('v_fmac_f32 v%d, v49, v%d', YA + 2 * q + 1, 24 + j)
    a.e('s_nop 1')
    for q in range(4):
        a.e('v_permlane32_swap_b32 v%d, v%d', YA + q, YA + 4 + q)
    for q in range(4):
        a.e('v_add_f32 v%d, v%d, v%d', YA + q, YA + q, YA + 4 + q)
    a.e('s_nop 1')
    for q in range(2):
        a.e('v_permlane16_swap_b32 v%d, v%d', YA + q, YA + 2 + q)
    for q in range(2):
        a.e('v_add_f32 v%d, v%d, v%d', YA + q, YA + q, YA + 2 + q)
    a.e('s_nop 1')
    for q in range(2):
        a.e('v_add_f32_dpp v%d, v%d, v%d row_ror:8 row_mask:0xf bank_mask:0xf', YA + q, YA + q, YA + q)
    a.e('v_and_b32 v16, 7, v2')
    a.e('v_lshlrev_b32 v16, 5, v16')
    a.e('v_lshl_add_u32 v16, v8, 3, v16')
    a.e('s_lshl_b32 s64, s2, 10')
    a.e('s_lshl_b32 s65, s6, 8')
    a.e('s_add_u32 s64, s64, s65')
    a.e('s_add_u32 s64, s64, %d', WS_YP)
    a.e('s_mov_b32 exec_lo, 0x00ff00ff\ns_mov_b32 exec_hi, 0x00ff00ff')
    a.e('buffer_store_dwordx2 %s, v16, %s, s64 offen' + WT, vr(YA, 2), WSR)
    a.e('s_mov_b64 exec, -1')
    stamp(a, 9)
    if 'latep' not in EXP:
        f2_poll_first(a)
    t2_fill(a)
    a.e('s_branch P2_start')


def gen_c1(a):
    a.e('C_start:')
    TOUCH = E('TOUCH', 0)
    if TOUCH:
        a.e('s_mul_i32 s64, s2, 24576')
        a.e('s_mul_i32 s65, s3, 6144')
        a.e('s_add_u32 s64, s64, s65')
        a.e('v_mul_u32_u24 v3, %d, v2', TOUCH)
        a.e('s_mov_b32 exec_hi, 0xffff')
        for q in range(128 // TOUCH):
            a.vm_issue('t', 'buffer_load_dword v60, v3, %s, s64 offen offset:%d', sr(S_W, 4), q * 3072)
        a.e('s_mov_b32 exec_hi, -1')
    if 'noscode' not in EXP:
        NS = E('NS', 4)
        a.e('s_getpc_b64 s[68:69]')
        a.e('C_pc:')
        a.e('s_sub_u32 s68, s68, C_pc-%s_kernel' % NAME)
        a.e('s_subb_u32 s69, s69, 0')
        a.e('s_lshr_b32 s64, s2, 3')
        a.e('s_lshl_b32 s64, s64, 2')
        a.e('s_add_u32 s64, s64, s3')
        a.e('s_mul_i32 s64, s64, %d', NS * 64)
        a.e('s_mov_b32 s65, CODE_END-%s_kernel-4' % NAME)
        for q in range(NS):
            a.e('s_min_u32 s66, s64, s65')
            a.e('s_load_dword s75, s[68:69], s66')
            a.e('s_add_u32 s64, s64, 64')
    M16 = 'v_mfma_f32_16x16x32_bf16'
    VAB, VBB, VA, VB = 4, 6, 8, 10
    BF = [16, 40]
    AB = [192, 208]
    QA, KA_, VA_ = 64, 96, 128
    qt = lambda sb, db: QA + (sb * 2 + db) * 4
    kt = lambda base, sb, db: base + (((sb >> 1) * 2 + db) * 2 + (sb & 1)) * 4
    X = 224
    ONES = 236
    a.e('s_and_b32 s6, s3, 1')
    a.e('s_lshr_b32 s7, s3, 1')
    a.e('v_and_b32 v3, 15, v2')
    a.e('s_lshl_b32 s64, s6, 6')
    a.e('v_add_u32 v3, s64, v3')
    a.e('v_lshlrev_b32 v3, 7, v3')
    a.e('v_add_u32 v3, %d, v3', RB)
    a.e('v_bfe_u32 v56, v2, 1, 3')
    a.e('v_lshrrev_b32 v57, 4, v2')
    a.e('v_xor_b32 v56, v56, v57')
    a.e('v_lshl_add_u32 v%d, v56, 4, v3', VAB)
    a.e('v_xor_b32 v%d, 64, v%d', VAB + 1, VAB)
    a.e('v_bfe_u32 v56, v2, 2, 2')
    a.e('v_lshl_add_u32 v58, v57, 3, v56')
    a.e('v_lshlrev_b32 v58, 7, v58')
    a.e('v_lshrrev_b32 v56, 1, v56')
    a.e('v_xor_b32 v56, s7, v56')
    a.e('v_lshl_add_u32 v58, v56, 6, v58')
    a.e('v_and_b32 v57, 1, v57')
    a.e('v_lshl_add_u32 v58, v57, 5, v58')
    a.e('v_and_b32 v56, 3, v2')
    a.e('v_lshl_add_u32 v58, v56, 3, v58')
    a.e('v_add_u32 v%d, %d, v58', VBB, RB + 16384)
    a.e('v_xor_b32 v%d, 32, v%d', VBB + 1, VBB)
    for t in range(2):
        a.e('v_mov_b32 v%d, v%d', VA + t, VAB + t)
        a.e('v_mov_b32 v%d, v%d', VB + t, VBB + t)
    for r in range(64, 160):
        a.e('v_mov_b32 v%d, 0', r)
    a.e('s_lshl_b32 s64, s3, 2')
    a.e('v_mov_b32 v%d, s64', X + 5)
    a.e('ds_write_b32 v%d, v64 offset:%d', X + 5, L_FLG)
    a.e('v_lshlrev_b32 v3, 4, v2')
    a.e('s_lshl_b32 s64, s3, 11')
    a.e('v_add_u32 v%d, s64, v3', X)
    a.e('v_xor_b32 v%d, 2048, v%d', X + 1, X)
    a.e('s_lshl_b32 s64, s3, 8')
    a.e('v_lshl_add_u32 v%d, v2, 2, s64', X + 3)
    a.e('v_xor_b32 v%d, 256, v%d', X + 4, X + 3)
    a.e('v_xor_b32 v%d, 4, v%d', X + 6, X + 5)
    a.e('v_mov_b32 v%d, 1', X + 7)
    a.e('v_lshlrev_b32 v%d, 2, v2', X + 8)
    a.e('s_lshl_b32 s64, 1, s4')
    a.e('v_mov_b32 v%d, s64', X + 9)
    a.e('s_lshl_b32 s43, s5, 2')
    a.e('s_add_u32 s43, s43, s3')
    a.e('s_lshl_b32 s64, s43, 7')
    a.e('s_add_u32 s64, s64, %d', WS_F1)
    a.e('v_mov_b32 v%d, s64', X + 10)
    a.e('s_lshl_b32 s43, s43, 4')
    a.e('s_add_u32 s43, s43, s4')
    a.e('s_mul_i32 s43, s43, %d', KVB)
    a.e('s_add_u32 s43, s43, %d', WS_KVP)
    a.e('s_lshl_b32 s42, s4, 2')
    a.e('s_lshl_b32 s64, s6, 1')
    a.e('s_add_u32 s42, s42, s64')
    a.e('s_lshl_b32 s42, s42, 5')
    a.e('s_lshl_b32 s64, s5, 1')
    a.e('s_add_u32 s42, s42, s64')
    a.e('s_add_u32 s42, s42, s7')
    a.e('s_lshl_b32 s42, s42, 11')
    a.e('s_and_b32 s64, s5, 7')
    a.e('s_lshl_b32 s64, s64, 1')
    a.e('s_add_u32 s64, s64, s7')
    a.e('s_lshl_b32 s64, 1, s64')
    a.e('v_mov_b32 v13, s64')
    a.e('s_lshr_b32 s64, s5, 3')
    a.e('s_lshl_b32 s64, s64, 1')
    a.e('s_add_u32 s64, s64, s6')
    a.e('s_lshl_b32 s64, s64, 8')
    a.e('s_lshl_b32 s65, s4, 10')
    a.e('s_add_u32 s64, s64, s65')
    a.e('s_add_u32 s64, s64, %d', WS_F2)
    a.e('v_lshl_add_u32 v12, v2, 7, s64')
    p2_ids(a)
    a.e('s_mov_b32 s65, 0')
    a.e('s_mov_b32 s66, 0')
    for r in range(4):
        a.e('v_mov_b32 v%d, 0x3f803f80', ONES + r)

    def reads(st, buf, areg, q=True):
        B = lambda ty, cb: ['ds_read_b64_tr_b16 %s, v%d offset:%d' % (vr(BF[buf] + 8 * ty + 4 * cb + 2 * tt, 2), VB + cb, ty * 8192 + st * 4096 + tt * 512)
                            for tt in range(2)]
        A = ['ds_read_b128 %s, v%d offset:%d' % (vr(areg + 4 * b, 4), VA + st, b * 2048) for b in range(4)]
        L = []
        for ty in ((0, 1, 2) if q else (1, 2)):
            for cb in range(2):
                L += B(ty, cb)
        return L[:2] + A + L[2:]

    def mfmas(buf, areg, q=True):
        L = []
        tys = (0, 1, 2) if q else (1, 2)
        order = [(ty, cb, b) for ty in tys for cb in range(2) for b in range(4)]
        if 'ordb' in EXP:
            order = [(ty, cb, b) for b in range(4) for ty in tys for cb in range(2)]
        if 'ords' in EXP:
            order = [(ty, cb, b if (2 * k + cb) % 2 == 0 else 3 - b) for k, ty in enumerate(tys) for cb in range(2) for b in range(4)]
        for (ty, cb, b) in order:
            if True:
                w = vr(BF[buf] + 8 * ty + 4 * cb, 4)
                if True:
                    x = vr(areg + 4 * b, 4)
                    if ty == 0:
                        d = vr(qt(b, cb), 4)
                        L.append('%s %s, %s, %s, %s' % (M16, d, w, x, d))
                    else:
                        d = vr(kt(KA_ if ty == 1 else VA_, b, cb), 4)
                        L.append('%s %s, %s, %s, %s' % (M16, d, x, w, d))
        return L

    def bar_stamped():
        if STAMPS == 2:
            a.e('s_memtime s[68:69]')
        a.e('s_barrier')
        if STAMPS == 2:
            a.e('s_memtime s[70:71]')
            a.e('s_waitcnt lgkmcnt(0)')
            a.e('s_mov_b32 m0, s66')
            a.e('s_nop 0')
            a.e('v_writelane_b32 v14, s68, m0')
            a.e('s_add_u32 m0, s66, 16')
            a.e('s_nop 0')
            a.e('v_writelane_b32 v14, s70, m0')
            a.e('s_memrealtime s[70:71]')
            a.e('s_add_u32 m0, s66, 32')
            a.e('s_waitcnt lgkmcnt(0)')
            a.e('v_writelane_b32 v14, s70, m0')

    def step(M, F):
        for i, m_ in enumerate(M):
            a.e(m_)
            if i < len(F):
                a.e(F[i])
        for f in F[len(M):]:
            a.e(f)

    stamp(a, 3)
    a.vm_wait('d0', 'lgkmcnt(0)')
    stamp(a, 4)
    a.e('s_barrier')
    for r in reads(0, 0, AB[0]):
        a.e(r)
    ND = E('ND', 2)
    a.e('.p2align 3')
    a.e('C_loop:')
    a.e('s_waitcnt lgkmcnt(0)')
    step(mfmas(0, AB[0]), reads(1, 1, AB[1]))
    a.e('s_waitcnt lgkmcnt(0)')
    bar_stamped()
    a.e('s_add_u32 s65, s65, %d', SLOT)
    a.e('s_cmp_eq_u32 s65, %d', 3 * SLOT)
    a.e('s_cselect_b32 s65, 0, s65')
    AD = ['v_add_u32 v%d, s65, v%d' % (r + 4, r) for r in (VBB, VAB, VBB + 1, VAB + 1)]
    R = reads(0, 0, AB[0])
    step(mfmas(1, AB[1]), [AD[0] + '\n' + AD[1]] + R[:6] + [AD[2]] + R[6:] + [AD[3]])
    a.e('s_add_u32 s66, s66, 1')
    a.e('s_cmp_lt_u32 s66, %d', 16 - ND)
    a.e('s_cbranch_scc1 C_loop')
    AR = {(14, 0): 192, (14, 1): 160, (15, 0): 176, (15, 1): 208}
    if ND:
        a.e('s_waitcnt lgkmcnt(0)')
        step(mfmas(0, AR[14, 0], False), reads(1, 1, AR[14, 1], False))
        a.e('s_waitcnt lgkmcnt(0)')
        bar_stamped()
        a.e('s_add_u32 s66, s66, 1')
        AD = ['v_mov_b32 v%d, v%d' % (r + 4, r) for r in (VBB, VAB, VBB + 1, VAB + 1)]
        R = reads(0, 0, AR[15, 0], False)
        step(mfmas(1, AR[14, 1], False), [AD[0] + '\n' + AD[1]] + R[:2] + [AD[2] + '\n' + AD[3]] + R[2:])
        a.e('s_waitcnt lgkmcnt(0)')
        step(mfmas(0, AR[15, 0], False), reads(1, 1, AR[15, 1], False))
        a.e('s_waitcnt lgkmcnt(0)')
        bar_stamped()
        step(mfmas(1, AR[15, 1], False), [])
    a.vm = []
    stamp(a, 5)
    PK = [16, 24]; VBF = [32, 40]; T0, T1, E0, E1, MN = 48, 49, 50, 51, 56
    KVA = 240; ZA = [96, 60]
    if not ND:
        a.e('s_waitcnt lgkmcnt(0)')
    for cb in range(2):
        a.e('v_add_u32 v%d, %d, v%d', VB + cb, 2 * SLOT, VBB + cb)
    for p in range(2):
        if 'pkphi' in EXP:
            if p == 0:
                a.e('s_mov_b32 s68, s%d', S_LOG2E)
                a.e('s_mov_b32 s69, s%d', S_LOG2E)
                a.e('s_mov_b32 s70, 1.0')
                a.e('s_mov_b32 s71, 1.0')
            phi16_pk(a, KA_ + 16 * p, PK[p], MN, 68)
        else:
            phi16(a, KA_ + 16 * p, PK[p], T0, T1, E0, E1, MN)
        for j in range(8):
            a.e('v_cvt_pk_bf16_f32 v%d, v%d, v%d', VBF[p] + j, VA_ + 16 * p + 2 * j, VA_ + 16 * p + 2 * j + 1)
            if j in (1, 2):
                db = j - 1
                a.e('%s %s, %s, %s, %s', M16, vr(ZA[db], 4), vr(ONES, 4), vr(PK[p] + 4 * db, 4), '0' if p == 0 else vr(ZA[db], 4))
            if j in (5, 6):
                db = j - 5
                d = vr(KVA + db * 4, 4)
                a.e('%s %s, %s, %s, %s', M16, d, vr(PK[p] + 4 * db, 4), vr(VBF[p], 4), '0' if p == 0 else d)
        a.e('s_nop 1')
        for db in range(2):
            d = vr(KVA + 8 + db * 4, 4)
            a.e('%s %s, %s, %s, %s', M16, d, vr(PK[p] + 4 * db, 4), vr(VBF[p] + 4, 4), '0' if p == 0 else d)
    a.e('s_cmp_eq_u32 s6, 0')
    a.e('s_cbranch_scc0 C_ex1')
    a.e('ds_write_b32 v%d, v%d offset:%d', X + 3, ZA[1], L_ZX)
    a.e('s_nop 5')
    a.e('ds_write_b128 v%d, %s offset:%d', X, vr(KVA + 8, 4), L_EX)
    a.e('ds_write_b128 v%d, %s offset:%d', X, vr(KVA + 12, 4), L_EX + 1024)
    a.e('C_ex2:')
    with a.cold():
        a.e('C_ex1:')
        a.e('ds_write_b32 v%d, v%d offset:%d', X + 3, ZA[0], L_ZX)
        a.e('ds_write_b128 v%d, %s offset:%d', X, vr(KVA, 4), L_EX)
        a.e('ds_write_b128 v%d, %s offset:%d', X, vr(KVA + 4, 4), L_EX + 1024)
        a.e('s_nop 4')
        a.e('v_mov_b32 v%d, v%d', ZA[0], ZA[1])
        for r in range(8):
            a.e('v_mov_b32 v%d, v%d', KVA + r, KVA + 8 + r)
        a.e('s_branch C_ex2')
    a.e('ds_write_b32 v%d, v%d offset:%d', X + 5, X + 7, L_FLG)
    a.e('C_ps:')
    a.e('ds_read_b32 v25, v%d offset:%d', X + 6, L_FLG)
    a.e('ds_read_b128 v[16:19], v%d offset:%d', X + 1, L_EX)
    a.e('ds_read_b128 v[20:23], v%d offset:%d', X + 1, L_EX + 1024)
    a.e('ds_read_b32 v24, v%d offset:%d', X + 4, L_ZX)
    a.e('s_waitcnt lgkmcnt(0)')
    a.e('v_cmp_eq_u32 vcc, 0, v25')
    a.e('s_cbranch_vccnz C_ps')
    for r in range(8):
        a.e('v_add_f32 v%d, v%d, v%d', 16 + r, 16 + r, KVA + r)
    a.e('v_add_f32 v24, v24, v%d', ZA[0])
    for r in range(4):
        a.e('v_cvt_pk_bf16_f32 v%d, v%d, v%d', 28 + r, 16 + 2 * r, 17 + 2 * r)
    a.vm_issue('kvp', 'buffer_store_dwordx4 v[28:31], v3, %s, s43 offen' + WT, WSR)
    a.e('s_mov_b64 exec, 0xffff')
    a.vm_issue('kvp', 'buffer_store_dword v24, v%d, %s, s43 offen offset:%d' + WT, X + 8, WSR, KVZ)
    a.e('s_mov_b64 exec, 1')
    a.vm_issue('f1', 'buffer_atomic_or v%d, v%d, %s, 0 offen', X + 9, X + 10, WSR)
    a.e('s_mov_b64 exec, -1')
    stamp(a, 6)
    if STAMPS == 2:
        a.e('v_mov_b32 v250, v14')
    if ND:
        steps = [(14, 0), (14, 1), (15, 0), (15, 1)]
        for n, (sg, st) in enumerate(steps):
            for cb in range(2):
                for tt in range(2):
                    a.e('ds_read_b64_tr_b16 %s, v%d offset:%d', vr(96 + 8 * n + 4 * cb + 2 * tt, 2), (VB if sg == 14 else VBB) + cb, st * 4096 + tt * 512)
        for n, (sg, st) in enumerate(steps):
            a.e('s_waitcnt lgkmcnt(%d)', 12 - 4 * n)
            for cb in range(2):
                for b in range(4):
                    d = vr(qt(b, cb), 4)
                    a.e('%s %s, %s, %s, %s', M16, d, vr(96 + 8 * n + 4 * cb, 4), vr(AR[sg, st] + 4 * b, 4), d)
    stamp(a, 7)
    xo_loads(a)
    a.e('v_lshlrev_b32 v3, 4, v2')
    a.e('s_lshl_b32 s64, s7, 11')
    a.e('v_add_u32 v4, s64, v3')
    a.e('v_lshrrev_b32 v5, 4, v2')
    a.e('v_lshlrev_b32 v5, 4, v5')
    a.e('s_lshl_b32 s64, s7, 6')
    a.e('v_add_u32 v5, s64, v5')
    a.e('v_mov_b32 v6, %d', L_KEY + 32)
    a.e('ds_read_b32 v6, v6')
    PQ = 32
    for p in range(2):
        phi16(a, QA + 16 * p, PQ + 8 * p, T0, T1, E0, E1, MN)
    a.e('s_waitcnt lgkmcnt(0)')
    a.e('v_readfirstlane_b32 s75, v6')
    a.vm_wait('xo')
    t2_fill(a)
    a.e('s_cmp_lg_u32 s3, 0')
    a.e('s_cbranch_scc1 C_nh')
    stamp(a, 3, lvl=4)
    h_compute(a)
    stamp(a, 4, lvl=4)
    if STAMPS == 4:
        a.e('s_mov_b32 s88, s65')
        a.e('s_mov_b32 s89, 0')
    a.e('s_waitcnt lgkmcnt(0)')
    a.e('C_nh:')
    a.e('v_lshlrev_b32 v3, 4, v2')
    a.e('s_barrier')
    stamp(a, 8)
    KF, ZF = 16, 24
    NA, DA, OF = 64, 96, 128
    a.e('ds_read_b128 %s, v5 offset:%d', vr(ZF, 4), L_ZF)
    a.e('ds_read_b128 %s, v4 offset:%d', vr(KF, 4), L_KF)
    a.e('ds_read_b128 %s, v4 offset:%d', vr(KF + 4, 4), L_KF + 1024)
    a.e('s_waitcnt lgkmcnt(2)')
    for sb in range(4):
        a.e('%s %s, %s, %s, 0', M16, vr(DA + 4 * sb, 4), vr(ZF, 4), vr(PQ + 4 * sb, 4))
    a.e('s_waitcnt lgkmcnt(0)')
    for sb in range(4):
        for eb in range(2):
            a.e('%s %s, %s, %s, 0', M16, vr(NA + 8 * sb + 4 * eb, 4), vr(KF + 4 * eb, 4), vr(PQ + 4 * sb, 4))
    D = [48 + sb for sb in range(4)]
    for sb in range(4):
        a.e('v_cvt_pk_bf16_f32 v%d, v%d, v%d', D[sb], DA + 4 * sb, DA + 4 * sb)
    for d in D:
        a.e('v_lshlrev_b32 v%d, 16, v%d', d, d)
    for d in D:
        a.e('v_add_f32 v%d, s%d, v%d', d, S_EPS, d)
    for d in D:
        a.e('v_cvt_pk_bf16_f32 v%d, v%d, v%d', d, d, d)
    for d in D:
        a.e('v_lshlrev_b32 v%d, 16, v%d', d, d)
    for d in D:
        a.e('v_rcp_f32 v%d, v%d', d, d)
    a.e('s_nop 0')
    for sb in range(4):
        for j in range(4):
            r = NA + 8 * sb + 2 * j
            a.e('v_mul_f32 v%d, v%d, v%d', r, r, D[sb])
            a.e('v_mul_f32 v%d, v%d, v%d', r + 1, r + 1, D[sb])
            a.e('v_cvt_pk_bf16_f32 v%d, v%d, v%d', OF + 4 * sb + j, r, r + 1)
        a.vm_issue('o', 'buffer_store_dwordx4 %s, v3, %s, s42 offen offset:%d' + WT, vr(OF + 4 * sb, 4), WSR, (sb & 1) * 1024)
        if sb == 1:
            a.e('s_add_u32 s42, s42, 65536')
    if 'latep' not in EXP:
        f2_poll_first(a)
    a.vm_wait('o')
    a.e('s_mov_b64 exec, 3')
    a.vm_issue('f2', 'buffer_atomic_or v13, v12, %s, 0 offen', WSR)
    a.e('s_mov_b64 exec, -1')
    stamp(a, 9)


def gen_p2(a):
    a.e('P2_start:')
    a.vm = []
    a.e('s_and_b32 s6, s3, 3')
    a.e('s_lshr_b32 s7, s3, 2')
    srd(a, S_OUT, 58, 4194304)
    a.e('s_and_b32 s67, s75, 0x7ff')
    a.e('s_sub_u32 s67, 2047, s67')
    VO, VO2 = 4, 12
    a.e('s_lshl_b32 s64, s4, 2')
    a.e('s_add_u32 s64, s64, s6')
    a.e('s_lshl_b32 s64, s64, 16')
    a.e('s_lshl_b32 s65, s7, 15')
    a.e('s_add_u32 s64, s64, s65')
    a.e('s_lshl_b32 s65, s7, 10')
    a.e('s_add_u32 s66, s64, s65')
    a.e('s_sub_u32 s64, s64, s65')
    a.e('v_lshl_add_u32 v%d, v2, 4, s66', VO)
    a.e('v_lshl_add_u32 v%d, v2, 4, s64', VO2)
    M16 = 'v_mfma_f32_16x16x32_bf16'
    VWL = [5, 6, 1, 3]; VW = [8, 9, 10, 11]
    a.e('v_lshrrev_b32 v10, 4, v2')
    a.e('v_bfe_u32 v11, v2, 2, 2')
    a.e('v_lshl_add_u32 v10, v10, 2, v11')
    a.e('v_bfe_u32 v13, v10, 1, 2')
    a.e('v_lshlrev_b32 v10, 7, v10')
    a.e('v_lshl_add_u32 v10, v13, 5, v10')
    a.e('v_and_b32 v13, 3, v2')
    a.e('v_lshl_add_u32 v%d, v13, 3, v10', VWL[0])
    for nb in range(1, 4):
        a.e('v_xor_b32 v%d, %d, v%d', VWL[nb], 32 * nb, VWL[0])
    SB = 32
    VT, VF, VP = 7, 14, 15
    if 'latep' in EXP:
        f2_poll_first(a)

    def poll():
        return ['s_mov_b64 exec, 1', 'v_mov_b32 v%d, 0' % VP,
                'buffer_atomic_or v%d, v%d, %s, 0 offen sc0' % (VP, VF, WSR), 's_mov_b64 exec, -1']
    a.e('s_and_b32 s74, s5, 7')
    a.e('s_lshl_b32 s74, s74, 1')
    a.e('s_cmp_eq_u32 s7, 0')
    for j in range(8):
        a.e('s_mov_b32 s64, %d', POS[8 + j])
        a.e('s_cselect_b32 s64, %d, s64', POS[j])
        a.e('s_sub_u32 m0, %d, s74', 2 * j + 16)
        a.e('s_and_b32 m0, m0, 15')
        a.e('v_writelane_b32 v%d, s64, m0', VT)
        a.e('s_cmp_eq_u32 s7, 0')
    ACO = [16, 32]
    WOF = [48, 64]
    OB = 80
    YL = 208
    for r in range(16, 48):
        a.e('v_mov_b32 v%d, 0', r)
    if 'p2prio' in EXP:
        a.e('s_cmp_lt_u32 s3, 4')
        a.e('s_cbranch_scc1 P2_np')
        a.e('s_setprio 1')
        a.e('P2_np:')
    if STAMPS == 2:
        a.e('s_mov_b32 s71, 0')
        for l in range(48, 64):
            a.e('v_writelane_b32 v250, 0, %d', l)
    a.e('v_mov_b32 v209, 0')
    a.e('v_mov_b32 v215, 0')
    a.e('s_lshr_b32 s46, s67, 7')
    a.e('s_xor_b32 s46, s46, s4')
    a.e('s_or_b32 s46, s46, s3')
    a.e('s_mov_b32 s47, 0')
    a.e('s_cbranch_scc0 P2_ys')
    with a.cold():
        a.e('P2_ys:')
        a.e('v_lshrrev_b32 v13, 4, v2')
        a.e('v_lshlrev_b32 v13, 12, v13')
        a.e('v_and_b32 v208, 15, v2')
        a.e('v_lshl_add_u32 v13, v208, 4, v13')
        a.e('s_lshl_b32 s64, s5, 8')
        a.e('v_add_u32 v13, s64, v13')
        a.e('s_lshl_b32 s64, s67, 11')
        a.e('s_lshl_b32 s65, s5, 7')
        a.e('s_add_u32 s64, s64, s65')
        a.e('v_lshl_add_u32 v209, v208, 3, s64')
        a.e('s_lshl_b32 s64, s67, 2')
        a.e('s_add_u32 s64, s64, %d', WS_G)
        a.e('v_mov_b32 v215, s64')
        a.e('s_branch P2_ysd')
    a.e('P2_ysd:')
    a.e('s_mov_b32 s66, 0x5555')
    a.e('s_mov_b32 s65, 0')
    stamp(a, 10)

    def issue(c):
        L = ['s_ff1_i32_b32 s64, s68', 's_bitset0_b32 s68, s64', 'v_readlane_b32 s%d, v%d, s64' % (SB + c, VT),
             's_add_u32 s69, s64, s74', 's_and_b32 s69, s69, 15', 's_lshl_b32 s69, s69, 11']
        for q in range(4):
            L.append('buffer_load_dwordx4 %s, v%d, %s, s69 offen offset:%d sc1' % (vr(OB + 16 * c + 4 * q, 4), VO2 if q & 1 else VO, WSR, q * 1024))
        return L

    def wo_reads(c, u):
        L = []
        for nb in range(4):
            if u == 0:
                L.append('v_add_u32 v%d, s%d, v%d' % (VW[nb], SB + c, VWL[nb]))
            for tt in range(2):
                L.append('ds_read_b64_tr_b16 %s, v%d offset:%d' % (vr(WOF[u] + 4 * nb + 2 * tt, 2), VW[nb], u * 4096 + tt * 2048))
        return L

    def Mm(c, u):
        L = []
        for nb in range(4):
            for sub in range(2):
                d = vr(16 + (sub * 4 + nb) * 4, 4)
                L.append('%s %s, %s, %s, %s' % (M16, d, vr(WOF[u] + 4 * nb, 4), vr(OB + 16 * c + 8 * u + 4 * sub, 4), d))
        return L

    if 'latep' not in EXP:
        a.e('s_cmp_lt_u32 s3, 4')
        a.e('s_cbranch_scc0 D_wait')
        a.e('s_waitcnt vmcnt(1)')
        a.e('s_branch D_got')
    a.e('D_wait:')
    a.e('s_waitcnt vmcnt(0)')
    a.e('D_got:')
    a.e('v_readfirstlane_b32 s68, v%d', VP)
    a.e('s_mul_i32 s68, s68, 0x10001')
    a.e('s_lshr_b32 s68, s68, s74')
    a.e('s_lshr_b32 s64, s68, 1')
    a.e('s_and_b32 s68, s68, s64')
    a.e('s_and_b32 s68, s68, s66')
    a.e('s_cbranch_scc1 D_go')
    a.e('s_add_u32 s65, s65, 1')
    a.e('s_cmp_ge_u32 s65, 40000')
    a.e('s_cbranch_scc1 D_end')
    if E('PSL', 1):
        a.e('s_sleep %d', E('PSL', 1))
    for p in poll():
        a.e(p)
    a.e('s_branch D_wait')
    a.e('D_go:')
    a.e('s_andn2_b32 s66, s66, s68')
    if STAMPS == 2:
        a.e('s_memrealtime s[86:87]')
        a.e('s_min_u32 s64, s71, 7')
        a.e('s_lshl_b32 s64, s64, 1')
        a.e('s_add_u32 m0, s64, 48')
        a.e('s_waitcnt lgkmcnt(0)')
        a.e('v_writelane_b32 v250, s86, m0')
        a.e('s_add_u32 m0, m0, 1')
        a.e('s_nop 0')
        a.e('v_writelane_b32 v250, s66, m0')
        a.e('s_add_u32 s71, s71, 1')
    a.e('s_bcnt1_i32_b32 s70, s68')
    a.e('s_or_b32 s64, s46, s66')
    a.e('s_cbranch_scc0 P2_yl')
    YB = OB + 64

    def y_loads():
        a.e('buffer_load_dwordx2 v[210:211], v209, %s, 0 offen', sr(S_X, 4))
        a.e('buffer_load_dword v212, v215, %s, 0 offen sc1', WSR)
        for q in range(16):
            a.e('s_mov_b32 s69, %d', WS_YP + q * 16384)
            a.e('buffer_load_dwordx4 %s, v13, %s, s69 offen sc1' % (vr(YB + 4 * q, 4), WSR))
    with a.cold():
        a.e('P2_yl:')
        a.e('s_cmp_gt_u32 s70, 4')
        a.e('s_cbranch_scc1 P2_nyl')
        y_loads()
        a.e('s_mov_b32 s47, 1')
        a.e('s_branch P2_nyl')
    a.e('P2_nyl:')
    a.e('s_cmp_gt_u32 s70, 4')
    a.e('s_cbranch_scc1 D_t58')
    a.e('s_cmp_gt_u32 s70, 2')
    a.e('s_cbranch_scc1 D_t34')
    a.e('s_cmp_eq_u32 s70, 2')
    a.e('s_cbranch_scc1 D_e2')

    LA = E('LA', 2)

    def entry(n, last=False):
        a.e('D_e%d:', n)
        L = []
        for k in range(min(LA, n)):
            L += issue(n - 1 - k)
        if n <= LA:
            L += poll()
        for x in L + wo_reads(n - 1, 0):
            a.e(x)
        if not last:
            a.e('s_branch D_p%d', n - 1)
    entry(1); entry(2)
    a.e('D_t34:')
    a.e('s_cmp_eq_u32 s70, 4')
    a.e('s_cbranch_scc1 D_e4')
    entry(3); entry(4)
    a.e('D_t58:')
    a.e('s_cmp_gt_u32 s70, 6')
    a.e('s_cbranch_scc1 D_t78')
    a.e('s_cmp_eq_u32 s70, 6')
    a.e('s_cbranch_scc1 D_e6')
    entry(5); entry(6)
    a.e('D_t78:')
    a.e('s_cmp_eq_u32 s70, 8')
    a.e('s_cbranch_scc1 D_e8')
    entry(7); entry(8, True)
    for c in range(7, -1, -1):
        a.e('D_p%d:', c)
        if 'prc' in EXP:
            a.e('s_setprio %d', min(3, c // 2))
        if 'pra' in EXP:
            a.e('s_setprio %d', c & 1)
        G = issue(c - LA) if c >= LA else []
        Gs = [G[:7], G[7:8], G[8:9], G[9:10] + (poll() if c == LA else [])] if G else [[], [], [], []]
        for u in range(2):
            if u == 0:
                a.e('s_waitcnt vmcnt(%d) lgkmcnt(0)', 4 * (LA - 1) if c >= LA else 4 * c + 1)
            else:
                a.e('s_waitcnt lgkmcnt(0)')
            F = wo_reads(c, 1) if u == 0 else (wo_reads(c - 1, 0) if c >= 1 else [])
            M = Mm(c, u)
            per = -(-len(F) // 6) if F else 0
            for k in range(8):
                a.e(M[k])
                for f in F[k * per:(k + 1) * per]:
                    a.e(f)
                if k in (3, 6):
                    for x in Gs[2 * u + k // 6]:
                        a.e(x)
    a.e('s_cmp_lg_u32 s66, 0')
    a.e('s_cbranch_scc1 D_wait')
    a.e('D_end:')
    stamp(a, 11)
    a.e('s_lshl_b32 s64, s3, 12')
    a.e('s_add_u32 s64, s64, %d', RB)
    a.e('v_lshl_add_u32 v8, v2, 4, s64')
    a.e('s_xor_b32 s65, s3, 4')
    a.e('s_lshl_b32 s65, s65, 12')
    a.e('s_add_u32 s65, s65, %d', RB)
    a.e('v_lshl_add_u32 v5, v2, 4, s65')
    a.e('v_lshlrev_b32 v9, 1, v%d', VCO)
    a.e('v_cmp_eq_u32 s[70:71], s67, v%d', VRO)
    a.e('s_cmp_eq_u32 s46, 0')
    a.e('s_cbranch_scc1 P2_y')
    with a.cold():
        a.e('P2_y:')
        a.e('s_mov_b32 s66, 0')
        a.e('s_cmp_lg_u32 s47, 0')
        a.e('s_cbranch_scc1 P2_ychk')
        a.e('P2_yre:')
        y_loads()
        a.e('P2_ychk:')
        a.e('s_and_b32 s64, s75, 0xffff0000')
        a.e('s_xor_b32 s65, s64, 0x80000000')
        a.e('s_not_b32 s69, s64')
        a.e('s_and_b32 s69, s69, 0xffff0000')
        a.e('s_cmp_ge_u32 s64, 0x80000000')
        a.e('s_cselect_b32 s64, s65, s69')
        a.e('v_mov_b32 v213, s64')
        sigmoid_bf16(a, [213])
        a.e('s_waitcnt vmcnt(0)')
        a.e('v_sub_f32 v214, 1.0, v212')
        a.e('v_cvt_pk_bf16_f32 v214, v214, v214')
        a.e('v_lshlrev_b32 v214, 16, v214')
        a.e('v_max3_u32 v10, v%d, v%d, v%d', YB, YB + 1, YB + 2)
        for r in range(3, 63, 2):
            a.e('v_max3_u32 v10, v%d, v%d, v10', YB + r, YB + r + 1)
        a.e('v_max_u32 v10, v%d, v10', YB + 63)
        a.e('v_cmp_eq_u32 vcc, -1, v10')
        a.e('s_cbranch_vccz P2_yok')
        a.e('s_add_u32 s66, s66, 1')
        a.e('s_cmp_ge_u32 s66, 40000')
        a.e('s_cbranch_scc1 P2_yok')
        a.e('s_sleep 4')
        a.e('s_branch P2_yre')
        a.e('P2_yok:')
        for d in (32, 16, 8, 4):
            for r in range(0, d, 2):
                a.e('v_pk_add_f32 %s, %s, %s', vr(YB + r, 2), vr(YB + r, 2), vr(YB + d + r, 2))
        Y = YB
        for swp in ('v_permlane16_swap_b32', 'v_permlane32_swap_b32'):
            for q in range(4):
                a.e('v_mov_b32 v%d, v%d', Y + 4 + q, Y + q)
            a.e('s_nop 0')
            for q in range(4):
                a.e('%s v%d, v%d', swp, Y + q, Y + 4 + q)
            for q in range(4):
                a.e('v_add_f32 v%d, v%d, v%d', Y + q, Y + q, Y + 4 + q)
        for q in range(2):
            y0, y1, x0, x1, t = Y + 2 * q, Y + 2 * q + 1, Y + 4 + 2 * q, Y + 5 + 2 * q, Y + 8
            a.e('v_cvt_pk_bf16_f32 v%d, v%d, v%d', t, y0, y1)
            a.e('v_lshlrev_b32 v%d, 16, v%d', y0, t)
            a.e('v_and_b32 v%d, 0xffff0000, v%d', y1, t)
            a.e('v_mul_f32 v%d, v%d, v213', y0, y0)
            a.e('v_mul_f32 v%d, v%d, v213', y1, y1)
            a.e('v_cvt_pk_bf16_f32 v%d, v%d, v%d', t, y0, y1)
            a.e('v_lshlrev_b32 v%d, 16, v%d', y0, t)
            a.e('v_and_b32 v%d, 0xffff0000, v%d', y1, t)
            a.e('v_lshlrev_b32 v%d, 16, v%d', x0, 210 + q)
            a.e('v_and_b32 v%d, 0xffff0000, v%d', x1, 210 + q)
            a.e('v_add_f32 v%d, v%d, v%d', y0, x0, y0)
            a.e('v_add_f32 v%d, v%d, v%d', y1, x1, y1)
            a.e('v_cvt_pk_bf16_f32 v%d, v%d, v%d', t, y0, y1)
            a.e('v_lshlrev_b32 v%d, 16, v%d', y0, t)
            a.e('v_and_b32 v%d, 0xffff0000, v%d', y1, t)
            a.e('v_mul_f32 v%d, v%d, v214', y0, y0)
            a.e('v_mul_f32 v%d, v%d, v214', y1, y1)
            a.e('v_cvt_pk_bf16_f32 v%d, v%d, v%d', t, y0, y1)
            a.e('v_lshlrev_b32 v%d, 16, v%d', y0, t)
            a.e('v_and_b32 v%d, 0xffff0000, v%d', y1, t)
        a.e('v_lshlrev_b32 v208, 4, v208')
        a.e('ds_write_b128 v208, %s offset:%d', vr(Y, 4), L_YS)
        a.e('s_waitcnt lgkmcnt(0)')
        a.e('s_branch P2_ny')
    a.e('P2_ny:')
    a.e('s_barrier')
    stamp(a, 3, lvl=3)
    for nb in range(4):
        a.e('ds_write_b128 v8, %s offset:%d', vr(32 + 4 * nb, 4), nb * 1024)
    a.e('s_cmp_lg_u64 s[70:71], 0')
    a.e('s_cbranch_scc1 P2_fix')
    a.e('P2_nr:')
    with a.cold():
        a.e('P2_fix:')
        a.e('s_mov_b64 exec, s[70:71]')
        for q in range(4):
            a.e('ds_read_b128 %s, v9 offset:%d', vr(T2 + 4 * q, 4), L_YS + (q >> 1) * 128 + (q & 1) * 16)
        a.e('s_mov_b64 exec, -1')
        a.e('s_branch P2_nr')
    a.e('s_waitcnt lgkmcnt(0)')
    stamp(a, 4, lvl=3)
    a.e('s_barrier')
    stamp(a, 6, lvl=3)
    AB = 64
    for nb in range(4):
        a.e('ds_read_b128 %s, v5 offset:%d', vr(AB + 4 * nb, 4), nb * 1024)
    Gr = XO + 8
    PKOP = 'nopk' not in EXP
    for half in range(2):
        A = 16 + 8 * half
        T = T2 + 8 * half
        a.e('s_waitcnt lgkmcnt(%d)', 2 if half == 0 else 0)
        for q in range(4):
            a0_ = A + 2 * q
            if PKOP:
                a.e('v_pk_add_f32 %s, %s, %s', vr(a0_, 2), vr(a0_, 2), vr(AB + 8 * half + 2 * q, 2))
            else:
                for k in range(2):
                    a.e('v_add_f32 v%d, v%d, v%d', a0_ + k, a0_ + k, AB + 8 * half + 2 * q + k)
        P = 48 + 4 * half
        for q in range(4):
            a.e('v_cvt_pk_bf16_f32 v%d, v%d, v%d', P + q, A + 2 * q, A + 2 * q + 1)
        a.e('s_nop 0')
        a.e('v_permlane16_swap_b32 v%d, v%d', P, P + 2)
        a.e('v_permlane16_swap_b32 v%d, v%d', P + 1, P + 3)
        O = 120 + 4 * half
        for q in range(4):
            a.e('v_lshlrev_b32 v%d, 16, v%d', A + 2 * q, P + q)
            a.e('v_and_b32 v%d, 0xffff0000, v%d', A + 2 * q + 1, P + q)
        for q in range(4):
            a0_ = A + 2 * q
            if PKOP:
                a.e('v_pk_mul_f32 %s, %s, %s op_sel_hi:[1,0]', vr(a0_, 2), vr(a0_, 2), vr(Gr, 2))
            else:
                for k in range(2):
                    a.e('v_mul_f32 v%d, v%d, v%d', a0_ + k, a0_ + k, Gr)
        for q in range(4):
            a.e('v_cvt_pk_bf16_f32 v%d, v%d, v%d', P + q, A + 2 * q, A + 2 * q + 1)
        for q in range(4):
            a.e('v_lshlrev_b32 v%d, 16, v%d', A + 2 * q, P + q)
            a.e('v_and_b32 v%d, 0xffff0000, v%d', A + 2 * q + 1, P + q)
        for q in range(4):
            a0_ = A + 2 * q
            if PKOP:
                a.e('v_pk_add_f32 %s, %s, %s', vr(a0_, 2), vr(a0_, 2), vr(T + 2 * q, 2))
            else:
                for k in range(2):
                    a.e('v_add_f32 v%d, v%d, v%d', a0_ + k, a0_ + k, T + 2 * q + k)
        for q in range(4):
            a.e('v_cvt_pk_bf16_f32 v%d, v%d, v%d', O + q, A + 2 * q, A + 2 * q + 1)
        if 'seg64' in EXP:
            a.e('buffer_store_dwordx4 %s, v%d, %s, 0 offen offset:%d ' + os.environ.get('OUTF', 'nt'), vr(O, 4), VXO, sr(S_OUT, 4), 64 * half)
        elif half == 0:
            a.e('v_and_b32 v6, 1, v2')
            a.e('v_mul_u32_u24 v6, %d, v6', 2048 - 64)
            a.e('v_sub_u32 v%d, v%d, v6', VXO, VXO)
            a.e('s_mov_b32 vcc_lo, 0x55555555')
            a.e('s_mov_b32 vcc_hi, 0x55555555')
    if 'seg64' not in EXP:
        a.e('s_nop 1')
        for q in range(4):
            a.e('v_cndmask_b32_dpp v%d, v%d, v%d, vcc quad_perm:[1,0,3,2] row_mask:0xf bank_mask:0xf', 56 + q, 124 + q, 120 + q)
        a.e('buffer_store_dwordx4 v[56:59], v%d, %s, 0 offen ' + os.environ.get('OUTF', 'nt'), VXO, sr(S_OUT, 4))
        a.e('s_not_b64 vcc, vcc')
        for q in range(4):
            a.e('v_cndmask_b32_dpp v%d, v%d, v%d, vcc quad_perm:[1,0,3,2] row_mask:0xf bank_mask:0xf', 60 + q, 120 + q, 124 + q)
        a.e('buffer_store_dwordx4 v[60:63], v%d, %s, 0 offen offset:2048 ' + os.environ.get('OUTF', 'nt'), VXO, sr(S_OUT, 4))
    stamp(a, 7, lvl=3)
    if STAMPS:
        a.e('s_waitcnt vmcnt(0)')
    stamp(a, 12, True); stamp(a, 2, False)
    stamp_flush(a)
    a.e('K_end:')
    a.e('s_endpgm')
    a.flush_cold()


def main():
    hdr = open(os.path.join(os.path.dirname(os.path.abspath(__file__)), '..', NAME + '.s.ref')).read().split('; Override launch')[0]
    a = Asm()
    a.e('.amdgcn_target "amdgcn-amd-amdhsa--gfx950"')
    a.e('.text')
    gen(a)
    a.e('CODE_END:')
    out = hdr + '; @launch grid=(256,1,1) block=(512,1,1) lds=%d\n' % LDS_BYTES + a.text() + '.section .rodata,"a"\n' + kd(NAME + '_kernel', 256)
    path = sys.argv[1] if len(sys.argv) > 1 else os.path.join(os.path.dirname(os.path.abspath(__file__)), '..', NAME + '.s')
    open(path, 'w').write(out)


if __name__ == '__main__':
    main()
```

```python
import sys, os
sys.path.insert(0, os.path.dirname(os.path.abspath(__file__)))
from asmlib import *

NAME = 'gated_mix__linear_attn_block__moe_arch_mod__prompt'
E = lambda k, d: int(os.environ.get(k, str(d)))
EXP = os.environ.get('EXP', '').split(',')

SK = 1 if 'sk' in EXP else 0
PS = 10 + SK
WS_O = 0
WS_KVP = 4096 << PS
KVB = 2048 if SK else 1152
KVZ = 1152 if SK else 1024
FS = 7 + SK
WS_F1 = WS_KVP + 16 * 4 * 16 * KVB
WS_F2 = WS_F1 + (64 << FS)
WS_HP = WS_F2 + (128 << FS)
WS_YP = WS_HP + 64 * 2 * 32 * 256
WS_G = WS_YP + 64 * 4096
WS_KEY = WS_G + 8192
WS_END = WS_KEY + 4096
WS_BYTES = 268435456
WS_ST = 16 << 20

STAMPS = E('STAMPS', 0)
NFIX = E('NFIX', 0)
WT = ' sc1' if 'wt1' in EXP else ' sc0 sc1'
DF = os.environ.get('DF', '')
NTA = ' nt' if 'ntA' in EXP else DF
NTB = ' nt' if 'ntB' in EXP else DF
NTO = ' nt' if 'ntO' in EXP else DF
NTW = os.environ.get('WF', ' nt')
LOG2E = 0x3fb8aa3b
EPS6 = 0x358637bd

SLOT = 40960
MISC = 0
RB = 8192
SP = RB + 3 * SLOT
L_KF = MISC
L_ZF = MISC + 4096
L_KEY = MISC + 4224
L_FLG = MISC + 4288
L_H = MISC + 4352
L_ZX = MISC + 4608
L_YS = MISC + 5632
L_EX = RB + 24576
LDS_BYTES = 163840
EARLY = [SP, SP + 8192, RB + SLOT + 24576, RB + 2 * SLOT + 24576, SP + 16384, SP + 24576, RB + SLOT + 32768, RB + 2 * SLOT + 32768]
LATE = [RB + x for x in (32768, 0, 8192, 2 * SLOT + 8192, SLOT, SLOT + 8192, SLOT + 16384, 2 * SLOT)]
POS = EARLY[0:4] + LATE[0:4] + EARLY[4:8] + LATE[4:8]
TP = 272
TK = 128 * TP

S_X, S_W, S_WS, S_DBG, S_WR, S_GW, S_WG, S_WU = 8, 12, 16, 20, 24, 28, 32, 36
S_WO, S_OUT, S_WD = 28, 20, 24
WSR = sr(S_WS, 4)
S_LOG2E, S_EPS = 72, 73


def lane_off(a, v, t):
    a.e('v_lshlrev_b32 v%d, 4, v2', v)
    if SK:
        a.e('v_add_u32 v%d, 40, v2', t)
        a.e('v_and_b32 v%d, 64, v%d', t, t)
        a.e('v_lshl_add_u32 v%d, v%d, 1, v%d', v, t, v)


def stamp(a, idx, real=True, lvl=0):
    if STAMPS in (3, 4) and idx in (3, 4, 6, 7, 9, 10) and lvl != STAMPS:
        return
    if lvl and STAMPS != lvl:
        return
    if STAMPS:
        a.e('%s s[%d:%d]', 's_memrealtime' if real else 's_memtime', 76 + 2 * idx, 77 + 2 * idx)


def stamp_flush(a):
    if not STAMPS:
        return
    a.e('s_waitcnt lgkmcnt(0)')
    a.e('s_lshl_b32 s64, s2, 3')
    a.e('s_add_u32 s64, s64, s3')
    a.e('s_lshl_b32 s64, s64, 7')
    a.e('s_add_u32 s64, s64, %d', WS_ST)
    a.e('v_mov_b32 v1, s64')
    a.e('s_mov_b64 exec, 1')
    for i in range(13):
        a.e('v_mov_b32 v2, s%d', 76 + 2 * i)
        a.e('v_mov_b32 v3, s%d', 77 + 2 * i)
        a.e('buffer_store_dwordx2 v[2:3], v1, %s, 0 offen offset:%d', WSR, 8 * i)
        a.e('s_nop 1')
    a.e('s_mov_b64 exec, -1')
    if STAMPS == 2:
        a.e('s_lshl_b32 s64, s2, 3')
        a.e('s_add_u32 s64, s64, s3')
        a.e('s_lshl_b32 s64, s64, 8')
        a.e('s_add_u32 s64, s64, %d', WS_ST + (1 << 20))
        a.e('v_and_b32 v1, 63, v0')
        a.e('v_lshlrev_b32 v1, 2, v1')
        a.e('v_add_u32 v1, s64, v1')
        a.e('buffer_store_dword v250, v1, %s, 0 offen', WSR)


def phi16_fast(a, acc, out, e0, mn, sp):
    for j in range(8):
        a0, a1, p = acc + 2 * j, acc + 2 * j + 1, out + j
        e = e0 + 2 * (j & 1)
        a.e('v_pk_mul_f32 v[%d:%d], v[%d:%d], s[%d:%d]', e, e + 1, a0, a1, sp, sp + 1)
        a.e('v_pk_add_f32 v[%d:%d], v[%d:%d], s[%d:%d]', a0, a1, a0, a1, sp + 2, sp + 3)
        a.e('v_exp_f32 v%d, v%d clamp', e, e)
        a.e('v_exp_f32 v%d, v%d clamp', e + 1, e + 1)
        if j:
            phi_tail(a, acc, out, e0, mn, j - 1)
    phi_tail(a, acc, out, e0, mn, 7)
    phi_fix(a, out, e0, e0 + 1, mn)


def phi_tail(a, acc, out, e0, mn, j):
    a0, a1, p = acc + 2 * j, acc + 2 * j + 1, out + j
    e = e0 + 2 * (j & 1)
    a.e('v_max_f32 v%d, v%d, v%d', a0, a0, e)
    a.e('v_max_f32 v%d, v%d, v%d', a1, a1, e + 1)
    if j == 0:
        a.e('v_min_f32 v%d, v%d, v%d', mn, a0, a1)
    else:
        a.e('v_min3_f32 v%d, v%d, v%d, v%d', mn, a0, a1, mn)
    a.e('v_cvt_pk_bf16_f32 v%d, v%d, v%d', p, a0, a1)


def phi16_pk(a, acc, out, mn, sp):
    def head(j):
        t, e, p = 48 + 4 * (j & 1), 50 + 4 * (j & 1), out + j
        a.e('v_cvt_pk_bf16_f32 v%d, v%d, v%d', p, acc + 2 * j, acc + 2 * j + 1)
        a.e('v_lshlrev_b32 v%d, 16, v%d', t, p)
        a.e('v_and_b32 v%d, 0xffff0000, v%d', t + 1, p)
        a.e('v_pk_mul_f32 v[%d:%d], v[%d:%d], s[%d:%d]', e, e + 1, t, t + 1, sp, sp + 1)
        a.e('v_pk_add_f32 v[%d:%d], v[%d:%d], s[%d:%d]', t, t + 1, t, t + 1, sp + 2, sp + 3)
        a.e('v_exp_f32 v%d, v%d clamp', e, e)
        a.e('v_exp_f32 v%d, v%d clamp', e + 1, e + 1)

    def tail(j):
        t, e, p = 48 + 4 * (j & 1), 50 + 4 * (j & 1), out + j
        a.e('v_max_f32 v%d, v%d, v%d', t, t, e)
        a.e('v_max_f32 v%d, v%d, v%d', t + 1, t + 1, e + 1)
        if j == 0:
            a.e('v_min_f32 v%d, v%d, v%d', mn, t, t + 1)
        else:
            a.e('v_min3_f32 v%d, v%d, v%d, v%d', mn, t, t + 1, mn)
        a.e('v_cvt_pk_bf16_f32 v%d, v%d, v%d', p, t, t + 1)
    for j in range(8):
        head(j)
        if j:
            tail(j - 1)
    a.e('s_nop 0')
    tail(7)
    phi_fix(a, out, 48, 49, mn)


def phi16(a, acc, out, t0, t1, e0, e1, mn):
    for j in range(8):
        a0, a1, p = acc + 2 * j, acc + 2 * j + 1, out + j
        a.e('v_cvt_pk_bf16_f32 v%d, v%d, v%d', p, a0, a1)
        a.e('v_lshlrev_b32 v%d, 16, v%d', t0, p)
        a.e('v_and_b32 v%d, 0xffff0000, v%d', t1, p)
        a.e('v_mul_f32 v%d, s%d, v%d', e0, S_LOG2E, t0)
        a.e('v_mul_f32 v%d, s%d, v%d', e1, S_LOG2E, t1)
        a.e('v_exp_f32 v%d, v%d clamp', e0, e0)
        a.e('v_exp_f32 v%d, v%d clamp', e1, e1)
        a.e('v_max_f32 v%d, 0, v%d', t0, t0)
        a.e('v_max_f32 v%d, 0, v%d', t1, t1)
        a.e('v_add_f32 v%d, v%d, v%d', t0, t0, e0)
        a.e('v_add_f32 v%d, v%d, v%d', t1, t1, e1)
        if j == 0:
            a.e('v_min_f32 v%d, v%d, v%d', mn, t0, t1)
        else:
            a.e('v_min3_f32 v%d, v%d, v%d, v%d', mn, t0, t1, mn)
        a.e('v_cvt_pk_bf16_f32 v%d, v%d, v%d', p, t0, t1)
    phi_fix(a, out, t0, t1, mn)


def phi_fix(a, out, t0, t1, mn):
    lab = a.label('phi')
    a.e('v_cmp_gt_f32 vcc, 0x3a800000, v%d', mn)
    a.e('s_cbranch_vccnz %s_fix', lab)
    a.e('%s_done:', lab)
    with a.cold():
        a.e('%s_fix:', lab)
        for j in range(8):
            p = out + j
            a.e('v_lshlrev_b32 v%d, 16, v%d', t0, p)
            a.e('v_and_b32 v%d, 0xffff0000, v%d', t1, p)
            a.e('v_add_f32 v%d, s%d, v%d', t0, S_EPS, t0)
            a.e('v_add_f32 v%d, s%d, v%d', t1, S_EPS, t1)
            a.e('v_cvt_pk_bf16_f32 v%d, v%d, v%d', p, t0, t1)
        a.e('s_branch %s_done', lab)


def wave_reduce(a, regs, op, stmp):
    pats = ['quad_perm:[1,0,3,2]', 'quad_perm:[2,3,0,1]', 'row_half_mirror', 'row_mirror']
    a.e('s_nop 1')
    for p in pats:
        if len(regs) < 3:
            a.e('s_nop 1')
        for r in regs:
            a.e('%s_dpp v%d, v%d, v%d %s row_mask:0xf bank_mask:0xf', op, r, r, r, p)
    a.e('s_nop 1')
    for r in regs:
        for q in range(4):
            a.e('v_readlane_b32 s%d, v%d, %d', stmp + q, r, 16 * q)
        a.e('s_nop 1')
        a.e('v_mov_b32 v%d, s%d', r, stmp)
        for q in range(1, 4):
            a.e('%s v%d, s%d, v%d', op, r, stmp + q, r)


def sigmoid_bf16(a, regs):
    for r in regs:
        a.e('v_mul_f32 v%d, s%d, v%d', r, S_LOG2E, r)
    for r in regs:
        a.e('v_exp_f32 v%d, -v%d', r, r)
    a.e('s_nop 0')
    for r in regs:
        a.e('v_add_f32 v%d, 1.0, v%d', r, r)
    for r in regs:
        a.e('v_rcp_f32 v%d, v%d', r, r)
    a.e('s_nop 0')
    for r in regs:
        a.e('v_cvt_pk_bf16_f32 v%d, v%d, v%d', r, r, r)
    for r in regs:
        a.e('v_lshlrev_b32 v%d, 16, v%d', r, r)


def p2_ids(a):
    if os.environ.get('P2MAP', 'a') == 'c':
        a.e('s_and_b32 s4, s2, 1')
        a.e('s_lshl_b32 s4, s4, 3')
        a.e('s_bfe_u32 s64, s2, 0x30003')
        a.e('s_add_u32 s4, s4, s64')
        a.e('s_bfe_u32 s5, s2, 0x20001')
        a.e('s_lshl_b32 s5, s5, 2')
        a.e('s_lshr_b32 s64, s2, 6')
        a.e('s_add_u32 s5, s5, s64')
        return
    if os.environ.get('P2MAP', 'a') == 'b':
        a.e('s_and_b32 s4, s2, 7')
        a.e('s_lshl_b32 s4, s4, 1')
        a.e('s_bfe_u32 s64, s2, 0x10003')
        a.e('s_add_u32 s4, s4, s64')
        a.e('s_lshr_b32 s5, s2, 4')
        return
    a.e('s_and_b32 s64, s2, 7')
    a.e('s_lshr_b32 s65, s2, 3')
    a.e('s_and_b32 s4, s64, 3')
    a.e('s_lshl_b32 s4, s4, 2')
    a.e('s_and_b32 s66, s65, 3')
    a.e('s_add_u32 s4, s4, s66')
    a.e('s_lshr_b32 s5, s64, 2')
    a.e('s_lshl_b32 s5, s5, 3')
    a.e('s_lshr_b32 s66, s65, 2')
    a.e('s_add_u32 s5, s5, s66')


def wo_voff(a, vdst, t0, t1, s_piece):
    a.e('v_lshrrev_b32 v%d, 3, v2', t0)
    a.e('s_lshl_b32 s64, s%d, 3', s_piece)
    a.e('v_add_u32 v%d, s64, v%d', t0, t0)
    a.e('v_lshlrev_b32 v%d, 11, v%d', t0, t0)
    a.e('v_lshrrev_b32 v%d, 4, v2', t1)
    a.e('v_lshlrev_b32 v%d, 1, v%d', t1, t1)
    a.e('v_and_b32 v%d, 7, v2', vdst)
    a.e('v_xor_b32 v%d, v%d, v%d', t1, t1, vdst)
    a.e('v_lshl_add_u32 v%d, v%d, 4, v%d', t0, t1, t0)
    a.e('s_lshl_b32 s64, s5, 7')
    a.e('v_add_u32 v%d, s64, v%d', vdst, t0)


def wo_dma(a, pos, voff, s_w1k, tag):
    a.e('s_mov_b32 s65, %d', pos << 17)
    for b in range(2):
        a.e('s_add_u32 m0, s%d, %d', s_w1k, POS[pos] + b * 4096)
        if b:
            a.e('s_add_u32 s65, s65, 65536')
        else:
            a.e('s_nop 0')
        a.vm_issue(tag, 'buffer_load_dwordx4 v%d, %s, s65 offen' + NTO + ' lds', voff, sr(S_WO, 4))


XO = 220
T2 = 232
VRO, VXO = 230, 231


def xo_loads(a):
    a.e('s_and_b32 s64, s3, 3')
    a.e('s_lshl_b32 s64, s64, 1')
    a.e('s_lshr_b32 s65, s3, 2')
    a.e('s_add_u32 s64, s64, s65')
    a.e('s_lshl_b32 s64, s64, 4')
    a.e('s_lshl_b32 s65, s4, 7')
    a.e('s_add_u32 s64, s64, s65')
    a.e('v_and_b32 v%d, 15, v2', VRO)
    a.e('v_add_u32 v%d, s64, v%d', VRO, VRO)
    a.e('v_bfe_u32 v3, v2, 4, 1')
    a.e('v_lshlrev_b32 v%d, 5, v3', VCO)
    a.e('v_lshrrev_b32 v3, 5, v2')
    a.e('v_lshl_add_u32 v%d, v3, 4, v%d', VCO, VCO)
    a.e('v_lshl_add_u32 v%d, v%d, 11, v%d', VXO, VRO, VCO)
    a.e('s_lshl_b32 s64, s5, 7')
    a.e('v_add_u32 v%d, s64, v%d', VXO, VXO)
    a.e('v_lshlrev_b32 v3, 2, v%d', VRO)
    a.e('v_add_u32 v3, %d, v3', WS_G)
    a.vm_issue('xo', 'buffer_load_dwordx4 %s, v%d, %s, 0 offen', vr(XO, 4), VXO, sr(S_X, 4))
    a.vm_issue('xo', 'buffer_load_dwordx4 %s, v%d, %s, 0 offen offset:64', vr(XO + 4, 4), VXO, sr(S_X, 4))
    a.vm_issue('xo', 'buffer_load_dword v%d, v3, %s, 0 offen sc1', XO + 8, WSR)


OM = 248
VCO = 229


def t2_fill(a):
    a.e('v_sub_f32 v%d, 1.0, v%d', OM, XO + 8)
    a.e('v_cvt_pk_bf16_f32 v%d, v%d, v%d', OM, OM, OM)
    a.e('v_lshlrev_b32 v%d, 16, v%d', OM, OM)
    for q in range(8):
        x0, x1 = T2 + 2 * q, T2 + 2 * q + 1
        a.e('v_lshlrev_b32 v%d, 16, v%d', x0, XO + q)
        a.e('v_and_b32 v%d, 0xffff0000, v%d', x1, XO + q)
        a.e('v_mul_f32 v%d, v%d, v%d', x0, x0, OM)
        a.e('v_mul_f32 v%d, v%d, v%d', x1, x1, OM)
        a.e('v_cvt_pk_bf16_f32 v3, v%d, v%d', x0, x1)
        a.e('v_lshlrev_b32 v%d, 16, v3', x0)
        a.e('v_and_b32 v%d, 0xffff0000, v3', x1)


MASK14 = 's_mov_b32 exec_lo, 0x3fff3fff\ns_mov_b32 exec_hi, 0x3fff3fff'


def hp_loads(a):
    HB = 156
    a.e('s_lshr_b32 s64, s2, 2')
    a.e('s_lshl_b32 s64, s64, 14')
    a.e('s_add_u32 s64, s64, %d', WS_HP)
    a.e('v_lshl_add_u32 v152, v2, 4, s64')
    for q in range(16):
        a.e('s_mov_b32 s64, %d', (q >> 2) * 4096)
        a.e('buffer_load_dwordx4 %s, v152, %s, s64 offen offset:%d sc1', vr(HB + 4 * q, 4), WSR, (q & 3) * 1024)


def h_compute(a):
    HB = 156
    a.e('s_mov_b32 s65, 0')
    a.e('v_lshrrev_b32 v155, 4, v2')
    a.e('H_hl:')
    a.e('v_max3_u32 v153, v%d, v%d, v%d', HB, HB + 1, HB + 2)
    for r in range(3, 63, 2):
        a.e('v_max3_u32 v153, v%d, v%d, v153', HB + r, HB + r + 1)
    a.e('v_max_u32 v153, v%d, v153', HB + 63)
    a.e(MASK14)
    a.e('v_cmp_eq_u32 vcc, -1, v153')
    a.e('s_mov_b64 exec, -1')
    a.e('s_cbranch_vccz H_hok')
    a.e('s_add_u32 s65, s65, 1')
    a.e('s_cmp_ge_u32 s65, 100000')
    a.e('s_cbranch_scc1 H_hok')
    a.e('s_sleep 8')
    hp_loads(a)
    a.e('s_waitcnt vmcnt(0)')
    a.e('s_branch H_hl')
    a.e('H_hok:')
    for m in range(2):
        for i in range(1, 8):
            for q in range(4):
                a.e('v_add_f32 v%d, v%d, v%d', HB + 32 * m + q, HB + 32 * m + q, HB + 32 * m + 4 * i + q)
    a.e('s_nop 1')
    for q in range(4):
        a.e('v_permlane16_swap_b32 v%d, v%d', HB + q, HB + 32 + q)
    for q in range(4):
        a.e('v_add_f32 v%d, v%d, v%d', HB + q, HB + q, HB + 32 + q)
    a.e('s_nop 1')
    for q in range(2):
        a.e('v_permlane32_swap_b32 v%d, v%d', HB + q, HB + 2 + q)
    for q in range(2):
        a.e('v_add_f32 v%d, v%d, v%d', HB + q, HB + q, HB + 2 + q)
    a.e('s_nop 1')
    a.e('v_permlane16_swap_b32 v%d, v%d', HB, HB + 1)
    G_, U_, T_ = HB, HB + 1, HB + 2
    a.e('v_cvt_pk_bf16_f32 v%d, v%d, v%d', T_, G_, U_)
    a.e('v_lshlrev_b32 v%d, 16, v%d', G_, T_)
    a.e('v_and_b32 v%d, 0xffff0000, v%d', U_, T_)
    a.e('v_mul_f32 v%d, s%d, v%d', T_, S_LOG2E, G_)
    a.e('v_exp_f32 v%d, -v%d', T_, T_)
    a.e('v_and_b32 v154, 15, v2')
    a.e('v_add_f32 v%d, 1.0, v%d', T_, T_)
    a.e('v_rcp_f32 v%d, v%d', T_, T_)
    a.e('v_lshl_add_u32 v154, v154, 2, v155')
    a.e('v_mul_f32 v%d, v%d, v%d', T_, T_, G_)
    a.e('v_cvt_pk_bf16_f32 v%d, v%d, v%d', T_, T_, T_)
    a.e('v_lshlrev_b32 v%d, 16, v%d', T_, T_)
    a.e('v_mul_f32 v%d, v%d, v%d', T_, T_, U_)
    a.e('v_cvt_pk_bf16_f32 v%d, v%d, v%d', T_, T_, T_)
    a.e('v_lshlrev_b32 v%d, 16, v%d', T_, T_)
    a.e('v_lshlrev_b32 v154, 2, v154')
    a.e('ds_write_b32 v154, v%d offset:%d', T_, L_H)


def f2_poll_first(a):
    a.e('s_lshl_b32 s64, s4, 3')
    a.e('s_add_u32 s64, s64, s3')
    a.e('s_lshl_b32 s64, s64, %d', FS)
    a.e('s_add_u32 s64, s64, %d', WS_F2)
    a.e('v_mov_b32 v14, s64')
    a.e('s_mov_b64 exec, 1')
    a.e('v_mov_b32 v15, 0')
    a.vm_issue('p', 'buffer_atomic_or v15, v14, %s, 0 offen sc0', WSR)
    a.e('s_mov_b64 exec, -1')


def scode(a, sw):
    NS = E('NS', 4)
    lab = a.label('pc')
    a.e('s_getpc_b64 s[66:67]')
    a.e('%s:', lab)
    a.e('s_sub_u32 s66, s66, %s-%s_kernel' % (lab, NAME))
    a.e('s_subb_u32 s67, s67, 0')
    a.e('s_lshr_b32 s64, s2, 3')
    a.e('s_lshl_b32 s64, s64, 2')
    a.e('s_add_u32 s64, s64, s%d', sw)
    a.e('s_mul_i32 s64, s64, %d', NS * 64)
    for q in range(NS):
        a.e('s_min_u32 s65, s64, CODE_END-%s_kernel-4' % NAME)
        a.e('s_load_dword s43, s[66:67], s65')
        a.e('s_add_u32 s64, s64, 64')


def gen(a):
    kn = NAME + '_kernel'
    a.e('.globl %s\n.p2align 8\n.type %s,@function\n%s:' % (kn, kn, kn))
    a.e('s_load_dwordx16 s[40:55], s[0:1], 0')
    a.e('s_load_dwordx8 s[56:63], s[0:1], 64')
    a.e('s_cmp_ge_u32 s2, 256')
    a.e('s_cbranch_scc1 K_end')
    stamp(a, 0, True); stamp(a, 1, False)
    a.e('v_lshrrev_b32 v1, 6, v0')
    a.e('v_and_b32 v2, 63, v0')
    a.e('s_and_b32 s6, s2, 7')
    a.e('v_readfirstlane_b32 s3, v1')
    a.e('s_lshr_b32 s7, s2, 3')
    a.e('s_and_b32 s4, s6, 1')
    a.e('s_lshl_b32 s4, s4, 3')
    a.e('s_and_b32 s64, s7, 7')
    a.e('s_add_u32 s4, s4, s64')
    a.e('s_lshr_b32 s5, s6, 1')
    a.e('s_lshl_b32 s5, s5, 2')
    a.e('s_lshr_b32 s64, s7, 3')
    if 'ctrev' in EXP:
        a.e('s_xor_b32 s64, s64, 3')
    a.e('s_add_u32 s5, s5, s64')
    ROT = os.environ.get('ROT', 'td850fc74e860fd75')
    if ROT == 'rt':
        a.e('s_lshl_b32 s74, s4, 1')
    elif ROT == 'xcd':
        a.e('s_lshl_b32 s74, s6, 1')
    elif ROT == 'xcd1':
        a.e('s_mov_b32 s74, s6')
    elif ROT == 'x2':
        a.e('s_and_b32 s74, s4, 1')
        a.e('s_lshl_b32 s74, s74, 3')
        a.e('s_add_u32 s74, s74, s6')
    elif ROT == 'x4':
        a.e('s_and_b32 s74, s4, 3')
        a.e('s_lshl_b32 s74, s74, 2')
        a.e('s_add_u32 s74, s74, s6')
        C3 = os.environ.get('C3', '')
        if C3:
            a.e('s_mul_i32 s64, s4, %d', int(C3[0]))
            if len(C3) > 1:
                a.e('s_add_u32 s64, s64, s6')
            a.e('s_and_b32 s65, s5, 7')
            a.e('s_cmp_eq_u32 s65, 3')
            a.e('s_cselect_b32 s74, s64, s74')
    elif ROT.startswith('g'):
        A_, M_, B_, C_, D_ = [int(c, 16) for c in ROT[1:]]
        a.e('s_and_b32 s74, s4, %d', M_)
        a.e('s_mul_i32 s74, s74, %d', A_)
        a.e('s_mul_i32 s64, s6, %d', B_)
        a.e('s_add_u32 s74, s74, s64')
        a.e('s_lshr_b32 s64, s6, 1')
        a.e('s_mul_i32 s64, s64, %d', C_)
        a.e('s_add_u32 s74, s74, s64')
        a.e('s_bfe_u32 s64, s4, 0x10002')
        a.e('s_mul_i32 s64, s64, %d', D_)
        a.e('s_add_u32 s74, s74, s64')
    elif ROT == 'x3':
        a.e('s_and_b32 s64, s4, 7')
        a.e('s_mul_i32 s65, s64, 11')
        a.e('s_lshr_b32 s65, s65, 5')
        a.e('s_mul_i32 s65, s65, 3')
        a.e('s_sub_u32 s64, s64, s65')
        a.e('s_mul_i32 s74, s64, 11')
        a.e('s_lshr_b32 s74, s74, 1')
        a.e('s_add_u32 s74, s74, s6')
    elif ROT == 'x5':
        a.e('s_and_b32 s64, s4, 7')
        a.e('s_mul_i32 s74, s64, 5')
        a.e('s_lshr_b32 s74, s74, 3')
        a.e('s_mul_i32 s74, s74, 13')
        a.e('s_lshr_b32 s74, s74, 2')
        a.e('s_add_u32 s74, s74, s6')
    elif ROT.startswith('t'):
        words = [int(ROT[1 + 4 * k:5 + 4 * k], 16) for k in range((len(ROT) - 1) // 4)]
        n = len(words)
        pk = [words[2 * k] | (words[2 * k + 1] << 16) for k in range(n // 2)]
        if n == 2:
            a.e('s_mov_b32 s64, 0x%x', pk[0])
        else:
            a.e('s_bitcmp1_b32 s6, 1')
            a.e('s_mov_b32 s64, 0x%x', pk[0])
            a.e('s_cselect_b32 s64, 0x%x, s64', pk[1])
        a.e('s_and_b32 s65, s6, 1')
        a.e('s_lshl_b32 s65, s65, 2')
        a.e('s_and_b32 s74, s4, 3')
        a.e('s_add_u32 s65, s65, s74')
        a.e('s_lshl_b32 s65, s65, 2')
        a.e('s_lshr_b32 s74, s64, s65')
        a.e('s_and_b32 s74, s74, 15')
    elif ROT == 'x8':
        a.e('s_lshl_b32 s74, s4, 1')
        a.e('s_lshr_b32 s64, s6, 1')
        a.e('s_add_u32 s74, s74, s64')
    elif ROT == 'x8b':
        a.e('s_lshl_b32 s74, s4, 1')
        a.e('s_and_b32 s64, s6, 1')
        a.e('s_add_u32 s74, s74, s64')
    elif ROT == 'r4':
        a.e('s_and_b32 s74, s4, 3')
        a.e('s_lshl_b32 s74, s74, 2')
    elif ROT == 'r2':
        a.e('s_and_b32 s74, s4, 1')
        a.e('s_lshl_b32 s74, s74, 3')
    elif ROT == 'r4b':
        a.e('s_bfe_u32 s74, s4, 0x20001')
        a.e('s_lshl_b32 s74, s74, 2')
    elif ROT == 'r5':
        a.e('s_mul_i32 s74, s4, 3')
    elif ROT == 'rt1':
        a.e('s_mov_b32 s74, s4')
    else:
        a.e('s_mov_b32 s74, 0')
    a.e('v_lshrrev_b32 v6, 3, v2')
    a.e('s_lshl_b32 s65, s3, 3')
    a.e('v_add_u32 v6, s65, v6')
    a.e('s_lshl_b32 s64, s4, 7')
    a.e('v_add_u32 v7, s64, v6')
    a.e('v_lshlrev_b32 v7, 11, v7')
    a.e('v_lshrrev_b32 v8, 4, v2')
    a.e('s_and_b32 s64, s3, 1')
    a.e('s_lshl_b32 s64, s64, 2')
    a.e('v_add_u32 v9, s64, v8')
    a.e('v_and_b32 v10, 7, v2')
    a.e('v_xor_b32 v9, v9, v10')
    a.e('v_lshl_add_u32 v7, v9, 4, v7')
    a.e('v_mul_u32_u24 v6, 6144, v6')
    a.e('v_and_b32 v9, 1, v8')
    a.e('s_lshr_b32 s64, s64, 1')
    a.e('v_lshl_add_u32 v9, v9, 2, s64')
    a.e('v_xor_b32 v9, v9, v10')
    a.e('v_lshl_add_u32 v6, v9, 4, v6')
    a.e('s_lshl_b32 s64, s5, 7')
    a.e('v_add_u32 v6, s64, v6')
    a.e('s_lshl_b32 s66, s3, 10')
    a.e('s_mov_b32 s10, 4194304')
    a.e('s_mov_b32 s11, 0x00020000')
    a.e('s_mov_b32 s14, 6291456')
    a.e('s_mov_b32 s15, 0x00020000')

    def dma8(stage):
        a.e('s_add_u32 s65, s74, %d', stage)
        a.e('s_and_b32 s65, s65, 15' if NFIX == 0 else 's_mov_b32 s65, 0')
        a.e('s_lshl_b32 s67, s65, 7')
        a.e('s_mul_i32 s65, s65, 393216')
        if stage == 0:
            a.e('s_waitcnt lgkmcnt(0)')
            a.e('s_mov_b32 s8, s40'); a.e('s_mov_b32 s9, s41')
            a.e('s_mov_b32 s12, s42'); a.e('s_mov_b32 s13, s43')
        for aa in range(2):
            a.e('s_add_u32 m0, s66, %d', RB + stage * SLOT + aa * 8192)
            a.e('s_add_u32 s64, s67, %d', aa * 131072)
            a.vm_issue('d%d' % stage, 'buffer_load_dwordx4 v7, %s, s64 offen' + NTA + ' lds', sr(S_X, 4))
        for ty in range(3):
            a.e('s_add_u32 m0, s66, %d', RB + stage * SLOT + 16384 + ty * 8192)
            a.e('s_add_u32 s64, s65, %d', ty * 2048)
            a.vm_issue('d%d' % stage, 'buffer_load_dwordx4 v6, %s, s64 offen' + NTB + ' lds', sr(S_W, 4))
    dma8(0)
    if 'noste' not in EXP:
        a.e('s_cmp_lt_u32 s3, 4')
        a.e('s_cbranch_scc1 %s', 'K_ct' if 'stc' in EXP else 'K_nt')
        if 'stc' in EXP:
            with a.cold():
                a.e('K_ct:')
                a.e('s_lshl_b32 s64, s2, 2')
                a.e('s_add_u32 s64, s64, s3')
                a.e('s_lshl_b32 s64, s64, 12')
                a.e('s_add_u32 s46, s8, s64')
                a.e('s_addc_u32 s47, s9, 0')
                for o in [r * 2048 + t * 1024 + 384 + h for r in range(2) for t in range(2) for h in (0, 64)]:
                    a.e('s_load_dword s75, s[46:47], %d', o)
                a.e('s_barrier')
                a.e('s_mov_b32 s%d, 0x%x', S_LOG2E, LOG2E)
                a.e('s_mov_b32 s%d, 0x%x', S_EPS, EPS6)
                srd(a, S_WS, 62, WS_BYTES)
                a.e('s_branch C_start')
        a.e('s_lshl_b32 s64, s2, 2')
        a.e('s_add_u32 s64, s64, s3')
        a.e('s_sub_u32 s64, s64, 4')
        a.e('s_mul_i32 s64, s64, 6144')
        a.e('s_add_u32 s46, s12, s64')
        a.e('s_addc_u32 s47, s13, 0')
        for o in [t * 1024 + 384 + h for t in range(6) for h in (0, 64)]:
            a.e('s_load_dword s43, s[46:47], %d', o)
        a.e('K_nt:')
    if 'pfw' in EXP:
        a.e('s_mul_i32 s64, s2, 24576')
        a.e('s_mul_i32 s65, s3, 3072')
        a.e('s_add_u32 s64, s64, s65')
        a.e('v_lshlrev_b32 v11, 4, v2')
        for q in range(3):
            a.vm_issue('t', 'buffer_load_dwordx4 v[252:255], v11, %s, s64 offen offset:%d', sr(S_W, 4), q * 1024)
    a.e('s_barrier')
    a.e('s_mov_b32 s%d, 0x%x', S_LOG2E, LOG2E)
    a.e('s_mov_b32 s%d, 0x%x', S_EPS, EPS6)
    srd(a, S_WS, 62, WS_BYTES)
    a.e('s_cmp_lt_u32 s3, 4')
    a.e('s_cbranch_scc1 C_start')
    vm_entry = list(a.vm)
    gen_h1(a)
    a.vm = list(vm_entry)
    gen_c1(a)
    gen_p2(a)


def gen_h1(a):
    VOA, VOB = 4, 5
    a.e('s_sub_u32 s6, s3, 4')
    a.e('s_lshl_b32 s7, s6, 10')
    a.e('v_lshrrev_b32 v6, 3, v2')
    a.e('s_lshl_b32 s64, s4, 7')
    a.e('s_lshl_b32 s65, s6, 3')
    a.e('s_add_u32 s64, s64, s65')
    a.e('v_add_u32 v7, s64, v6')
    a.e('v_lshlrev_b32 v7, 11, v7')
    a.e('s_and_b32 s64, s6, 1')
    a.e('s_lshl_b32 s64, s64, 2')
    a.e('v_add_u32 v9, s64, v8')
    a.e('v_xor_b32 v9, v9, v10')
    a.e('v_lshl_add_u32 v%d, v9, 4, v7', VOA)
    a.e('v_add_u32 v7, s65, v6')
    a.e('v_mul_u32_u24 v7, 6144, v7')
    a.e('v_and_b32 v9, 1, v8')
    a.e('s_lshr_b32 s64, s64, 1')
    a.e('v_lshl_add_u32 v9, v9, 2, s64')
    a.e('v_xor_b32 v9, v9, v10')
    a.e('v_lshl_add_u32 v7, v9, 4, v7')
    a.e('s_lshl_b32 s64, s5, 7')
    a.e('v_add_u32 v%d, s64, v7', VOB)

    def spread(fill, n):
        fill = list(fill or [])
        per = -(-len(fill) // n)

        def put():
            for _ in range(per):
                if fill:
                    for ln in fill.pop(0):
                        a.e(ln)
        return put

    if NFIX:
        a.e('s_and_b32 s74, s4, 7')
        a.e('s_mul_i32 s74, s74, %d', 16 - NFIX)
        a.e('s_lshr_b32 s74, s74, 3')

    def dma(stage, fill=None):
        slot = stage % 3
        put = spread(fill, 10)
        if NFIX == 0:
            a.e('s_add_u32 s41, s74, %d', stage)
            a.e('s_and_b32 s41, s41, 15')
        elif stage < NFIX:
            a.e('s_mov_b32 s41, %d', stage)
        else:
            a.e('s_add_u32 s41, s74, %d', stage - NFIX)
            a.e('s_cmp_ge_u32 s41, %d', 16 - NFIX)
            a.e('s_cselect_b32 s42, %d, 0', 16 - NFIX)
            a.e('s_sub_u32 s41, s41, s42')
            a.e('s_add_u32 s41, s41, %d', NFIX)
        a.e('s_lshl_b32 s42, s41, 7')
        a.e('s_mul_i32 s41, s41, 393216')
        for aa in range(4):
            a.e('s_add_u32 m0, s7, %d', RB + slot * SLOT + aa * 4096)
            a.e('s_add_u32 s40, s42, %d', aa * 65536)
            a.vm_issue('d%d' % stage, 'buffer_load_dwordx4 v%d, %s, s40 offen' + NTA + ' lds', VOA, sr(S_X, 4))
            put()
        for ty in range(3):
            for b in range(2):
                a.e('s_add_u32 m0, s7, %d', RB + slot * SLOT + 16384 + ty * 8192 + b * 4096)
                a.e('s_add_u32 s40, s41, %d', b * 196608 + ty * 2048)
                a.vm_issue('d%d' % stage, 'buffer_load_dwordx4 v%d, %s, s40 offen' + NTB + ' lds', VOB, sr(S_W, 4))
                put()

    def wo_units(ps, fill=None):
        if not ps:
            for ch in fill or []:
                for ln in ch:
                    a.e(ln)
            return
        put = spread(fill, 2 * len(ps))
        for p in ps:
            for b in range(2):
                a.e('s_add_u32 m0, s7, %d', POS[p] + b * 4096)
                a.e('s_mov_b32 s40, %d', (p << 17) + b * 65536)
                a.vm_issue('wo', 'buffer_load_dwordx4 v%d, %s, s40 offen' + NTO + ' lds', VOW, sr(S_WO, 4))
                put()

    def cap(fn, n=4):
        saved = a.lines
        a.lines = []
        fn()
        L = [ln.strip() for ln in a.lines]
        a.lines = saved
        return [L[k:k + n] for k in range(0, len(L), n)]
    VOW = 10
    V16 = 6
    a.e('v_lshlrev_b32 v%d, 4, v2', V16)
    a.e('s_and_b32 s64, s2, 1')
    a.e('s_lshl_b32 s68, s64, 10')
    a.e('s_bfe_u32 s64, s2, 0x20001')
    a.e('s_lshl_b32 s64, s64, 8')
    a.e('s_add_u32 s68, s68, s64')
    a.e('s_and_b32 s64, s2, 0xf8')
    a.e('s_add_u32 s68, s68, s64')
    a.e('s_lshl_b32 s64, s6, 1')
    a.e('s_add_u32 s68, s68, s64')
    a.e('s_lshl_b32 s64, s68, 11')
    a.e('v_add_u32 v13, s64, v%d', V16)
    XR, WR, GW, WF = 24, 40, 48, 56
    RL = E('RL', -1)

    def x_rows():
        for q in range(4):
            a.vm_issue('r', 'buffer_load_dwordx4 %s, v13, %s, 0 offen offset:%d', vr(XR + 4 * q, 4), sr(S_X, 4), q * 1024)
    if 'rows0' in EXP:
        x_rows()

    def slow_touch(ptr, stride, offs):
        a.e('s_lshl_b32 s64, s2, 2')
        a.e('s_add_u32 s64, s64, s6')
        a.e('s_mul_i32 s64, s64, %d', stride)
        a.e('s_add_u32 s46, s%d, s64', ptr)
        a.e('s_addc_u32 s47, s%d, 0', ptr + 1)
        for o in offs:
            a.e('s_load_dword s43, s[46:47], %d', o)
    SPF = 'spf' in EXP

    def spf(k, x=False):
        if not SPF or k > 15:
            return
        a.e('s_add_u32 s50, s46, %d', k * 393216)
        a.e('s_addc_u32 s51, s47, 0')
        if 'spfl' in EXP:
            for r in range(2):
                for ty in range(3):
                    for h in ((0,) if 'spfh' in EXP else (0, 64)):
                        a.e('s_load_dword s43, s[50:51], %d', r * 6144 + ty * 2048 + h)
        else:
            for o in range(6):
                a.e('s_load_dword s43, s[50:51], %d', o * 64)
        if x:
            for o in (0, 64, 2048, 2112):
                a.e('s_load_dword s43, s[52:53], %d', o + k * 128)
    if 'st0' in EXP:
        slow_touch(12, 6144, [t * 1024 + 384 + h for t in range(6) for h in (0, 64)])
    dma(1)
    if 'st1' in EXP:
        slow_touch(12, 6144, [t * 1024 + 384 + h for t in range(6) for h in (0, 64)])
    srd(a, S_WG, 50, 7340032)
    srd(a, S_WU, 52, 7340032)
    if SPF:
        a.e('s_lshl_b32 s64, s2, 2')
        a.e('s_add_u32 s64, s64, s6')
        a.e('s_lshl_b32 s65, s64, 12')
        a.e('s_add_u32 s52, s8, s65')
        a.e('s_addc_u32 s53, s9, 0')
        a.e('s_lshr_b32 s65, s64, 4')
        a.e('s_mul_i32 s65, s65, 6144')
        a.e('s_and_b32 s64, s64, 15')
        a.e('s_mul_i32 s64, s64, 384')
        a.e('s_add_u32 s64, s64, s65')
        if 'spfl' in EXP:
            a.e('s_and_b32 s64, s4, 7')
            a.e('s_lshl_b32 s64, s64, 2')
            a.e('s_add_u32 s64, s64, s6')
            a.e('s_mul_i32 s64, s64, 12288')
            a.e('s_lshl_b32 s65, s5, 7')
            a.e('s_add_u32 s64, s64, s65')
        a.e('s_add_u32 s46, s12, s64')
        a.e('s_addc_u32 s47, s13, 0')
    XT = 'spfx' in EXP
    SL0 = [int(c, 16) for c in os.environ.get('SL0', '34')]
    SL1 = [int(c, 16) for c in os.environ.get('SL1', '56')]
    for k in SL0:
        spf(k)
    a.e('s_or_b32 s64, s2, s6')
    a.e('s_cmp_lg_u32 s64, 0')
    a.e('s_cbranch_scc1 H_nn')
    a.e('s_mov_b32 s64, %d', WS_KEY)
    a.e('s_load_dwordx2 s[66:67], s[62:63], s64')
    srd(a, S_DBG, 60, 256)
    a.e('s_waitcnt lgkmcnt(0)')
    a.e('s_xor_b32 s64, s66, s67')
    a.e('s_add_u32 s64, s64, 1')
    a.e('s_max_u32 s64, s64, 1')
    a.e('v_mov_b32 v72, s64')
    a.e('v_mov_b32 v73, 0')
    a.e('s_mov_b64 exec, 1')
    a.vm_uncounted('buffer_store_dword v72, v73, %s, 0 offen' % sr(S_DBG, 4) + WT)
    a.e('s_mov_b64 exec, -1')
    a.e('H_nn:')
    stamp(a, 3)
    srd(a, S_DBG, 60, 256)
    srd(a, S_WR, 48, 2048)
    srd(a, S_GW, 56, 2048)
    VWG, VHP, VKB = 11, 12, 14
    a.e('s_lshr_b32 s69, s2, 3')
    a.e('s_and_b32 s64, s2, 7')
    a.e('v_and_b32 v9, 15, v2')
    a.e('v_min_u32 v9, 13, v9')
    a.e('s_lshl_b32 s65, s69, 5')
    a.e('v_lshl_add_u32 v7, v8, 3, s65')
    a.e('v_mul_u32_u24 v7, 7168, v7')
    a.e('s_mul_i32 s65, s64, 896')
    a.e('s_mul_i32 s66, s6, 224')
    a.e('s_add_u32 s65, s65, s66')
    a.e('v_lshl_add_u32 v7, v9, 4, v7')
    a.e('v_add_u32 v%d, s65, v7', VWG)
    a.e('v_cmp_le_u32 vcc, 7, v9')
    a.e('v_mov_b32 v15, %d', 16384 - 7 * 32)
    a.e('s_nop 0')
    a.e('v_cndmask_b32 v7, 0, v15, vcc')
    a.e('v_lshl_add_u32 v7, v9, 5, v7')
    a.e('v_lshrrev_b32 v15, 1, v8')
    a.e('v_lshl_add_u32 v7, v15, 13, v7')
    a.e('v_and_b32 v15, 1, v8')
    a.e('v_lshl_add_u32 v7, v15, 4, v7')
    a.e('s_lshl_b32 s64, s64, 17')
    a.e('s_lshl_b32 s65, s6, 15')
    a.e('s_add_u32 s64, s64, s65')
    a.e('s_lshl_b32 s65, s69, 8')
    a.e('s_add_u32 s64, s64, s65')
    a.e('s_add_u32 s64, s64, %d', WS_HP)
    a.e('v_add_u32 v%d, s64, v7', VHP)
    if 'noack' in EXP:
        a.e('s_lshl_b32 s66, s4, 2')
        a.e('s_and_b32 s65, s6, 1')
        a.e('s_lshl_b32 s65, s65, 1')
        a.e('s_add_u32 s66, s66, s65')
        a.e('s_lshl_b32 s66, s66, 5')
        a.e('s_lshl_b32 s65, s5, 1')
        a.e('s_add_u32 s66, s66, s65')
        a.e('s_lshr_b32 s65, s6, 1')
        a.e('s_add_u32 s66, s66, s65')
        a.e('s_lshl_b32 s66, s66, %d', PS + 1)
        a.e('v_mov_b32 v14, s66')
    a.e('s_lshl_b32 s70, s5, 2')
    a.e('s_add_u32 s70, s70, s6')
    a.e('s_mul_i32 s70, s70, %d', 16 * KVB)
    a.e('s_add_u32 s70, s70, %d', WS_KVP)
    a.e('s_mul_i32 s64, s4, %d', KVB)
    a.e('s_add_u32 s64, s64, s70')
    a.e('s_mov_b32 s67, s64')
    a.e('v_lshl_add_u32 v15, v2, 2, s64')
    a.e('v_add_u32 v15, %d, v15', KVZ - 64)
    a.e('s_lshl_b32 s64, s5, 2')
    a.e('s_add_u32 s64, s64, s6')
    a.e('s_lshl_b32 s64, s64, %d', FS)
    a.e('s_add_u32 s64, s64, %d', WS_F1)
    a.e('v_mov_b32 v23, s64')
    a.e('s_lshl_b32 s65, s4, %d', FS + 3)
    a.e('s_add_u32 s65, s65, %d', WS_F2 - (1 << FS))
    a.e('v_lshl_add_u32 v20, v2, %d, s65', FS)
    a.e('v_cmp_gt_u32 vcc, 16, v2')
    a.e('s_nop 1')
    a.e('v_cndmask_b32 v15, v15, v20, vcc')
    a.e('v_writelane_b32 v15, s64, 0')
    a.e('s_cmp_eq_u32 s4, 0')
    a.e('s_cselect_b32 s75, 1, 0')
    a.e('s_or_b32 s64, s5, s6')
    a.e('s_cmp_eq_u32 s64, 0')
    a.e('s_cselect_b32 s64, 0x1fe, 0')
    a.e('s_or_b32 s75, s75, s64')
    a.e('s_or_b32 s75, s75, 0xffff0000')
    lane_off(a, 22, 16)
    a.e('v_add_u32 v22, s67, v22')
    for r in range(4):
        a.e('v_mov_b32 v%d, -1', 16 + r)
    a.e('v_cndmask_b32 v20, -1, 0, vcc')
    a.vm_wait('d0')
    stamp(a, 4)
    D2E = E('D2E', 0)
    if D2E:
        saved = a.lines
        a.lines = []
        dma(2)
        L = a.lines
        a.lines = saved
        idx = [k for k, ln in enumerate(L) if 'buffer_load' in ln][D2E - 1] + 1
        a.lines += L[:idx]
        a.e('s_barrier')
        a.lines += L[idx:]
    else:
        a.e('s_barrier')
        dma(2)
    if 'cscode' not in EXP and 'noscode' not in EXP and E('SC', -1) == -1:
        scode(a, 6)
    if 'stx' in EXP:
        slow_touch(8, 4096, [r * 2048 + t * 1024 + 384 + h for r in range(2) for t in range(2) for h in (0, 64)])
    for k in SL1:
        spf(k)

    def init_stores():
        a.vm_issue('init', 'buffer_store_dwordx4 v[16:19], v22, %s, 0 offen' + WT, WSR)
        a.e('s_mov_b32 exec_lo, s75\ns_mov_b32 exec_hi, 0')
        a.vm_issue('init', 'buffer_store_dword v20, v15, %s, 0 offen' + WT, WSR)
        a.e(MASK14)
        a.vm_issue('init', 'buffer_store_dwordx4 v[16:19], v%d, %s, 0 offen' + WT, VHP, WSR)
        a.e('s_mov_b64 exec, 0xffff')
        a.e('s_lshl_b32 s64, s2, 10')
        a.e('s_lshl_b32 s65, s6, 8')
        a.e('s_add_u32 s64, s64, s65')
        a.e('s_add_u32 s64, s64, %d', WS_YP)
        a.vm_issue('init', 'buffer_store_dwordx4 v[16:19], v%d, %s, s64 offen' + WT, V16, WSR)
        a.e('s_mov_b64 exec, -1')

    def row_loads():
        if 'rows0' not in EXP:
            x_rows()
        if 'wrv' in EXP:
            for q in range(2):
                a.vm_issue('r', 'buffer_load_dwordx4 %s, v%d, %s, 0 offen offset:%d', vr(WR + 4 * q, 4), V16, sr(S_WR, 4), q * 1024)
            for q in range(2):
                a.vm_issue('r', 'buffer_load_dwordx4 %s, v%d, %s, 0 offen offset:%d', vr(GW + 4 * q, 4), V16, sr(S_GW, 4), q * 1024)
            return
        a.e('s_cmp_lt_u32 s6, 2')
        a.e('s_cselect_b32 s%d, s48, s56', S_WR)
        a.e('s_cselect_b32 s%d, s49, s57', S_WR + 1)
        a.e('s_and_b32 s64, s7, 1024')
        a.e('s_add_u32 m0, s7, %d', L_KF)
        a.e('s_nop 0')
        a.vm_issue('r', 'buffer_load_dwordx4 v%d, %s, s64 offen lds', V16, sr(S_WR, 4))

    WGT = 96
    XS = 88
    WD = 192
    wl = [(m, j) for j in range(8) for m in range(2)]
    def mk_sched(txt):
        TR = [int(c) for c in txt]
        assert len(TR) == 17 and sum(TR) == 23, sum(TR)
        allw = [('w', x) for x in wl] + [('d', j) for j in range(7)]
        ws_, ds_ = {}, {}
        for k, n in enumerate(TR):
            for kind, x in allw[sum(TR[:k]):sum(TR[:k + 1])]:
                (ws_ if kind == 'w' else ds_).setdefault(k - 1, []).append(x)
        return ws_, ds_, min(ds_)
    wsched, dsched, D0 = mk_sched(os.environ.get('TR', '00005005006007000'))
    TR2 = os.environ.get('TR2')
    GV = E('GV', 13)
    VWD = 21

    def wload(lst):
        if 'now' in EXP:
            return
        a.e(MASK14)
        for (m, j) in lst:
            a.e('s_mov_b32 s64, %d', j * 7168)
            a.vm_issue('w', 'buffer_load_dwordx4 %s, v%d, %s, s64 offen' + NTW, vr(WGT + 32 * m + 4 * j, 4), VWG, sr(S_WG if m == 0 else S_WU, 4))
        a.e('s_mov_b64 exec, -1')

    GA = 32
    MK = 40

    def gemv1_part(pairs):
        if pairs[0] == 0:
            a.e('v_and_b32 v48, 15, v2')
            a.e('v_and_b32 v49, 1, v2')
            a.e('v_lshlrev_b32 v49, 4, v49')
            a.e('v_mov_b32 v50, 0xffff')
            a.e('v_lshlrev_b32 v49, v49, v50')
            a.e('v_lshrrev_b32 v48, 1, v48')
            for q in range(4):
                a.e('v_cmp_eq_u32 vcc, %d, v48', q)
                a.e('s_nop 1')
                a.e('v_cndmask_b32 v%d, 0, v49, vcc', MK + q)
        a.e('s_mov_b32 s64, 0x01000100')
        a.e('s_mov_b32 s65, 0x03020302')
        for jp in pairs:
            for k in range(2):
                j = 2 * jp + k
                t = 44 + 8 * (j & 1)
                a.e('v_perm_b32 v48, v%d, v%d, s%d', XS + jp, XS + jp, 64 + k)
                for q in range(4):
                    a.e('v_and_b32 v%d, v48, v%d', t + q, MK + q)
                a.e('s_nop 1')
                for m in range(2):
                    d = vr(GA + 4 * m, 4)
                    a.e('v_mfma_f32_16x16x32_bf16 %s, %s, %s, %s', d, vr(t, 4), vr(WGT + 32 * m + 4 * j, 4), '0' if j == 0 else d)

    def gemv1_fin():
        a.e('s_nop 7')
        for q in range(4):
            a.e('v_permlane32_swap_b32 v%d, v%d', GA + q, GA + 4 + q)
        a.e(MASK14)
        a.vm_issue('hp', 'buffer_store_dwordx4 %s, v%d, %s, 0 offen' + WT, vr(GA, 4), VHP, WSR)
        a.e('s_mov_b64 exec, -1')
        stamp(a, 7)

    def h0_only(name):
        a.e('s_cmp_lg_u32 s6, 0')
        a.e('s_cbranch_scc1 %s', name)

    IN = E('IN', 0)
    PB = E('PB', 10)
    KP = E('KP', RL + 7)
    gv = {'a': {GV: [0, 1], GV + 1: [2, 3]}, 'b': {GV: [0], GV + 1: [1, 2], GV + 2: [3]}, 'c': {GV: [0], GV + 1: [1], GV + 2: [2, 3]},
          'd': {GV: [0, 1, 2, 3]}}[os.environ.get('GVS', 'd')]
    WOS = {'a': {13: (0, 8, 1, 9, 2, 10), 14: (3, 11), 15: (4, 12, 5, 13, 6, 14, 7, 15)},
           'b': {13: (0, 8, 1, 9), 14: (2, 10), 15: (3, 11, 4, 12, 5, 13, 6, 14, 7, 15)},
           'c': {13: (0, 8), 14: (1, 9), 15: (2, 10, 3, 11, 4, 12, 5, 13, 6, 14, 7, 15)},
           'd': {13: (0,), 14: (8, 1, 9, 2), 15: (10, 3, 11, 4, 12, 5, 13, 6, 14, 7, 15)},
           'e': {13: (0, 8), 14: (1, 9, 2, 10), 15: (3, 11, 4, 12, 5, 13, 6, 14, 7, 15)},
           'f': {13: (0, 8), 14: (1, 9, 2, 10), 15: (3, 4, 5, 6, 7, 11), 16: (12, 13, 14, 15)},
           'g': {13: (0, 1), 14: (2, 8, 9), 15: (3, 4, 5, 6, 7), 16: (10, 11, 12, 13, 14, 15)},
           'j': {10: (0, 8), 12: (1, 9), 13: (2, 10), 14: (3, 11), 15: (4, 12, 5, 13, 6, 14, 7, 15)},
           'k': {12: (0, 8), 13: (1, 9, 2), 14: (10, 3, 11), 15: (4, 12, 5, 13, 6, 14, 7, 15)},
           'l': {8: (0, 8), 10: (1, 9), 13: (2, 10), 14: (3, 11), 15: (4, 12, 5, 13, 6, 14, 7, 15)},
           'm': {13: (0, 8), 14: (1, 9, 2, 10, 3, 11), 15: (4, 12, 5, 13, 6, 14, 7, 15)},
           'n': {13: (0, 8), 14: (1, 9, 2, 10), 15: (3, 11, 4, 12, 5), 17: (13, 6, 14, 7, 15)},
           'o': {13: (0, 8), 14: (1, 9, 2, 10), 15: (3, 11), 17: (4, 12, 5, 13, 6, 14, 7, 15)},
           'p': {13: (0, 8), 14: (1, 9, 2, 10), 15: (3, 11, 4, 12, 5, 13, 6), 17: (14, 7, 15)},
           'h': {13: (0, 8), 14: (1, 9, 2, 10), 15: (3, 4, 5, 6, 7, 11, 12, 13), 16: (14, 15)},
           'i': {13: (0, 1), 14: (2,), 15: (3, 4, 5, 6, 7), 16: (8, 9, 10, 11, 12, 13, 14, 15)}}[os.environ.get('WOSCH', 'e')]
    if RL == -1:
        row_loads()
    if IN == -1:
        init_stores()
    if -1 in wsched:
        wload(wsched[-1])
    def wd_addr():
        srd(a, S_WD, 54, 7340032)
        a.e('s_lshr_b32 s64, s2, 2')
        a.e('s_mul_i32 s64, s64, %d', 56 * 2048)
        a.e('s_and_b32 s65, s2, 3')
        a.e('s_lshl_b32 s65, s65, 9')
        a.e('s_add_u32 s64, s64, s65')
        a.e('s_lshl_b32 s65, s6, 7')
        a.e('s_add_u32 s64, s64, s65')
        a.e('v_lshrrev_b32 v7, 3, v2')
        a.e('v_lshlrev_b32 v7, 11, v7')
        a.e('v_and_b32 v9, 7, v2')
        a.e('v_lshl_add_u32 v7, v9, 4, v7')
        a.e('v_add_u32 v%d, s64, v7', VWD)

    def key_loads():
        a.e('s_mov_b32 s64, %d', WS_KEY)
        for q in range(2):
            a.vm_uncounted('buffer_load_dwordx4 %s, v%d, %s, s64 offen offset:%d sc1' % (vr(24 + 4 * q, 4), V16, WSR, q * 1024))

    def dots():
        for q in range(8):
            for k, (x, w) in enumerate(((XR + q, GW + q), (XR + 8 + q, GW + q), (XR + q, WR + q), (XR + 8 + q, WR + q))):
                a.e('v_dot2_f32_bf16 v%d, v%d, v%d, %s', 72 + k, x, w, '0' if q == 0 else 'v%d' % (72 + k))

    def router_fin():
        a.e('v_permlane32_swap_b32 v72, v74')
        a.e('v_permlane32_swap_b32 v73, v75')
        a.e('v_add_f32 v72, v72, v74')
        a.e('v_add_f32 v73, v73, v75')
        a.e('s_lshl_b32 s64, s68, 2')
        a.e('s_add_u32 s64, s64, %d', WS_G)
        a.e('v_permlane16_swap_b32 v72, v73')
        a.e('v_add_f32 v72, v72, v73')
        a.e('v_and_b32 v75, 1, v8')
        a.e('v_lshl_add_u32 v76, v75, 2, s64')
        for pat in ('quad_perm:[1,0,3,2]', 'quad_perm:[2,3,0,1]', 'row_half_mirror', 'row_mirror'):
            a.e('v_add_f32_dpp v72, v72, v72 %s row_mask:0xf bank_mask:0xf', pat)
            a.e('s_nop 1')
        a.e('v_cvt_pk_bf16_f32 v72, v72, v72')
        a.e('s_sub_u32 s64, %d, s68', 2047 + 0x8000)
        a.e('v_lshlrev_b32 v72, 16, v72')
        a.e('v_ashrrev_i32 v73, 31, v72')
        a.e('v_sub_u32 v77, s64, v75')
        a.e('v_or_b32 v73, 0x80000000, v73')
        a.e('s_lshl_b32 s64, s6, 3')
        a.e('v_xor_b32 v73, v72, v73')
        a.e('v_lshl_add_u32 v75, v75, 2, s64')
        a.e('v_and_b32 v73, 0xffff0000, v73')
        a.e('v_or_b32 v73, v77, v73')
        sigmoid_bf16(a, [72])

    def key_max():
        a.e('v_max_u32 v3, v24, v26')
        a.e('v_max3_u32 v3, v3, v28, v30')
        a.e('s_nop 1')
        for pat in ('quad_perm:[1,0,3,2]', 'quad_perm:[2,3,0,1]', 'row_half_mirror', 'row_mirror'):
            a.e('v_max_u32_dpp v3, v3, v3 %s row_mask:0xf bank_mask:0xf', pat)
            a.e('s_nop 1')
        for swp in ('v_permlane16_swap_b32', 'v_permlane32_swap_b32'):
            a.e('v_mov_b32 v7, v3')
            a.e('s_nop 1')
            a.e('%s v3, v7', swp)
            a.e('v_max_u32 v3, v3, v7')
        a.e('v_mov_b32 v7, %d', L_KEY + 32)

    sched0 = (wsched, dsched, D0)
    marks = {}
    nxt = [max(SL1) + 1]
    gv0, WOS0 = gv, WOS

    def stage(i, slow, sched=None):
        wsched, dsched, D0 = sched or sched0
        gv, WOS = gv0, WOS0
        if sched and 'c3v' in EXP:
            gv = {E('GV2', 15): [0, 1, 2, 3]}
            WOS = {'a': {13: (), 14: (), 15: (0, 8, 1, 9, 2, 10, 3, 11, 4, 12, 5, 13, 6, 14, 7, 15)},
                   'b': {13: (0,), 14: (8, 1), 15: (9, 2, 10, 3, 11, 4, 12, 5, 13, 6, 14, 7, 15)}, 'e': WOS0}[os.environ.get('WOS2', 'a')]
        if i + 1 < 16:
            a.vm_wait('d%d' % (i + 1))
        if i == KP:
            a.vm_wait('g')
        if i == RL + 3:
            a.vm_wait('r')
        if i in (RL + 5, PB + 2):
            a.e('s_waitcnt lgkmcnt(0)')
        a.e('s_barrier')
        fill = []
        if i == RL + 2:
            a.e('v_mov_b32 v79, 0')
            h0_only('H_nc')
            a.vm_uncounted('buffer_load_dword v78, v79, %s, 0 offen sc1' % sr(S_DBG, 4))
            a.e('H_nc:')
        if i == PB:
            h0_only('H_np')
            key_loads()
            a.e('H_np:')
            marks['poll'] = a.issued
        if i == PB + 1:
            h0_only('H_nq')
            a.e('s_waitcnt vmcnt(%d)', a.issued - marks['poll'])
            a.e('s_mov_b32 s65, 0')
            a.e('H_spin:')
            for q in range(4):
                a.e('v_xor_b32 v%d, v%d, v%d', 25 + 2 * q, 24 + 2 * q, 25 + 2 * q)
            a.e('v_xor_b32 v3, s71, v25')
            a.e('v_xor_b32 v7, s71, v27')
            a.e('v_xor_b32 v25, s71, v29')
            a.e('v_xor_b32 v27, s71, v31')
            a.e('v_or3_b32 v3, v3, v7, v25')
            a.e('v_or_b32 v3, v3, v27')
            a.e('v_cmp_ne_u32 vcc, 0, v3')
            a.e('s_cbranch_vccnz H_retry')
            with a.cold():
                a.e('H_retry:')
                a.e('s_add_u32 s65, s65, 1')
                a.e('s_cmp_ge_u32 s65, 200000')
                a.e('s_cbranch_scc1 H_nq')
                a.e('s_sleep 8')
                key_loads()
                a.e('s_waitcnt vmcnt(0)')
                a.e('s_branch H_spin')
            a.e('H_nq:')
            fill += cap(key_max)
        if i == PB + 2:
            a.e('v_mov_b32 v7, %d', L_KEY + 32)
            a.e('ds_read_b32 v3, v7')
            a.e('s_lshl_b32 s65, s69, 6')
            a.e('v_lshl_add_u32 v7, v8, 4, s65')
            a.e('s_waitcnt lgkmcnt(0)')
            a.e('v_readfirstlane_b32 s75, v3')
            a.e('s_nop 3')
            a.e('s_and_b32 s64, s75, 0x7ff')
            a.e('s_sub_u32 s64, 2047, s64')
            a.e('s_lshl_b32 s64, s64, 11')
            a.vm_issue('xs', 'buffer_load_dwordx4 %s, v7, %s, s64 offen', vr(XS, 4), sr(S_X, 4))
        if i == RL + 3:
            a.vm_wait('r')
            if 'wrv' not in EXP:
                for q in range(4):
                    a.e('ds_read_b128 %s, v%d offset:%d', vr(WR + 4 * q, 4), V16, L_KF + q * 1024)
                fill += [['s_waitcnt lgkmcnt(0)']]
            fill += cap(dots)
        if i == RL + 4:
            fill += cap(router_fin)
        if i in gv:
            if gv[i][0] == 0:
                a.vm_wait('xs')
                a.vm_wait('w')
                stamp(a, 6)
            fill += cap(lambda: gemv1_part(gv[i]))
        if i + 3 < 16:
            dma(i + 3, fill)
        else:
            if i == 13 and not slow and min(WOS) == 13:
                wo_setup()
            if i == E('OFS', 14) and 'noack' in EXP:
                assert not SK
                a.e('v_add_u32 v14, v14, v%d', V16)
                a.e('s_mov_b32 s64, 65536')
                for q in range(4):
                    a.vm_issue('init', 'buffer_store_dwordx4 v[16:19], v14, %s, %s offen offset:%d' + WT, WSR, 's64' if q >= 2 else '0', (q & 1) * 1024)
            if i == 15:
                xo_loads(a)
            wo_units((WOSS if slow else WOS)[i], fill)
        if not slow and i in WOS and i < 13:
            assert i != PB + 1
            if i == min(WOS):
                wo_setup()
            wo_units(WOS[i])
        if slow and i in WOSS and i < 13:
            assert i != PB + 1
            if i == min(WOSS):
                wo_setup()
            wo_units(WOSS[i])
        if slow and i == E('ET2', 99):
            assert i >= min(WOSS) and i != PB + 1
            a.e('s_and_b32 s64, s4, 3')
            a.e('s_lshl_b32 s64, s64, 6')
            a.e('s_lshl_b32 s65, s6, 4')
            a.e('s_add_u32 s64, s64, s65')
            a.e('s_and_b32 s65, s64, 128')
            a.e('s_mul_i32 s65, s65, 3')
            a.e('s_add_u32 s64, s64, s65')
            a.e('s_add_u32 s64, s64, 128')
            a.e('s_lshl_b32 s64, s64, 11')
            a.e('s_lshl_b32 s65, s5, 7')
            a.e('s_add_u32 s64, s64, s65')
            a.e('v_lshrrev_b32 v7, 1, v2')
            a.e('v_lshlrev_b32 v7, 11, v7')
            a.e('v_and_b32 v9, 1, v2')
            a.e('v_lshl_add_u32 v7, v9, 6, v7')
            a.e('s_mov_b32 exec_hi, 0')
            a.vm_issue('t', 'buffer_load_dword v56, v7, %s, s64 offen', sr(S_WO, 4))
            a.e('s_mov_b32 exec_hi, -1')
        if slow and i == E('ET', 99):
            assert i >= min(WOSS) and i != PB + 1
            a.e('s_and_b32 s64, s4, 3')
            a.e('s_lshl_b32 s64, s64, 7')
            a.e('s_lshl_b32 s65, s6, 5')
            a.e('s_add_u32 s64, s64, s65')
            a.e('s_and_b32 s65, s64, 256')
            a.e('s_add_u32 s64, s64, s65')
            a.e('s_add_u32 s64, s64, 256')
            a.e('s_lshl_b32 s64, s64, 11')
            a.e('s_lshl_b32 s65, s5, 7')
            a.e('s_add_u32 s64, s64, s65')
            a.e('v_lshrrev_b32 v7, 1, v2')
            a.e('v_lshlrev_b32 v7, 11, v7')
            a.e('v_and_b32 v9, 1, v2')
            a.e('v_lshl_add_u32 v7, v9, 6, v7')
            a.vm_issue('t', 'buffer_load_dword v56, v7, %s, s64 offen', sr(S_WO, 4))
        if i not in (RL + 4, KP - 1, KP, PB, PB + 1) or 'spfs' not in EXP:
            spf(nxt[0]); nxt[0] += 1
        if i == RL:
            row_loads()
        if i == IN:
            init_stores()
        if i == RL + 4:
            a.e('s_mov_b32 exec_lo, 0\ns_mov_b32 exec_hi, 0x10001')
            a.e('ds_write_b32 v75, v73 offset:%d', L_KEY)
            a.e('s_mov_b32 exec_lo, 0x10001\ns_mov_b32 exec_hi, 0')
            a.vm_issue('g', 'buffer_store_dword v72, v76, %s, 0 offen' + WT, WSR)
            a.e('s_mov_b64 exec, -1')
        if i == KP:
            assert IN <= RL + 4 < KP
            h0_only('H_nk')
            a.e('v_mov_b32 v3, %d', L_KEY)
            a.e('ds_read_b128 v[72:75], v3')
            a.e('ds_read_b128 v[24:27], v3 offset:16')
            a.e('s_mov_b32 s65, 0')
            a.e('H_nspin:')
            a.e('v_readfirstlane_b32 s71, v78')
            a.e('s_cmp_eq_u32 s71, 0')
            a.e('s_cbranch_scc1 H_nre')
            with a.cold():
                a.e('H_nre:')
                a.e('s_add_u32 s65, s65, 1')
                a.e('s_cmp_ge_u32 s65, 200000')
                a.e('s_cbranch_scc1 H_nok')
                a.e('s_sleep 4')
                a.e('buffer_load_dword v78, v79, %s, 0 offen sc1' % sr(S_DBG, 4))
                a.e('s_waitcnt vmcnt(0)')
                a.e('s_branch H_nspin')
            a.e('H_nok:')
            a.e('s_lshl_b32 s64, s2, 3')
            a.e('s_add_u32 s64, s64, %d', WS_KEY)
            a.e('v_mov_b32 v3, s64')
            a.e('s_waitcnt lgkmcnt(0)')
            a.e('v_max3_u32 v72, v72, v73, v74')
            a.e('v_max3_u32 v24, v24, v25, v26')
            a.e('v_max3_u32 v72, v72, v75, v27')
            a.e('v_max_u32 v72, v72, v24')
            a.e('v_xor_b32 v73, s71, v72')
            a.e('s_mov_b64 exec, 1')
            a.vm_uncounted('buffer_store_dwordx2 v[72:73], v3, %s, 0 offen' % WSR + WT)
            a.e('s_mov_b64 exec, -1')
            a.e('H_nk:')
        if i == PB + 1:
            h0_only('H_nw')
            a.e('ds_write_b32 v7, v3')
            a.e('H_nw:')
        if i == E('PFO', 99):
            srd(a, S_GW, 44, 2097152)
            a.e('s_lshl_b32 s64, s2, 13')
            a.e('s_lshl_b32 s65, s6, 11')
            a.e('s_add_u32 s64, s64, s65')
            for q in range(2):
                a.vm_issue('t', 'buffer_load_dwordx4 v[56:59], v%d, %s, s64 offen offset:%d', V16, sr(S_GW, 4), q * 1024)
        PFL = [int(c, 16) for c in os.environ.get('PFL', '')]
        if i in PFL:
            n = 8 // len(PFL)
            srd(a, S_GW, 44, 2097152)
            a.e('s_lshr_b32 s64, s2, 3')
            a.e('s_lshl_b32 s64, s64, 2')
            a.e('s_add_u32 s64, s64, s6')
            a.e('s_lshl_b32 s64, s64, 14')
            a.e('s_bfe_u32 s65, s2, 0x10002')
            a.e('s_lshl_b32 s65, s65, 10')
            a.e('s_add_u32 s64, s64, s65')
            a.e('s_add_u32 s64, s64, %d', PFL.index(i) * n * 2048)
            for q in range(n):
                a.vm_issue('t', 'buffer_load_dwordx4 v[56:59], v%d, %s, s64 offen', V16, sr(S_GW, 4))
                a.e('s_add_u32 s64, s64, 2048')
        SPD = [int(c, 16) for c in os.environ.get('SPD', '')]
        if i in SPD:
            if i == SPD[0]:
                a.e('s_lshr_b32 s64, s2, 2')
                a.e('s_mul_i32 s64, s64, %d', 56 * 2048)
                a.e('s_and_b32 s65, s2, 3')
                a.e('s_lshl_b32 s65, s65, 9')
                a.e('s_add_u32 s64, s64, s65')
                a.e('s_lshl_b32 s65, s6, 7')
                a.e('s_add_u32 s64, s64, s65')
                a.e('s_add_u32 s46, s54, s64')
                a.e('s_addc_u32 s47, s55, 0')
            per = -(-56 // len(SPD))
            for r in range(SPD.index(i) * per, min(56, (SPD.index(i) + 1) * per)):
                for h in (0, 64):
                    a.e('s_load_dword s43, s[46:47], %d', r * 2048 + h)
        if i == E('SC', -1):
            scode(a, 6)
        if i == E('STG', 99):
            slow_touch(S_WG, 7168, [t * 1024 + 384 + h for t in range(7) for h in (0, 64)])
        if i == E('STU', 99):
            slow_touch(S_WU, 7168, [t * 1024 + 384 + h for t in range(7) for h in (0, 64)])
        if i == E('STD', 99):
            slow_touch(54, 7168, [t * 1024 + 384 + h for t in range(7) for h in (0, 64)])
        if i == E('STO', 7):
            slow_touch(44, 2048, [t * 1024 + 384 + h for t in range(2) for h in (0, 64)])
        if i in wsched:
            wload(wsched[i])
        if i == D0:
            wd_addr()
        if i in dsched and 'now' not in EXP:
            for j in dsched[i]:
                a.e('s_mov_b32 s64, %d', j * 16384)
                a.vm_issue('wd', 'buffer_load_dwordx4 %s, v%d, %s, s64 offen' + NTW, vr(WD + 4 * j, 4), VWD, sr(S_WD, 4))
        if i == max(gv):
            gemv1_fin()

    def wo_setup():
        p2_ids(a)
        srd(a, S_WO, 44, 2097152)
        wo_voff(a, VOW, 7, 9, 6)
    EW = E('EW', 99)
    WOSS = {EW: (0, 8), EW + 3: (1, 9), 13: (2, 10), 14: (3, 11), 15: (4, 12, 5, 13, 6, 14, 7, 15)}
    if os.environ.get('EWS') == 'b':
        WOSS = {EW: (0, 8, 1, 9), 13: (2, 10), 14: (3, 11), 15: (4, 12, 5, 13, 6, 14, 7, 15)}
    if TR2:
        EW = 1
    for i in range(min(EW, 16)):
        stage(i, False)
    if EW < 13:
        if TR2 and 'c3v' in EXP:
            a.e('s_and_b32 s64, s5, 7')
            a.e('s_cmp_eq_u32 s64, 3')
        elif TR2:
            a.e('s_bitcmp1_b32 s2, %d', E('TRB', 3))
        else:
            a.e('s_lshr_b32 s64, s2, 5')
            a.e('s_cmp_eq_u32 s64, 3')
        a.e('s_cbranch_scc1 H_slow')
        st_ = (list(a.vm), a.issued, dict(marks), list(nxt))
        main, cold0 = a.lines, list(getattr(a, 'cold_lines', []))
        a.lines, a.cold_lines = [], []
        a.e('H_slow:')
        for i in range(EW, 16):
            stage(i, not TR2, mk_sched(TR2) if TR2 else None)
        a.e('s_branch H_join')
        import re as _re
        ren = lambda ln: _re.sub(r'\b(H_n[a-z]+|H_spin|H_retry)\b', lambda m: m.group(1) + '_S', ln)
        slow_code = [ren(ln) for ln in a.lines + a.cold_lines]
        a.lines, a.cold_lines = main, cold0 + slow_code
        a.vm, a.issued = st_[0], st_[1]
        marks.clear(); marks.update(st_[2]); nxt[:] = st_[3]
        for i in range(EW, 16):
            stage(i, False)
        a.e('H_join:')
    stamp(a, 5)
    if STAMPS == 4:
        a.e('s_waitcnt vmcnt(19)')
        stamp(a, 3, lvl=4)
        a.e('s_waitcnt vmcnt(16)')
        stamp(a, 4, lvl=4)
        a.e('s_waitcnt vmcnt(8)')
        stamp(a, 6, lvl=4)
        a.e('s_waitcnt vmcnt(0)')
        stamp(a, 7, lvl=4)
    if 'gprio' in EXP:
        a.e('s_setprio 3')
    KB, KA, PA = 64, 128, 48
    SL = 40

    def f1_poll():
        a.e('s_mov_b64 exec, 1')
        a.e('v_mov_b32 v20, 0')
        a.e('buffer_atomic_or v20, v23, %s, 0 offen sc0', WSR)
        a.e('s_mov_b64 exec, -1')
    f1_poll()
    lane_off(a, 17, 18)
    a.e('v_add_u32 v17, s70, v17')
    a.e('v_lshrrev_b32 v18, 2, v2')
    a.e('v_mul_u32_u24 v18, %d, v18', KVB)
    a.e('v_and_b32 v19, 3, v2')
    a.e('v_lshl_add_u32 v18, v19, 4, v18')
    a.e('s_add_u32 s64, s70, %d', KVZ)
    a.e('v_add_u32 v18, s64, v18')
    a.e('v_bfe_u32 v26, v2, 3, 1')
    a.e('v_lshl_add_u32 v26, v26, 2, v19')
    a.e('v_bfe_u32 v27, v2, 2, 1')
    a.e('v_lshrrev_b32 v28, 5, v2')
    a.e('v_cmp_eq_u32 vcc, v27, v28')
    a.e('v_and_b32 v27, 16, v2')
    a.e('v_cmp_eq_u32 s[64:65], 0, v27')
    a.e('s_and_b64 vcc, vcc, s[64:65]')
    a.e('v_and_b32 v27, 1, v26')
    a.e('v_lshlrev_b32 v27, 4, v27')
    a.e('v_mov_b32 v28, 0x3f80')
    a.e('v_lshlrev_b32 v27, v27, v28')
    a.e('v_cndmask_b32 v27, 0, v27, vcc')
    a.e('v_lshrrev_b32 v26, 1, v26')
    for q in range(4):
        a.e('v_cmp_eq_u32 vcc, %d, v26', q)
        a.e('s_nop 1')
        a.e('v_cndmask_b32 v%d, 0, v27, vcc', PA + q)
    for r in range(16):
        a.e('v_mov_b32 v%d, 0', KA + r)
    a.e('s_mov_b32 s66, 0xffff')
    a.e('s_mov_b32 s65, 0')
    if 'ht2late' not in EXP:
        a.e('s_waitcnt vmcnt(%d)', 1 + 2 * len(WOS[15]))
        t2_fill(a)
    a.e('s_waitcnt vmcnt(0)')
    a.e('G_loop:')
    a.e('v_readfirstlane_b32 s68, v20')
    if E('SPEC', 0):
        a.e('s_bcnt1_i32_b32 s64, s66')
        a.e('s_cmp_le_u32 s64, %d', E('SPEC', 0))
        a.e('s_cselect_b32 s68, 0xffff, s68')
    a.e('s_and_b32 s68, s68, s66')
    a.e('G_new:')
    a.e('s_andn2_b32 s66, s66, s68')
    if STAMPS == 2:
        a.e('s_memrealtime s[86:87]')
        a.e('s_min_u32 s64, s65, 30')
        a.e('s_lshl_b32 m0, s64, 1')
        a.e('s_waitcnt lgkmcnt(0)')
        a.e('v_writelane_b32 v250, s86, m0')
        a.e('s_add_u32 m0, m0, 1')
        a.e('s_nop 0')
        a.e('v_writelane_b32 v250, s66, m0')
        a.e('v_writelane_b32 v250, s65, 63')
    a.e('s_bcnt1_i32_b32 s67, s68')

    def jump_n(pref):
        def rec(lo, hi, last):
            if lo == hi:
                if not (last and lo == 16):
                    a.e('s_branch %s%d', pref, lo)
                return
            mid = lo if hi - lo < 3 else (lo + hi) // 2
            if mid == lo:
                a.e('s_cmp_eq_u32 s67, %d', lo)
                a.e('s_cbranch_scc1 %s%d', pref, lo)
                rec(lo + 1, hi, last)
            else:
                lab = a.label(pref + 't')
                a.e('s_cmp_gt_u32 s67, %d', mid)
                a.e('s_cbranch_scc1 %s', lab)
                rec(lo, mid, False)
                a.e('%s:', lab)
                rec(mid + 1, hi, last)
        a.e('s_cmp_eq_u32 s67, 0')
        a.e('s_cbranch_scc1 %s0', pref)
        rec(1, 16, True)
    jump_n('G_l')
    for c in range(15, -1, -1):
        a.e('G_l%d:', c + 1)
        a.e('s_ff1_i32_b32 s%d, s68', SL + c)
        a.e('s_bitset0_b32 s68, s%d', SL + c)
        a.e('s_mul_i32 s64, s%d, %d', SL + c, KVB)
        a.e('buffer_load_dwordx4 %s, v17, %s, s64 offen sc1', vr(KB + 4 * c, 4), WSR)
    a.e('G_l0:')
    a.e('s_mov_b32 s68, s66')
    a.e('s_cmp_eq_u32 s66, 0')
    a.e('s_cbranch_scc1 G_z')
    a.e('s_cmp_lg_u32 s67, 0')
    a.e('s_cbranch_scc1 G_p')
    if 'gp2' in EXP:
        f1_poll()
        a.e('s_sleep %d', E('DPS', 6))
        a.e('G_i:')
        for k, (r, o) in enumerate(((21, 20), (20, 21))):
            a.e('s_mov_b64 exec, 1')
            a.e('v_mov_b32 v%d, 0', r)
            a.e('buffer_atomic_or v%d, v23, %s, 0 offen sc0', r, WSR)
            a.e('s_mov_b64 exec, -1')
            a.e('s_waitcnt vmcnt(1)')
            a.e('v_readfirstlane_b32 s68, v%d', o)
            a.e('s_and_b32 s68, s68, s66')
            a.e('s_cbranch_scc1 G_new')
        a.e('s_add_u32 s65, s65, 1')
        a.e('s_cmp_lt_u32 s65, 40000')
        a.e('s_cbranch_scc1 G_i')
        a.e('s_branch G_done')
    a.e('s_sleep %d', E('GSL', 2))
    a.e('G_p:')
    if E('LP', 0):
        a.e('s_bcnt1_i32_b32 s64, s66')
        a.e('s_cmp_gt_u32 s64, %d', E('LP', 0))
        a.e('s_cbranch_scc1 G_pa')
        a.e('s_mov_b64 exec, 1')
        a.e('buffer_load_dword v20, v23, %s, 0 offen sc1', WSR)
        a.e('s_mov_b64 exec, -1')
        a.e('s_branch G_proc')
        a.e('G_pa:')
    f1_poll()
    a.e('s_branch G_proc')
    a.e('G_z:')
    a.e('buffer_load_dwordx4 v[56:59], v18, %s, 0 offen sc1', WSR)
    a.e('G_proc:')

    def g_proc(x, extra):
        jump_n('G_q' + x)
        fails = []
        for c in range(15, -1, -1):
            b = KB + 4 * c
            a.e('G_q%s%d:', x, c + 1)
            a.e('s_waitcnt vmcnt(%d)', c + 1 + extra)
            a.e('v_max3_u32 v21, v%d, v%d, v%d', b, b + 1, b + 2)
            a.e('v_max_u32 v21, v21, v%d', b + 3)
            a.e('v_cmp_eq_u32 vcc, -1, v21')
            a.e('s_cbranch_vccnz G_f%s%d', x, c)
            a.e('v_mfma_f32_32x32x16_bf16 %s, %s, %s, %s', vr(KA, 16), vr(PA, 4), vr(b, 4), vr(KA, 16))
            with a.cold():
                a.e('G_f%s%d:', x, c)
                a.e('s_bitset1_b32 s66, s%d', SL + c)
                a.e('s_branch G_q%s%d', x, c)
        a.e('G_q%s0:', x)
    if 17 in WOS:
        a.e('s_cmp_lg_u32 s65, 0')
        a.e('s_cbranch_scc1 G_pn')
        for p in WOS[17]:
            for b in range(2):
                a.e('s_add_u32 m0, s7, %d', POS[p] + b * 4096)
                a.e('s_mov_b32 s64, %d', (p << 17) + b * 65536)
                a.e('buffer_load_dwordx4 v%d, %s, s64 offen lds', VOW, sr(S_WO, 4))
        g_proc('a', 2 * len(WOS[17]))
        a.e('s_waitcnt vmcnt(%d)', 2 * len(WOS[17]))
        a.e('s_branch G_chk')
        a.e('G_pn:')
    g_proc('', 0)
    a.e('s_waitcnt vmcnt(0)')
    a.e('G_chk:')
    a.e('s_add_u32 s65, s65, 1')
    a.e('s_cmp_ge_u32 s65, 40000')
    a.e('s_cbranch_scc1 G_done')
    a.e('s_cmp_lg_u32 s68, 0')
    a.e('s_cbranch_scc1 G_loop')
    a.e('v_mov_b32 v20, -1')
    a.e('s_cmp_lg_u32 s66, 0')
    a.e('s_cbranch_scc1 G_loop')
    a.e('v_max3_u32 v21, v56, v57, v58')
    a.e('v_max_u32 v21, v21, v59')
    a.e('v_cmp_eq_u32 vcc, -1, v21')
    a.e('s_cbranch_vccnz G_loop')
    a.e('G_done:')
    a.vm = []
    stamp(a, 8)
    a.e('v_add_u32 v16, s7, v%d', V16)
    for pat in ('row_ror:4', 'row_ror:8'):
        for q in range(4):
            a.e('v_add_f32_dpp v%d, v%d, v%d %s row_mask:0xf bank_mask:0xf', 56 + q, 56 + q, 56 + q, pat)
    for swp in ('v_permlane16_swap_b32', 'v_permlane32_swap_b32'):
        for q in range(4):
            a.e('v_mov_b32 v%d, v%d', 64 + q, 56 + q)
        a.e('s_nop 0')
        for q in range(4):
            a.e('%s v%d, v%d', swp, 56 + q, 64 + q)
        for q in range(4):
            a.e('v_add_f32 v%d, v%d, v%d', 56 + q, 56 + q, 64 + q)
    for q in range(4):
        a.e('v_cvt_pk_bf16_f32 v%d, v%d, v%d', 60 + q, KA + 2 * q, KA + 2 * q + 1)
    a.e('ds_write_b128 v16, v[60:63] offset:%d', L_KF)
    a.e('v_cvt_pk_bf16_f32 v56, v56, v57')
    a.e('v_cvt_pk_bf16_f32 v57, v58, v59')
    a.e('s_lshr_b32 s64, s6, 1')
    a.e('s_lshl_b32 s64, s64, 6')
    a.e('s_and_b32 s65, s6, 1')
    a.e('s_lshl_b32 s65, s65, 3')
    a.e('s_add_u32 s64, s64, s65')
    a.e('v_lshl_add_u32 v16, v2, 4, s64')
    a.e('s_mov_b64 exec, 15')
    a.e('ds_write_b64 v16, v[56:57] offset:%d', L_ZF)
    a.e('s_mov_b64 exec, -1')
    a.e('s_waitcnt vmcnt(0) lgkmcnt(0)')
    a.e('s_barrier')
    if 16 in WOS and 'w16l' not in EXP:
        wo_units(WOS[16])
    if 'gprio' in EXP:
        a.e('s_setprio 0')
    a.e('v_lshrrev_b32 v18, 3, v2')
    a.e('v_lshlrev_b32 v18, 2, v18')
    for j in range(7):
        a.e('ds_read_b32 v%d, v18 offset:%d', 24 + j, L_H + 32 * j)
    a.e('s_waitcnt lgkmcnt(0)')
    YA = 32
    if 'g2old' in EXP:
        for j in range(7):
            for q in range(4):
                w = WD + 4 * j + q
                a.e('v_lshlrev_b32 v48, 16, v%d', w)
                a.e('v_and_b32 v49, 0xffff0000, v%d', w)
                if j == 0:
                    a.e('v_mul_f32 v%d, v48, v%d', YA + 2 * q, 24 + j)
                    a.e('v_mul_f32 v%d, v49, v%d', YA + 2 * q + 1, 24 + j)
                else:
                    a.e('v_fmac_f32 v%d, v48, v%d', YA + 2 * q, 24 + j)
                    a.e('v_fmac_f32 v%d, v49, v%d', YA + 2 * q + 1, 24 + j)
    else:
        a.e('s_mov_b32 s64, 0x05040100')
        a.e('s_mov_b32 s65, 0x07060302')
        for jp in range(4):
            a.e('v_cvt_pk_bf16_f32 v%d, v%d, %s', 24 + jp, 24 + 2 * jp, 'v%d' % (25 + 2 * jp) if jp < 3 else '0')
        for jp in range(4):
            for q in range(4):
                w0 = WD + 8 * jp + q
                w1 = w0 + 4 if jp < 3 else w0
                t = 48 + 2 * (q & 1)
                a.e('v_perm_b32 v%d, v%d, v%d, s64', t, w1, w0)
                a.e('v_perm_b32 v%d, v%d, v%d, s65', t + 1, w1, w0)
                for k in range(2):
                    acc = YA + 2 * q + k
                    a.e('v_dot2_f32_bf16 v%d, v%d, v%d, %s', acc, t + k, 24 + jp, '0' if jp == 0 else 'v%d' % acc)
        a.e('s_nop 1')
    a.e('s_nop 1')
    for q in range(4):
        a.e('v_permlane32_swap_b32 v%d, v%d', YA + q, YA + 4 + q)
    for q in range(4):
        a.e('v_add_f32 v%d, v%d, v%d', YA + q, YA + q, YA + 4 + q)
    a.e('s_nop 1')
    for q in range(2):
        a.e('v_permlane16_swap_b32 v%d, v%d', YA + q, YA + 2 + q)
    for q in range(2):
        a.e('v_add_f32 v%d, v%d, v%d', YA + q, YA + q, YA + 2 + q)
    a.e('s_nop 1')
    for q in range(2):
        a.e('v_add_f32_dpp v%d, v%d, v%d row_ror:8 row_mask:0xf bank_mask:0xf', YA + q, YA + q, YA + q)
    a.e('v_and_b32 v16, 7, v2')
    a.e('v_lshlrev_b32 v16, 5, v16')
    a.e('v_lshl_add_u32 v16, v8, 3, v16')
    a.e('s_lshl_b32 s64, s2, 10')
    a.e('s_lshl_b32 s65, s6, 8')
    a.e('s_add_u32 s64, s64, s65')
    a.e('s_add_u32 s64, s64, %d', WS_YP)
    a.e('s_mov_b32 exec_lo, 0x00ff00ff\ns_mov_b32 exec_hi, 0x00ff00ff')
    a.vm_issue('y', 'buffer_store_dwordx2 %s, v16, %s, s64 offen' + WT, vr(YA, 2), WSR)
    a.e('s_mov_b64 exec, -1')
    stamp(a, 9)
    if 16 in WOS and 'w16l' in EXP:
        wo_units(WOS[16])
    if 'latep' not in EXP:
        f2_poll_first(a)
    if 'ht2late' in EXP:
        t2_fill(a)
    global HSYNC
    HSYNC = 16 in WOS
    a.e('v_mov_b32 v254, v14')
    a.e('s_branch P2_start')


def gen_c1(a):
    a.e('C_start:')
    TOUCH = E('TOUCH', 0)
    if TOUCH:
        a.e('s_mul_i32 s64, s2, 24576')
        a.e('s_mul_i32 s65, s3, 6144')
        a.e('s_add_u32 s64, s64, s65')
        a.e('v_mul_u32_u24 v3, %d, v2', TOUCH)
        a.e('s_mov_b32 exec_hi, 0xffff')
        for q in range(128 // TOUCH):
            a.vm_issue('t', 'buffer_load_dword v60, v3, %s, s64 offen offset:%d', sr(S_W, 4), q * 3072)
        a.e('s_mov_b32 exec_hi, -1')
    if 'cscode' in EXP:
        scode(a, 3)
    M16 = 'v_mfma_f32_16x16x32_bf16'
    VAB, VBB, VA, VB = 4, 6, 8, 10
    BF = [16, 40]
    AB = [192, 208]
    QA, KA_, VA_ = 64, 96, 128
    qt = lambda sb, db: QA + (sb * 2 + db) * 4
    kt = lambda base, sb, db: base + (((sb >> 1) * 2 + db) * 2 + (sb & 1)) * 4
    X = 224
    ONES = 236
    a.e('s_and_b32 s6, s3, 1')
    a.e('s_lshr_b32 s7, s3, 1')
    a.e('v_and_b32 v3, 15, v2')
    a.e('s_lshl_b32 s64, s6, 6')
    a.e('v_add_u32 v3, s64, v3')
    a.e('v_lshlrev_b32 v3, 7, v3')
    a.e('v_add_u32 v3, %d, v3', RB)
    a.e('v_bfe_u32 v56, v2, 1, 3')
    a.e('v_lshrrev_b32 v57, 4, v2')
    a.e('v_xor_b32 v56, v56, v57')
    a.e('v_lshl_add_u32 v%d, v56, 4, v3', VAB)
    a.e('v_xor_b32 v%d, 64, v%d', VAB + 1, VAB)
    a.e('v_bfe_u32 v56, v2, 2, 2')
    a.e('v_lshl_add_u32 v58, v57, 3, v56')
    a.e('v_lshlrev_b32 v58, 7, v58')
    a.e('v_lshrrev_b32 v56, 1, v56')
    a.e('v_xor_b32 v56, s7, v56')
    a.e('v_lshl_add_u32 v58, v56, 6, v58')
    a.e('v_and_b32 v57, 1, v57')
    a.e('v_lshl_add_u32 v58, v57, 5, v58')
    a.e('v_and_b32 v56, 3, v2')
    a.e('v_lshl_add_u32 v58, v56, 3, v58')
    a.e('v_add_u32 v%d, %d, v58', VBB, RB + 16384)
    a.e('v_xor_b32 v%d, 32, v%d', VBB + 1, VBB)
    for t in range(2):
        a.e('v_mov_b32 v%d, v%d', VA + t, VAB + t)
        a.e('v_mov_b32 v%d, v%d', VB + t, VBB + t)
    for r in range(64, 160):
        a.e('v_mov_b32 v%d, 0', r)
    a.e('s_lshl_b32 s64, s3, 2')
    a.e('v_mov_b32 v%d, s64', X + 5)
    a.e('ds_write_b32 v%d, v64 offset:%d', X + 5, L_FLG)
    a.e('ds_write_b32 v%d, v64 offset:%d', X + 5, L_FLG + 16)
    a.e('v_lshlrev_b32 v3, 4, v2')
    a.e('s_lshl_b32 s64, s3, 11')
    a.e('v_add_u32 v%d, s64, v3', X)
    a.e('v_xor_b32 v%d, 2048, v%d', X + 1, X)
    a.e('s_lshl_b32 s64, s3, 8')
    a.e('v_lshl_add_u32 v%d, v2, 2, s64', X + 3)
    a.e('v_xor_b32 v%d, 256, v%d', X + 4, X + 3)
    a.e('v_xor_b32 v%d, 4, v%d', X + 6, X + 5)
    a.e('v_mov_b32 v%d, 1', X + 7)
    a.e('v_lshlrev_b32 v%d, 2, v2', X + 8)
    a.e('s_lshl_b32 s64, 1, s4')
    a.e('v_mov_b32 v%d, s64', X + 9)
    a.e('s_lshl_b32 s43, s5, 2')
    a.e('s_add_u32 s43, s43, s3')
    a.e('s_lshl_b32 s64, s43, %d', FS)
    a.e('s_add_u32 s64, s64, %d', WS_F1)
    a.e('v_mov_b32 v%d, s64', X + 10)
    a.e('s_lshl_b32 s43, s43, 4')
    a.e('s_add_u32 s43, s43, s4')
    a.e('s_mul_i32 s43, s43, %d', KVB)
    a.e('s_add_u32 s43, s43, %d', WS_KVP)
    a.e('s_lshl_b32 s42, s4, 2')
    a.e('s_lshl_b32 s64, s6, 1')
    a.e('s_add_u32 s42, s42, s64')
    a.e('s_lshl_b32 s42, s42, 5')
    a.e('s_lshl_b32 s64, s5, 1')
    a.e('s_add_u32 s42, s42, s64')
    a.e('s_add_u32 s42, s42, s7')
    a.e('s_lshl_b32 s42, s42, %d', PS + 1)
    a.e('s_and_b32 s64, s5, 7')
    a.e('s_lshl_b32 s64, s64, 1')
    a.e('s_add_u32 s64, s64, s7')
    a.e('s_lshl_b32 s64, 1, s64')
    a.e('v_mov_b32 v13, s64')
    a.e('s_lshr_b32 s64, s5, 3')
    a.e('s_lshl_b32 s64, s64, 1')
    a.e('s_add_u32 s64, s64, s6')
    a.e('s_lshl_b32 s64, s64, %d', FS + 1)
    a.e('s_lshl_b32 s65, s4, %d', FS + 3)
    a.e('s_add_u32 s64, s64, s65')
    a.e('s_add_u32 s64, s64, %d', WS_F2)
    a.e('v_lshl_add_u32 v15, v2, %d, s64', FS)
    lane_off(a, 1, 56)
    p2_ids(a)
    a.e('s_mov_b32 s65, 0')
    a.e('s_mov_b32 s66, 0')
    for r in range(4):
        a.e('v_mov_b32 v%d, 0x3f803f80', ONES + r)

    def reads(st, buf, areg, q=True):
        B = lambda ty, cb: ['ds_read_b64_tr_b16 %s, v%d offset:%d' % (vr(BF[buf] + 8 * ty + 4 * cb + 2 * tt, 2), VB + cb, ty * 8192 + st * 4096 + tt * 512)
                            for tt in range(2)]
        A = ['ds_read_b128 %s, v%d offset:%d' % (vr(areg + 4 * b, 4), VA + st, b * 2048) for b in range(4)]
        L = []
        for ty in ((0, 1, 2) if q else (1, 2)):
            for cb in range(2):
                L += B(ty, cb)
        return L[:2] + A + L[2:]

    def mfmas(buf, areg, q=True):
        L = []
        tys = (0, 1, 2) if q else (1, 2)
        order = [(ty, cb, b) for ty in tys for cb in range(2) for b in range(4)]
        if 'ordb' in EXP:
            order = [(ty, cb, b) for b in range(4) for ty in tys for cb in range(2)]
        if 'ords' in EXP:
            order = [(ty, cb, b if (2 * k + cb) % 2 == 0 else 3 - b) for k, ty in enumerate(tys) for cb in range(2) for b in range(4)]
        for (ty, cb, b) in order:
            if True:
                w = vr(BF[buf] + 8 * ty + 4 * cb, 4)
                if True:
                    x = vr(areg + 4 * b, 4)
                    if ty == 0:
                        d = vr(qt(b, cb), 4)
                        L.append('%s %s, %s, %s, %s' % (M16, d, w, x, d))
                    else:
                        d = vr(kt(KA_ if ty == 1 else VA_, b, cb), 4)
                        L.append('%s %s, %s, %s, %s' % (M16, d, x, w, d))
        return L

    def bar_stamped():
        if STAMPS == 2:
            a.e('s_memtime s[68:69]')
        a.e('s_barrier')
        if STAMPS == 2:
            a.e('s_memtime s[70:71]')
            a.e('s_waitcnt lgkmcnt(0)')
            a.e('s_mov_b32 m0, s66')
            a.e('s_nop 0')
            a.e('v_writelane_b32 v14, s68, m0')
            a.e('s_add_u32 m0, s66, 16')
            a.e('s_nop 0')
            a.e('v_writelane_b32 v14, s70, m0')
            a.e('s_memrealtime s[70:71]')
            a.e('s_add_u32 m0, s66, 32')
            a.e('s_waitcnt lgkmcnt(0)')
            a.e('v_writelane_b32 v14, s70, m0')

    def step(M, F):
        for i, m_ in enumerate(M):
            a.e(m_)
            if i < len(F):
                a.e(F[i])
        for f in F[len(M):]:
            a.e(f)

    stamp(a, 3)
    a.vm_wait('d0', 'lgkmcnt(0)')
    stamp(a, 4)
    a.e('s_barrier')
    for r in reads(0, 0, AB[0]):
        a.e(r)
    ND = E('ND', 2)
    a.e('.p2align 3')
    a.e('C_loop:')
    a.e('s_waitcnt lgkmcnt(0)')
    step(mfmas(0, AB[0]), reads(1, 1, AB[1]))
    a.e('s_waitcnt lgkmcnt(0)')
    bar_stamped()
    a.e('s_add_u32 s65, s65, %d', SLOT)
    a.e('s_cmp_eq_u32 s65, %d', 3 * SLOT)
    a.e('s_cselect_b32 s65, 0, s65')
    AD = ['v_add_u32 v%d, s65, v%d' % (r + 4, r) for r in (VBB, VAB, VBB + 1, VAB + 1)]
    R = reads(0, 0, AB[0])
    step(mfmas(1, AB[1]), [AD[0] + '\n' + AD[1]] + R[:6] + [AD[2]] + R[6:] + [AD[3]])
    a.e('s_add_u32 s66, s66, 1')
    a.e('s_cmp_lt_u32 s66, %d', 16 - ND)
    a.e('s_cbranch_scc1 C_loop')
    AR = {(14, 0): 192, (14, 1): 160, (15, 0): 176, (15, 1): 208}
    if ND:
        a.e('s_waitcnt lgkmcnt(0)')
        step(mfmas(0, AR[14, 0], False), reads(1, 1, AR[14, 1], False))
        a.e('s_waitcnt lgkmcnt(0)')
        bar_stamped()
        a.e('s_add_u32 s66, s66, 1')
        AD = ['v_mov_b32 v%d, v%d' % (r + 4, r) for r in (VBB, VAB, VBB + 1, VAB + 1)]
        R = reads(0, 0, AR[15, 0], False)
        step(mfmas(1, AR[14, 1], False), [AD[0] + '\n' + AD[1]] + R[:2] + [AD[2] + '\n' + AD[3]] + R[2:])
        a.e('s_waitcnt lgkmcnt(0)')
        step(mfmas(0, AR[15, 0], False), reads(1, 1, AR[15, 1], False))
        a.e('s_waitcnt lgkmcnt(0)')
        bar_stamped()
        step(mfmas(1, AR[15, 1], False), [])
    a.vm = []
    stamp(a, 5)
    PK = [16, 24]; VBF = [32, 40]; T0, T1, E0, E1, MN = 48, 49, 50, 51, 56
    KVA = 240; ZA = [96, 60]
    if not ND:
        a.e('s_waitcnt lgkmcnt(0)')
    for cb in range(2):
        a.e('v_add_u32 v%d, %d, v%d', VB + cb, 2 * SLOT, VBB + cb)
    for p in range(2):
        if 'pkphi' in EXP:
            if p == 0:
                a.e('s_mov_b32 s68, s%d', S_LOG2E)
                a.e('s_mov_b32 s69, s%d', S_LOG2E)
                a.e('s_mov_b32 s70, 1.0')
                a.e('s_mov_b32 s71, 1.0')
            phi16_pk(a, KA_ + 16 * p, PK[p], MN, 68)
        else:
            phi16(a, KA_ + 16 * p, PK[p], T0, T1, E0, E1, MN)
        for j in range(8):
            a.e('v_cvt_pk_bf16_f32 v%d, v%d, v%d', VBF[p] + j, VA_ + 16 * p + 2 * j, VA_ + 16 * p + 2 * j + 1)
            if j in (1, 2):
                db = j - 1
                a.e('%s %s, %s, %s, %s', M16, vr(ZA[db], 4), vr(ONES, 4), vr(PK[p] + 4 * db, 4), '0' if p == 0 else vr(ZA[db], 4))
            if j in (5, 6):
                db = j - 5
                d = vr(KVA + db * 4, 4)
                a.e('%s %s, %s, %s, %s', M16, d, vr(PK[p] + 4 * db, 4), vr(VBF[p], 4), '0' if p == 0 else d)
        a.e('s_nop 1')
        for db in range(2):
            d = vr(KVA + 8 + db * 4, 4)
            a.e('%s %s, %s, %s, %s', M16, d, vr(PK[p] + 4 * db, 4), vr(VBF[p] + 4, 4), '0' if p == 0 else d)
    a.e('s_cmp_eq_u32 s6, 0')
    a.e('s_cbranch_scc0 C_ex1')
    a.e('ds_write_b32 v%d, v%d offset:%d', X + 3, ZA[1], L_ZX)
    a.e('s_nop 5')
    a.e('ds_write_b128 v%d, %s offset:%d', X, vr(KVA + 8, 4), L_EX)
    a.e('ds_write_b128 v%d, %s offset:%d', X, vr(KVA + 12, 4), L_EX + 1024)
    a.e('C_ex2:')
    with a.cold():
        a.e('C_ex1:')
        a.e('ds_write_b32 v%d, v%d offset:%d', X + 3, ZA[0], L_ZX)
        a.e('ds_write_b128 v%d, %s offset:%d', X, vr(KVA, 4), L_EX)
        a.e('ds_write_b128 v%d, %s offset:%d', X, vr(KVA + 4, 4), L_EX + 1024)
        a.e('s_nop 4')
        a.e('v_mov_b32 v%d, v%d', ZA[0], ZA[1])
        for r in range(8):
            a.e('v_mov_b32 v%d, v%d', KVA + r, KVA + 8 + r)
        a.e('s_branch C_ex2')
    a.e('ds_write_b32 v%d, v%d offset:%d', X + 5, X + 7, L_FLG)
    a.e('C_ps:')
    a.e('ds_read_b32 v25, v%d offset:%d', X + 6, L_FLG)
    a.e('ds_read_b128 v[16:19], v%d offset:%d', X + 1, L_EX)
    a.e('ds_read_b128 v[20:23], v%d offset:%d', X + 1, L_EX + 1024)
    a.e('ds_read_b32 v24, v%d offset:%d', X + 4, L_ZX)
    a.e('s_waitcnt lgkmcnt(0)')
    a.e('v_cmp_eq_u32 vcc, 0, v25')
    a.e('s_cbranch_vccnz C_ps')
    for r in range(8):
        a.e('v_add_f32 v%d, v%d, v%d', 16 + r, 16 + r, KVA + r)
    a.e('v_add_f32 v24, v24, v%d', ZA[0])
    for r in range(4):
        a.e('v_cvt_pk_bf16_f32 v%d, v%d, v%d', 28 + r, 16 + 2 * r, 17 + 2 * r)
    a.vm_issue('kvp', 'buffer_store_dwordx4 v[28:31], v1, %s, s43 offen' + WT, WSR)
    a.e('s_mov_b64 exec, 0xffff')
    a.vm_issue('kvp', 'buffer_store_dword v24, v%d, %s, s43 offen offset:%d' + WT, X + 8, WSR, KVZ)
    a.e('s_mov_b64 exec, 1')
    a.vm_issue('f1', 'buffer_atomic_or v%d, v%d, %s, 0 offen', X + 9, X + 10, WSR)
    a.e('s_mov_b64 exec, -1')
    stamp(a, 6)
    if STAMPS == 2:
        a.e('v_mov_b32 v250, v14')
    if ND:
        steps = [(14, 0), (14, 1), (15, 0), (15, 1)]
        for n, (sg, st) in enumerate(steps):
            for cb in range(2):
                for tt in range(2):
                    a.e('ds_read_b64_tr_b16 %s, v%d offset:%d', vr(96 + 8 * n + 4 * cb + 2 * tt, 2), (VB if sg == 14 else VBB) + cb, st * 4096 + tt * 512)
        for n, (sg, st) in enumerate(steps):
            a.e('s_waitcnt lgkmcnt(%d)', 12 - 4 * n)
            for cb in range(2):
                for b in range(4):
                    d = vr(qt(b, cb), 4)
                    a.e('%s %s, %s, %s, %s', M16, d, vr(96 + 8 * n + 4 * cb, 4), vr(AR[sg, st] + 4 * b, 4), d)
    stamp(a, 7)
    a.e('v_mov_b32 v254, v15')
    a.e('v_mov_b32 v255, v13')
    if 'hplate' not in EXP:
        a.e('s_cmp_lg_u32 s3, 0')
        a.e('s_cbranch_scc1 C_nh0')
        hp_loads(a)
        a.e('C_nh0:')
    xo_loads(a)
    a.e('v_lshlrev_b32 v3, 4, v2')
    a.e('s_lshl_b32 s64, s7, 11')
    a.e('v_add_u32 v4, s64, v3')
    a.e('v_lshrrev_b32 v5, 4, v2')
    a.e('v_lshlrev_b32 v5, 4, v5')
    a.e('s_lshl_b32 s64, s7, 6')
    a.e('v_add_u32 v5, s64, v5')
    a.e('v_mov_b32 v6, %d', L_KEY + 32)
    a.e('ds_read_b32 v6, v6')
    PQ = 32
    for p in range(2):
        phi16(a, QA + 16 * p, PQ + 8 * p, T0, T1, E0, E1, MN)
    a.e('s_waitcnt lgkmcnt(0)')
    a.e('v_readfirstlane_b32 s75, v6')
    a.vm_wait('xo')
    t2_fill(a)
    a.e('s_cmp_lg_u32 s3, 0')
    a.e('s_cbranch_scc1 C_nh')
    stamp(a, 3, lvl=4)
    if 'hplate' in EXP:
        hp_loads(a)
        a.e('s_waitcnt vmcnt(0)')
    h_compute(a)
    stamp(a, 4, lvl=4)
    if STAMPS == 4:
        a.e('s_mov_b32 s88, s65')
        a.e('s_mov_b32 s89, 0')
    a.e('s_waitcnt lgkmcnt(0)')
    a.e('C_nh:')
    a.e('v_lshlrev_b32 v3, 4, v2')
    a.e('s_barrier')
    stamp(a, 8)
    KF, ZF = 16, 24
    NA, DA, OF = 64, 96, 128
    a.e('ds_read_b128 %s, v5 offset:%d', vr(ZF, 4), L_ZF)
    a.e('ds_read_b128 %s, v4 offset:%d', vr(KF, 4), L_KF)
    a.e('ds_read_b128 %s, v4 offset:%d', vr(KF + 4, 4), L_KF + 1024)
    a.e('s_waitcnt lgkmcnt(2)')
    for sb in range(4):
        a.e('%s %s, %s, %s, 0', M16, vr(DA + 4 * sb, 4), vr(ZF, 4), vr(PQ + 4 * sb, 4))
    a.e('s_waitcnt lgkmcnt(0)')
    for sb in range(4):
        for eb in range(2):
            a.e('%s %s, %s, %s, 0', M16, vr(NA + 8 * sb + 4 * eb, 4), vr(KF + 4 * eb, 4), vr(PQ + 4 * sb, 4))
    D = [48 + sb for sb in range(4)]
    for sb in range(4):
        a.e('v_cvt_pk_bf16_f32 v%d, v%d, v%d', D[sb], DA + 4 * sb, DA + 4 * sb)
    for d in D:
        a.e('v_lshlrev_b32 v%d, 16, v%d', d, d)
    for d in D:
        a.e('v_add_f32 v%d, s%d, v%d', d, S_EPS, d)
    for d in D:
        a.e('v_cvt_pk_bf16_f32 v%d, v%d, v%d', d, d, d)
    for d in D:
        a.e('v_lshlrev_b32 v%d, 16, v%d', d, d)
    for d in D:
        a.e('v_rcp_f32 v%d, v%d', d, d)
    a.e('s_nop 0')
    for sb in range(4):
        for j in range(4):
            r = NA + 8 * sb + 2 * j
            a.e('v_mul_f32 v%d, v%d, v%d', r, r, D[sb])
            a.e('v_mul_f32 v%d, v%d, v%d', r + 1, r + 1, D[sb])
            a.e('v_cvt_pk_bf16_f32 v%d, v%d, v%d', OF + 4 * sb + j, r, r + 1)
        a.vm_issue('o', 'buffer_store_dwordx4 %s, v1, %s, s42 offen offset:%d' + WT, vr(OF + 4 * sb, 4), WSR, (sb & 1) << PS)
        if sb == 1:
            a.e('s_add_u32 s42, s42, %d', 64 << PS)
    if 'noack' in EXP:
        a.e('s_mov_b64 exec, 3')
        a.e('buffer_atomic_or v255, v254, %s, 0 offen', WSR)
        a.e('s_mov_b64 exec, -1')
        stamp(a, 9)
    f2_poll_first(a)


def gen_p2(a):
    a.e('P2_start:')
    a.vm = []
    a.e('s_and_b32 s6, s3, 3')
    a.e('s_lshr_b32 s7, s3, 2')
    srd(a, S_OUT, 58, 4194304)
    a.e('s_and_b32 s67, s75, 0x7ff')
    a.e('s_sub_u32 s67, 2047, s67')
    VO, VO2 = 4, 12
    a.e('s_lshl_b32 s64, s4, 2')
    a.e('s_add_u32 s64, s64, s6')
    a.e('s_lshl_b32 s64, s64, %d', PS + 6)
    a.e('s_lshl_b32 s65, s7, %d', PS + 5)
    a.e('s_add_u32 s64, s64, s65')
    a.e('s_lshl_b32 s65, s7, %d', PS)
    a.e('s_add_u32 s66, s64, s65')
    a.e('s_xor_b32 s64, s66, %d', 1 << PS)
    lane_off(a, VO2, VO)
    a.e('v_add_u32 v%d, s66, v%d', VO, VO2)
    a.e('v_add_u32 v%d, s64, v%d', VO2, VO2)
    M16 = 'v_mfma_f32_16x16x32_bf16'
    VWL = [5, 6, 1, 3]; VW = [8, 9, 10, 11]
    a.e('v_lshrrev_b32 v10, 4, v2')
    a.e('v_bfe_u32 v11, v2, 2, 2')
    a.e('v_lshl_add_u32 v10, v10, 2, v11')
    a.e('v_bfe_u32 v13, v10, 1, 2')
    a.e('v_lshlrev_b32 v10, 7, v10')
    a.e('v_lshl_add_u32 v10, v13, 5, v10')
    a.e('v_and_b32 v13, 3, v2')
    a.e('v_lshl_add_u32 v%d, v13, 3, v10', VWL[0])
    for nb in range(1, 4):
        a.e('v_xor_b32 v%d, %d, v%d', VWL[nb], 32 * nb, VWL[0])
    SB = 32
    VT, VF, VP = 7, 14, 15
    if 'latep' in EXP:
        f2_poll_first(a)

    def poll():
        return ['s_mov_b64 exec, 1', 'v_mov_b32 v%d, 0' % VP,
                'buffer_atomic_or v%d, v%d, %s, 0 offen sc0' % (VP, VF, WSR), 's_mov_b64 exec, -1']
    a.e('s_and_b32 s74, s5, %d', 3 if os.environ.get('P2MAP') == 'c' else 7)
    a.e('s_lshl_b32 s74, s74, %d', 2 if os.environ.get('P2MAP') == 'c' else 1)
    a.e('s_cmp_eq_u32 s7, 0')
    for j in range(8):
        a.e('s_mov_b32 s64, %d', POS[8 + j])
        a.e('s_cselect_b32 s64, %d, s64', POS[j])
        a.e('s_sub_u32 m0, %d, s74', 2 * j + 16)
        a.e('s_and_b32 m0, m0, 15')
        a.e('v_writelane_b32 v%d, s64, m0', VT)
        a.e('s_cmp_eq_u32 s7, 0')
    ACO = [16, 32]
    WOF = [48, 64]
    OB = 80
    YL = 208
    for r in range(16, 48):
        a.e('v_mov_b32 v%d, 0', r)
    if 'p2prio' in EXP:
        a.e('s_cmp_lt_u32 s3, 4')
        a.e('s_cbranch_scc1 P2_np')
        a.e('s_setprio 1')
        a.e('P2_np:')
    if STAMPS == 2:
        a.e('s_mov_b32 s71, 0')
        for l in range(48, 64):
            a.e('v_writelane_b32 v250, 0, %d', l)
    a.e('v_mov_b32 v209, 0')
    a.e('v_mov_b32 v215, 0')
    a.e('s_lshr_b32 s46, s67, 7')
    a.e('s_xor_b32 s46, s46, s4')
    a.e('s_or_b32 s46, s46, s7')
    a.e('s_mov_b32 s47, 0')
    a.e('s_cbranch_scc0 P2_ys')
    with a.cold():
        a.e('P2_ys:')
        a.e('v_lshrrev_b32 v13, 4, v2')
        a.e('v_lshlrev_b32 v13, 12, v13')
        a.e('v_and_b32 v208, 15, v2')
        a.e('v_lshl_add_u32 v13, v208, 4, v13')
        a.e('s_lshl_b32 s64, s5, 8')
        a.e('s_lshl_b32 s65, s3, 16')
        a.e('s_add_u32 s64, s64, s65')
        a.e('v_add_u32 v13, s64, v13')
        a.e('s_lshl_b32 s64, s67, 11')
        a.e('s_lshl_b32 s65, s5, 7')
        a.e('s_add_u32 s64, s64, s65')
        a.e('v_lshl_add_u32 v209, v2, 1, s64')
        a.e('s_lshl_b32 s64, s67, 2')
        a.e('s_add_u32 s64, s64, %d', WS_G)
        a.e('v_mov_b32 v215, s64')
        a.e('s_branch P2_ysd')
    a.e('P2_ysd:')
    a.e('s_mov_b32 s66, 0x5555')
    a.e('s_mov_b32 s65, 0')
    stamp(a, 10)

    def issue(c):
        L = ['s_ff1_i32_b32 s64, s68', 's_bitset0_b32 s68, s64', 'v_readlane_b32 s%d, v%d, s64' % (SB + c, VT),
             's_add_u32 s69, s64, s74', 's_and_b32 s69, s69, 15', 's_lshl_b32 s69, s69, %d' % (PS + 1) + ('\ns_mov_b32 s%d, s69' % (48 + c) if 'noack' in EXP else '')]
        for q in range(4):
            L.append(('s_add_u32 s69, s69, %d\n' % (2 << PS) if q == 2 else '') +
                     'buffer_load_dwordx4 %s, v%d, %s, s69 offen sc1' % (vr(OB + 16 * c + 4 * q, 4), VO2 if q & 1 else VO, WSR))
        return L

    def wo_reads(c, u):
        L = []
        for nb in range(4):
            if u == 0:
                L.append('v_add_u32 v%d, s%d, v%d' % (VW[nb], SB + c, VWL[nb]))
            for tt in range(2):
                L.append('ds_read_b64_tr_b16 %s, v%d offset:%d' % (vr(WOF[u] + 4 * nb + 2 * tt, 2), VW[nb], u * 4096 + tt * 2048))
        return L

    def Mm(c, u):
        L = []
        for nb in range(4):
            for sub in range(2):
                d = vr(16 + (sub * 4 + nb) * 4, 4)
                L.append('%s %s, %s, %s, %s' % (M16, d, vr(WOF[u] + 4 * nb, 4), vr(OB + 16 * c + 8 * u + 4 * sub, 4), d))
        return L

    if 'noack' not in EXP:
        a.e('s_cmp_lt_u32 s3, 4')
        a.e('s_cbranch_scc0 %s', 'D_hs' if HSYNC else 'D_wait')
        a.e('s_waitcnt vmcnt(1)')
        a.e('s_mov_b64 exec, 3')
        a.e('buffer_atomic_or v255, v254, %s, 0 offen', WSR)
        a.e('s_mov_b64 exec, -1')
        stamp(a, 9)
        a.e('s_waitcnt vmcnt(1)')
        a.e('s_branch D_got')
        if HSYNC:
            a.e('D_hs:')
            a.e('v_mov_b32 v217, %d', L_FLG + 20)
            a.e('v_mov_b32 v218, 1')
            a.e('s_waitcnt vmcnt(1)')
            a.e('s_mov_b64 exec, 1')
            a.e('ds_add_u32 v217, v218')
            a.e('s_mov_b64 exec, -1')
            a.e('D_hw:')
            a.e('ds_read_b32 v218, v217')
            a.e('s_waitcnt lgkmcnt(0)')
            a.e('v_cmp_gt_u32 vcc, 4, v218')
            a.e('s_cbranch_vccnz D_hw')
    a.e('D_wait:')
    a.e('s_waitcnt vmcnt(0)')
    a.e('D_got:')
    a.e('v_readfirstlane_b32 s68, v%d', VP)
    a.e('s_mul_i32 s68, s68, 0x10001')
    a.e('s_lshr_b32 s68, s68, s74')
    a.e('s_lshr_b32 s64, s68, 1')
    a.e('s_and_b32 s68, s68, s64')
    a.e('s_and_b32 s68, s68, s66')
    a.e('s_cbranch_scc1 D_go')
    a.e('s_add_u32 s65, s65, 1')
    a.e('s_cmp_ge_u32 s65, 40000')
    a.e('s_cbranch_scc1 D_end')
    if 'dp2' in EXP:
        for p in poll():
            a.e(p)
        a.e('s_sleep %d', E('DPS', 6))
        a.e('D_i:')
        for k, (r, o) in enumerate(((216, VP), (VP, 216))):
            a.e('s_mov_b64 exec, 1')
            a.e('v_mov_b32 v%d, 0', r)
            a.e('buffer_atomic_or v%d, v%d, %s, 0 offen sc0', r, VF, WSR)
            a.e('s_mov_b64 exec, -1')
            a.e('s_waitcnt vmcnt(1)')
            a.e('v_readfirstlane_b32 s68, v%d', o)
            a.e('s_mul_i32 s68, s68, 0x10001')
            a.e('s_lshr_b32 s68, s68, s74')
            a.e('s_lshr_b32 s64, s68, 1')
            a.e('s_and_b32 s68, s68, s64')
            a.e('s_and_b32 s68, s68, s66')
            a.e('s_cbranch_scc1 D_go')
        a.e('s_add_u32 s65, s65, 1')
        a.e('s_cmp_lt_u32 s65, 40000')
        a.e('s_cbranch_scc1 D_i')
        a.e('s_branch D_end')
    else:
        if E('PSL', 1):
            a.e('s_sleep %d', E('PSL', 1))
        for p in poll():
            a.e(p)
        a.e('s_branch D_wait')
    a.e('D_go:')
    a.e('s_andn2_b32 s66, s66, s68')
    if STAMPS == 2:
        a.e('s_memrealtime s[86:87]')
        a.e('s_min_u32 s64, s71, 7')
        a.e('s_lshl_b32 s64, s64, 1')
        a.e('s_add_u32 m0, s64, 48')
        a.e('s_waitcnt lgkmcnt(0)')
        a.e('v_writelane_b32 v250, s86, m0')
        a.e('s_add_u32 m0, m0, 1')
        a.e('s_nop 0')
        a.e('v_writelane_b32 v250, s66, m0')
        a.e('s_add_u32 s71, s71, 1')
    a.e('s_bcnt1_i32_b32 s70, s68')
    a.e('s_or_b32 s64, s46, s66')
    a.e('s_cbranch_scc0 P2_yl')
    YB = OB + 112

    def y_loads():
        a.e('buffer_load_ushort v211, v209, %s, 0 offen', sr(S_X, 4))
        a.e('buffer_load_dword v212, v215, %s, 0 offen sc1', WSR)
        for q in range(4):
            a.e('s_mov_b32 s69, %d', WS_YP + q * 16384)
            a.e('buffer_load_dwordx4 %s, v13, %s, s69 offen sc1' % (vr(YB + 4 * q, 4), WSR))
    with a.cold():
        a.e('P2_yl:')
        a.e('s_cmp_gt_u32 s70, 7')
        a.e('s_cbranch_scc1 P2_nyl')
        y_loads()
        a.e('s_mov_b32 s47, 1')
        a.e('s_branch P2_nyl')
    a.e('P2_nyl:')
    a.e('s_cmp_gt_u32 s70, 4')
    a.e('s_cbranch_scc1 D_t58')
    a.e('s_cmp_gt_u32 s70, 2')
    a.e('s_cbranch_scc1 D_t34')
    a.e('s_cmp_eq_u32 s70, 2')
    a.e('s_cbranch_scc1 D_e2')

    LA = E('LA', 2)

    def entry(n, last=False):
        a.e('D_e%d:', n)
        L = []
        for k in range(min(LA, n)):
            L += issue(n - 1 - k)
        if n <= LA:
            L += poll()
        for x in L + wo_reads(n - 1, 0):
            a.e(x)
        if not last:
            a.e('s_branch D_p%d', n - 1)
    entry(1); entry(2)
    a.e('D_t34:')
    a.e('s_cmp_eq_u32 s70, 4')
    a.e('s_cbranch_scc1 D_e4')
    entry(3); entry(4)
    a.e('D_t58:')
    a.e('s_cmp_gt_u32 s70, 6')
    a.e('s_cbranch_scc1 D_t78')
    a.e('s_cmp_eq_u32 s70, 6')
    a.e('s_cbranch_scc1 D_e6')
    entry(5); entry(6)
    a.e('D_t78:')
    a.e('s_cmp_eq_u32 s70, 8')
    a.e('s_cbranch_scc1 D_e8')
    entry(7); entry(8, True)
    for c in range(7, -1, -1):
        a.e('D_p%d:', c)
        if 'prc' in EXP:
            a.e('s_setprio %d', min(3, c // 2))
        if 'pra' in EXP:
            a.e('s_setprio %d', c & 1)
        G = issue(c - LA) if c >= LA else []
        Gs = [G[:7], G[7:8], G[8:9], G[9:10] + (poll() if c == LA else [])] if G else [[], [], [], []]
        for u in range(2):
            if u == 0:
                a.e('s_waitcnt vmcnt(%d) lgkmcnt(0)', 4 * (LA - 1) if c >= LA else 4 * c + 1)
                if 'noack' in EXP:
                    b = OB + 16 * c
                    a.e('D_k%d:', c)
                    if 'ck4' in EXP:
                        a.e('v_max3_u32 v217, v%d, v%d, v%d', b + 3, b + 7, b + 11)
                        a.e('v_max_u32 v217, v217, v%d', b + 15)
                    else:
                        a.e('v_max3_u32 v217, v%d, v%d, v%d', b, b + 1, b + 2)
                        a.e('v_max3_u32 v218, v%d, v%d, v%d', b + 3, b + 4, b + 5)
                        for r in range(6, 16, 4):
                            a.e('v_max3_u32 v217, v%d, v%d, v217', b + r, b + r + 1)
                            if r + 2 < 16:
                                a.e('v_max3_u32 v218, v%d, v%d, v218', b + r + 2, b + r + 3)
                        a.e('v_max_u32 v217, v217, v218')
                    a.e('v_cmp_eq_u32 vcc, -1, v217')
                    a.e('s_cbranch_vccnz D_f%d', c)
                    a.e('D_g%d:', c)
                    with a.cold():
                        a.e('D_f%d:', c)
                        a.e('s_add_u32 s65, s65, 1')
                        a.e('s_cmp_ge_u32 s65, 40000')
                        a.e('s_cbranch_scc1 D_g%d', c)
                        a.e('s_sleep 2')
                        for q in range(4):
                            a.e('buffer_load_dwordx4 %s, v%d, %s, s%d offen offset:%d sc1', vr(b + 4 * q, 4), VO2 if q & 1 else VO, WSR, 48 + c, (q >> 1) * 2048)
                        a.e('s_waitcnt vmcnt(0)')
                        a.e('s_branch D_k%d', c)
            else:
                a.e('s_waitcnt lgkmcnt(0)')
            F = wo_reads(c, 1) if u == 0 else (wo_reads(c - 1, 0) if c >= 1 else [])
            M = Mm(c, u)
            per = -(-len(F) // 6) if F else 0
            for k in range(8):
                a.e(M[k])
                for f in F[k * per:(k + 1) * per]:
                    a.e(f)
                if k in (3, 6):
                    for x in Gs[2 * u + k // 6]:
                        a.e(x)
    a.e('s_cmp_lg_u32 s66, 0')
    a.e('s_cbranch_scc1 D_wait')
    a.e('D_end:')
    stamp(a, 11)
    a.e('s_lshl_b32 s64, s3, 12')
    a.e('s_add_u32 s64, s64, %d', RB)
    a.e('v_lshl_add_u32 v8, v2, 4, s64')
    a.e('s_xor_b32 s65, s3, 4')
    a.e('s_lshl_b32 s65, s65, 12')
    a.e('s_add_u32 s65, s65, %d', RB)
    a.e('v_lshl_add_u32 v5, v2, 4, s65')
    a.e('v_lshlrev_b32 v9, 1, v%d', VCO)
    a.e('v_cmp_eq_u32 s[70:71], s67, v%d', VRO)
    a.e('s_cmp_eq_u32 s46, 0')
    a.e('s_cbranch_scc1 P2_y')
    with a.cold():
        a.e('P2_y:')
        a.e('s_mov_b32 s66, 0')
        a.e('s_cmp_lg_u32 s47, 0')
        a.e('s_cbranch_scc1 P2_ychk')
        a.e('P2_yre:')
        y_loads()
        a.e('P2_ychk:')
        a.e('s_waitcnt vmcnt(0)')
        a.e('v_max3_u32 v10, v%d, v%d, v%d', YB, YB + 1, YB + 2)
        for r in range(3, 15, 2):
            a.e('v_max3_u32 v10, v%d, v%d, v10', YB + r, YB + r + 1)
        a.e('v_max_u32 v10, v%d, v10', YB + 15)
        a.e('v_cmp_eq_u32 vcc, -1, v10')
        a.e('s_cbranch_vccz P2_yok')
        a.e('s_add_u32 s66, s66, 1')
        a.e('s_cmp_ge_u32 s66, 40000')
        a.e('s_cbranch_scc1 P2_yok')
        a.e('s_sleep 4')
        a.e('s_branch P2_yre')
        a.e('P2_yok:')
        for d in (8, 4):
            for r in range(0, d, 2):
                a.e('v_pk_add_f32 %s, %s, %s', vr(YB + r, 2), vr(YB + r, 2), vr(YB + d + r, 2))
        Y = YB
        for swp in ('v_permlane16_swap_b32', 'v_permlane32_swap_b32'):
            for q in range(4):
                a.e('v_mov_b32 v%d, v%d', Y + 4 + q, Y + q)
            a.e('s_nop 0')
            for q in range(4):
                a.e('%s v%d, v%d', swp, Y + q, Y + 4 + q)
            for q in range(4):
                a.e('v_add_f32 v%d, v%d, v%d', Y + q, Y + q, Y + 4 + q)
        a.e('s_lshl_b32 s64, s3, 8')
        a.e('v_lshl_add_u32 v208, v208, 4, s64')
        a.e('ds_write_b128 v208, %s offset:%d', vr(Y, 4), L_YS + 256)
        a.e('v_mov_b32 v208, 0')
        a.e('v_mov_b32 v214, 1')
        a.e('s_mov_b64 exec, 1')
        a.e('ds_add_rtn_u32 v210, v208, v214 offset:%d', L_FLG + 16)
        a.e('s_mov_b64 exec, -1')
        a.e('s_and_b32 s64, s75, 0xffff0000')
        a.e('s_xor_b32 s65, s64, 0x80000000')
        a.e('s_not_b32 s69, s64')
        a.e('s_and_b32 s69, s69, 0xffff0000')
        a.e('s_cmp_ge_u32 s64, 0x80000000')
        a.e('s_cselect_b32 s64, s65, s69')
        a.e('v_mov_b32 v213, s64')
        a.e('v_lshlrev_b32 v208, 2, v2')
        a.e('s_waitcnt lgkmcnt(0)')
        a.e('v_readfirstlane_b32 s64, v210')
        a.e('s_cmp_lg_u32 s64, 3')
        a.e('s_cbranch_scc1 P2_ny')
        for w in range(4):
            a.e('ds_read_b32 v%d, v208 offset:%d', Y + w, L_YS + 256 + 256 * w)
        sigmoid_bf16(a, [213])
        a.e('v_sub_f32 v214, 1.0, v212')
        rnd = lambda r: (a.e('v_cvt_pk_bf16_f32 v%d, v%d, v%d', r, r, r), a.e('v_lshlrev_b32 v%d, 16, v%d', r, r))
        rnd(214)
        a.e('v_lshlrev_b32 v211, 16, v211')
        a.e('s_waitcnt lgkmcnt(0)')
        a.e('v_add_f32 v%d, v%d, v%d', Y, Y, Y + 1)
        a.e('v_add_f32 v%d, v%d, v%d', Y + 2, Y + 2, Y + 3)
        a.e('v_add_f32 v210, v%d, v%d', Y, Y + 2)
        rnd(210)
        a.e('v_mul_f32 v210, v210, v213')
        rnd(210)
        a.e('v_add_f32 v210, v211, v210')
        rnd(210)
        a.e('v_mul_f32 v210, v210, v214')
        rnd(210)
        a.e('ds_write_b32 v208, v210 offset:%d', L_YS)
        a.e('s_waitcnt lgkmcnt(0)')
        a.e('s_branch P2_ny')
    a.e('P2_ny:')
    a.e('s_barrier')
    stamp(a, 3, lvl=3)
    for nb in range(4):
        a.e('ds_write_b128 v8, %s offset:%d', vr(32 + 4 * nb, 4), nb * 1024)
    a.e('s_cmp_lg_u64 s[70:71], 0')
    a.e('s_cbranch_scc1 P2_fix')
    a.e('P2_nr:')
    with a.cold():
        a.e('P2_fix:')
        a.e('s_mov_b64 exec, s[70:71]')
        for q in range(4):
            a.e('ds_read_b128 %s, v9 offset:%d', vr(T2 + 4 * q, 4), L_YS + (q >> 1) * 128 + (q & 1) * 16)
        a.e('s_mov_b64 exec, -1')
        a.e('s_branch P2_nr')
    a.e('s_waitcnt lgkmcnt(0)')
    stamp(a, 4, lvl=3)
    a.e('s_barrier')
    stamp(a, 6, lvl=3)
    AB = 64
    for nb in range(4):
        a.e('ds_read_b128 %s, v5 offset:%d', vr(AB + 4 * nb, 4), nb * 1024)
    Gr = XO + 8
    PKOP = 'nopk' not in EXP
    for half in range(2):
        A = 16 + 8 * half
        T = T2 + 8 * half
        a.e('s_waitcnt lgkmcnt(%d)', 2 if half == 0 else 0)
        for q in range(4):
            a0_ = A + 2 * q
            if PKOP:
                a.e('v_pk_add_f32 %s, %s, %s', vr(a0_, 2), vr(a0_, 2), vr(AB + 8 * half + 2 * q, 2))
            else:
                for k in range(2):
                    a.e('v_add_f32 v%d, v%d, v%d', a0_ + k, a0_ + k, AB + 8 * half + 2 * q + k)
        P = 48 + 4 * half
        for q in range(4):
            a.e('v_cvt_pk_bf16_f32 v%d, v%d, v%d', P + q, A + 2 * q, A + 2 * q + 1)
        a.e('s_nop 0')
        a.e('v_permlane16_swap_b32 v%d, v%d', P, P + 2)
        a.e('v_permlane16_swap_b32 v%d, v%d', P + 1, P + 3)
        O = 120 + 4 * half
        for q in range(4):
            a.e('v_lshlrev_b32 v%d, 16, v%d', A + 2 * q, P + q)
            a.e('v_and_b32 v%d, 0xffff0000, v%d', A + 2 * q + 1, P + q)
        for q in range(4):
            a0_ = A + 2 * q
            if PKOP:
                a.e('v_pk_mul_f32 %s, %s, %s op_sel_hi:[1,0]', vr(a0_, 2), vr(a0_, 2), vr(Gr, 2))
            else:
                for k in range(2):
                    a.e('v_mul_f32 v%d, v%d, v%d', a0_ + k, a0_ + k, Gr)
        for q in range(4):
            a.e('v_cvt_pk_bf16_f32 v%d, v%d, v%d', P + q, A + 2 * q, A + 2 * q + 1)
        for q in range(4):
            a.e('v_lshlrev_b32 v%d, 16, v%d', A + 2 * q, P + q)
            a.e('v_and_b32 v%d, 0xffff0000, v%d', A + 2 * q + 1, P + q)
        for q in range(4):
            a0_ = A + 2 * q
            if PKOP:
                a.e('v_pk_add_f32 %s, %s, %s', vr(a0_, 2), vr(a0_, 2), vr(T + 2 * q, 2))
            else:
                for k in range(2):
                    a.e('v_add_f32 v%d, v%d, v%d', a0_ + k, a0_ + k, T + 2 * q + k)
        for q in range(4):
            a.e('v_cvt_pk_bf16_f32 v%d, v%d, v%d', O + q, A + 2 * q, A + 2 * q + 1)
        if 'seg64' in EXP:
            a.e('buffer_store_dwordx4 %s, v%d, %s, 0 offen offset:%d ' + os.environ.get('OUTF', 'nt'), vr(O, 4), VXO, sr(S_OUT, 4), 64 * half)
        elif half == 0:
            a.e('v_and_b32 v6, 1, v2')
            a.e('v_mul_u32_u24 v6, %d, v6', 2048 - 64)
            a.e('v_sub_u32 v%d, v%d, v6', VXO, VXO)
            a.e('s_mov_b32 vcc_lo, 0x55555555')
            a.e('s_mov_b32 vcc_hi, 0x55555555')
    if 'seg64' not in EXP:
        a.e('s_nop 1')
        for q in range(4):
            a.e('v_cndmask_b32_dpp v%d, v%d, v%d, vcc quad_perm:[1,0,3,2] row_mask:0xf bank_mask:0xf', 56 + q, 124 + q, 120 + q)
        a.e('buffer_store_dwordx4 v[56:59], v%d, %s, 0 offen ' + os.environ.get('OUTF', 'nt'), VXO, sr(S_OUT, 4))
        a.e('s_not_b64 vcc, vcc')
        for q in range(4):
            a.e('v_cndmask_b32_dpp v%d, v%d, v%d, vcc quad_perm:[1,0,3,2] row_mask:0xf bank_mask:0xf', 60 + q, 120 + q, 124 + q)
        a.e('buffer_store_dwordx4 v[60:63], v%d, %s, 0 offen offset:2048 ' + os.environ.get('OUTF', 'nt'), VXO, sr(S_OUT, 4))
    stamp(a, 7, lvl=3)
    if STAMPS:
        a.e('s_waitcnt vmcnt(0)')
    stamp(a, 12, True); stamp(a, 2, False)
    stamp_flush(a)
    a.e('K_end:')
    a.e('s_endpgm')
    a.flush_cold()


def main():
    hdr = open(os.path.join(os.path.dirname(os.path.abspath(__file__)), '..', NAME + '.s.ref')).read().split('; Override launch')[0]
    a = Asm()
    a.e('.amdgcn_target "amdgcn-amd-amdhsa--gfx950"')
    a.e('.text')
    gen(a)
    a.e('CODE_END:')
    out = hdr + '; @launch grid=(256,1,1) block=(512,1,1) lds=%d\n' % LDS_BYTES + a.text() + '.section .rodata,"a"\n' + kd(NAME + '_kernel', 256)
    path = sys.argv[1] if len(sys.argv) > 1 else os.path.join(os.path.dirname(os.path.abspath(__file__)), '..', NAME + '.s')
    open(path, 'w').write(out)


if __name__ == '__main__':
    main()
```

```python
import sys, os
sys.path.insert(0, os.path.dirname(os.path.abspath(__file__)))
from asmlib import *

NAME = 'gated_mix__linear_attn_block__moe_arch_mod__prompt'
E = lambda k, d: int(os.environ.get(k, str(d)))
EXP = os.environ.get('EXP', '').split(',')

SK = 1 if 'sk' in EXP else 0
PS = 10 + SK
WS_O = 0
WS_KVP = 4096 << PS
KVB = 2048 if SK else 1152
KVZ = 1152 if SK else 1024
FS = 7 + SK
WS_F1 = WS_KVP + 16 * 4 * 16 * KVB
WS_F2 = WS_F1 + (64 << FS)
WS_HP = WS_F2 + (128 << FS)
WS_YP = WS_HP + 64 * 2 * 32 * 256
WS_G = WS_YP + 64 * 4096
WS_KEY = WS_G + 8192
WS_END = WS_KEY + 4096
WS_BYTES = 268435456
WS_ST = 16 << 20

STAMPS = E('STAMPS', 0)
NFIX = E('NFIX', 0)
WT = ' sc1' if 'wt1' in EXP else ' sc0 sc1'
DF = os.environ.get('DF', '')
NTA = ' nt' if 'ntA' in EXP else DF
NTB = ' nt' if 'ntB' in EXP else DF
NTO = ' nt' if 'ntO' in EXP else DF
NTW = os.environ.get('WF', ' nt')
LOG2E = 0x3fb8aa3b
EPS6 = 0x358637bd

SLOT = 40960
MISC = 0
RB = 8192
SP = RB + 3 * SLOT
L_KF = MISC
L_ZF = MISC + 4096
L_KEY = MISC + 4224
L_FLG = MISC + 4288
L_H = MISC + 4352
L_ZX = MISC + 4608
L_YS = MISC + 5632
L_EX = RB + 24576
LDS_BYTES = 163840
EARLY = [SP, SP + 8192, RB + SLOT + 24576, RB + 2 * SLOT + 24576, SP + 16384, SP + 24576, RB + SLOT + 32768, RB + 2 * SLOT + 32768]
LATE = [RB + x for x in (32768, 0, 8192, 2 * SLOT + 8192, SLOT, SLOT + 8192, SLOT + 16384, 2 * SLOT)]
POS = EARLY[0:4] + LATE[0:4] + EARLY[4:8] + LATE[4:8]
TP = 272
TK = 128 * TP

S_X, S_W, S_WS, S_DBG, S_WR, S_GW, S_WG, S_WU = 8, 12, 16, 20, 24, 28, 32, 36
S_WO, S_OUT, S_WD = 28, 20, 24
WSR = sr(S_WS, 4)
S_LOG2E, S_EPS = 72, 73


def lane_off(a, v, t):
    a.e('v_lshlrev_b32 v%d, 4, v2', v)
    if SK:
        a.e('v_add_u32 v%d, 40, v2', t)
        a.e('v_and_b32 v%d, 64, v%d', t, t)
        a.e('v_lshl_add_u32 v%d, v%d, 1, v%d', v, t, v)


def stamp(a, idx, real=True, lvl=0):
    if STAMPS in (3, 4) and idx in (3, 4, 6, 7, 9, 10) and lvl != STAMPS:
        return
    if lvl and STAMPS != lvl:
        return
    if STAMPS:
        a.e('%s s[%d:%d]', 's_memrealtime' if real else 's_memtime', 76 + 2 * idx, 77 + 2 * idx)


def stamp_flush(a):
    if not STAMPS:
        return
    a.e('s_waitcnt lgkmcnt(0)')
    a.e('s_lshl_b32 s64, s2, 3')
    a.e('s_add_u32 s64, s64, s3')
    a.e('s_lshl_b32 s64, s64, 7')
    a.e('s_add_u32 s64, s64, %d', WS_ST)
    a.e('v_mov_b32 v1, s64')
    a.e('s_mov_b64 exec, 1')
    for i in range(13):
        a.e('v_mov_b32 v2, s%d', 76 + 2 * i)
        a.e('v_mov_b32 v3, s%d', 77 + 2 * i)
        a.e('buffer_store_dwordx2 v[2:3], v1, %s, 0 offen offset:%d', WSR, 8 * i)
        a.e('s_nop 1')
    a.e('s_mov_b64 exec, -1')
    if STAMPS == 2:
        a.e('s_lshl_b32 s64, s2, 3')
        a.e('s_add_u32 s64, s64, s3')
        a.e('s_lshl_b32 s64, s64, 8')
        a.e('s_add_u32 s64, s64, %d', WS_ST + (1 << 20))
        a.e('v_and_b32 v1, 63, v0')
        a.e('v_lshlrev_b32 v1, 2, v1')
        a.e('v_add_u32 v1, s64, v1')
        a.e('buffer_store_dword v250, v1, %s, 0 offen', WSR)


def phi16_fast(a, acc, out, e0, mn, sp):
    for j in range(8):
        a0, a1, p = acc + 2 * j, acc + 2 * j + 1, out + j
        e = e0 + 2 * (j & 1)
        a.e('v_pk_mul_f32 v[%d:%d], v[%d:%d], s[%d:%d]', e, e + 1, a0, a1, sp, sp + 1)
        a.e('v_pk_add_f32 v[%d:%d], v[%d:%d], s[%d:%d]', a0, a1, a0, a1, sp + 2, sp + 3)
        a.e('v_exp_f32 v%d, v%d clamp', e, e)
        a.e('v_exp_f32 v%d, v%d clamp', e + 1, e + 1)
        if j:
            phi_tail(a, acc, out, e0, mn, j - 1)
    phi_tail(a, acc, out, e0, mn, 7)
    phi_fix(a, out, e0, e0 + 1, mn)


def phi_tail(a, acc, out, e0, mn, j):
    a0, a1, p = acc + 2 * j, acc + 2 * j + 1, out + j
    e = e0 + 2 * (j & 1)
    a.e('v_max_f32 v%d, v%d, v%d', a0, a0, e)
    a.e('v_max_f32 v%d, v%d, v%d', a1, a1, e + 1)
    if j == 0:
        a.e('v_min_f32 v%d, v%d, v%d', mn, a0, a1)
    else:
        a.e('v_min3_f32 v%d, v%d, v%d, v%d', mn, a0, a1, mn)
    a.e('v_cvt_pk_bf16_f32 v%d, v%d, v%d', p, a0, a1)


def phi16_pk(a, acc, out, mn, sp):
    def head(j):
        t, e, p = 48 + 4 * (j & 1), 50 + 4 * (j & 1), out + j
        a.e('v_cvt_pk_bf16_f32 v%d, v%d, v%d', p, acc + 2 * j, acc + 2 * j + 1)
        a.e('v_lshlrev_b32 v%d, 16, v%d', t, p)
        a.e('v_and_b32 v%d, 0xffff0000, v%d', t + 1, p)
        a.e('v_pk_mul_f32 v[%d:%d], v[%d:%d], s[%d:%d]', e, e + 1, t, t + 1, sp, sp + 1)
        a.e('v_pk_add_f32 v[%d:%d], v[%d:%d], s[%d:%d]', t, t + 1, t, t + 1, sp + 2, sp + 3)
        a.e('v_exp_f32 v%d, v%d clamp', e, e)
        a.e('v_exp_f32 v%d, v%d clamp', e + 1, e + 1)

    def tail(j):
        t, e, p = 48 + 4 * (j & 1), 50 + 4 * (j & 1), out + j
        a.e('v_max_f32 v%d, v%d, v%d', t, t, e)
        a.e('v_max_f32 v%d, v%d, v%d', t + 1, t + 1, e + 1)
        if j == 0:
            a.e('v_min_f32 v%d, v%d, v%d', mn, t, t + 1)
        else:
            a.e('v_min3_f32 v%d, v%d, v%d, v%d', mn, t, t + 1, mn)
        a.e('v_cvt_pk_bf16_f32 v%d, v%d, v%d', p, t, t + 1)
    for j in range(8):
        head(j)
        if j:
            tail(j - 1)
    a.e('s_nop 0')
    tail(7)
    phi_fix(a, out, 48, 49, mn)


def phi16(a, acc, out, t0, t1, e0, e1, mn):
    for j in range(8):
        a0, a1, p = acc + 2 * j, acc + 2 * j + 1, out + j
        a.e('v_cvt_pk_bf16_f32 v%d, v%d, v%d', p, a0, a1)
        a.e('v_lshlrev_b32 v%d, 16, v%d', t0, p)
        a.e('v_and_b32 v%d, 0xffff0000, v%d', t1, p)
        a.e('v_mul_f32 v%d, s%d, v%d', e0, S_LOG2E, t0)
        a.e('v_mul_f32 v%d, s%d, v%d', e1, S_LOG2E, t1)
        a.e('v_exp_f32 v%d, v%d clamp', e0, e0)
        a.e('v_exp_f32 v%d, v%d clamp', e1, e1)
        a.e('v_max_f32 v%d, 0, v%d', t0, t0)
        a.e('v_max_f32 v%d, 0, v%d', t1, t1)
        a.e('v_add_f32 v%d, v%d, v%d', t0, t0, e0)
        a.e('v_add_f32 v%d, v%d, v%d', t1, t1, e1)
        if j == 0:
            a.e('v_min_f32 v%d, v%d, v%d', mn, t0, t1)
        else:
            a.e('v_min3_f32 v%d, v%d, v%d, v%d', mn, t0, t1, mn)
        a.e('v_cvt_pk_bf16_f32 v%d, v%d, v%d', p, t0, t1)
    phi_fix(a, out, t0, t1, mn)


def phi_fix(a, out, t0, t1, mn):
    lab = a.label('phi')
    a.e('v_cmp_gt_f32 vcc, 0x3a800000, v%d', mn)
    a.e('s_cbranch_vccnz %s_fix', lab)
    a.e('%s_done:', lab)
    with a.cold():
        a.e('%s_fix:', lab)
        for j in range(8):
            p = out + j
            a.e('v_lshlrev_b32 v%d, 16, v%d', t0, p)
            a.e('v_and_b32 v%d, 0xffff0000, v%d', t1, p)
            a.e('v_add_f32 v%d, s%d, v%d', t0, S_EPS, t0)
            a.e('v_add_f32 v%d, s%d, v%d', t1, S_EPS, t1)
            a.e('v_cvt_pk_bf16_f32 v%d, v%d, v%d', p, t0, t1)
        a.e('s_branch %s_done', lab)


def wave_reduce(a, regs, op, stmp):
    pats = ['quad_perm:[1,0,3,2]', 'quad_perm:[2,3,0,1]', 'row_half_mirror', 'row_mirror']
    a.e('s_nop 1')
    for p in pats:
        if len(regs) < 3:
            a.e('s_nop 1')
        for r in regs:
            a.e('%s_dpp v%d, v%d, v%d %s row_mask:0xf bank_mask:0xf', op, r, r, r, p)
    a.e('s_nop 1')
    for r in regs:
        for q in range(4):
            a.e('v_readlane_b32 s%d, v%d, %d', stmp + q, r, 16 * q)
        a.e('s_nop 1')
        a.e('v_mov_b32 v%d, s%d', r, stmp)
        for q in range(1, 4):
            a.e('%s v%d, s%d, v%d', op, r, stmp + q, r)


def sigmoid_bf16(a, regs):
    for r in regs:
        a.e('v_mul_f32 v%d, s%d, v%d', r, S_LOG2E, r)
    for r in regs:
        a.e('v_exp_f32 v%d, -v%d', r, r)
    a.e('s_nop 0')
    for r in regs:
        a.e('v_add_f32 v%d, 1.0, v%d', r, r)
    for r in regs:
        a.e('v_rcp_f32 v%d, v%d', r, r)
    a.e('s_nop 0')
    for r in regs:
        a.e('v_cvt_pk_bf16_f32 v%d, v%d, v%d', r, r, r)
    for r in regs:
        a.e('v_lshlrev_b32 v%d, 16, v%d', r, r)


def p2_ids(a):
    if os.environ.get('P2MAP', 'a') == 'c':
        a.e('s_and_b32 s4, s2, 1')
        a.e('s_lshl_b32 s4, s4, 3')
        a.e('s_bfe_u32 s64, s2, 0x30003')
        a.e('s_add_u32 s4, s4, s64')
        a.e('s_bfe_u32 s5, s2, 0x20001')
        a.e('s_lshl_b32 s5, s5, 2')
        a.e('s_lshr_b32 s64, s2, 6')
        a.e('s_add_u32 s5, s5, s64')
        return
    if os.environ.get('P2MAP', 'a') == 'b':
        a.e('s_and_b32 s4, s2, 7')
        a.e('s_lshl_b32 s4, s4, 1')
        a.e('s_bfe_u32 s64, s2, 0x10003')
        a.e('s_add_u32 s4, s4, s64')
        a.e('s_lshr_b32 s5, s2, 4')
        return
    a.e('s_and_b32 s64, s2, 7')
    a.e('s_lshr_b32 s65, s2, 3')
    a.e('s_and_b32 s4, s64, 3')
    a.e('s_lshl_b32 s4, s4, 2')
    a.e('s_and_b32 s66, s65, 3')
    a.e('s_add_u32 s4, s4, s66')
    a.e('s_lshr_b32 s5, s64, 2')
    a.e('s_lshl_b32 s5, s5, 3')
    a.e('s_lshr_b32 s66, s65, 2')
    a.e('s_add_u32 s5, s5, s66')


def wo_voff(a, vdst, t0, t1, s_piece):
    a.e('v_lshrrev_b32 v%d, 3, v2', t0)
    a.e('s_lshl_b32 s64, s%d, 3', s_piece)
    a.e('v_add_u32 v%d, s64, v%d', t0, t0)
    a.e('v_lshlrev_b32 v%d, 11, v%d', t0, t0)
    a.e('v_lshrrev_b32 v%d, 4, v2', t1)
    a.e('v_lshlrev_b32 v%d, 1, v%d', t1, t1)
    a.e('v_and_b32 v%d, 7, v2', vdst)
    a.e('v_xor_b32 v%d, v%d, v%d', t1, t1, vdst)
    a.e('v_lshl_add_u32 v%d, v%d, 4, v%d', t0, t1, t0)
    a.e('s_lshl_b32 s64, s5, 7')
    a.e('v_add_u32 v%d, s64, v%d', vdst, t0)


def wo_dma(a, pos, voff, s_w1k, tag):
    a.e('s_mov_b32 s65, %d', pos << 17)
    for b in range(2):
        a.e('s_add_u32 m0, s%d, %d', s_w1k, POS[pos] + b * 4096)
        if b:
            a.e('s_add_u32 s65, s65, 65536')
        else:
            a.e('s_nop 0')
        a.vm_issue(tag, 'buffer_load_dwordx4 v%d, %s, s65 offen' + NTO + ' lds', voff, sr(S_WO, 4))


XO = 220
T2 = 232
VRO, VXO = 230, 231


def xo_loads(a):
    a.e('s_and_b32 s64, s3, 3')
    a.e('s_lshl_b32 s64, s64, 1')
    a.e('s_lshr_b32 s65, s3, 2')
    a.e('s_add_u32 s64, s64, s65')
    a.e('s_lshl_b32 s64, s64, 4')
    a.e('s_lshl_b32 s65, s4, 7')
    a.e('s_add_u32 s64, s64, s65')
    a.e('v_and_b32 v%d, 15, v2', VRO)
    a.e('v_add_u32 v%d, s64, v%d', VRO, VRO)
    a.e('v_bfe_u32 v3, v2, 4, 1')
    a.e('v_lshlrev_b32 v%d, 5, v3', VCO)
    a.e('v_lshrrev_b32 v3, 5, v2')
    a.e('v_lshl_add_u32 v%d, v3, 4, v%d', VCO, VCO)
    a.e('v_lshl_add_u32 v%d, v%d, 11, v%d', VXO, VRO, VCO)
    a.e('s_lshl_b32 s64, s5, 7')
    a.e('v_add_u32 v%d, s64, v%d', VXO, VXO)
    a.e('v_lshlrev_b32 v3, 2, v%d', VRO)
    a.e('v_add_u32 v3, %d, v3', WS_G)
    a.vm_issue('xo', 'buffer_load_dwordx4 %s, v%d, %s, 0 offen', vr(XO, 4), VXO, sr(S_X, 4))
    a.vm_issue('xo', 'buffer_load_dwordx4 %s, v%d, %s, 0 offen offset:64', vr(XO + 4, 4), VXO, sr(S_X, 4))
    a.vm_issue('xo', 'buffer_load_dword v%d, v3, %s, 0 offen sc1', XO + 8, WSR)


OM = 248
VCO = 229


def t2_fill(a):
    if os.environ.get('GS', ''):
        lab = a.label('G_ck')
        a.e('%s:', lab)
        a.e('v_cmp_eq_u32 vcc, -1, v%d', XO + 8)
        a.e('s_cbranch_vccnz %s_r', lab)
        a.e('%s_d:', lab)
        with a.cold():
            a.e('%s_r:', lab)
            a.e('s_mov_b32 s64, 0')
            a.e('v_lshlrev_b32 v3, 2, v%d', VRO)
            a.e('v_add_u32 v3, %d, v3', WS_G)
            a.e('%s_l:', lab)
            a.e('s_sleep 4')
            a.e('buffer_load_dword v%d, v3, %s, 0 offen sc1', XO + 8, WSR)
            a.e('s_waitcnt vmcnt(0)')
            a.e('s_add_u32 s64, s64, 1')
            a.e('s_cmp_ge_u32 s64, 40000')
            a.e('s_cbranch_scc1 %s_d', lab)
            a.e('v_cmp_eq_u32 vcc, -1, v%d', XO + 8)
            a.e('s_cbranch_vccnz %s_l', lab)
            a.e('s_branch %s_d', lab)
    a.e('v_sub_f32 v%d, 1.0, v%d', OM, XO + 8)
    a.e('v_cvt_pk_bf16_f32 v%d, v%d, v%d', OM, OM, OM)
    a.e('v_lshlrev_b32 v%d, 16, v%d', OM, OM)
    for q in range(8):
        x0, x1 = T2 + 2 * q, T2 + 2 * q + 1
        a.e('v_lshlrev_b32 v%d, 16, v%d', x0, XO + q)
        a.e('v_and_b32 v%d, 0xffff0000, v%d', x1, XO + q)
        a.e('v_mul_f32 v%d, v%d, v%d', x0, x0, OM)
        a.e('v_mul_f32 v%d, v%d, v%d', x1, x1, OM)
        a.e('v_cvt_pk_bf16_f32 v3, v%d, v%d', x0, x1)
        a.e('v_lshlrev_b32 v%d, 16, v3', x0)
        a.e('v_and_b32 v%d, 0xffff0000, v3', x1)


MASK14 = 's_mov_b32 exec_lo, 0x3fff3fff\ns_mov_b32 exec_hi, 0x3fff3fff'


def hp_loads(a):
    HB = 156
    a.e('s_lshr_b32 s64, s2, 2')
    a.e('s_lshl_b32 s64, s64, 14')
    a.e('s_add_u32 s64, s64, %d', WS_HP)
    a.e('v_lshl_add_u32 v152, v2, 4, s64')
    for q in range(16):
        a.e('s_mov_b32 s64, %d', (q >> 2) * 4096)
        a.e('buffer_load_dwordx4 %s, v152, %s, s64 offen offset:%d sc1', vr(HB + 4 * q, 4), WSR, (q & 3) * 1024)


def h_compute(a):
    HB = 156
    a.e('s_mov_b32 s65, 0')
    a.e('v_lshrrev_b32 v155, 4, v2')
    a.e('H_hl:')
    a.e('v_max3_u32 v153, v%d, v%d, v%d', HB, HB + 1, HB + 2)
    for r in range(3, 63, 2):
        a.e('v_max3_u32 v153, v%d, v%d, v153', HB + r, HB + r + 1)
    a.e('v_max_u32 v153, v%d, v153', HB + 63)
    a.e(MASK14)
    a.e('v_cmp_eq_u32 vcc, -1, v153')
    a.e('s_mov_b64 exec, -1')
    a.e('s_cbranch_vccz H_hok')
    a.e('s_add_u32 s65, s65, 1')
    a.e('s_cmp_ge_u32 s65, 100000')
    a.e('s_cbranch_scc1 H_hok')
    a.e('s_sleep 8')
    hp_loads(a)
    a.e('s_waitcnt vmcnt(0)')
    a.e('s_branch H_hl')
    a.e('H_hok:')
    for m in range(2):
        for i in range(1, 8):
            for q in range(4):
                a.e('v_add_f32 v%d, v%d, v%d', HB + 32 * m + q, HB + 32 * m + q, HB + 32 * m + 4 * i + q)
    a.e('s_nop 1')
    for q in range(4):
        a.e('v_permlane16_swap_b32 v%d, v%d', HB + q, HB + 32 + q)
    for q in range(4):
        a.e('v_add_f32 v%d, v%d, v%d', HB + q, HB + q, HB + 32 + q)
    a.e('s_nop 1')
    for q in range(2):
        a.e('v_permlane32_swap_b32 v%d, v%d', HB + q, HB + 2 + q)
    for q in range(2):
        a.e('v_add_f32 v%d, v%d, v%d', HB + q, HB + q, HB + 2 + q)
    a.e('s_nop 1')
    a.e('v_permlane16_swap_b32 v%d, v%d', HB, HB + 1)
    G_, U_, T_ = HB, HB + 1, HB + 2
    a.e('v_cvt_pk_bf16_f32 v%d, v%d, v%d', T_, G_, U_)
    a.e('v_lshlrev_b32 v%d, 16, v%d', G_, T_)
    a.e('v_and_b32 v%d, 0xffff0000, v%d', U_, T_)
    a.e('v_mul_f32 v%d, s%d, v%d', T_, S_LOG2E, G_)
    a.e('v_exp_f32 v%d, -v%d', T_, T_)
    a.e('v_and_b32 v154, 15, v2')
    a.e('v_add_f32 v%d, 1.0, v%d', T_, T_)
    a.e('v_rcp_f32 v%d, v%d', T_, T_)
    a.e('v_lshl_add_u32 v154, v154, 2, v155')
    a.e('v_mul_f32 v%d, v%d, v%d', T_, T_, G_)
    a.e('v_cvt_pk_bf16_f32 v%d, v%d, v%d', T_, T_, T_)
    a.e('v_lshlrev_b32 v%d, 16, v%d', T_, T_)
    a.e('v_mul_f32 v%d, v%d, v%d', T_, T_, U_)
    a.e('v_cvt_pk_bf16_f32 v%d, v%d, v%d', T_, T_, T_)
    a.e('v_lshlrev_b32 v%d, 16, v%d', T_, T_)
    a.e('v_lshlrev_b32 v154, 2, v154')
    a.e('ds_write_b32 v154, v%d offset:%d', T_, L_H)


def f2_poll_first(a):
    a.e('s_lshl_b32 s64, s4, 3')
    a.e('s_add_u32 s64, s64, s3')
    a.e('s_lshl_b32 s64, s64, %d', FS)
    a.e('s_add_u32 s64, s64, %d', WS_F2)
    a.e('v_mov_b32 v14, s64')
    a.e('s_mov_b64 exec, 1')
    a.e('v_mov_b32 v15, 0')
    a.vm_issue('p', 'buffer_atomic_or v15, v14, %s, 0 offen sc0', WSR)
    a.e('s_mov_b64 exec, -1')


def scode(a, sw):
    NS = E('NS', 4)
    lab = a.label('pc')
    a.e('s_getpc_b64 s[66:67]')
    a.e('%s:', lab)
    a.e('s_sub_u32 s66, s66, %s-%s_kernel' % (lab, NAME))
    a.e('s_subb_u32 s67, s67, 0')
    a.e('s_lshr_b32 s64, s2, 3')
    a.e('s_lshl_b32 s64, s64, 2')
    a.e('s_add_u32 s64, s64, s%d', sw)
    a.e('s_mul_i32 s64, s64, %d', NS * 64)
    for q in range(NS):
        a.e('s_min_u32 s65, s64, CODE_END-%s_kernel-4' % NAME)
        a.e('s_load_dword s43, s[66:67], s65')
        a.e('s_add_u32 s64, s64, 64')


def gen(a):
    kn = NAME + '_kernel'
    a.e('.globl %s\n.p2align 8\n.type %s,@function\n%s:' % (kn, kn, kn))
    a.e('s_load_dwordx16 s[40:55], s[0:1], 0')
    a.e('s_load_dwordx8 s[56:63], s[0:1], 64')
    a.e('s_cmp_ge_u32 s2, 256')
    a.e('s_cbranch_scc1 K_end')
    stamp(a, 0, True); stamp(a, 1, False)
    a.e('v_lshrrev_b32 v1, 6, v0')
    a.e('v_and_b32 v2, 63, v0')
    a.e('s_and_b32 s6, s2, 7')
    a.e('v_readfirstlane_b32 s3, v1')
    a.e('s_lshr_b32 s7, s2, 3')
    a.e('s_and_b32 s4, s6, 1')
    a.e('s_lshl_b32 s4, s4, 3')
    a.e('s_and_b32 s64, s7, 7')
    a.e('s_add_u32 s4, s4, s64')
    a.e('s_lshr_b32 s5, s6, 1')
    a.e('s_lshl_b32 s5, s5, 2')
    a.e('s_lshr_b32 s64, s7, 3')
    if 'ctrev' in EXP:
        a.e('s_xor_b32 s64, s64, 3')
    a.e('s_add_u32 s5, s5, s64')
    ROT = os.environ.get('ROT', 'td850fc74e860fd75')
    if ROT == 'rt':
        a.e('s_lshl_b32 s74, s4, 1')
    elif ROT == 'xcd':
        a.e('s_lshl_b32 s74, s6, 1')
    elif ROT == 'xcd1':
        a.e('s_mov_b32 s74, s6')
    elif ROT == 'x2':
        a.e('s_and_b32 s74, s4, 1')
        a.e('s_lshl_b32 s74, s74, 3')
        a.e('s_add_u32 s74, s74, s6')
    elif ROT == 'x4':
        a.e('s_and_b32 s74, s4, 3')
        a.e('s_lshl_b32 s74, s74, 2')
        a.e('s_add_u32 s74, s74, s6')
        C3 = os.environ.get('C3', '')
        if C3:
            a.e('s_mul_i32 s64, s4, %d', int(C3[0]))
            if len(C3) > 1:
                a.e('s_add_u32 s64, s64, s6')
            a.e('s_and_b32 s65, s5, 7')
            a.e('s_cmp_eq_u32 s65, 3')
            a.e('s_cselect_b32 s74, s64, s74')
    elif ROT.startswith('g'):
        A_, M_, B_, C_, D_ = [int(c, 16) for c in ROT[1:]]
        a.e('s_and_b32 s74, s4, %d', M_)
        a.e('s_mul_i32 s74, s74, %d', A_)
        a.e('s_mul_i32 s64, s6, %d', B_)
        a.e('s_add_u32 s74, s74, s64')
        a.e('s_lshr_b32 s64, s6, 1')
        a.e('s_mul_i32 s64, s64, %d', C_)
        a.e('s_add_u32 s74, s74, s64')
        a.e('s_bfe_u32 s64, s4, 0x10002')
        a.e('s_mul_i32 s64, s64, %d', D_)
        a.e('s_add_u32 s74, s74, s64')
    elif ROT == 'x3':
        a.e('s_and_b32 s64, s4, 7')
        a.e('s_mul_i32 s65, s64, 11')
        a.e('s_lshr_b32 s65, s65, 5')
        a.e('s_mul_i32 s65, s65, 3')
        a.e('s_sub_u32 s64, s64, s65')
        a.e('s_mul_i32 s74, s64, 11')
        a.e('s_lshr_b32 s74, s74, 1')
        a.e('s_add_u32 s74, s74, s6')
    elif ROT == 'x5':
        a.e('s_and_b32 s64, s4, 7')
        a.e('s_mul_i32 s74, s64, 5')
        a.e('s_lshr_b32 s74, s74, 3')
        a.e('s_mul_i32 s74, s74, 13')
        a.e('s_lshr_b32 s74, s74, 2')
        a.e('s_add_u32 s74, s74, s6')
    elif ROT.startswith('t'):
        words = [int(ROT[1 + 4 * k:5 + 4 * k], 16) for k in range((len(ROT) - 1) // 4)]
        n = len(words)
        pk = [words[2 * k] | (words[2 * k + 1] << 16) for k in range(n // 2)]
        if n == 2:
            a.e('s_mov_b32 s64, 0x%x', pk[0])
        else:
            a.e('s_bitcmp1_b32 s6, 1')
            a.e('s_mov_b32 s64, 0x%x', pk[0])
            a.e('s_cselect_b32 s64, 0x%x, s64', pk[1])
        a.e('s_and_b32 s65, s6, 1')
        a.e('s_lshl_b32 s65, s65, 2')
        a.e('s_and_b32 s74, s4, 3')
        a.e('s_add_u32 s65, s65, s74')
        a.e('s_lshl_b32 s65, s65, 2')
        a.e('s_lshr_b32 s74, s64, s65')
        a.e('s_and_b32 s74, s74, 15')
    elif ROT == 'x8':
        a.e('s_lshl_b32 s74, s4, 1')
        a.e('s_lshr_b32 s64, s6, 1')
        a.e('s_add_u32 s74, s74, s64')
    elif ROT == 'x8b':
        a.e('s_lshl_b32 s74, s4, 1')
        a.e('s_and_b32 s64, s6, 1')
        a.e('s_add_u32 s74, s74, s64')
    elif ROT == 'r4':
        a.e('s_and_b32 s74, s4, 3')
        a.e('s_lshl_b32 s74, s74, 2')
    elif ROT == 'r2':
        a.e('s_and_b32 s74, s4, 1')
        a.e('s_lshl_b32 s74, s74, 3')
    elif ROT == 'r4b':
        a.e('s_bfe_u32 s74, s4, 0x20001')
        a.e('s_lshl_b32 s74, s74, 2')
    elif ROT == 'r5':
        a.e('s_mul_i32 s74, s4, 3')
    elif ROT == 'rt1':
        a.e('s_mov_b32 s74, s4')
    else:
        a.e('s_mov_b32 s74, 0')
    a.e('v_lshrrev_b32 v6, 3, v2')
    a.e('s_lshl_b32 s65, s3, 3')
    a.e('v_add_u32 v6, s65, v6')
    a.e('s_lshl_b32 s64, s4, 7')
    a.e('v_add_u32 v7, s64, v6')
    a.e('v_lshlrev_b32 v7, 11, v7')
    a.e('v_lshrrev_b32 v8, 4, v2')
    a.e('s_and_b32 s64, s3, 1')
    a.e('s_lshl_b32 s64, s64, 2')
    a.e('v_add_u32 v9, s64, v8')
    a.e('v_and_b32 v10, 7, v2')
    a.e('v_xor_b32 v9, v9, v10')
    a.e('v_lshl_add_u32 v7, v9, 4, v7')
    a.e('v_mul_u32_u24 v6, 6144, v6')
    a.e('v_and_b32 v9, 1, v8')
    a.e('s_lshr_b32 s64, s64, 1')
    a.e('v_lshl_add_u32 v9, v9, 2, s64')
    a.e('v_xor_b32 v9, v9, v10')
    a.e('v_lshl_add_u32 v6, v9, 4, v6')
    a.e('s_lshl_b32 s64, s5, 7')
    a.e('v_add_u32 v6, s64, v6')
    a.e('s_lshl_b32 s66, s3, 10')
    a.e('s_mov_b32 s10, 4194304')
    a.e('s_mov_b32 s11, 0x00020000')
    a.e('s_mov_b32 s14, 6291456')
    a.e('s_mov_b32 s15, 0x00020000')

    def dma8(stage):
        a.e('s_add_u32 s65, s74, %d', stage)
        a.e('s_and_b32 s65, s65, 15' if NFIX == 0 else 's_mov_b32 s65, 0')
        a.e('s_lshl_b32 s67, s65, 7')
        a.e('s_mul_i32 s65, s65, 393216')
        if stage == 0:
            a.e('s_waitcnt lgkmcnt(0)')
            a.e('s_mov_b32 s8, s40'); a.e('s_mov_b32 s9, s41')
            a.e('s_mov_b32 s12, s42'); a.e('s_mov_b32 s13, s43')
        for aa in range(2):
            a.e('s_add_u32 m0, s66, %d', RB + stage * SLOT + aa * 8192)
            a.e('s_add_u32 s64, s67, %d', aa * 131072)
            a.vm_issue('d%d' % stage, 'buffer_load_dwordx4 v7, %s, s64 offen' + NTA + ' lds', sr(S_X, 4))
        for ty in range(3):
            a.e('s_add_u32 m0, s66, %d', RB + stage * SLOT + 16384 + ty * 8192)
            a.e('s_add_u32 s64, s65, %d', ty * 2048)
            a.vm_issue('d%d' % stage, 'buffer_load_dwordx4 v6, %s, s64 offen' + NTB + ' lds', sr(S_W, 4))
    dma8(0)
    if 'noste' not in EXP:
        a.e('s_cmp_lt_u32 s3, 4')
        a.e('s_cbranch_scc1 %s', 'K_ct' if 'stc' in EXP else 'K_nt')
        if 'stc' in EXP:
            with a.cold():
                a.e('K_ct:')
                a.e('s_lshl_b32 s64, s2, 2')
                a.e('s_add_u32 s64, s64, s3')
                a.e('s_lshl_b32 s64, s64, 12')
                a.e('s_add_u32 s46, s8, s64')
                a.e('s_addc_u32 s47, s9, 0')
                for o in [r * 2048 + t * 1024 + 384 + h for r in range(2) for t in range(2) for h in (0, 64)]:
                    a.e('s_load_dword s75, s[46:47], %d', o)
                a.e('s_barrier')
                a.e('s_mov_b32 s%d, 0x%x', S_LOG2E, LOG2E)
                a.e('s_mov_b32 s%d, 0x%x', S_EPS, EPS6)
                srd(a, S_WS, 62, WS_BYTES)
                a.e('s_branch C_start')
        a.e('s_lshl_b32 s64, s2, 2')
        a.e('s_add_u32 s64, s64, s3')
        a.e('s_sub_u32 s64, s64, 4')
        a.e('s_mul_i32 s64, s64, 6144')
        a.e('s_add_u32 s46, s12, s64')
        a.e('s_addc_u32 s47, s13, 0')
        for o in [t * 1024 + 384 + h for t in range(6) for h in (0, 64)]:
            a.e('s_load_dword s43, s[46:47], %d', o)
        a.e('K_nt:')
    if 'pfw' in EXP:
        a.e('s_mul_i32 s64, s2, 24576')
        a.e('s_mul_i32 s65, s3, 3072')
        a.e('s_add_u32 s64, s64, s65')
        a.e('v_lshlrev_b32 v11, 4, v2')
        for q in range(3):
            a.vm_issue('t', 'buffer_load_dwordx4 v[252:255], v11, %s, s64 offen offset:%d', sr(S_W, 4), q * 1024)
    a.e('s_barrier')
    a.e('s_mov_b32 s%d, 0x%x', S_LOG2E, LOG2E)
    a.e('s_mov_b32 s%d, 0x%x', S_EPS, EPS6)
    srd(a, S_WS, 62, WS_BYTES)
    a.e('s_cmp_lt_u32 s3, 4')
    a.e('s_cbranch_scc1 C_start')
    vm_entry = list(a.vm)
    gen_h1(a)
    a.vm = list(vm_entry)
    gen_c1(a)
    gen_p2(a)


def gen_h1(a):
    VOA, VOB = 4, 5
    a.e('s_sub_u32 s6, s3, 4')
    a.e('s_lshl_b32 s7, s6, 10')
    a.e('v_lshrrev_b32 v6, 3, v2')
    a.e('s_lshl_b32 s64, s4, 7')
    a.e('s_lshl_b32 s65, s6, 3')
    a.e('s_add_u32 s64, s64, s65')
    a.e('v_add_u32 v7, s64, v6')
    a.e('v_lshlrev_b32 v7, 11, v7')
    a.e('s_and_b32 s64, s6, 1')
    a.e('s_lshl_b32 s64, s64, 2')
    a.e('v_add_u32 v9, s64, v8')
    a.e('v_xor_b32 v9, v9, v10')
    a.e('v_lshl_add_u32 v%d, v9, 4, v7', VOA)
    a.e('v_add_u32 v7, s65, v6')
    a.e('v_mul_u32_u24 v7, 6144, v7')
    a.e('v_and_b32 v9, 1, v8')
    a.e('s_lshr_b32 s64, s64, 1')
    a.e('v_lshl_add_u32 v9, v9, 2, s64')
    a.e('v_xor_b32 v9, v9, v10')
    a.e('v_lshl_add_u32 v7, v9, 4, v7')
    a.e('s_lshl_b32 s64, s5, 7')
    a.e('v_add_u32 v%d, s64, v7', VOB)

    def spread(fill, n):
        fill = list(fill or [])
        per = -(-len(fill) // n)

        def put():
            for _ in range(per):
                if fill:
                    for ln in fill.pop(0):
                        a.e(ln)
        return put

    if NFIX:
        a.e('s_and_b32 s74, s4, 7')
        a.e('s_mul_i32 s74, s74, %d', 16 - NFIX)
        a.e('s_lshr_b32 s74, s74, 3')

    def dma(stage, fill=None):
        slot = stage % 3
        put = spread(fill, 10)
        if NFIX == 0:
            a.e('s_add_u32 s41, s74, %d', stage)
            a.e('s_and_b32 s41, s41, 15')
        elif stage < NFIX:
            a.e('s_mov_b32 s41, %d', stage)
        else:
            a.e('s_add_u32 s41, s74, %d', stage - NFIX)
            a.e('s_cmp_ge_u32 s41, %d', 16 - NFIX)
            a.e('s_cselect_b32 s42, %d, 0', 16 - NFIX)
            a.e('s_sub_u32 s41, s41, s42')
            a.e('s_add_u32 s41, s41, %d', NFIX)
        a.e('s_lshl_b32 s42, s41, 7')
        a.e('s_mul_i32 s41, s41, 393216')
        for aa in range(4):
            a.e('s_add_u32 m0, s7, %d', RB + slot * SLOT + aa * 4096)
            a.e('s_add_u32 s40, s42, %d', aa * 65536)
            a.vm_issue('d%d' % stage, 'buffer_load_dwordx4 v%d, %s, s40 offen' + NTA + ' lds', VOA, sr(S_X, 4))
            put()
        for ty in range(3):
            for b in range(2):
                a.e('s_add_u32 m0, s7, %d', RB + slot * SLOT + 16384 + ty * 8192 + b * 4096)
                a.e('s_add_u32 s40, s41, %d', b * 196608 + ty * 2048)
                a.vm_issue('d%d' % stage, 'buffer_load_dwordx4 v%d, %s, s40 offen' + NTB + ' lds', VOB, sr(S_W, 4))
                put()

    def wo_units(ps, fill=None):
        if not ps:
            for ch in fill or []:
                for ln in ch:
                    a.e(ln)
            return
        put = spread(fill, 2 * len(ps))
        for p in ps:
            for b in range(2):
                a.e('s_add_u32 m0, s7, %d', POS[p] + b * 4096)
                a.e('s_mov_b32 s40, %d', (p << 17) + b * 65536)
                a.vm_issue('wo', 'buffer_load_dwordx4 v%d, %s, s40 offen' + NTO + ' lds', VOW, sr(S_WO, 4))
                put()

    def cap(fn, n=4):
        saved = a.lines
        a.lines = []
        fn()
        L = [ln.strip() for ln in a.lines]
        a.lines = saved
        return [L[k:k + n] for k in range(0, len(L), n)]
    VOW = 10
    V16 = 6
    a.e('v_lshlrev_b32 v%d, 4, v2', V16)
    a.e('s_and_b32 s64, s2, 1')
    a.e('s_lshl_b32 s68, s64, 10')
    a.e('s_bfe_u32 s64, s2, 0x20001')
    a.e('s_lshl_b32 s64, s64, 8')
    a.e('s_add_u32 s68, s68, s64')
    a.e('s_and_b32 s64, s2, 0xf8')
    a.e('s_add_u32 s68, s68, s64')
    a.e('s_lshl_b32 s64, s6, 1')
    a.e('s_add_u32 s68, s68, s64')
    a.e('s_lshl_b32 s64, s68, 11')
    a.e('v_add_u32 v13, s64, v%d', V16)
    XR, WR, GW, WF = 24, 40, 48, 56
    RL = E('RL', -2)

    def x_rows():
        for q in range(4):
            a.vm_issue('r', 'buffer_load_dwordx4 %s, v13, %s, 0 offen offset:%d', vr(XR + 4 * q, 4), sr(S_X, 4), q * 1024)
    def row_loads():
        if 'rows0' not in EXP:
            x_rows()
        if 'wrv' in EXP:
            for q in range(2):
                a.vm_issue('r', 'buffer_load_dwordx4 %s, v%d, %s, 0 offen offset:%d', vr(WR + 4 * q, 4), V16, sr(S_WR, 4), q * 1024)
            for q in range(2):
                a.vm_issue('r', 'buffer_load_dwordx4 %s, v%d, %s, 0 offen offset:%d', vr(GW + 4 * q, 4), V16, sr(S_GW, 4), q * 1024)
            return
        a.e('s_cmp_lt_u32 s6, 2')
        a.e('s_cselect_b32 s%d, s48, s56', S_WR)
        a.e('s_cselect_b32 s%d, s49, s57', S_WR + 1)
        a.e('s_and_b32 s64, s7, 1024')
        a.e('s_add_u32 m0, s7, %d', L_KF)
        a.e('s_nop 0')
        a.vm_issue('r', 'buffer_load_dwordx4 v%d, %s, s64 offen lds', V16, sr(S_WR, 4))

    if 'rows0' in EXP:
        x_rows()
    if RL < -1:
        srd(a, S_WR, 48, 2048)
        row_loads()

    def slow_touch(ptr, stride, offs):
        a.e('s_lshl_b32 s64, s2, 2')
        a.e('s_add_u32 s64, s64, s6')
        a.e('s_mul_i32 s64, s64, %d', stride)
        a.e('s_add_u32 s46, s%d, s64', ptr)
        a.e('s_addc_u32 s47, s%d, 0', ptr + 1)
        for o in offs:
            a.e('s_load_dword s43, s[46:47], %d', o)
    SPF = 'spf' in EXP

    def spf(k, x=False):
        if not SPF or k > 15:
            return
        a.e('s_add_u32 s50, s46, %d', k * 393216)
        a.e('s_addc_u32 s51, s47, 0')
        if 'spfl' in EXP:
            for r in range(2):
                for ty in range(3):
                    for h in ((0,) if 'spfh' in EXP else (0, 64)):
                        a.e('s_load_dword s43, s[50:51], %d', r * 6144 + ty * 2048 + h)
        else:
            for o in range(6):
                a.e('s_load_dword s43, s[50:51], %d', o * 64)
        if x:
            for o in (0, 64, 2048, 2112):
                a.e('s_load_dword s43, s[52:53], %d', o + k * 128)
    if 'st0' in EXP:
        slow_touch(12, 6144, [t * 1024 + 384 + h for t in range(6) for h in (0, 64)])
    dma(1)
    if 'st1' in EXP:
        slow_touch(12, 6144, [t * 1024 + 384 + h for t in range(6) for h in (0, 64)])
    srd(a, S_WG, 50, 7340032)
    srd(a, S_WU, 52, 7340032)
    if SPF:
        a.e('s_lshl_b32 s64, s2, 2')
        a.e('s_add_u32 s64, s64, s6')
        a.e('s_lshl_b32 s65, s64, 12')
        a.e('s_add_u32 s52, s8, s65')
        a.e('s_addc_u32 s53, s9, 0')
        a.e('s_lshr_b32 s65, s64, 4')
        a.e('s_mul_i32 s65, s65, 6144')
        a.e('s_and_b32 s64, s64, 15')
        a.e('s_mul_i32 s64, s64, 384')
        a.e('s_add_u32 s64, s64, s65')
        if 'spfl' in EXP:
            a.e('s_and_b32 s64, s4, 7')
            a.e('s_lshl_b32 s64, s64, 2')
            a.e('s_add_u32 s64, s64, s6')
            a.e('s_mul_i32 s64, s64, 12288')
            a.e('s_lshl_b32 s65, s5, 7')
            a.e('s_add_u32 s64, s64, s65')
        a.e('s_add_u32 s46, s12, s64')
        a.e('s_addc_u32 s47, s13, 0')
    XT = 'spfx' in EXP
    SL0 = [int(c, 16) for c in os.environ.get('SL0', '34')]
    SL1 = [int(c, 16) for c in os.environ.get('SL1', '56')]
    for k in SL0:
        spf(k)
    stamp(a, 3)
    srd(a, S_DBG, 60, 256)
    if RL >= -1:
        srd(a, S_WR, 48, 2048)
    srd(a, S_GW, 56, 2048)
    VWG, VHP, VKB = 11, 12, 14
    a.e('s_lshr_b32 s69, s2, 3')
    a.e('s_and_b32 s64, s2, 7')
    a.e('v_and_b32 v9, 15, v2')
    a.e('v_min_u32 v9, 13, v9')
    a.e('s_lshl_b32 s65, s69, 5')
    a.e('v_lshl_add_u32 v7, v8, 3, s65')
    a.e('v_mul_u32_u24 v7, 7168, v7')
    a.e('s_mul_i32 s65, s64, 896')
    a.e('s_mul_i32 s66, s6, 224')
    a.e('s_add_u32 s65, s65, s66')
    a.e('v_lshl_add_u32 v7, v9, 4, v7')
    a.e('v_add_u32 v%d, s65, v7', VWG)
    a.e('v_cmp_le_u32 vcc, 7, v9')
    a.e('v_mov_b32 v15, %d', 16384 - 7 * 32)
    a.e('s_nop 0')
    a.e('v_cndmask_b32 v7, 0, v15, vcc')
    a.e('v_lshl_add_u32 v7, v9, 5, v7')
    a.e('v_lshrrev_b32 v15, 1, v8')
    a.e('v_lshl_add_u32 v7, v15, 13, v7')
    a.e('v_and_b32 v15, 1, v8')
    a.e('v_lshl_add_u32 v7, v15, 4, v7')
    a.e('s_lshl_b32 s64, s64, 17')
    a.e('s_lshl_b32 s65, s6, 15')
    a.e('s_add_u32 s64, s64, s65')
    a.e('s_lshl_b32 s65, s69, 8')
    a.e('s_add_u32 s64, s64, s65')
    a.e('s_add_u32 s64, s64, %d', WS_HP)
    a.e('v_add_u32 v%d, s64, v7', VHP)
    if 'noack' in EXP:
        a.e('s_lshl_b32 s66, s4, 2')
        a.e('s_and_b32 s65, s6, 1')
        a.e('s_lshl_b32 s65, s65, 1')
        a.e('s_add_u32 s66, s66, s65')
        a.e('s_lshl_b32 s66, s66, 5')
        a.e('s_lshl_b32 s65, s5, 1')
        a.e('s_add_u32 s66, s66, s65')
        a.e('s_lshr_b32 s65, s6, 1')
        a.e('s_add_u32 s66, s66, s65')
        a.e('s_lshl_b32 s66, s66, %d', PS + 1)
        a.e('v_mov_b32 v14, s66')
    a.e('s_lshl_b32 s70, s5, 2')
    a.e('s_add_u32 s70, s70, s6')
    a.e('s_mul_i32 s70, s70, %d', 16 * KVB)
    a.e('s_add_u32 s70, s70, %d', WS_KVP)
    a.e('s_mul_i32 s64, s4, %d', KVB)
    a.e('s_add_u32 s64, s64, s70')
    a.e('s_mov_b32 s67, s64')
    a.e('v_lshl_add_u32 v15, v2, 2, s64')
    a.e('v_add_u32 v15, %d, v15', KVZ - 64)
    a.e('s_lshl_b32 s64, s5, 2')
    a.e('s_add_u32 s64, s64, s6')
    a.e('s_lshl_b32 s64, s64, %d', FS)
    a.e('s_add_u32 s64, s64, %d', WS_F1)
    a.e('v_mov_b32 v23, s64')
    a.e('s_lshl_b32 s65, s4, %d', FS + 3)
    a.e('s_add_u32 s65, s65, %d', WS_F2 - (1 << FS))
    a.e('v_lshl_add_u32 v20, v2, %d, s65', FS)
    a.e('v_cmp_gt_u32 vcc, 16, v2')
    a.e('s_nop 1')
    a.e('v_cndmask_b32 v15, v15, v20, vcc')
    a.e('v_writelane_b32 v15, s64, 0')
    a.e('s_cmp_eq_u32 s4, 0')
    a.e('s_cselect_b32 s75, 1, 0')
    a.e('s_or_b32 s64, s5, s6')
    a.e('s_cmp_eq_u32 s64, 0')
    a.e('s_cselect_b32 s64, 0x1fe, 0')
    a.e('s_or_b32 s75, s75, s64')
    a.e('s_or_b32 s75, s75, 0xffff0000')
    lane_off(a, 22, 16)
    a.e('v_add_u32 v22, s67, v22')
    for r in range(4):
        a.e('v_mov_b32 v%d, -1', 16 + r)
    a.e('v_cndmask_b32 v20, -1, 0, vcc')
    a.vm_wait('d0')
    stamp(a, 4)
    D2E = E('D2E', 0)
    if D2E:
        saved = a.lines
        a.lines = []
        dma(2)
        L = a.lines
        a.lines = saved
        idx = [k for k, ln in enumerate(L) if 'buffer_load' in ln][D2E - 1] + 1
        a.lines += L[:idx]
        a.e('s_barrier')
        a.lines += L[idx:]
    else:
        a.e('s_barrier')
        dma(2)
    if 'cscode' not in EXP and 'noscode' not in EXP and E('SC', -1) == -1:
        scode(a, 6)
    if 'stx' in EXP:
        slow_touch(8, 4096, [r * 2048 + t * 1024 + 384 + h for r in range(2) for t in range(2) for h in (0, 64)])
    for k in SL1:
        spf(k)

    def init_stores():
        if os.environ.get('GS', ''):
            a.e('s_lshl_b32 s64, s68, 2')
            a.e('s_add_u32 s64, s64, %d', WS_G)
            a.e('v_lshrrev_b32 v76, 5, v2')
            a.e('v_lshl_add_u32 v76, v76, 2, s64')
            a.e('s_mov_b32 exec_lo, 1\ns_mov_b32 exec_hi, 1')
            a.vm_issue('g', 'buffer_store_dword v16, v76, %s, 0 offen' + WT, WSR)
            a.e('s_mov_b64 exec, -1')
        a.vm_issue('init', 'buffer_store_dwordx4 v[16:19], v22, %s, 0 offen' + WT, WSR)
        a.e('s_mov_b32 exec_lo, s75\ns_mov_b32 exec_hi, 0')
        a.vm_issue('init', 'buffer_store_dword v20, v15, %s, 0 offen' + WT, WSR)
        a.e(MASK14)
        a.vm_issue('init', 'buffer_store_dwordx4 v[16:19], v%d, %s, 0 offen' + WT, VHP, WSR)
        a.e('s_mov_b64 exec, 0xffff')
        a.e('s_lshl_b32 s64, s2, 10')
        a.e('s_lshl_b32 s65, s6, 8')
        a.e('s_add_u32 s64, s64, s65')
        a.e('s_add_u32 s64, s64, %d', WS_YP)
        a.vm_issue('init', 'buffer_store_dwordx4 v[16:19], v%d, %s, s64 offen' + WT, V16, WSR)
        a.e('s_mov_b64 exec, -1')

    WGT = 96
    XS = 88
    WD = 192
    wl = [(m, j) for j in range(8) for m in range(2)]
    def mk_sched(txt):
        TR = [int(c) for c in txt]
        assert len(TR) == 17 and sum(TR) == 23, sum(TR)
        allw = [('w', x) for x in wl] + [('d', j) for j in range(7)]
        ws_, ds_ = {}, {}
        for k, n in enumerate(TR):
            for kind, x in allw[sum(TR[:k]):sum(TR[:k + 1])]:
                (ws_ if kind == 'w' else ds_).setdefault(k - 1, []).append(x)
        return ws_, ds_, min(ds_)
    wsched, dsched, D0 = mk_sched(os.environ.get('TR', '00005005006007000'))
    TR2 = os.environ.get('TR2')
    GV = E('GV', 13)
    VWD = 21

    def wload(lst):
        if 'now' in EXP:
            return
        a.e(MASK14)
        for (m, j) in lst:
            a.e('s_mov_b32 s64, %d', j * 7168)
            a.vm_issue('w', 'buffer_load_dwordx4 %s, v%d, %s, s64 offen' + NTW, vr(WGT + 32 * m + 4 * j, 4), VWG, sr(S_WG if m == 0 else S_WU, 4))
        a.e('s_mov_b64 exec, -1')

    GA = 32
    MK = 40

    def gemv1_part(pairs):
        if pairs[0] == 0:
            a.e('v_and_b32 v48, 15, v2')
            a.e('v_and_b32 v49, 1, v2')
            a.e('v_lshlrev_b32 v49, 4, v49')
            a.e('v_mov_b32 v50, 0xffff')
            a.e('v_lshlrev_b32 v49, v49, v50')
            a.e('v_lshrrev_b32 v48, 1, v48')
            for q in range(4):
                a.e('v_cmp_eq_u32 vcc, %d, v48', q)
                a.e('s_nop 1')
                a.e('v_cndmask_b32 v%d, 0, v49, vcc', MK + q)
        a.e('s_mov_b32 s64, 0x01000100')
        a.e('s_mov_b32 s65, 0x03020302')
        for jp in pairs:
            for k in range(2):
                j = 2 * jp + k
                t = 44 + 8 * (j & 1)
                a.e('v_perm_b32 v48, v%d, v%d, s%d', XS + jp, XS + jp, 64 + k)
                for q in range(4):
                    a.e('v_and_b32 v%d, v48, v%d', t + q, MK + q)
                a.e('s_nop 1')
                for m in range(2):
                    d = vr(GA + 4 * m, 4)
                    a.e('v_mfma_f32_16x16x32_bf16 %s, %s, %s, %s', d, vr(t, 4), vr(WGT + 32 * m + 4 * j, 4), '0' if j == 0 else d)

    def gemv1_fin():
        a.e('s_nop 7')
        for q in range(4):
            a.e('v_permlane32_swap_b32 v%d, v%d', GA + q, GA + 4 + q)
        a.e(MASK14)
        a.vm_issue('hp', 'buffer_store_dwordx4 %s, v%d, %s, 0 offen' + WT, vr(GA, 4), VHP, WSR)
        a.e('s_mov_b64 exec, -1')
        stamp(a, 7)

    def h0_only(name):
        a.e('s_cmp_lg_u32 s6, 0')
        a.e('s_cbranch_scc1 %s', name)

    IN = E('IN', 0)
    GX = E('GX', 1)
    GS = [int(c, 16) for c in os.environ.get('GS', '')]
    PB = E('PB', 10)
    KP = E('KP', 6)
    gv = {'a': {GV: [0, 1], GV + 1: [2, 3]}, 'b': {GV: [0], GV + 1: [1, 2], GV + 2: [3]}, 'c': {GV: [0], GV + 1: [1], GV + 2: [2, 3]},
          'd': {GV: [0, 1, 2, 3]}}[os.environ.get('GVS', 'd')]
    WOS = {'a': {13: (0, 8, 1, 9, 2, 10), 14: (3, 11), 15: (4, 12, 5, 13, 6, 14, 7, 15)},
           'b': {13: (0, 8, 1, 9), 14: (2, 10), 15: (3, 11, 4, 12, 5, 13, 6, 14, 7, 15)},
           'c': {13: (0, 8), 14: (1, 9), 15: (2, 10, 3, 11, 4, 12, 5, 13, 6, 14, 7, 15)},
           'd': {13: (0,), 14: (8, 1, 9, 2), 15: (10, 3, 11, 4, 12, 5, 13, 6, 14, 7, 15)},
           'e': {13: (0, 8), 14: (1, 9, 2, 10), 15: (3, 11, 4, 12, 5, 13, 6, 14, 7, 15)},
           'f': {13: (0, 8), 14: (1, 9, 2, 10), 15: (3, 4, 5, 6, 7, 11), 16: (12, 13, 14, 15)},
           'g': {13: (0, 1), 14: (2, 8, 9), 15: (3, 4, 5, 6, 7), 16: (10, 11, 12, 13, 14, 15)},
           'j': {10: (0, 8), 12: (1, 9), 13: (2, 10), 14: (3, 11), 15: (4, 12, 5, 13, 6, 14, 7, 15)},
           'k': {12: (0, 8), 13: (1, 9, 2), 14: (10, 3, 11), 15: (4, 12, 5, 13, 6, 14, 7, 15)},
           'l': {8: (0, 8), 10: (1, 9), 13: (2, 10), 14: (3, 11), 15: (4, 12, 5, 13, 6, 14, 7, 15)},
           'm': {13: (0, 8), 14: (1, 9, 2, 10, 3, 11), 15: (4, 12, 5, 13, 6, 14, 7, 15)},
           'n': {13: (0, 8), 14: (1, 9, 2, 10), 15: (3, 11, 4, 12, 5), 17: (13, 6, 14, 7, 15)},
           'o': {13: (0, 8), 14: (1, 9, 2, 10), 15: (3, 11), 17: (4, 12, 5, 13, 6, 14, 7, 15)},
           'p': {13: (0, 8), 14: (1, 9, 2, 10), 15: (3, 11, 4, 12, 5, 13, 6), 17: (14, 7, 15)},
           'h': {13: (0, 8), 14: (1, 9, 2, 10), 15: (3, 4, 5, 6, 7, 11, 12, 13), 16: (14, 15)},
           'i': {13: (0, 1), 14: (2,), 15: (3, 4, 5, 6, 7), 16: (8, 9, 10, 11, 12, 13, 14, 15)}}[os.environ.get('WOSCH', 'e')]
    if RL == -1:
        row_loads()

    if IN == -1:
        init_stores()
    if -1 in wsched:
        wload(wsched[-1])
    def wd_addr():
        srd(a, S_WD, 54, 7340032)
        a.e('s_lshr_b32 s64, s2, 2')
        a.e('s_mul_i32 s64, s64, %d', 56 * 2048)
        a.e('s_and_b32 s65, s2, 3')
        a.e('s_lshl_b32 s65, s65, 9')
        a.e('s_add_u32 s64, s64, s65')
        a.e('s_lshl_b32 s65, s6, 7')
        a.e('s_add_u32 s64, s64, s65')
        a.e('v_lshrrev_b32 v7, 3, v2')
        a.e('v_lshlrev_b32 v7, 11, v7')
        a.e('v_and_b32 v9, 7, v2')
        a.e('v_lshl_add_u32 v7, v9, 4, v7')
        a.e('v_add_u32 v%d, s64, v7', VWD)

    def key_loads():
        a.e('s_mov_b32 s64, %d', WS_KEY)
        for q in range(2):
            a.vm_uncounted('buffer_load_dwordx4 %s, v%d, %s, s64 offen offset:%d sc1' % (vr(24 + 4 * q, 4), V16, WSR, q * 1024))

    def dots():
        for q in range(8):
            for k, (x, w) in enumerate(((XR + q, GW + q), (XR + 8 + q, GW + q), (XR + q, WR + q), (XR + 8 + q, WR + q))):
                a.e('v_dot2_f32_bf16 v%d, v%d, v%d, %s', 72 + k, x, w, '0' if q == 0 else 'v%d' % (72 + k))

    def dots_exact(part):
        WU = 56
        if part == 0:
            a.e('v_mov_b32 v84, 0x3f803f80')
        for q in range(4 * part, 4 * part + 4):
            a.e('v_lshlrev_b32 v%d, 16, v%d', WU, GW + q)
            a.e('v_and_b32 v%d, 0xffff0000, v%d', WU + 1, GW + q)
            for k in range(2):
                x, t = XR + 8 * k + q, 80 + 2 * k
                a.e('v_lshlrev_b32 v%d, 16, v%d', t, x)
                a.e('v_and_b32 v%d, 0xffff0000, v%d', t + 1, x)
                a.e('v_mul_f32 v%d, v%d, v%d', t, t, WU)
                a.e('v_mul_f32 v%d, v%d, v%d', t + 1, t + 1, WU + 1)
                a.e('v_dot2_f32_bf16 v%d, v%d, v%d, %s', 74 + k, x, WR + q, '0' if q == 0 else 'v%d' % (74 + k))
                a.e('v_cvt_pk_bf16_f32 v%d, v%d, v%d', t, t, t + 1)
            for k in range(2):
                a.e('v_dot2_f32_bf16 v%d, v%d, v84, %s', 72 + k, 80 + 2 * k, '0' if q == 0 else 'v%d' % (72 + k))

    def half_reduce(r0, r1):
        a.e('v_permlane32_swap_b32 v%d, v%d', r0, r1)
        a.e('v_add_f32 v%d, v%d, v%d', r0, r0, r1)
        a.e('v_mov_b32 v%d, v%d', r1, r0)
        a.e('s_nop 1')
        a.e('v_permlane16_swap_b32 v%d, v%d', r0, r1)
        a.e('v_add_f32 v%d, v%d, v%d', r0, r0, r1)
        a.e('s_nop 1')
        for pat in ('quad_perm:[1,0,3,2]', 'quad_perm:[2,3,0,1]', 'row_half_mirror', 'row_mirror'):
            a.e('v_add_f32_dpp v%d, v%d, v%d %s row_mask:0xf bank_mask:0xf', r0, r0, r0, pat)
            a.e('s_nop 1')
        a.e('v_cvt_pk_bf16_f32 v%d, v%d, v%d', r0, r0, r0)
        a.e('v_lshlrev_b32 v%d, 16, v%d', r0, r0)

    def rdots():
        for q in range(8):
            for k in range(2):
                a.e('v_dot2_f32_bf16 v%d, v%d, v%d, %s', 74 + k, XR + 8 * k + q, WR + q, '0' if q == 0 else 'v%d' % (74 + k))

    def key_fin():
        half_reduce(74, 75)
        a.e('s_sub_u32 s64, %d, s68', 2047 + 0x8000)
        a.e('v_lshrrev_b32 v75, 5, v2')
        a.e('v_ashrrev_i32 v73, 31, v74')
        a.e('v_sub_u32 v77, s64, v75')
        a.e('v_or_b32 v73, 0x80000000, v73')
        a.e('s_lshl_b32 s64, s6, 3')
        a.e('v_xor_b32 v73, v74, v73')
        a.e('v_lshl_add_u32 v75, v75, 2, s64')
        a.e('v_and_b32 v73, 0xffff0000, v73')
        a.e('v_or_b32 v73, v77, v73')

    def gate_part(part, n):
        if part == 0:
            a.e('v_mov_b32 v84, 0x3f803f80')
        for q in range(8 * part // n, 8 * (part + 1) // n):
            a.e('v_lshlrev_b32 v56, 16, v%d', GW + q)
            a.e('v_and_b32 v57, 0xffff0000, v%d', GW + q)
            for k in range(2):
                x, t = XR + 8 * k + q, 80 + 2 * k
                a.e('v_lshlrev_b32 v%d, 16, v%d', t, x)
                a.e('v_and_b32 v%d, 0xffff0000, v%d', t + 1, x)
                a.e('v_mul_f32 v%d, v%d, v56', t, t)
                a.e('v_mul_f32 v%d, v%d, v57', t + 1, t + 1)
                a.e('v_cvt_pk_bf16_f32 v%d, v%d, v%d', t, t, t + 1)
            for k in range(2):
                a.e('v_dot2_f32_bf16 v%d, v%d, v84, %s', 85 + k, 80 + 2 * k, '0' if q == 0 else 'v%d' % (85 + k))

    def gate_fin():
        half_reduce(85, 86)
        sigmoid_bf16(a, [85])

    def router_fin():
        a.e('v_permlane32_swap_b32 v72, v74')
        a.e('v_permlane32_swap_b32 v73, v75')
        a.e('v_add_f32 v72, v72, v74')
        a.e('v_add_f32 v73, v73, v75')
        a.e('s_lshl_b32 s64, s68, 2')
        a.e('s_add_u32 s64, s64, %d', WS_G)
        a.e('v_permlane16_swap_b32 v72, v73')
        a.e('v_add_f32 v72, v72, v73')
        a.e('v_and_b32 v75, 1, v8')
        a.e('v_lshl_add_u32 v76, v75, 2, s64')
        for pat in ('quad_perm:[1,0,3,2]', 'quad_perm:[2,3,0,1]', 'row_half_mirror', 'row_mirror'):
            a.e('v_add_f32_dpp v72, v72, v72 %s row_mask:0xf bank_mask:0xf', pat)
            a.e('s_nop 1')
        a.e('v_cvt_pk_bf16_f32 v72, v72, v72')
        a.e('s_sub_u32 s64, %d, s68', 2047 + 0x8000)
        a.e('v_lshlrev_b32 v72, 16, v72')
        a.e('v_ashrrev_i32 v73, 31, v72')
        a.e('v_sub_u32 v77, s64, v75')
        a.e('v_or_b32 v73, 0x80000000, v73')
        a.e('s_lshl_b32 s64, s6, 3')
        a.e('v_xor_b32 v73, v72, v73')
        a.e('v_lshl_add_u32 v75, v75, 2, s64')
        a.e('v_and_b32 v73, 0xffff0000, v73')
        a.e('v_or_b32 v73, v77, v73')
        sigmoid_bf16(a, [72])

    def key_max():
        a.e('v_max_u32 v3, v24, v26')
        a.e('v_max3_u32 v3, v3, v28, v30')
        a.e('s_nop 1')
        for pat in ('quad_perm:[1,0,3,2]', 'quad_perm:[2,3,0,1]', 'row_half_mirror', 'row_mirror'):
            a.e('v_max_u32_dpp v3, v3, v3 %s row_mask:0xf bank_mask:0xf', pat)
            a.e('s_nop 1')
        for swp in ('v_permlane16_swap_b32', 'v_permlane32_swap_b32'):
            a.e('v_mov_b32 v7, v3')
            a.e('s_nop 1')
            a.e('%s v3, v7', swp)
            a.e('v_max_u32 v3, v3, v7')
        a.e('v_mov_b32 v7, %d', L_KEY + 32)

    sched0 = (wsched, dsched, D0)
    marks = {}
    nxt = [max(SL1) + 1]
    gv0, WOS0 = gv, WOS

    def stage(i, slow, sched=None):
        wsched, dsched, D0 = sched or sched0
        gv, WOS = gv0, WOS0
        if sched and 'c3v' in EXP:
            gv = {E('GV2', 15): [0, 1, 2, 3]}
            WOS = {'a': {13: (), 14: (), 15: (0, 8, 1, 9, 2, 10, 3, 11, 4, 12, 5, 13, 6, 14, 7, 15)},
                   'b': {13: (0,), 14: (8, 1), 15: (9, 2, 10, 3, 11, 4, 12, 5, 13, 6, 14, 7, 15)}, 'e': WOS0}[os.environ.get('WOS2', 'a')]
        if i + 1 < 16:
            a.vm_wait('d%d' % (i + 1))
        if i == KP:
            a.vm_wait('g')
            a.vm_wait('init')
        if i == RL + 3:
            a.vm_wait('r')
        if i in (RL + 5 + GX, PB + 2):
            a.e('s_waitcnt lgkmcnt(0)')
        a.e('s_barrier')
        fill = []
        if i == E('NL', KP - 2):
            assert i <= KP - 2
            a.e('v_mov_b32 v79, 0')
            h0_only('H_nc')
            a.vm_uncounted('buffer_load_dword v78, v79, %s, 0 offen sc1' % sr(S_DBG, 4))
            a.e('H_nc:')
        if i == PB:
            h0_only('H_np')
            key_loads()
            a.e('H_np:')
            marks['poll'] = a.issued
        if i == PB + 1:
            h0_only('H_nq')
            a.e('s_waitcnt vmcnt(%d)', a.issued - marks['poll'])
            a.e('s_mov_b32 s65, 0')
            a.e('H_spin:')
            for q in range(4):
                a.e('v_xor_b32 v%d, v%d, v%d', 25 + 2 * q, 24 + 2 * q, 25 + 2 * q)
            a.e('v_xor_b32 v3, s71, v25')
            a.e('v_xor_b32 v7, s71, v27')
            a.e('v_xor_b32 v25, s71, v29')
            a.e('v_xor_b32 v27, s71, v31')
            a.e('v_or3_b32 v3, v3, v7, v25')
            a.e('v_or_b32 v3, v3, v27')
            a.e('v_cmp_ne_u32 vcc, 0, v3')
            a.e('s_cbranch_vccnz H_retry')
            with a.cold():
                a.e('H_retry:')
                a.e('s_add_u32 s65, s65, 1')
                a.e('s_cmp_ge_u32 s65, 200000')
                a.e('s_cbranch_scc1 H_nq')
                a.e('s_sleep 8')
                key_loads()
                a.e('s_waitcnt vmcnt(0)')
                a.e('s_branch H_spin')
            a.e('H_nq:')
            fill += cap(key_max)
        if i == PB + 2:
            a.e('v_mov_b32 v7, %d', L_KEY + 32)
            a.e('ds_read_b32 v3, v7')
            a.e('s_lshl_b32 s65, s69, 6')
            a.e('v_lshl_add_u32 v7, v8, 4, s65')
            a.e('s_waitcnt lgkmcnt(0)')
            a.e('v_readfirstlane_b32 s75, v3')
            a.e('s_nop 3')
            a.e('s_and_b32 s64, s75, 0x7ff')
            a.e('s_sub_u32 s64, 2047, s64')
            a.e('s_lshl_b32 s64, s64, 11')
            a.vm_issue('xs', 'buffer_load_dwordx4 %s, v7, %s, s64 offen', vr(XS, 4), sr(S_X, 4))
        if i == RL + 3:
            a.vm_wait('r')
            if 'wrv' not in EXP:
                for q in range(4):
                    a.e('ds_read_b128 %s, v%d offset:%d', vr(WR + 4 * q, 4), V16, L_KF + q * 1024)
                fill += [['s_waitcnt lgkmcnt(0)']]
            fill += cap(rdots if GS else dots if GX == 0 and 'gx1' not in EXP else lambda: dots_exact(0))
            if 'gx1' in EXP:
                fill += cap(lambda: dots_exact(1))
        if i == RL + 4 and GX:
            fill += cap(lambda: dots_exact(1))
        if i == RL + 4 + GX:
            fill += cap(key_fin if GS else router_fin)
        if i in GS[:-1]:
            fill += cap(lambda: gate_part(GS.index(i), len(GS) - 1))
        if GS and i == GS[-1]:
            fill += cap(gate_fin)
        if i in gv:
            if gv[i][0] == 0:
                a.vm_wait('xs')
                a.vm_wait('w')
                stamp(a, 6)
            fill += cap(lambda: gemv1_part(gv[i]))
        if i + 3 < 16:
            dma(i + 3, fill)
        else:
            if i == 13 and not slow and min(WOS) == 13:
                wo_setup()
            if i == E('OFS', 14) and 'noack' in EXP:
                assert not SK
                a.e('v_add_u32 v14, v14, v%d', V16)
                a.e('s_mov_b32 s64, 65536')
                for q in range(4):
                    a.vm_issue('init', 'buffer_store_dwordx4 v[16:19], v14, %s, %s offen offset:%d' + WT, WSR, 's64' if q >= 2 else '0', (q & 1) * 1024)
            if i == 15:
                xo_loads(a)
            wo_units((WOSS if slow else WOS)[i], fill)
        if not slow and i in WOS and i < 13:
            assert i != PB + 1
            if i == min(WOS):
                wo_setup()
            wo_units(WOS[i])
        if slow and i in WOSS and i < 13:
            assert i != PB + 1
            if i == min(WOSS):
                wo_setup()
            wo_units(WOSS[i])
        if slow and i == E('ET2', 99):
            assert i >= min(WOSS) and i != PB + 1
            a.e('s_and_b32 s64, s4, 3')
            a.e('s_lshl_b32 s64, s64, 6')
            a.e('s_lshl_b32 s65, s6, 4')
            a.e('s_add_u32 s64, s64, s65')
            a.e('s_and_b32 s65, s64, 128')
            a.e('s_mul_i32 s65, s65, 3')
            a.e('s_add_u32 s64, s64, s65')
            a.e('s_add_u32 s64, s64, 128')
            a.e('s_lshl_b32 s64, s64, 11')
            a.e('s_lshl_b32 s65, s5, 7')
            a.e('s_add_u32 s64, s64, s65')
            a.e('v_lshrrev_b32 v7, 1, v2')
            a.e('v_lshlrev_b32 v7, 11, v7')
            a.e('v_and_b32 v9, 1, v2')
            a.e('v_lshl_add_u32 v7, v9, 6, v7')
            a.e('s_mov_b32 exec_hi, 0')
            a.vm_issue('t', 'buffer_load_dword v56, v7, %s, s64 offen', sr(S_WO, 4))
            a.e('s_mov_b32 exec_hi, -1')
        if slow and i == E('ET', 99):
            assert i >= min(WOSS) and i != PB + 1
            a.e('s_and_b32 s64, s4, 3')
            a.e('s_lshl_b32 s64, s64, 7')
            a.e('s_lshl_b32 s65, s6, 5')
            a.e('s_add_u32 s64, s64, s65')
            a.e('s_and_b32 s65, s64, 256')
            a.e('s_add_u32 s64, s64, s65')
            a.e('s_add_u32 s64, s64, 256')
            a.e('s_lshl_b32 s64, s64, 11')
            a.e('s_lshl_b32 s65, s5, 7')
            a.e('s_add_u32 s64, s64, s65')
            a.e('v_lshrrev_b32 v7, 1, v2')
            a.e('v_lshlrev_b32 v7, 11, v7')
            a.e('v_and_b32 v9, 1, v2')
            a.e('v_lshl_add_u32 v7, v9, 6, v7')
            a.vm_issue('t', 'buffer_load_dword v56, v7, %s, s64 offen', sr(S_WO, 4))
        if i not in (RL + 4, KP - 1, KP, PB, PB + 1) or 'spfs' not in EXP:
            spf(nxt[0]); nxt[0] += 1
        if i == RL:
            row_loads()
        if i == IN:
            init_stores()
        if GS and i == RL + 4:
            a.e('s_mov_b32 exec_lo, 1\ns_mov_b32 exec_hi, 1')
            a.e('ds_write_b32 v75, v73 offset:%d', L_KEY)
            a.e('s_mov_b64 exec, -1')
        if GS and i == GS[-1]:
            a.e('s_mov_b32 exec_lo, 1\ns_mov_b32 exec_hi, 1')
            a.vm_issue('g2', 'buffer_store_dword v85, v76, %s, 0 offen' + WT, WSR)
            a.e('s_mov_b64 exec, -1')
        if not GS and i == RL + 4 + GX:
            a.e('s_mov_b32 exec_lo, 0\ns_mov_b32 exec_hi, 0x10001')
            a.e('ds_write_b32 v75, v73 offset:%d', L_KEY)
            a.e('s_mov_b32 exec_lo, 0x10001\ns_mov_b32 exec_hi, 0')
            a.vm_issue('g', 'buffer_store_dword v72, v76, %s, 0 offen' + WT, WSR)
            a.e('s_mov_b64 exec, -1')
        if i == KP:
            assert IN <= RL + 4 + GX < KP
            h0_only('H_nk')
            a.e('v_mov_b32 v3, %d', L_KEY)
            a.e('ds_read_b128 v[72:75], v3')
            a.e('ds_read_b128 v[60:63], v3 offset:16')
            a.e('s_mov_b32 s65, 0')
            a.e('H_nspin:')
            a.e('v_readfirstlane_b32 s71, v78')
            a.e('s_cmp_eq_u32 s71, 0')
            a.e('s_cbranch_scc1 H_nre')
            with a.cold():
                a.e('H_nre:')
                a.e('s_add_u32 s65, s65, 1')
                a.e('s_cmp_ge_u32 s65, 200000')
                a.e('s_cbranch_scc1 H_nok')
                a.e('s_sleep 4')
                a.e('buffer_load_dword v78, v79, %s, 0 offen sc1' % sr(S_DBG, 4))
                a.e('s_waitcnt vmcnt(0)')
                a.e('s_branch H_nspin')
            a.e('H_nok:')
            a.e('s_lshl_b32 s64, s2, 3')
            a.e('s_add_u32 s64, s64, %d', WS_KEY)
            a.e('v_mov_b32 v3, s64')
            a.e('s_waitcnt lgkmcnt(0)')
            a.e('v_max3_u32 v72, v72, v73, v74')
            a.e('v_max3_u32 v60, v60, v61, v62')
            a.e('v_max3_u32 v72, v72, v75, v63')
            a.e('v_max_u32 v72, v72, v60')
            a.e('v_xor_b32 v73, s71, v72')
            a.e('s_mov_b64 exec, 1')
            a.vm_uncounted('buffer_store_dwordx2 v[72:73], v3, %s, 0 offen' % WSR + WT)
            a.e('s_mov_b64 exec, -1')
            a.e('H_nk:')
        if i == PB + 1:
            h0_only('H_nw')
            a.e('ds_write_b32 v7, v3')
            a.e('H_nw:')
        if i == E('PFO', 99):
            srd(a, S_GW, 44, 2097152)
            a.e('s_lshl_b32 s64, s2, 13')
            a.e('s_lshl_b32 s65, s6, 11')
            a.e('s_add_u32 s64, s64, s65')
            for q in range(2):
                a.vm_issue('t', 'buffer_load_dwordx4 v[56:59], v%d, %s, s64 offen offset:%d', V16, sr(S_GW, 4), q * 1024)
        PFL = [int(c, 16) for c in os.environ.get('PFL', '')]
        if i in PFL:
            n = 8 // len(PFL)
            srd(a, S_GW, 44, 2097152)
            a.e('s_lshr_b32 s64, s2, 3')
            a.e('s_lshl_b32 s64, s64, 2')
            a.e('s_add_u32 s64, s64, s6')
            a.e('s_lshl_b32 s64, s64, 14')
            a.e('s_bfe_u32 s65, s2, 0x10002')
            a.e('s_lshl_b32 s65, s65, 10')
            a.e('s_add_u32 s64, s64, s65')
            a.e('s_add_u32 s64, s64, %d', PFL.index(i) * n * 2048)
            for q in range(n):
                a.vm_issue('t', 'buffer_load_dwordx4 v[56:59], v%d, %s, s64 offen', V16, sr(S_GW, 4))
                a.e('s_add_u32 s64, s64, 2048')
        SPD = [int(c, 16) for c in os.environ.get('SPD', '')]
        if i in SPD:
            if i == SPD[0]:
                a.e('s_lshr_b32 s64, s2, 2')
                a.e('s_mul_i32 s64, s64, %d', 56 * 2048)
                a.e('s_and_b32 s65, s2, 3')
                a.e('s_lshl_b32 s65, s65, 9')
                a.e('s_add_u32 s64, s64, s65')
                a.e('s_lshl_b32 s65, s6, 7')
                a.e('s_add_u32 s64, s64, s65')
                a.e('s_add_u32 s46, s54, s64')
                a.e('s_addc_u32 s47, s55, 0')
            per = -(-56 // len(SPD))
            for r in range(SPD.index(i) * per, min(56, (SPD.index(i) + 1) * per)):
                for h in (0, 64):
                    a.e('s_load_dword s43, s[46:47], %d', r * 2048 + h)
        if i == E('SC', -1):
            scode(a, 6)
        if i == E('TLB', 99):
            assert i > KP
            srd(a, S_OUT, 58, 4194304)
            a.e('s_and_b32 s64, s2, 3')
            a.e('s_lshl_b32 s64, s64, 2')
            a.e('s_bfe_u32 s65, s2, 0x20003')
            a.e('s_add_u32 s64, s64, s65')
            a.e('s_lshl_b32 s64, s64, 18')
            a.e('s_lshl_b32 s65, s6, 16')
            a.e('s_add_u32 s64, s64, s65')
            a.e('s_mov_b64 exec, 1')
            a.vm_issue('t', 'buffer_load_dword v56, v%d, %s, s64 offen', V16, sr(S_OUT, 4))
            a.e('s_lshl_b32 s64, s4, 18')
            a.e('s_add_u32 s64, s64, s65')
            a.e('s_lshl_b32 s65, s5, 12')
            a.e('s_add_u32 s64, s64, s65')
            a.vm_issue('t', 'buffer_load_dword v56, v%d, %s, s64 offen', V16, WSR)
            a.e('s_mov_b64 exec, -1')
        if i == E('STG', 99):
            slow_touch(S_WG, 7168, [t * 1024 + 384 + h for t in range(7) for h in (0, 64)])
        if i == E('STU', 99):
            slow_touch(S_WU, 7168, [t * 1024 + 384 + h for t in range(7) for h in (0, 64)])
        if i == E('STD', 99):
            slow_touch(54, 7168, [t * 1024 + 384 + h for t in range(7) for h in (0, 64)])
        if i == E('STO', 7):
            slow_touch(44, 2048, [t * 1024 + 384 + h for t in range(2) for h in (0, 64)])
        if i in wsched:
            wload(wsched[i])
        if i == D0:
            wd_addr()
        if i in dsched and 'now' not in EXP:
            for j in dsched[i]:
                a.e('s_mov_b32 s64, %d', j * 16384)
                a.vm_issue('wd', 'buffer_load_dwordx4 %s, v%d, %s, s64 offen' + NTW, vr(WD + 4 * j, 4), VWD, sr(S_WD, 4))
        if i == max(gv):
            gemv1_fin()

    def wo_setup():
        p2_ids(a)
        srd(a, S_WO, 44, 2097152)
        wo_voff(a, VOW, 7, 9, 6)
    EW = E('EW', 99)
    WOSS = {EW: (0, 8), EW + 3: (1, 9), 13: (2, 10), 14: (3, 11), 15: (4, 12, 5, 13, 6, 14, 7, 15)}
    if os.environ.get('EWS') == 'b':
        WOSS = {EW: (0, 8, 1, 9), 13: (2, 10), 14: (3, 11), 15: (4, 12, 5, 13, 6, 14, 7, 15)}
    if TR2:
        EW = 1
    FREE_END = 'freeend' in EXP and EW >= 16 and not TR2
    for i in range(min(EW, 13 if FREE_END else 16)):
        stage(i, False)
    if FREE_END:
        assert max(gv) == 13 and max(wsched) < 13 and max(dsched) < 13
        a.vm_wait('d14')
        a.e('s_barrier')
        a.vm_wait('xs')
        a.vm_wait('w')
        stamp(a, 6)
        gemv1_part([0, 1, 2, 3])
        wo_setup()
        gemv1_fin()
        a.e('v_mov_b32 v7, %d', L_FLG + 20)
        a.e('v_mov_b32 v9, 1')
        a.vm_wait('d15')
        a.e('s_mov_b64 exec, 1')
        a.e('ds_add_u32 v7, v9 offset:4')
        a.e('s_mov_b64 exec, -1')
        EO = {'a': ((0, 8, 1, 9, 2, 10, 12, 13, 14), (3, 11, 15, 7), (4, 5, 6)),
              'b': ((0, 8, 1, 9, 2, 10), (12, 13, 14, 3, 11, 15, 7), (4, 5, 6))}[os.environ.get('EO', 'a')]
        wo_units(EO[0])
        for n, us in ((4, EO[1]), (8, EO[2])):
            lab = a.label('H_cw')
            a.e('%s:', lab)
            a.e('ds_read_b32 v9, v7')
            a.e('s_waitcnt lgkmcnt(0)')
            a.e('v_cmp_gt_u32 vcc, %d, v9', n)
            a.e('s_cbranch_vccnz %s', lab)
            if n == 8:
                xo_loads(a)
            wo_units(us)
        WOS = {15: EO[2]}
    if EW < 13:
        if TR2 and 'c3v' in EXP:
            a.e('s_and_b32 s64, s5, 7')
            a.e('s_cmp_eq_u32 s64, 3')
        elif TR2:
            a.e('s_bitcmp1_b32 s2, %d', E('TRB', 3))
        else:
            a.e('s_lshr_b32 s64, s2, 5')
            a.e('s_cmp_eq_u32 s64, 3')
        a.e('s_cbranch_scc1 H_slow')
        st_ = (list(a.vm), a.issued, dict(marks), list(nxt))
        main, cold0 = a.lines, list(getattr(a, 'cold_lines', []))
        a.lines, a.cold_lines = [], []
        a.e('H_slow:')
        for i in range(EW, 16):
            stage(i, not TR2, mk_sched(TR2) if TR2 else None)
        a.e('s_branch H_join')
        import re as _re
        ren = lambda ln: _re.sub(r'\b(H_n[a-z]+|H_spin|H_retry)\b', lambda m: m.group(1) + '_S', ln)
        slow_code = [ren(ln) for ln in a.lines + a.cold_lines]
        a.lines, a.cold_lines = main, cold0 + slow_code
        a.vm, a.issued = st_[0], st_[1]
        marks.clear(); marks.update(st_[2]); nxt[:] = st_[3]
        for i in range(EW, 16):
            stage(i, False)
        a.e('H_join:')
    stamp(a, 5)
    if STAMPS == 4:
        a.e('s_waitcnt vmcnt(19)')
        stamp(a, 3, lvl=4)
        a.e('s_waitcnt vmcnt(16)')
        stamp(a, 4, lvl=4)
        a.e('s_waitcnt vmcnt(8)')
        stamp(a, 6, lvl=4)
        a.e('s_waitcnt vmcnt(0)')
        stamp(a, 7, lvl=4)
    if 'gprio' in EXP:
        a.e('s_setprio 3')
    KB, KA, PA = 64, 128, 48
    SL = 40

    def f1_poll():
        a.e('s_mov_b64 exec, 1')
        a.e('v_mov_b32 v20, 0')
        a.e('buffer_atomic_or v20, v23, %s, 0 offen sc0', WSR)
        a.e('s_mov_b64 exec, -1')
    f1_poll()
    lane_off(a, 17, 18)
    a.e('v_add_u32 v17, s70, v17')
    a.e('v_lshrrev_b32 v18, 2, v2')
    a.e('v_mul_u32_u24 v18, %d, v18', KVB)
    a.e('v_and_b32 v19, 3, v2')
    a.e('v_lshl_add_u32 v18, v19, 4, v18')
    a.e('s_add_u32 s64, s70, %d', KVZ)
    a.e('v_add_u32 v18, s64, v18')
    a.e('v_bfe_u32 v26, v2, 3, 1')
    a.e('v_lshl_add_u32 v26, v26, 2, v19')
    a.e('v_bfe_u32 v27, v2, 2, 1')
    a.e('v_lshrrev_b32 v28, 5, v2')
    a.e('v_cmp_eq_u32 vcc, v27, v28')
    a.e('v_and_b32 v27, 16, v2')
    a.e('v_cmp_eq_u32 s[64:65], 0, v27')
    a.e('s_and_b64 vcc, vcc, s[64:65]')
    a.e('v_and_b32 v27, 1, v26')
    a.e('v_lshlrev_b32 v27, 4, v27')
    a.e('v_mov_b32 v28, 0x3f80')
    a.e('v_lshlrev_b32 v27, v27, v28')
    a.e('v_cndmask_b32 v27, 0, v27, vcc')
    a.e('v_lshrrev_b32 v26, 1, v26')
    for q in range(4):
        a.e('v_cmp_eq_u32 vcc, %d, v26', q)
        a.e('s_nop 1')
        a.e('v_cndmask_b32 v%d, 0, v27, vcc', PA + q)
    for r in range(16):
        a.e('v_mov_b32 v%d, 0', KA + r)
    a.e('s_mov_b32 s66, 0xffff')
    a.e('s_mov_b32 s65, 0')
    if 'ht2late' not in EXP:
        a.e('s_waitcnt vmcnt(%d)', 1 + 2 * len(WOS[15]))
        t2_fill(a)
    a.e('s_waitcnt vmcnt(0)')
    a.e('G_loop:')
    a.e('v_readfirstlane_b32 s68, v20')
    if E('SPEC', 0):
        a.e('s_bcnt1_i32_b32 s64, s66')
        a.e('s_cmp_le_u32 s64, %d', E('SPEC', 0))
        a.e('s_cselect_b32 s68, 0xffff, s68')
    a.e('s_and_b32 s68, s68, s66')
    a.e('G_new:')
    a.e('s_andn2_b32 s66, s66, s68')
    if STAMPS == 2:
        a.e('s_memrealtime s[86:87]')
        a.e('s_min_u32 s64, s65, 30')
        a.e('s_lshl_b32 m0, s64, 1')
        a.e('s_waitcnt lgkmcnt(0)')
        a.e('v_writelane_b32 v250, s86, m0')
        a.e('s_add_u32 m0, m0, 1')
        a.e('s_nop 0')
        a.e('v_writelane_b32 v250, s66, m0')
        a.e('v_writelane_b32 v250, s65, 63')
    a.e('s_bcnt1_i32_b32 s67, s68')

    def jump_n(pref):
        def rec(lo, hi, last):
            if lo == hi:
                if not (last and lo == 16):
                    a.e('s_branch %s%d', pref, lo)
                return
            mid = lo if hi - lo < 3 else (lo + hi) // 2
            if mid == lo:
                a.e('s_cmp_eq_u32 s67, %d', lo)
                a.e('s_cbranch_scc1 %s%d', pref, lo)
                rec(lo + 1, hi, last)
            else:
                lab = a.label(pref + 't')
                a.e('s_cmp_gt_u32 s67, %d', mid)
                a.e('s_cbranch_scc1 %s', lab)
                rec(lo, mid, False)
                a.e('%s:', lab)
                rec(mid + 1, hi, last)
        a.e('s_cmp_eq_u32 s67, 0')
        a.e('s_cbranch_scc1 %s0', pref)
        rec(1, 16, True)
    jump_n('G_l')
    for c in range(15, -1, -1):
        a.e('G_l%d:', c + 1)
        a.e('s_ff1_i32_b32 s%d, s68', SL + c)
        a.e('s_bitset0_b32 s68, s%d', SL + c)
        a.e('s_mul_i32 s64, s%d, %d', SL + c, KVB)
        a.e('buffer_load_dwordx4 %s, v17, %s, s64 offen sc1', vr(KB + 4 * c, 4), WSR)
    a.e('G_l0:')
    a.e('s_mov_b32 s68, s66')
    a.e('s_cmp_eq_u32 s66, 0')
    a.e('s_cbranch_scc1 G_z')
    a.e('s_cmp_lg_u32 s67, 0')
    a.e('s_cbranch_scc1 G_p')
    if 'gp2' in EXP:
        f1_poll()
        a.e('s_sleep %d', E('DPS', 6))
        a.e('G_i:')
        for k, (r, o) in enumerate(((21, 20), (20, 21))):
            a.e('s_mov_b64 exec, 1')
            a.e('v_mov_b32 v%d, 0', r)
            a.e('buffer_atomic_or v%d, v23, %s, 0 offen sc0', r, WSR)
            a.e('s_mov_b64 exec, -1')
            a.e('s_waitcnt vmcnt(1)')
            a.e('v_readfirstlane_b32 s68, v%d', o)
            a.e('s_and_b32 s68, s68, s66')
            a.e('s_cbranch_scc1 G_new')
        a.e('s_add_u32 s65, s65, 1')
        a.e('s_cmp_lt_u32 s65, 40000')
        a.e('s_cbranch_scc1 G_i')
        a.e('s_branch G_done')
    a.e('s_sleep %d', E('GSL', 2))
    a.e('G_p:')
    if E('LP', 0):
        a.e('s_bcnt1_i32_b32 s64, s66')
        a.e('s_cmp_gt_u32 s64, %d', E('LP', 0))
        a.e('s_cbranch_scc1 G_pa')
        a.e('s_mov_b64 exec, 1')
        a.e('buffer_load_dword v20, v23, %s, 0 offen sc1', WSR)
        a.e('s_mov_b64 exec, -1')
        a.e('s_branch G_proc')
        a.e('G_pa:')
    f1_poll()
    a.e('s_branch G_proc')
    a.e('G_z:')
    a.e('buffer_load_dwordx4 v[56:59], v18, %s, 0 offen sc1', WSR)
    a.e('G_proc:')

    def g_proc(x, extra):
        jump_n('G_q' + x)
        fails = []
        for c in range(15, -1, -1):
            b = KB + 4 * c
            a.e('G_q%s%d:', x, c + 1)
            a.e('s_waitcnt vmcnt(%d)', c + 1 + extra)
            a.e('v_max3_u32 v21, v%d, v%d, v%d', b, b + 1, b + 2)
            a.e('v_max_u32 v21, v21, v%d', b + 3)
            a.e('v_cmp_eq_u32 vcc, -1, v21')
            a.e('s_cbranch_vccnz G_f%s%d', x, c)
            a.e('v_mfma_f32_32x32x16_bf16 %s, %s, %s, %s', vr(KA, 16), vr(PA, 4), vr(b, 4), vr(KA, 16))
            with a.cold():
                a.e('G_f%s%d:', x, c)
                a.e('s_bitset1_b32 s66, s%d', SL + c)
                a.e('s_branch G_q%s%d', x, c)
        a.e('G_q%s0:', x)
    if 17 in WOS:
        a.e('s_cmp_lg_u32 s65, 0')
        a.e('s_cbranch_scc1 G_pn')
        for p in WOS[17]:
            for b in range(2):
                a.e('s_add_u32 m0, s7, %d', POS[p] + b * 4096)
                a.e('s_mov_b32 s64, %d', (p << 17) + b * 65536)
                a.e('buffer_load_dwordx4 v%d, %s, s64 offen lds', VOW, sr(S_WO, 4))
        g_proc('a', 2 * len(WOS[17]))
        a.e('s_waitcnt vmcnt(%d)', 2 * len(WOS[17]))
        a.e('s_branch G_chk')
        a.e('G_pn:')
    g_proc('', 0)
    a.e('s_waitcnt vmcnt(0)')
    a.e('G_chk:')
    a.e('s_add_u32 s65, s65, 1')
    a.e('s_cmp_ge_u32 s65, 40000')
    a.e('s_cbranch_scc1 G_done')
    a.e('s_cmp_lg_u32 s68, 0')
    a.e('s_cbranch_scc1 G_loop')
    a.e('v_mov_b32 v20, -1')
    a.e('s_cmp_lg_u32 s66, 0')
    a.e('s_cbranch_scc1 G_loop')
    a.e('v_max3_u32 v21, v56, v57, v58')
    a.e('v_max_u32 v21, v21, v59')
    a.e('v_cmp_eq_u32 vcc, -1, v21')
    a.e('s_cbranch_vccnz G_loop')
    a.e('G_done:')
    a.vm = []
    stamp(a, 8)
    a.e('v_add_u32 v16, s7, v%d', V16)
    for pat in ('row_ror:4', 'row_ror:8'):
        for q in range(4):
            a.e('v_add_f32_dpp v%d, v%d, v%d %s row_mask:0xf bank_mask:0xf', 56 + q, 56 + q, 56 + q, pat)
    for swp in ('v_permlane16_swap_b32', 'v_permlane32_swap_b32'):
        for q in range(4):
            a.e('v_mov_b32 v%d, v%d', 64 + q, 56 + q)
        a.e('s_nop 0')
        for q in range(4):
            a.e('%s v%d, v%d', swp, 56 + q, 64 + q)
        for q in range(4):
            a.e('v_add_f32 v%d, v%d, v%d', 56 + q, 56 + q, 64 + q)
    for q in range(4):
        a.e('v_cvt_pk_bf16_f32 v%d, v%d, v%d', 60 + q, KA + 2 * q, KA + 2 * q + 1)
    a.e('ds_write_b128 v16, v[60:63] offset:%d', L_KF)
    a.e('v_cvt_pk_bf16_f32 v56, v56, v57')
    a.e('v_cvt_pk_bf16_f32 v57, v58, v59')
    a.e('s_lshr_b32 s64, s6, 1')
    a.e('s_lshl_b32 s64, s64, 6')
    a.e('s_and_b32 s65, s6, 1')
    a.e('s_lshl_b32 s65, s65, 3')
    a.e('s_add_u32 s64, s64, s65')
    a.e('v_lshl_add_u32 v16, v2, 4, s64')
    a.e('s_mov_b64 exec, 15')
    a.e('ds_write_b64 v16, v[56:57] offset:%d', L_ZF)
    a.e('s_mov_b64 exec, -1')
    a.e('s_waitcnt vmcnt(0) lgkmcnt(0)')
    a.e('s_barrier')
    if 16 in WOS and 'w16l' not in EXP:
        wo_units(WOS[16])
    if 'gprio' in EXP:
        a.e('s_setprio 0')
    a.e('v_lshrrev_b32 v18, 3, v2')
    a.e('v_lshlrev_b32 v18, 2, v18')
    for j in range(7):
        a.e('ds_read_b32 v%d, v18 offset:%d', 24 + j, L_H + 32 * j)
    a.e('s_waitcnt lgkmcnt(0)')
    YA = 32
    if 'g2old' in EXP:
        for j in range(7):
            for q in range(4):
                w = WD + 4 * j + q
                a.e('v_lshlrev_b32 v48, 16, v%d', w)
                a.e('v_and_b32 v49, 0xffff0000, v%d', w)
                if j == 0:
                    a.e('v_mul_f32 v%d, v48, v%d', YA + 2 * q, 24 + j)
                    a.e('v_mul_f32 v%d, v49, v%d', YA + 2 * q + 1, 24 + j)
                else:
                    a.e('v_fmac_f32 v%d, v48, v%d', YA + 2 * q, 24 + j)
                    a.e('v_fmac_f32 v%d, v49, v%d', YA + 2 * q + 1, 24 + j)
    else:
        a.e('s_mov_b32 s64, 0x05040100')
        a.e('s_mov_b32 s65, 0x07060302')
        for jp in range(4):
            a.e('v_cvt_pk_bf16_f32 v%d, v%d, %s', 24 + jp, 24 + 2 * jp, 'v%d' % (25 + 2 * jp) if jp < 3 else '0')
        for jp in range(4):
            for q in range(4):
                w0 = WD + 8 * jp + q
                w1 = w0 + 4 if jp < 3 else w0
                t = 48 + 2 * (q & 1)
                a.e('v_perm_b32 v%d, v%d, v%d, s64', t, w1, w0)
                a.e('v_perm_b32 v%d, v%d, v%d, s65', t + 1, w1, w0)
                for k in range(2):
                    acc = YA + 2 * q + k
                    a.e('v_dot2_f32_bf16 v%d, v%d, v%d, %s', acc, t + k, 24 + jp, '0' if jp == 0 else 'v%d' % acc)
        a.e('s_nop 1')
    a.e('s_nop 1')
    for q in range(4):
        a.e('v_permlane32_swap_b32 v%d, v%d', YA + q, YA + 4 + q)
    for q in range(4):
        a.e('v_add_f32 v%d, v%d, v%d', YA + q, YA + q, YA + 4 + q)
    a.e('s_nop 1')
    for q in range(2):
        a.e('v_permlane16_swap_b32 v%d, v%d', YA + q, YA + 2 + q)
    for q in range(2):
        a.e('v_add_f32 v%d, v%d, v%d', YA + q, YA + q, YA + 2 + q)
    a.e('s_nop 1')
    for q in range(2):
        a.e('v_add_f32_dpp v%d, v%d, v%d row_ror:8 row_mask:0xf bank_mask:0xf', YA + q, YA + q, YA + q)
    a.e('v_and_b32 v16, 7, v2')
    a.e('v_lshlrev_b32 v16, 5, v16')
    a.e('v_lshl_add_u32 v16, v8, 3, v16')
    a.e('s_lshl_b32 s64, s2, 10')
    a.e('s_lshl_b32 s65, s6, 8')
    a.e('s_add_u32 s64, s64, s65')
    a.e('s_add_u32 s64, s64, %d', WS_YP)
    a.e('s_mov_b32 exec_lo, 0x00ff00ff\ns_mov_b32 exec_hi, 0x00ff00ff')
    a.vm_issue('y', 'buffer_store_dwordx2 %s, v16, %s, s64 offen' + WT, vr(YA, 2), WSR)
    a.e('s_mov_b64 exec, -1')
    stamp(a, 9)
    if 16 in WOS and 'w16l' in EXP:
        wo_units(WOS[16])
    if 'latep' not in EXP:
        f2_poll_first(a)
    if 'ht2late' in EXP:
        t2_fill(a)
    global HSYNC
    HSYNC = 16 in WOS
    a.e('v_mov_b32 v254, v14')
    a.e('s_branch P2_start')


def gen_c1(a):
    a.e('C_start:')
    a.e('s_or_b32 s64, s2, s3')
    a.e('s_cbranch_scc1 C_nn')
    a.e('s_mov_b32 s64, %d', WS_KEY)
    a.e('s_load_dwordx2 s[66:67], s[62:63], s64')
    srd(a, S_DBG, 60, 256)
    a.e('v_mov_b32 v57, 0')
    a.e('s_waitcnt lgkmcnt(0)')
    a.e('s_xor_b32 s64, s66, s67')
    a.e('s_add_u32 s64, s64, 1')
    a.e('s_max_u32 s64, s64, 1')
    a.e('v_mov_b32 v56, s64')
    a.e('s_mov_b64 exec, 1')
    a.vm_uncounted('buffer_store_dword v56, v57, %s, 0 offen' % sr(S_DBG, 4) + WT)
    a.e('s_mov_b64 exec, -1')
    a.e('C_nn:')
    TOUCH = E('TOUCH', 0)
    if TOUCH:
        a.e('s_mul_i32 s64, s2, 24576')
        a.e('s_mul_i32 s65, s3, 6144')
        a.e('s_add_u32 s64, s64, s65')
        a.e('v_mul_u32_u24 v3, %d, v2', TOUCH)
        a.e('s_mov_b32 exec_hi, 0xffff')
        for q in range(128 // TOUCH):
            a.vm_issue('t', 'buffer_load_dword v60, v3, %s, s64 offen offset:%d', sr(S_W, 4), q * 3072)
        a.e('s_mov_b32 exec_hi, -1')
    if 'cscode' in EXP:
        scode(a, 3)
    M16 = 'v_mfma_f32_16x16x32_bf16'
    VAB, VBB, VA, VB = 4, 6, 8, 10
    BF = [16, 40]
    AB = [192, 208]
    QA, KA_, VA_ = 64, 96, 128
    qt = lambda sb, db: QA + (sb * 2 + db) * 4
    kt = lambda base, sb, db: base + (((sb >> 1) * 2 + db) * 2 + (sb & 1)) * 4
    X = 224
    ONES = 236
    a.e('s_and_b32 s6, s3, 1')
    a.e('s_lshr_b32 s7, s3, 1')
    a.e('v_and_b32 v3, 15, v2')
    a.e('s_lshl_b32 s64, s6, 6')
    a.e('v_add_u32 v3, s64, v3')
    a.e('v_lshlrev_b32 v3, 7, v3')
    a.e('v_add_u32 v3, %d, v3', RB)
    a.e('v_bfe_u32 v56, v2, 1, 3')
    a.e('v_lshrrev_b32 v57, 4, v2')
    a.e('v_xor_b32 v56, v56, v57')
    a.e('v_lshl_add_u32 v%d, v56, 4, v3', VAB)
    a.e('v_xor_b32 v%d, 64, v%d', VAB + 1, VAB)
    a.e('v_bfe_u32 v56, v2, 2, 2')
    a.e('v_lshl_add_u32 v58, v57, 3, v56')
    a.e('v_lshlrev_b32 v58, 7, v58')
    a.e('v_lshrrev_b32 v56, 1, v56')
    a.e('v_xor_b32 v56, s7, v56')
    a.e('v_lshl_add_u32 v58, v56, 6, v58')
    a.e('v_and_b32 v57, 1, v57')
    a.e('v_lshl_add_u32 v58, v57, 5, v58')
    a.e('v_and_b32 v56, 3, v2')
    a.e('v_lshl_add_u32 v58, v56, 3, v58')
    a.e('v_add_u32 v%d, %d, v58', VBB, RB + 16384)
    a.e('v_xor_b32 v%d, 32, v%d', VBB + 1, VBB)
    for t in range(2):
        a.e('v_mov_b32 v%d, v%d', VA + t, VAB + t)
        a.e('v_mov_b32 v%d, v%d', VB + t, VBB + t)
    for r in range(64, 160):
        a.e('v_mov_b32 v%d, 0', r)
    a.e('s_lshl_b32 s64, s3, 2')
    a.e('v_mov_b32 v%d, s64', X + 5)
    a.e('ds_write_b32 v%d, v64 offset:%d', X + 5, L_FLG)
    a.e('ds_write_b32 v%d, v64 offset:%d', X + 5, L_FLG + 16)
    a.e('v_lshlrev_b32 v3, 4, v2')
    a.e('s_lshl_b32 s64, s3, 11')
    a.e('v_add_u32 v%d, s64, v3', X)
    a.e('v_xor_b32 v%d, 2048, v%d', X + 1, X)
    a.e('s_lshl_b32 s64, s3, 8')
    a.e('v_lshl_add_u32 v%d, v2, 2, s64', X + 3)
    a.e('v_xor_b32 v%d, 256, v%d', X + 4, X + 3)
    a.e('v_xor_b32 v%d, 4, v%d', X + 6, X + 5)
    a.e('v_mov_b32 v%d, 1', X + 7)
    a.e('v_mov_b32 v%d, 0', X + 2)
    a.e('v_lshlrev_b32 v%d, 2, v2', X + 8)
    a.e('s_lshl_b32 s64, 1, s4')
    a.e('v_mov_b32 v%d, s64', X + 9)
    a.e('s_lshl_b32 s43, s5, 2')
    a.e('s_add_u32 s43, s43, s3')
    a.e('s_lshl_b32 s64, s43, %d', FS)
    a.e('s_add_u32 s64, s64, %d', WS_F1)
    a.e('v_mov_b32 v%d, s64', X + 10)
    a.e('s_lshl_b32 s43, s43, 4')
    a.e('s_add_u32 s43, s43, s4')
    a.e('s_mul_i32 s43, s43, %d', KVB)
    a.e('s_add_u32 s43, s43, %d', WS_KVP)
    a.e('s_lshl_b32 s42, s4, 2')
    a.e('s_lshl_b32 s64, s6, 1')
    a.e('s_add_u32 s42, s42, s64')
    a.e('s_lshl_b32 s42, s42, 5')
    a.e('s_lshl_b32 s64, s5, 1')
    a.e('s_add_u32 s42, s42, s64')
    a.e('s_add_u32 s42, s42, s7')
    a.e('s_lshl_b32 s42, s42, %d', PS + 1)
    a.e('s_and_b32 s64, s5, 7')
    a.e('s_lshl_b32 s64, s64, 1')
    a.e('s_add_u32 s64, s64, s7')
    a.e('s_lshl_b32 s64, 1, s64')
    a.e('v_mov_b32 v13, s64')
    a.e('s_lshr_b32 s64, s5, 3')
    a.e('s_lshl_b32 s64, s64, 1')
    a.e('s_add_u32 s64, s64, s6')
    a.e('s_lshl_b32 s64, s64, %d', FS + 1)
    a.e('s_lshl_b32 s65, s4, %d', FS + 3)
    a.e('s_add_u32 s64, s64, s65')
    a.e('s_add_u32 s64, s64, %d', WS_F2)
    a.e('v_lshl_add_u32 v15, v2, %d, s64', FS)
    lane_off(a, 1, 56)
    p2_ids(a)
    a.e('s_mov_b32 s65, 0')
    a.e('s_mov_b32 s66, 0')
    for r in range(4):
        a.e('v_mov_b32 v%d, 0x3f803f80', ONES + r)

    def reads(st, buf, areg, q=True):
        B = lambda ty, cb: ['ds_read_b64_tr_b16 %s, v%d offset:%d' % (vr(BF[buf] + 8 * ty + 4 * cb + 2 * tt, 2), VB + cb, ty * 8192 + st * 4096 + tt * 512)
                            for tt in range(2)]
        A = ['ds_read_b128 %s, v%d offset:%d' % (vr(areg + 4 * b, 4), VA + st, b * 2048) for b in range(4)]
        L = []
        for ty in ((0, 1, 2) if q else (1, 2)):
            for cb in range(2):
                L += B(ty, cb)
        return L[:2] + A + L[2:]

    def mfmas(buf, areg, q=True):
        L = []
        tys = (0, 1, 2) if q else (1, 2)
        order = [(ty, cb, b) for ty in tys for cb in range(2) for b in range(4)]
        if 'ordb' in EXP:
            order = [(ty, cb, b) for b in range(4) for ty in tys for cb in range(2)]
        if 'ords' in EXP:
            order = [(ty, cb, b if (2 * k + cb) % 2 == 0 else 3 - b) for k, ty in enumerate(tys) for cb in range(2) for b in range(4)]
        for (ty, cb, b) in order:
            if True:
                w = vr(BF[buf] + 8 * ty + 4 * cb, 4)
                if True:
                    x = vr(areg + 4 * b, 4)
                    if ty == 0:
                        d = vr(qt(b, cb), 4)
                        L.append('%s %s, %s, %s, %s' % (M16, d, w, x, d))
                    else:
                        d = vr(kt(KA_ if ty == 1 else VA_, b, cb), 4)
                        L.append('%s %s, %s, %s, %s' % (M16, d, x, w, d))
        return L

    def bar_stamped():
        if STAMPS == 2:
            a.e('s_memtime s[68:69]')
        a.e('s_barrier')
        if STAMPS == 2:
            a.e('s_memtime s[70:71]')
            a.e('s_waitcnt lgkmcnt(0)')
            a.e('s_mov_b32 m0, s66')
            a.e('s_nop 0')
            a.e('v_writelane_b32 v14, s68, m0')
            a.e('s_add_u32 m0, s66, 16')
            a.e('s_nop 0')
            a.e('v_writelane_b32 v14, s70, m0')
            a.e('s_memrealtime s[70:71]')
            a.e('s_add_u32 m0, s66, 32')
            a.e('s_waitcnt lgkmcnt(0)')
            a.e('v_writelane_b32 v14, s70, m0')

    def step(M, F):
        for i, m_ in enumerate(M):
            a.e(m_)
            if i < len(F):
                a.e(F[i])
        for f in F[len(M):]:
            a.e(f)

    stamp(a, 3)
    a.vm_wait('d0', 'lgkmcnt(0)')
    stamp(a, 4)
    a.e('s_barrier')
    for r in reads(0, 0, AB[0]):
        a.e(r)
    ND = E('ND', 2)
    a.e('.p2align 3')
    a.e('C_loop:')
    a.e('s_waitcnt lgkmcnt(0)')
    step(mfmas(0, AB[0]), reads(1, 1, AB[1]))
    a.e('s_waitcnt lgkmcnt(0)')
    bar_stamped()
    a.e('s_add_u32 s65, s65, %d', SLOT)
    a.e('s_cmp_eq_u32 s65, %d', 3 * SLOT)
    a.e('s_cselect_b32 s65, 0, s65')
    AD = ['v_add_u32 v%d, s65, v%d' % (r + 4, r) for r in (VBB, VAB, VBB + 1, VAB + 1)]
    R = reads(0, 0, AB[0])
    step(mfmas(1, AB[1]), [AD[0] + '\n' + AD[1]] + R[:6] + [AD[2]] + R[6:] + [AD[3]])
    a.e('s_add_u32 s66, s66, 1')
    a.e('s_cmp_lt_u32 s66, %d', 16 - ND)
    a.e('s_cbranch_scc1 C_loop')
    AR = {(14, 0): 192, (14, 1): 160, (15, 0): 176, (15, 1): 208}
    if ND:
        a.e('s_waitcnt lgkmcnt(0)')
        FE = 'freeend' in EXP and E('EW', 99) >= 16 and not os.environ.get('TR2')

        def csig():
            a.e('s_mov_b64 exec, 1')
            a.e('ds_add_u32 v%d, v%d offset:%d', X + 2, X + 7, L_FLG + 20)
            a.e('s_mov_b64 exec, -1')

        def cchk(reg, off, n):
            lab = a.label('C_w')
            a.e('v_cmp_gt_u32 vcc, %d, v%d', n, reg)
            a.e('s_cbranch_vccnz %s_s', lab)
            a.e('%s:', lab)
            with a.cold():
                a.e('%s_s:', lab)
                a.e('ds_read_b32 v%d, v%d offset:%d', reg, X + 2, off)
                a.e('s_waitcnt lgkmcnt(0)')
                a.e('v_cmp_gt_u32 vcc, %d, v%d', n, reg)
                a.e('s_cbranch_vccnz %s_s', lab)
                a.e('s_branch %s', lab)
        step(mfmas(0, AR[14, 0], False), reads(1, 1, AR[14, 1], False) +
             (['ds_read_b32 v%d, v%d offset:%d' % (X + 11, X + 2, L_FLG + 24)] if FE else []))
        a.e('s_waitcnt lgkmcnt(0)')
        if FE:
            csig()
            cchk(X + 11, L_FLG + 24, 4)
        else:
            bar_stamped()
        a.e('s_add_u32 s66, s66, 1')
        AD = ['v_mov_b32 v%d, v%d' % (r + 4, r) for r in (VBB, VAB, VBB + 1, VAB + 1)]
        R = reads(0, 0, AR[15, 0], False)
        step(mfmas(1, AR[14, 1], False), [AD[0] + '\n' + AD[1]] + R[:2] + [AD[2] + '\n' + AD[3]] + R[2:])
        a.e('s_waitcnt lgkmcnt(0)')
        step(mfmas(0, AR[15, 0], False), reads(1, 1, AR[15, 1], False))
        a.e('s_waitcnt lgkmcnt(0)')
        if FE:
            csig()
        else:
            bar_stamped()
        ML = mfmas(1, AR[15, 1], False)
        if 'nolast' in EXP:
            step(ML, [])
            ML = []
        else:
            first4 = [ML[0], ML[1], ML[4], ML[5]]
            ML = [m_ for m_ in ML if m_ not in first4]
            ML = ML[4:6] + ML[8:10] + ML[0:4] + ML[6:8] + ML[10:12]
            step(first4 + ML[:3], [])
            ML = ML[3:]
    a.vm = []
    stamp(a, 5)
    PK = [16, 24]; VBF = [32, 40]; T0, T1, E0, E1, MN = 48, 49, 50, 51, 56
    KVA = 240; ZA = [96, 60]
    if not ND:
        a.e('s_waitcnt lgkmcnt(0)')
    for cb in range(2):
        a.e('v_add_u32 v%d, %d, v%d', VB + cb, 2 * SLOT, VBB + cb)
    for p in range(2):
        if p == 1 and FE:
            a.e('ds_read_b32 v%d, v%d offset:%d', X + 11, X + 2, L_FLG + 20)
        if 'pkphi' in EXP:
            if p == 0:
                a.e('s_mov_b32 s68, s%d', S_LOG2E)
                a.e('s_mov_b32 s69, s%d', S_LOG2E)
                a.e('s_mov_b32 s70, 1.0')
                a.e('s_mov_b32 s71, 1.0')
            phi16_pk(a, KA_ + 16 * p, PK[p], MN, 68)
        elif p == 0 and ND and ML:
            saved = a.lines
            a.lines = []
            phi16(a, KA_, PK[0], 32, 33, 34, 35, 36)
            P = a.lines
            a.lines = saved
            a.e('s_nop 2')
            for n_, ln in enumerate(P):
                a.lines.append(ln)
                if n_ % 8 == 7 and ML:
                    a.e(ML.pop(0))
            assert not ML
        else:
            phi16(a, KA_ + 16 * p, PK[p], T0, T1, E0, E1, MN)
        for j in range(8):
            a.e('v_cvt_pk_bf16_f32 v%d, v%d, v%d', VBF[p] + j, VA_ + 16 * p + 2 * j, VA_ + 16 * p + 2 * j + 1)
            if j in (1, 2):
                db = j - 1
                a.e('%s %s, %s, %s, %s', M16, vr(ZA[db], 4), vr(ONES, 4), vr(PK[p] + 4 * db, 4), '0' if p == 0 else vr(ZA[db], 4))
            if j in (5, 6):
                db = j - 5
                d = vr(KVA + db * 4, 4)
                a.e('%s %s, %s, %s, %s', M16, d, vr(PK[p] + 4 * db, 4), vr(VBF[p], 4), '0' if p == 0 else d)
        a.e('s_nop 1')
        for db in range(2):
            d = vr(KVA + 8 + db * 4, 4)
            a.e('%s %s, %s, %s, %s', M16, d, vr(PK[p] + 4 * db, 4), vr(VBF[p] + 4, 4), '0' if p == 0 else d)
    if FE:
        a.e('s_waitcnt lgkmcnt(0)')
        cchk(X + 11, L_FLG + 20, 8)
    a.e('s_cmp_eq_u32 s6, 0')
    a.e('s_cbranch_scc0 C_ex1')
    a.e('ds_write_b32 v%d, v%d offset:%d', X + 3, ZA[1], L_ZX)
    a.e('s_nop 5')
    a.e('ds_write_b128 v%d, %s offset:%d', X, vr(KVA + 8, 4), L_EX)
    a.e('ds_write_b128 v%d, %s offset:%d', X, vr(KVA + 12, 4), L_EX + 1024)
    a.e('C_ex2:')
    with a.cold():
        a.e('C_ex1:')
        a.e('ds_write_b32 v%d, v%d offset:%d', X + 3, ZA[0], L_ZX)
        a.e('ds_write_b128 v%d, %s offset:%d', X, vr(KVA, 4), L_EX)
        a.e('ds_write_b128 v%d, %s offset:%d', X, vr(KVA + 4, 4), L_EX + 1024)
        a.e('s_nop 4')
        a.e('v_mov_b32 v%d, v%d', ZA[0], ZA[1])
        for r in range(8):
            a.e('v_mov_b32 v%d, v%d', KVA + r, KVA + 8 + r)
        a.e('s_branch C_ex2')
    a.e('ds_write_b32 v%d, v%d offset:%d', X + 5, X + 7, L_FLG)
    a.e('C_ps:')
    a.e('ds_read_b32 v25, v%d offset:%d', X + 6, L_FLG)
    a.e('ds_read_b128 v[16:19], v%d offset:%d', X + 1, L_EX)
    a.e('ds_read_b128 v[20:23], v%d offset:%d', X + 1, L_EX + 1024)
    a.e('ds_read_b32 v24, v%d offset:%d', X + 4, L_ZX)
    a.e('s_waitcnt lgkmcnt(0)')
    a.e('v_cmp_eq_u32 vcc, 0, v25')
    a.e('s_cbranch_vccnz C_ps')
    for r in range(8):
        a.e('v_add_f32 v%d, v%d, v%d', 16 + r, 16 + r, KVA + r)
    a.e('v_add_f32 v24, v24, v%d', ZA[0])
    for r in range(4):
        a.e('v_cvt_pk_bf16_f32 v%d, v%d, v%d', 28 + r, 16 + 2 * r, 17 + 2 * r)
    a.vm_issue('kvp', 'buffer_store_dwordx4 v[28:31], v1, %s, s43 offen' + WT, WSR)
    a.e('s_mov_b64 exec, 0xffff')
    a.vm_issue('kvp', 'buffer_store_dword v24, v%d, %s, s43 offen offset:%d' + WT, X + 8, WSR, KVZ)
    a.e('s_mov_b64 exec, 1')
    a.vm_issue('f1', 'buffer_atomic_or v%d, v%d, %s, 0 offen', X + 9, X + 10, WSR)
    a.e('s_mov_b64 exec, -1')
    stamp(a, 6)
    if STAMPS == 2:
        a.e('v_mov_b32 v250, v14')
    if ND:
        steps = [(14, 0), (14, 1), (15, 0), (15, 1)]
        for n, (sg, st) in enumerate(steps):
            for cb in range(2):
                for tt in range(2):
                    a.e('ds_read_b64_tr_b16 %s, v%d offset:%d', vr(96 + 8 * n + 4 * cb + 2 * tt, 2), (VB if sg == 14 else VBB) + cb, st * 4096 + tt * 512)
        for n, (sg, st) in enumerate(steps):
            a.e('s_waitcnt lgkmcnt(%d)', 12 - 4 * n)
            for cb in range(2):
                for b in range(4):
                    d = vr(qt(b, cb), 4)
                    a.e('%s %s, %s, %s, %s', M16, d, vr(96 + 8 * n + 4 * cb, 4), vr(AR[sg, st] + 4 * b, 4), d)
    stamp(a, 7)
    a.e('v_mov_b32 v254, v15')
    a.e('v_mov_b32 v255, v13')
    if 'hplate' not in EXP:
        a.e('s_cmp_lg_u32 s3, 0')
        a.e('s_cbranch_scc1 C_nh0')
        hp_loads(a)
        a.e('C_nh0:')
    xo_loads(a)
    a.e('v_lshlrev_b32 v3, 4, v2')
    a.e('s_lshl_b32 s64, s7, 11')
    a.e('v_add_u32 v4, s64, v3')
    a.e('v_lshrrev_b32 v5, 4, v2')
    a.e('v_lshlrev_b32 v5, 4, v5')
    a.e('s_lshl_b32 s64, s7, 6')
    a.e('v_add_u32 v5, s64, v5')
    a.e('v_mov_b32 v6, %d', L_KEY + 32)
    a.e('ds_read_b32 v6, v6')
    PQ = 32
    for p in range(2):
        phi16(a, QA + 16 * p, PQ + 8 * p, T0, T1, E0, E1, MN)
    a.e('s_waitcnt lgkmcnt(0)')
    a.e('v_readfirstlane_b32 s75, v6')
    a.vm_wait('xo')
    t2_fill(a)
    a.e('s_cmp_lg_u32 s3, 0')
    a.e('s_cbranch_scc1 C_nh')
    stamp(a, 3, lvl=4)
    if 'hplate' in EXP:
        hp_loads(a)
        a.e('s_waitcnt vmcnt(0)')
    h_compute(a)
    stamp(a, 4, lvl=4)
    if STAMPS == 4:
        a.e('s_mov_b32 s88, s65')
        a.e('s_mov_b32 s89, 0')
    a.e('s_waitcnt lgkmcnt(0)')
    a.e('C_nh:')
    a.e('v_lshlrev_b32 v3, 4, v2')
    a.e('s_barrier')
    stamp(a, 8)
    KF, ZF = 16, 24
    NA, DA, OF = 64, 96, 128
    a.e('ds_read_b128 %s, v5 offset:%d', vr(ZF, 4), L_ZF)
    a.e('ds_read_b128 %s, v4 offset:%d', vr(KF, 4), L_KF)
    a.e('ds_read_b128 %s, v4 offset:%d', vr(KF + 4, 4), L_KF + 1024)
    a.e('s_waitcnt lgkmcnt(2)')
    for sb in range(4):
        a.e('%s %s, %s, %s, 0', M16, vr(DA + 4 * sb, 4), vr(ZF, 4), vr(PQ + 4 * sb, 4))
    a.e('s_waitcnt lgkmcnt(0)')
    for sb in range(4):
        for eb in range(2):
            a.e('%s %s, %s, %s, 0', M16, vr(NA + 8 * sb + 4 * eb, 4), vr(KF + 4 * eb, 4), vr(PQ + 4 * sb, 4))
    D = [48 + sb for sb in range(4)]
    for sb in range(4):
        a.e('v_cvt_pk_bf16_f32 v%d, v%d, v%d', D[sb], DA + 4 * sb, DA + 4 * sb)
    for d in D:
        a.e('v_lshlrev_b32 v%d, 16, v%d', d, d)
    for d in D:
        a.e('v_add_f32 v%d, s%d, v%d', d, S_EPS, d)
    for d in D:
        a.e('v_cvt_pk_bf16_f32 v%d, v%d, v%d', d, d, d)
    for d in D:
        a.e('v_lshlrev_b32 v%d, 16, v%d', d, d)
    for d in D:
        a.e('v_rcp_f32 v%d, v%d', d, d)
    a.e('s_nop 0')
    for sb in range(4):
        for j in range(4):
            r = NA + 8 * sb + 2 * j
            a.e('v_mul_f32 v%d, v%d, v%d', r, r, D[sb])
            a.e('v_mul_f32 v%d, v%d, v%d', r + 1, r + 1, D[sb])
            a.e('v_cvt_pk_bf16_f32 v%d, v%d, v%d', OF + 4 * sb + j, r, r + 1)
        a.vm_issue('o', 'buffer_store_dwordx4 %s, v1, %s, s42 offen offset:%d' + WT, vr(OF + 4 * sb, 4), WSR, (sb & 1) << PS)
        if sb == 1:
            a.e('s_add_u32 s42, s42, %d', 64 << PS)
    if 'noack' in EXP:
        a.e('s_mov_b64 exec, 3')
        a.e('buffer_atomic_or v255, v254, %s, 0 offen', WSR)
        a.e('s_mov_b64 exec, -1')
        stamp(a, 9)
    f2_poll_first(a)


def gen_p2(a):
    a.e('P2_start:')
    a.vm = []
    a.e('s_and_b32 s6, s3, 3')
    a.e('s_lshr_b32 s7, s3, 2')
    srd(a, S_OUT, 58, 4194304)
    a.e('s_and_b32 s67, s75, 0x7ff')
    a.e('s_sub_u32 s67, 2047, s67')
    VO, VO2 = 4, 12
    a.e('s_lshl_b32 s64, s4, 2')
    a.e('s_add_u32 s64, s64, s6')
    a.e('s_lshl_b32 s64, s64, %d', PS + 6)
    a.e('s_lshl_b32 s65, s7, %d', PS + 5)
    a.e('s_add_u32 s64, s64, s65')
    a.e('s_lshl_b32 s65, s7, %d', PS)
    a.e('s_add_u32 s66, s64, s65')
    a.e('s_xor_b32 s64, s66, %d', 1 << PS)
    lane_off(a, VO2, VO)
    a.e('v_add_u32 v%d, s66, v%d', VO, VO2)
    a.e('v_add_u32 v%d, s64, v%d', VO2, VO2)
    M16 = 'v_mfma_f32_16x16x32_bf16'
    VWL = [5, 6, 1, 3]; VW = [8, 9, 10, 11]
    a.e('v_lshrrev_b32 v10, 4, v2')
    a.e('v_bfe_u32 v11, v2, 2, 2')
    a.e('v_lshl_add_u32 v10, v10, 2, v11')
    a.e('v_bfe_u32 v13, v10, 1, 2')
    a.e('v_lshlrev_b32 v10, 7, v10')
    a.e('v_lshl_add_u32 v10, v13, 5, v10')
    a.e('v_and_b32 v13, 3, v2')
    a.e('v_lshl_add_u32 v%d, v13, 3, v10', VWL[0])
    for nb in range(1, 4):
        a.e('v_xor_b32 v%d, %d, v%d', VWL[nb], 32 * nb, VWL[0])
    SB = 32
    VT, VF, VP = 7, 14, 15
    if 'latep' in EXP:
        f2_poll_first(a)

    def poll():
        return ['s_mov_b64 exec, 1', 'v_mov_b32 v%d, 0' % VP,
                'buffer_atomic_or v%d, v%d, %s, 0 offen sc0' % (VP, VF, WSR), 's_mov_b64 exec, -1']
    a.e('s_and_b32 s74, s5, %d', 3 if os.environ.get('P2MAP') == 'c' else 7)
    a.e('s_lshl_b32 s74, s74, %d', 2 if os.environ.get('P2MAP') == 'c' else 1)
    a.e('s_cmp_eq_u32 s7, 0')
    for j in range(8):
        a.e('s_mov_b32 s64, %d', POS[8 + j])
        a.e('s_cselect_b32 s64, %d, s64', POS[j])
        a.e('s_sub_u32 m0, %d, s74', 2 * j + 16)
        a.e('s_and_b32 m0, m0, 15')
        a.e('v_writelane_b32 v%d, s64, m0', VT)
        a.e('s_cmp_eq_u32 s7, 0')
    ACO = [16, 32]
    WOF = [48, 64]
    OB = 80
    YL = 208
    for r in range(16, 48):
        a.e('v_mov_b32 v%d, 0', r)
    if 'p2prio' in EXP:
        a.e('s_cmp_lt_u32 s3, 4')
        a.e('s_cbranch_scc1 P2_np')
        a.e('s_setprio 1')
        a.e('P2_np:')
    if STAMPS == 2:
        a.e('s_mov_b32 s71, 0')
        for l in range(48, 64):
            a.e('v_writelane_b32 v250, 0, %d', l)
    a.e('v_mov_b32 v209, 0')
    a.e('v_mov_b32 v215, 0')
    a.e('s_lshr_b32 s46, s67, 7')
    a.e('s_xor_b32 s46, s46, s4')
    a.e('s_or_b32 s46, s46, s7')
    a.e('s_mov_b32 s47, 0')
    a.e('s_cbranch_scc0 P2_ys')
    with a.cold():
        a.e('P2_ys:')
        a.e('v_lshrrev_b32 v13, 4, v2')
        a.e('v_lshlrev_b32 v13, 12, v13')
        a.e('v_and_b32 v208, 15, v2')
        a.e('v_lshl_add_u32 v13, v208, 4, v13')
        a.e('s_lshl_b32 s64, s5, 8')
        a.e('s_lshl_b32 s65, s3, 16')
        a.e('s_add_u32 s64, s64, s65')
        a.e('v_add_u32 v13, s64, v13')
        a.e('s_lshl_b32 s64, s67, 11')
        a.e('s_lshl_b32 s65, s5, 7')
        a.e('s_add_u32 s64, s64, s65')
        a.e('v_lshl_add_u32 v209, v2, 1, s64')
        a.e('s_lshl_b32 s64, s67, 2')
        a.e('s_add_u32 s64, s64, %d', WS_G)
        a.e('v_mov_b32 v215, s64')
        a.e('s_branch P2_ysd')
    a.e('P2_ysd:')
    a.e('s_mov_b32 s66, 0x5555')
    a.e('s_mov_b32 s65, 0')
    stamp(a, 10)

    def issue(c):
        L = ['s_ff1_i32_b32 s64, s68', 's_bitset0_b32 s68, s64', 'v_readlane_b32 s%d, v%d, s64' % (SB + c, VT),
             's_add_u32 s69, s64, s74', 's_and_b32 s69, s69, 15', 's_lshl_b32 s69, s69, %d' % (PS + 1) + ('\ns_mov_b32 s%d, s69' % (48 + c) if 'noack' in EXP else '')]
        for q in range(4):
            L.append(('s_add_u32 s69, s69, %d\n' % (2 << PS) if q == 2 else '') +
                     ('s_mov_b64 exec, 1\n' if 'halfo' in EXP and q >= 2 else '') +
                     'buffer_load_dwordx4 %s, v%d, %s, s69 offen sc1' % (vr(OB + 16 * c + 4 * q, 4), VO2 if q & 1 else VO, WSR) +
                     ('\ns_mov_b64 exec, -1' if 'halfo' in EXP and q >= 2 else ''))
        return L

    def wo_reads(c, u):
        L = []
        for nb in range(4):
            if u == 0:
                L.append('v_add_u32 v%d, s%d, v%d' % (VW[nb], SB + c, VWL[nb]))
            for tt in range(2):
                L.append('ds_read_b64_tr_b16 %s, v%d offset:%d' % (vr(WOF[u] + 4 * nb + 2 * tt, 2), VW[nb], u * 4096 + tt * 2048))
        return L

    def Mm(c, u):
        L = []
        for nb in range(4):
            for sub in range(2):
                d = vr(16 + (sub * 4 + nb) * 4, 4)
                L.append('%s %s, %s, %s, %s' % (M16, d, vr(WOF[u] + 4 * nb, 4), vr(OB + 16 * c + 8 * u + 4 * sub, 4), d))
        return L

    if 'noack' not in EXP:
        a.e('s_cmp_lt_u32 s3, 4')
        a.e('s_cbranch_scc0 %s', 'D_hs' if HSYNC else 'D_wait')
        a.e('s_waitcnt vmcnt(1)')
        a.e('s_mov_b64 exec, 3')
        a.e('buffer_atomic_or v255, v254, %s, 0 offen', WSR)
        a.e('s_mov_b64 exec, -1')
        stamp(a, 9)
        a.e('s_waitcnt vmcnt(1)')
        a.e('s_branch D_got')
        if HSYNC:
            a.e('D_hs:')
            a.e('v_mov_b32 v217, %d', L_FLG + 20)
            a.e('v_mov_b32 v218, 1')
            a.e('s_waitcnt vmcnt(1)')
            a.e('s_mov_b64 exec, 1')
            a.e('ds_add_u32 v217, v218')
            a.e('s_mov_b64 exec, -1')
            a.e('D_hw:')
            a.e('ds_read_b32 v218, v217')
            a.e('s_waitcnt lgkmcnt(0)')
            a.e('v_cmp_gt_u32 vcc, 4, v218')
            a.e('s_cbranch_vccnz D_hw')
    a.e('D_wait:')
    a.e('s_waitcnt vmcnt(0)')
    a.e('D_got:')
    a.e('v_readfirstlane_b32 s68, v%d', VP)
    a.e('s_mul_i32 s68, s68, 0x10001')
    a.e('s_lshr_b32 s68, s68, s74')
    a.e('s_lshr_b32 s64, s68, 1')
    a.e('s_and_b32 s68, s68, s64')
    a.e('s_and_b32 s68, s68, s66')
    a.e('s_cbranch_scc1 D_go')
    a.e('s_add_u32 s65, s65, 1')
    a.e('s_cmp_ge_u32 s65, 40000')
    a.e('s_cbranch_scc1 D_end')
    if 'dp2' in EXP:
        for p in poll():
            a.e(p)
        a.e('s_sleep %d', E('DPS', 6))
        a.e('D_i:')
        for k, (r, o) in enumerate(((216, VP), (VP, 216))):
            a.e('s_mov_b64 exec, 1')
            a.e('v_mov_b32 v%d, 0', r)
            a.e('buffer_atomic_or v%d, v%d, %s, 0 offen sc0', r, VF, WSR)
            a.e('s_mov_b64 exec, -1')
            a.e('s_waitcnt vmcnt(1)')
            a.e('v_readfirstlane_b32 s68, v%d', o)
            a.e('s_mul_i32 s68, s68, 0x10001')
            a.e('s_lshr_b32 s68, s68, s74')
            a.e('s_lshr_b32 s64, s68, 1')
            a.e('s_and_b32 s68, s68, s64')
            a.e('s_and_b32 s68, s68, s66')
            a.e('s_cbranch_scc1 D_go')
        a.e('s_add_u32 s65, s65, 1')
        a.e('s_cmp_lt_u32 s65, 40000')
        a.e('s_cbranch_scc1 D_i')
        a.e('s_branch D_end')
    else:
        if E('PSL', 1):
            a.e('s_sleep %d', E('PSL', 1))
        for p in poll():
            a.e(p)
        a.e('s_branch D_wait')
    a.e('D_go:')
    a.e('s_andn2_b32 s66, s66, s68')
    if STAMPS == 2:
        a.e('s_memrealtime s[86:87]')
        a.e('s_min_u32 s64, s71, 7')
        a.e('s_lshl_b32 s64, s64, 1')
        a.e('s_add_u32 m0, s64, 48')
        a.e('s_waitcnt lgkmcnt(0)')
        a.e('v_writelane_b32 v250, s86, m0')
        a.e('s_add_u32 m0, m0, 1')
        a.e('s_nop 0')
        a.e('v_writelane_b32 v250, s66, m0')
        a.e('s_add_u32 s71, s71, 1')
    a.e('s_bcnt1_i32_b32 s70, s68')
    a.e('s_or_b32 s64, s46, s66')
    a.e('s_cbranch_scc0 P2_yl')
    YB = OB + 112

    def y_loads():
        a.e('buffer_load_ushort v211, v209, %s, 0 offen', sr(S_X, 4))
        a.e('buffer_load_dword v212, v215, %s, 0 offen sc1', WSR)
        for q in range(4):
            a.e('s_mov_b32 s69, %d', WS_YP + q * 16384)
            a.e('buffer_load_dwordx4 %s, v13, %s, s69 offen sc1' % (vr(YB + 4 * q, 4), WSR))
    with a.cold():
        a.e('P2_yl:')
        a.e('s_cmp_gt_u32 s70, 7')
        a.e('s_cbranch_scc1 P2_nyl')
        y_loads()
        a.e('s_mov_b32 s47, 1')
        a.e('s_branch P2_nyl')
    a.e('P2_nyl:')
    a.e('s_cmp_gt_u32 s70, 4')
    a.e('s_cbranch_scc1 D_t58')
    a.e('s_cmp_gt_u32 s70, 2')
    a.e('s_cbranch_scc1 D_t34')
    a.e('s_cmp_eq_u32 s70, 2')
    a.e('s_cbranch_scc1 D_e2')

    LA = E('LA', 2)

    def entry(n, last=False):
        a.e('D_e%d:', n)
        L = []
        for k in range(min(LA, n)):
            L += issue(n - 1 - k)
        if n <= LA:
            L += poll()
        for x in L + wo_reads(n - 1, 0):
            a.e(x)
        if not last:
            a.e('s_branch D_p%d', n - 1)
    entry(1); entry(2)
    a.e('D_t34:')
    a.e('s_cmp_eq_u32 s70, 4')
    a.e('s_cbranch_scc1 D_e4')
    entry(3); entry(4)
    a.e('D_t58:')
    a.e('s_cmp_gt_u32 s70, 6')
    a.e('s_cbranch_scc1 D_t78')
    a.e('s_cmp_eq_u32 s70, 6')
    a.e('s_cbranch_scc1 D_e6')
    entry(5); entry(6)
    a.e('D_t78:')
    a.e('s_cmp_eq_u32 s70, 8')
    a.e('s_cbranch_scc1 D_e8')
    entry(7); entry(8, True)
    for c in range(7, -1, -1):
        a.e('D_p%d:', c)
        if 'prc' in EXP:
            a.e('s_setprio %d', min(3, c // 2))
        if 'pra' in EXP:
            a.e('s_setprio %d', c & 1)
        G = issue(c - LA) if c >= LA else []
        Gs = [G[:7], G[7:8], G[8:9], G[9:10] + (poll() if c == LA else [])] if G else [[], [], [], []]
        for u in range(2):
            if u == 0:
                a.e('s_waitcnt vmcnt(%d) lgkmcnt(0)', 4 * (LA - 1) if c >= LA else 4 * c + 1)
                if 'noack' in EXP:
                    b = OB + 16 * c
                    a.e('D_k%d:', c)
                    if 'ck4' in EXP:
                        a.e('v_max3_u32 v217, v%d, v%d, v%d', b + 3, b + 7, b + 11)
                        a.e('v_max_u32 v217, v217, v%d', b + 15)
                    else:
                        a.e('v_max3_u32 v217, v%d, v%d, v%d', b, b + 1, b + 2)
                        a.e('v_max3_u32 v218, v%d, v%d, v%d', b + 3, b + 4, b + 5)
                        for r in range(6, 16, 4):
                            a.e('v_max3_u32 v217, v%d, v%d, v217', b + r, b + r + 1)
                            if r + 2 < 16:
                                a.e('v_max3_u32 v218, v%d, v%d, v218', b + r + 2, b + r + 3)
                        a.e('v_max_u32 v217, v217, v218')
                    a.e('v_cmp_eq_u32 vcc, -1, v217')
                    a.e('s_cbranch_vccnz D_f%d', c)
                    a.e('D_g%d:', c)
                    with a.cold():
                        a.e('D_f%d:', c)
                        a.e('s_add_u32 s65, s65, 1')
                        a.e('s_cmp_ge_u32 s65, 40000')
                        a.e('s_cbranch_scc1 D_g%d', c)
                        a.e('s_sleep 2')
                        for q in range(4):
                            a.e('buffer_load_dwordx4 %s, v%d, %s, s%d offen offset:%d sc1', vr(b + 4 * q, 4), VO2 if q & 1 else VO, WSR, 48 + c, (q >> 1) * 2048)
                        a.e('s_waitcnt vmcnt(0)')
                        a.e('s_branch D_k%d', c)
            else:
                a.e('s_waitcnt lgkmcnt(0)')
            F = wo_reads(c, 1) if u == 0 else (wo_reads(c - 1, 0) if c >= 1 else [])
            M = Mm(c, u)
            per = -(-len(F) // 6) if F else 0
            for k in range(8):
                a.e(M[k])
                for f in F[k * per:(k + 1) * per]:
                    a.e(f)
                if k in (3, 6):
                    for x in Gs[2 * u + k // 6]:
                        a.e(x)
    a.e('s_cmp_lg_u32 s66, 0')
    a.e('s_cbranch_scc1 D_wait')
    a.e('D_end:')
    stamp(a, 11)
    a.e('s_lshl_b32 s64, s3, 12')
    a.e('s_add_u32 s64, s64, %d', RB)
    a.e('v_lshl_add_u32 v8, v2, 4, s64')
    a.e('s_xor_b32 s65, s3, 4')
    a.e('s_lshl_b32 s65, s65, 12')
    a.e('s_add_u32 s65, s65, %d', RB)
    a.e('v_lshl_add_u32 v5, v2, 4, s65')
    a.e('v_lshlrev_b32 v9, 1, v%d', VCO)
    a.e('v_cmp_eq_u32 s[70:71], s67, v%d', VRO)
    a.e('s_cmp_eq_u32 s46, 0')
    a.e('s_cbranch_scc1 P2_y')
    with a.cold():
        a.e('P2_y:')
        a.e('s_mov_b32 s66, 0')
        a.e('s_cmp_lg_u32 s47, 0')
        a.e('s_cbranch_scc1 P2_ychk')
        a.e('P2_yre:')
        y_loads()
        a.e('P2_ychk:')
        a.e('s_waitcnt vmcnt(0)')
        a.e('v_max3_u32 v10, v%d, v%d, v%d', YB, YB + 1, YB + 2)
        for r in range(3, 15, 2):
            a.e('v_max3_u32 v10, v%d, v%d, v10', YB + r, YB + r + 1)
        a.e('v_max_u32 v10, v%d, v10', YB + 15)
        a.e('v_cmp_eq_u32 vcc, -1, v10')
        a.e('s_cbranch_vccz P2_yok')
        a.e('s_add_u32 s66, s66, 1')
        a.e('s_cmp_ge_u32 s66, 40000')
        a.e('s_cbranch_scc1 P2_yok')
        a.e('s_sleep 4')
        a.e('s_branch P2_yre')
        a.e('P2_yok:')
        for d in (8, 4):
            for r in range(0, d, 2):
                a.e('v_pk_add_f32 %s, %s, %s', vr(YB + r, 2), vr(YB + r, 2), vr(YB + d + r, 2))
        Y = YB
        for swp in ('v_permlane16_swap_b32', 'v_permlane32_swap_b32'):
            for q in range(4):
                a.e('v_mov_b32 v%d, v%d', Y + 4 + q, Y + q)
            a.e('s_nop 0')
            for q in range(4):
                a.e('%s v%d, v%d', swp, Y + q, Y + 4 + q)
            for q in range(4):
                a.e('v_add_f32 v%d, v%d, v%d', Y + q, Y + q, Y + 4 + q)
        a.e('s_lshl_b32 s64, s3, 8')
        a.e('v_lshl_add_u32 v208, v208, 4, s64')
        a.e('ds_write_b128 v208, %s offset:%d', vr(Y, 4), L_YS + 256)
        a.e('v_mov_b32 v208, 0')
        a.e('v_mov_b32 v214, 1')
        a.e('s_mov_b64 exec, 1')
        a.e('ds_add_rtn_u32 v210, v208, v214 offset:%d', L_FLG + 16)
        a.e('s_mov_b64 exec, -1')
        a.e('s_and_b32 s64, s75, 0xffff0000')
        a.e('s_xor_b32 s65, s64, 0x80000000')
        a.e('s_not_b32 s69, s64')
        a.e('s_and_b32 s69, s69, 0xffff0000')
        a.e('s_cmp_ge_u32 s64, 0x80000000')
        a.e('s_cselect_b32 s64, s65, s69')
        a.e('v_mov_b32 v213, s64')
        a.e('v_lshlrev_b32 v208, 2, v2')
        a.e('s_waitcnt lgkmcnt(0)')
        a.e('v_readfirstlane_b32 s64, v210')
        a.e('s_cmp_lg_u32 s64, 3')
        a.e('s_cbranch_scc1 P2_ny')
        for w in range(4):
            a.e('ds_read_b32 v%d, v208 offset:%d', Y + w, L_YS + 256 + 256 * w)
        sigmoid_bf16(a, [213])
        a.e('v_sub_f32 v214, 1.0, v212')
        rnd = lambda r: (a.e('v_cvt_pk_bf16_f32 v%d, v%d, v%d', r, r, r), a.e('v_lshlrev_b32 v%d, 16, v%d', r, r))
        rnd(214)
        a.e('v_lshlrev_b32 v211, 16, v211')
        a.e('s_waitcnt lgkmcnt(0)')
        a.e('v_add_f32 v%d, v%d, v%d', Y, Y, Y + 1)
        a.e('v_add_f32 v%d, v%d, v%d', Y + 2, Y + 2, Y + 3)
        a.e('v_add_f32 v210, v%d, v%d', Y, Y + 2)
        rnd(210)
        a.e('v_mul_f32 v210, v210, v213')
        rnd(210)
        a.e('v_add_f32 v210, v211, v210')
        rnd(210)
        a.e('v_mul_f32 v210, v210, v214')
        rnd(210)
        a.e('ds_write_b32 v208, v210 offset:%d', L_YS)
        a.e('s_waitcnt lgkmcnt(0)')
        a.e('s_branch P2_ny')
    a.e('P2_ny:')
    a.e('s_barrier')
    stamp(a, 3, lvl=3)
    for nb in range(4):
        a.e('ds_write_b128 v8, %s offset:%d', vr(32 + 4 * nb, 4), nb * 1024)
    a.e('s_cmp_lg_u64 s[70:71], 0')
    a.e('s_cbranch_scc1 P2_fix')
    a.e('P2_nr:')
    with a.cold():
        a.e('P2_fix:')
        a.e('s_mov_b64 exec, s[70:71]')
        for q in range(4):
            a.e('ds_read_b128 %s, v9 offset:%d', vr(T2 + 4 * q, 4), L_YS + (q >> 1) * 128 + (q & 1) * 16)
        a.e('s_mov_b64 exec, -1')
        a.e('s_branch P2_nr')
    a.e('s_waitcnt lgkmcnt(0)')
    stamp(a, 4, lvl=3)
    a.e('s_barrier')
    stamp(a, 6, lvl=3)
    AB = 64
    for nb in range(4):
        a.e('ds_read_b128 %s, v5 offset:%d', vr(AB + 4 * nb, 4), nb * 1024)
    Gr = XO + 8
    PKOP = 'nopk' not in EXP
    for half in range(2):
        A = 16 + 8 * half
        T = T2 + 8 * half
        a.e('s_waitcnt lgkmcnt(%d)', 2 if half == 0 else 0)
        for q in range(4):
            a0_ = A + 2 * q
            if PKOP:
                a.e('v_pk_add_f32 %s, %s, %s', vr(a0_, 2), vr(a0_, 2), vr(AB + 8 * half + 2 * q, 2))
            else:
                for k in range(2):
                    a.e('v_add_f32 v%d, v%d, v%d', a0_ + k, a0_ + k, AB + 8 * half + 2 * q + k)
        P = 48 + 4 * half
        for q in range(4):
            a.e('v_cvt_pk_bf16_f32 v%d, v%d, v%d', P + q, A + 2 * q, A + 2 * q + 1)
        a.e('s_nop 0')
        a.e('v_permlane16_swap_b32 v%d, v%d', P, P + 2)
        a.e('v_permlane16_swap_b32 v%d, v%d', P + 1, P + 3)
        O = 120 + 4 * half
        for q in range(4):
            a.e('v_lshlrev_b32 v%d, 16, v%d', A + 2 * q, P + q)
            a.e('v_and_b32 v%d, 0xffff0000, v%d', A + 2 * q + 1, P + q)
        for q in range(4):
            a0_ = A + 2 * q
            if PKOP:
                a.e('v_pk_mul_f32 %s, %s, %s op_sel_hi:[1,0]', vr(a0_, 2), vr(a0_, 2), vr(Gr, 2))
            else:
                for k in range(2):
                    a.e('v_mul_f32 v%d, v%d, v%d', a0_ + k, a0_ + k, Gr)
        for q in range(4):
            a.e('v_cvt_pk_bf16_f32 v%d, v%d, v%d', P + q, A + 2 * q, A + 2 * q + 1)
        for q in range(4):
            a.e('v_lshlrev_b32 v%d, 16, v%d', A + 2 * q, P + q)
            a.e('v_and_b32 v%d, 0xffff0000, v%d', A + 2 * q + 1, P + q)
        for q in range(4):
            a0_ = A + 2 * q
            if PKOP:
                a.e('v_pk_add_f32 %s, %s, %s', vr(a0_, 2), vr(a0_, 2), vr(T + 2 * q, 2))
            else:
                for k in range(2):
                    a.e('v_add_f32 v%d, v%d, v%d', a0_ + k, a0_ + k, T + 2 * q + k)
        for q in range(4):
            a.e('v_cvt_pk_bf16_f32 v%d, v%d, v%d', O + q, A + 2 * q, A + 2 * q + 1)
        if 'seg64' in EXP:
            a.e('buffer_store_dwordx4 %s, v%d, %s, 0 offen offset:%d ' + os.environ.get('OUTF', 'nt'), vr(O, 4), VXO, sr(S_OUT, 4), 64 * half)
        elif half == 0:
            a.e('v_and_b32 v6, 1, v2')
            a.e('v_mul_u32_u24 v6, %d, v6', 2048 - 64)
            a.e('v_sub_u32 v%d, v%d, v6', VXO, VXO)
            a.e('s_mov_b32 vcc_lo, 0x55555555')
            a.e('s_mov_b32 vcc_hi, 0x55555555')
    if 'seg64' not in EXP:
        a.e('s_nop 1')
        for q in range(4):
            a.e('v_cndmask_b32_dpp v%d, v%d, v%d, vcc quad_perm:[1,0,3,2] row_mask:0xf bank_mask:0xf', 56 + q, 124 + q, 120 + q)
        a.e('buffer_store_dwordx4 v[56:59], v%d, %s, 0 offen ' + os.environ.get('OUTF', 'nt'), VXO, sr(S_OUT, 4))
        a.e('s_not_b64 vcc, vcc')
        for q in range(4):
            a.e('v_cndmask_b32_dpp v%d, v%d, v%d, vcc quad_perm:[1,0,3,2] row_mask:0xf bank_mask:0xf', 60 + q, 120 + q, 124 + q)
        a.e('buffer_store_dwordx4 v[60:63], v%d, %s, 0 offen offset:2048 ' + os.environ.get('OUTF', 'nt'), VXO, sr(S_OUT, 4))
    stamp(a, 7, lvl=3)
    if STAMPS:
        a.e('s_waitcnt vmcnt(0)')
    stamp(a, 12, True); stamp(a, 2, False)
    stamp_flush(a)
    a.e('K_end:')
    a.e('s_endpgm')
    a.flush_cold()


def main():
    hdr = open(os.path.join(os.path.dirname(os.path.abspath(__file__)), '..', NAME + '.s.ref')).read().split('; Override launch')[0]
    a = Asm()
    a.e('.amdgcn_target "amdgcn-amd-amdhsa--gfx950"')
    a.e('.text')
    gen(a)
    a.e('CODE_END:')
    out = hdr + '; @launch grid=(256,1,1) block=(512,1,1) lds=%d\n' % LDS_BYTES + a.text() + '.section .rodata,"a"\n' + kd(NAME + '_kernel', 256)
    path = sys.argv[1] if len(sys.argv) > 1 else os.path.join(os.path.dirname(os.path.abspath(__file__)), '..', NAME + '.s')
    open(path, 'w').write(out)


if __name__ == '__main__':
    main()
```
